```python
import torch

def _softmax(x, axis=-1):
    return torch.softmax(x, dim=axis)

def _gelu(x):
    return torch.nn.functional.gelu(x, approximate='tanh')

def _silu(x):
    return torch.nn.functional.silu(x)

def _sigmoid(x):
    return torch.sigmoid(x)

def _layernorm(x, axis=-1, eps=1e-05):
    m = x.mean(dim=axis, keepdim=True)
    v = x.var(dim=axis, keepdim=True, unbiased=False)
    return (x - m) / torch.sqrt(v + eps)

def _scatter_add(tgt, idx, src, axis=0):
    return tgt.clone().index_add_(axis, idx, src)

def _segment_sum(src, seg, n):
    out = torch.zeros((n,) + src.shape[1:], dtype=src.dtype)
    return out.index_add_(0, seg, src)

def _pad(x, pw):
    flat = tuple((v for pair in reversed(pw) for v in pair))
    return torch.nn.functional.pad(x, flat)
kernel_name = 'adaLN_cond__ssm_conv_h3__swiglu_ffn__prompt'

def setup_inputs():

    _w = lambda a: (lambda t: t.to(torch.bfloat16) if t.is_floating_point() else t)(torch.as_tensor(a))

    def _A_setup():
        B, S, D = (1, 2048, 512)
        ks = 4
        return {'q': _w((lambda *s: torch.randn(*s, dtype=torch.bfloat16) * 0.05)(B, S, D)), 'k': _w((lambda *s: torch.randn(*s, dtype=torch.bfloat16) * 0.8)(B, S, D)), 'v': _w((lambda *s: torch.randn(*s, dtype=torch.bfloat16) * 0.8)(B, S, D)), 'shift_k': _w((lambda *s: torch.randn(*s, dtype=torch.bfloat16) * 0.8)(D, ks) * 0.5), 'ssm_k': _w((lambda *s: torch.randn(*s, dtype=torch.bfloat16) * 0.8)(D, S) * (1.0 / S ** 0.5)), 'ssm_D': _w((lambda *s: torch.randn(*s, dtype=torch.bfloat16) * 0.8)(D))}
    _A_in = _A_setup()

    def _B_setup():
        B, S, D, F = (1, 2048, 512, 1792)
        return {'x': _w((lambda *s: torch.randn(*s, dtype=torch.bfloat16) * 0.05)(B, S, D)), 'w_gate': _w((lambda *s: torch.randn(*s, dtype=torch.bfloat16) * 0.05)(D, F)), 'w_up': _w((lambda *s: torch.randn(*s, dtype=torch.bfloat16) * 0.05)(D, F)), 'w_down': _w((lambda *s: torch.randn(*s, dtype=torch.bfloat16) * 0.05)(F, D))}
    _B_in = _B_setup()
    return {'A_q': _A_in['q'], 'A_k': _A_in['k'], 'A_v': _A_in['v'], 'A_shift_k': _A_in['shift_k'], 'A_ssm_k': _A_in['ssm_k'], 'A_ssm_D': _A_in['ssm_D'], 'B_x': _B_in['x'], 'B_w_gate': _B_in['w_gate'], 'B_w_up': _B_in['w_up'], 'B_w_down': _B_in['w_down'], 'c': _w((lambda *s: torch.randn(*s, dtype=torch.bfloat16) * 0.1)(1, 512) * 8.0), 'w_mod': _w((lambda *s: torch.randn(*s, dtype=torch.bfloat16) * 0.1)(512, 6 * 512) * 512 ** (-0.5) * 8.0)}

def reference(A_q, A_k, A_v, A_shift_k, A_ssm_k, A_ssm_D, B_x, B_w_gate, B_w_up, B_w_down, c, w_mod):

    def _A_ref(q, k, v, shift_k, ssm_k, ssm_D):
        B, S, D = q.shape
        ks = shift_k.shape[-1]
        k_pad = _pad(k, ((0, 0), (ks - 1, 0), (0, 0)))
        k_shift = torch.zeros_like(k)
        for t in range(ks):
            k_shift = k_shift + k_pad[:, t:t + S, :] * shift_k[:, ks - 1 - t][None, None, :]
        kv = k_shift * v
        L = 2 * S
        kv_pad = _pad(kv, ((0, 0), (0, S), (0, 0)))
        kf_pad = _pad(ssm_k, ((0, 0), (0, S)))
        kv_f = (lambda x, axes=(-2, -1): torch.fft.rfft2(x.float(), dim=axes))(kv_pad[:, None, :, :], axes=(1, 2))
        kf_f = (lambda x, axes=(-2, -1): torch.fft.rfft2(x.float(), dim=axes))(kf_pad[:, None, :], axes=(1, 2))
        kf_f = (lambda x, *d: x.permute(*d))(kf_f, 1, 2, 0)
        y_f = kv_f * kf_f[None, :, :, :]
        y = (lambda x, s, axes=(-2, -1): torch.fft.irfft2(x, s=s, dim=axes).to(torch.bfloat16))(y_f, (1, L), axes=(1, 2))[:, 0, :S, :]
        y = y + kv * ssm_D[None, None, :]
        return q * y

    def _B_ref(x, w_gate, w_up, w_down):
        g = _silu(x @ w_gate)
        u = x @ w_up
        return g * u @ w_down
    x = A_q
    mod = (_silu(c) @ w_mod).reshape(c.shape[0], 6, 1, -1)
    sa, ca, ga, sb, cb, gb = (mod[:, 0].clone(), mod[:, 1].clone(), mod[:, 2].clone(), mod[:, 3].clone(), mod[:, 4].clone(), mod[:, 5].clone())
    h = _layernorm(x, axis=-1) * (1 + ca) + sa
    x = x + ga * _A_ref(h, A_k, A_v, A_shift_k, A_ssm_k, A_ssm_D)
    h = _layernorm(x, axis=-1) * (1 + cb) + sb
    x = x + gb * _B_ref(h, B_w_gate, B_w_up, B_w_down)
    return x
```

```python
KA = dict(q=0,k=8,v=16,shift=24,ssm=32,D=40,bx=48,wg=56,wu=64,wd=72,c=80,wmod=88,out=96,dbg=104,ws=112)

WS_KVR = 0x000000
WS_YL  = 0x200000
WS_X1  = 0x400000
WS_H2  = 0x600000
WS_ACT = 0x800000
WS_MOD = 0x1000000
SZ2M = 0x200000
SZ_ACT = 64*112*1024

class Asm:
    def __init__(self):
        self.l = []
    def __call__(self, s=""):
        for line in s.split("\n"):
            self.l.append(line)
    def text(self):
        return "\n".join(self.l) + "\n"

def vr(a, n=1):
    return f"v{a}" if n == 1 else f"v[{a}:{a+n-1}]"
def ar(a, n=1):
    return f"a{a}" if n == 1 else f"a[{a}:{a+n-1}]"
def sr(a, n=1):
    return f"s{a}" if n == 1 else f"s[{a}:{a+n-1}]"

def srd(A, d, p, off, size):
    if off:
        A(f"  s_add_u32 s{d}, s{p}, {hex(off)}")
        A(f"  s_addc_u32 s{d+1}, s{p+1}, 0")
    else:
        A(f"  s_mov_b32 s{d}, s{p}")
        A(f"  s_mov_b32 s{d+1}, s{p+1}")
    A(f"  s_mov_b32 s{d+2}, {hex(size)}")
    A(f"  s_mov_b32 s{d+3}, 0x20000")

def kernel_header(A, name):
    A(f".text")
    A(f".globl {name}")
    A(f".p2align 8")
    A(f".type {name},@function")
    A(f"{name}:")

def kernel_desc(A, name, nvgpr, accum, nsgpr=102):
    A('.section .rodata,"a"')
    A(".p2align 6")
    A(f".amdhsa_kernel {name}")
    A(f"  .amdhsa_next_free_vgpr {nvgpr}")
    A(f"  .amdhsa_next_free_sgpr {nsgpr}")
    A(f"  .amdhsa_accum_offset {accum}")
    A("  .amdhsa_group_segment_fixed_size 0")
    A("  .amdhsa_kernarg_size 120")
    A("  .amdhsa_user_sgpr_count 2")
    A("  .amdhsa_user_sgpr_kernarg_segment_ptr 1")
    A("  .amdhsa_system_sgpr_workgroup_id_x 1")
    A("  .amdhsa_float_denorm_mode_32 3")
    A(".end_amdhsa_kernel")
```

```python
from common import *

def gen_k1(A, name="prep_kernel"):
    RED = 8192
    LDS = 8192 + 256
    kernel_header(A, name)
    sK, sV, sSH, sKV, sC, sWM, sMOD = 8, 12, 16, 20, 24, 28, 32
    stb, scb, sw, scol = 40, 41, 42, 43
    A("  s_cmp_ge_u32 s2, 256")
    A(f"  s_cbranch_scc1 {name}_end")
    A(f"  s_load_dwordx4 s[44:47], s[0:1], {KA['k']}")
    A(f"  s_load_dwordx2 s[48:49], s[0:1], {KA['shift']}")
    A(f"  s_load_dwordx4 s[52:55], s[0:1], {KA['c']}")
    A(f"  s_load_dwordx2 s[50:51], s[0:1], {KA['ws']}")
    vb, vt0, vt1, vt2, vW, vR0, vR1, vG, vSo, vWm, vCo = 1,2,3,4,5,6,7,8,9,10,11
    vKo = 12
    vK = 16
    vV = 36
    vS = 44
    vC = 60
    vM = 64
    vKf = 80
    vSf = 120
    vO = 152
    vP = 168
    A("  s_lshr_b32 s40, s2, 3")
    A("  s_and_b32 s41, s2, 7")
    A(f"  v_and_b32 v{vt0}, 7, v0")
    A(f"  v_lshrrev_b32 v{vt1}, 3, v0")
    A(f"  v_lshrrev_b32 v{vt2}, 6, v0")
    A("  s_nop 0")
    A(f"  v_readfirstlane_b32 s{sw}, v{vt2}")
    A(f"  s_lshl_b32 s56, s{stb}, 16")
    A(f"  s_lshl_b32 s57, s{scb}, 7")
    A(f"  s_add_u32 s56, s56, s57")
    A(f"  v_lshlrev_b32 v{vb}, 11, v{vt1}")
    A(f"  v_lshl_add_u32 v{vb}, v{vt0}, 4, v{vb}")
    A(f"  v_add_u32 v{vb}, s56, v{vb}")
    for i in range(3):
        A(f"  v_add_u32 v{vKo+i}, {hex((-(3-i)*1024) & 0xffffffff)}, v{vb}")
    A(f"  s_lshl_b32 s57, s{scb}, 9")
    A(f"  v_lshlrev_b32 v{vSo}, 6, v{vt0}")
    A(f"  v_add_u32 v{vSo}, s57, v{vSo}")
    A(f"  v_sub_u32 v{vt2}, 31, v{vt1}")
    A(f"  v_lshrrev_b32 v{vW}, 2, v{vt2}")
    A(f"  v_xor_b32 v{vW}, v{vW}, v{vt0}")
    A(f"  v_lshlrev_b32 v{vW}, 4, v{vW}")
    A(f"  v_and_b32 v{vt2}, 3, v{vt2}")
    A(f"  v_lshl_add_u32 v{vW}, v{vt2}, 2, v{vW}")
    A(f"  v_lshl_add_u32 v{vW}, v{vt0}, 10, v{vW}")
    A(f"  v_xor_b32 v{vt2}, s{sw}, v{vt0}")
    A(f"  v_lshlrev_b32 v{vt2}, 4, v{vt2}")
    A(f"  v_lshl_add_u32 v{vR0}, v{vt1}, 7, v{vt2}")
    A(f"  v_xor_b32 v{vt2}, 64, v{vt2}")
    A(f"  v_lshl_add_u32 v{vR1}, v{vt1}, 7, v{vt2}")
    A(f"  s_lshl_b32 s56, s{scb}, 18")
    A(f"  s_lshl_b32 s57, s{stb}, 7")
    A(f"  s_sub_u32 s56, s56, s57")
    A(f"  s_add_u32 s56, s56, 3968")
    A(f"  v_lshlrev_b32 v{vG}, 12, v{vt1}")
    A(f"  v_lshl_add_u32 v{vG}, v{vt0}, 4, v{vG}")
    A(f"  v_add_u32 v{vG}, s56, v{vG}")
    A(f"  s_mul_i32 s{scol}, s{scb}, 384")
    A(f"  s_lshl_b32 s57, s{stb}, 4")
    A(f"  s_add_u32 s{scol}, s{scol}, s57")
    A(f"  s_movk_i32 s57, 12288")
    A(f"  v_mul_lo_u32 v{vWm}, v0, s57")
    A(f"  v_lshlrev_b32 v{vCo}, 2, v0")
    A("  s_waitcnt lgkmcnt(0)")
    srd(A, sK, 44, 0, SZ2M)
    srd(A, sV, 46, 0, SZ2M)
    srd(A, sSH, 48, 0, 512*4*2)
    srd(A, sKV, 50, WS_KVR, SZ2M)
    srd(A, sC, 52, 0, 1024)
    srd(A, sWM, 54, 0, 512*3072*2)
    srd(A, sMOD, 50, WS_MOD, 3072*4)
    for i in range(3):
        A(f"  buffer_load_dwordx4 {vr(vK+4*i,4)}, v{vKo+i}, {sr(sK,4)}, 0 offen")
    for i in range(2):
        A(f"  buffer_load_dwordx4 {vr(vK+12+4*i,4)}, v{vb}, {sr(sK,4)}, 0 offen offset:{1024*i}")
    for i in range(2):
        A(f"  buffer_load_dwordx4 {vr(vV+4*i,4)}, v{vb}, {sr(sV,4)}, 0 offen offset:{1024*i}")
    for i in range(4):
        A(f"  buffer_load_dwordx4 {vr(vS+4*i,4)}, v{vSo}, {sr(sSH,4)}, 0 offen offset:{16*i}")
    A(f"  s_cmp_ge_u32 s{stb}, 24")
    A(f"  s_cbranch_scc1 {name}_nomodld")
    A(f"  s_lshl_b32 s56, s{scol}, 1")
    A(f"  s_add_u32 s57, s56, 6144")
    A(f"  buffer_load_dword v{vC}, v{vCo}, {sr(sC,4)}, 0 offen")
    for rr in range(2):
        for hh in range(2):
            A(f"  buffer_load_dwordx4 {vr(vM+8*rr+4*hh,4)}, v{vWm}, {sr(sWM,4)}, s{56+rr} offen offset:{16*hh}")
    A(f"  s_waitcnt vmcnt(5)")
    A(f"  s_branch {name}_go")
    A(f"{name}_nomodld:")
    A(f"  s_waitcnt vmcnt(0)")
    A(f"{name}_go:")
    for c in range(8):
        for hh in range(2):
            src = vS + 2*c + hh
            A(f"  v_lshlrev_b32 v{vSf+4*c+2*hh}, 16, v{src}")
            A(f"  v_and_b32 v{vSf+4*c+2*hh+1}, 0xffff0000, v{src}")
    for r in range(5):
        for i in range(4):
            A(f"  v_lshlrev_b32 v{vKf+8*r+2*i}, 16, v{vK+4*r+i}")
            A(f"  v_and_b32 v{vKf+8*r+2*i+1}, 0xffff0000, v{vK+4*r+i}")
    for tk in range(2):
        for c in range(8):
            A(f"  v_mul_f32 v{vO+8*tk+c}, v{vKf+8*(3+tk)+c}, v{vSf+4*c}")
        for j in range(1,4):
            for c in range(8):
                A(f"  v_fma_f32 v{vO+8*tk+c}, v{vKf+8*(3+tk-j)+c}, v{vSf+4*c+j}, v{vO+8*tk+c}")
    for tk in range(2):
        for i in range(4):
            A(f"  v_lshlrev_b32 v{vKf+8*tk+2*i}, 16, v{vV+4*tk+i}")
            A(f"  v_and_b32 v{vKf+8*tk+2*i+1}, 0xffff0000, v{vV+4*tk+i}")
    for tk in range(2):
        for c in range(8):
            A(f"  v_mul_f32 v{vO+8*tk+c}, v{vO+8*tk+c}, v{vKf+8*tk+c}")
    for c in range(8):
        A(f"  v_cvt_pk_bf16_f32 v{vP+c}, v{vO+8+c}, v{vO+c}")
    for c in range(8):
        A(f"  ds_write_b32 v{vW}, v{vP+c} offset:{128*c}")
    A("  s_waitcnt lgkmcnt(0)")
    A("  s_barrier")
    A(f"  ds_read_b128 {vr(vO,4)}, v{vR0}")
    A(f"  ds_read_b128 {vr(vO+4,4)}, v{vR1} offset:4096")
    A(f"  s_mov_b32 s56, {32*4096}")
    A("  s_waitcnt lgkmcnt(1)")
    A(f"  buffer_store_dwordx4 {vr(vO,4)}, v{vG}, {sr(sKV,4)}, 0 offen")
    A("  s_waitcnt lgkmcnt(0)")
    A(f"  buffer_store_dwordx4 {vr(vO+4,4)}, v{vG}, {sr(sKV,4)}, s56 offen")
    A(f"  s_cmp_ge_u32 s{stb}, 24")
    A(f"  s_cbranch_scc1 {name}_end")
    A("  s_waitcnt vmcnt(2)")
    c0, c1, e0, e1 = vKf, vKf+1, vKf+2, vKf+3
    A(f"  v_lshlrev_b32 v{c0}, 16, v{vC}")
    A(f"  v_and_b32 v{c1}, 0xffff0000, v{vC}")
    A("  s_mov_b32 s56, 0xbfb8aa3b")
    A(f"  v_mul_f32 v{e0}, s56, v{c0}")
    A(f"  v_mul_f32 v{e1}, s56, v{c1}")
    A(f"  v_exp_f32 v{e0}, v{e0}")
    A(f"  v_exp_f32 v{e1}, v{e1}")
    A("  s_nop 0")
    A(f"  v_add_f32 v{e0}, 1.0, v{e0}")
    A(f"  v_add_f32 v{e1}, 1.0, v{e1}")
    A(f"  v_rcp_f32 v{e0}, v{e0}")
    A(f"  v_rcp_f32 v{e1}, v{e1}")
    A("  s_nop 0")
    A(f"  v_mul_f32 v{c0}, v{c0}, v{e0}")
    A(f"  v_mul_f32 v{c1}, v{c1}, v{e1}")
    A(f"  v_cvt_pk_bf16_f32 v{e0}, v{c0}, v{c1}")
    A(f"  v_lshlrev_b32 v{c0}, 16, v{e0}")
    A(f"  v_and_b32 v{c1}, 0xffff0000, v{e0}")
    P = vSf
    U = vSf+16
    for i in range(8):
        A(f"  v_lshlrev_b32 v{U+2*i}, 16, v{vM+i}")
        A(f"  v_and_b32 v{U+2*i+1}, 0xffff0000, v{vM+i}")
    for n in range(16):
        A(f"  v_mul_f32 v{P+n}, v{U+n}, v{c0}")
    for i in range(8):
        A(f"  v_lshlrev_b32 v{U+2*i}, 16, v{vM+8+i}")
        A(f"  v_and_b32 v{U+2*i+1}, 0xffff0000, v{vM+8+i}")
    for n in range(16):
        A(f"  v_fma_f32 v{P+n}, v{U+n}, v{c1}, v{P+n}")
    A("  s_nop 1")
    for i in range(8):
        A(f"  v_permlane32_swap_b32 v{P+i}, v{P+i+8}")
    A("  s_nop 1")
    for i in range(8):
        A(f"  v_add_f32 v{P+i}, v{P+i}, v{P+i+8}")
    A("  s_nop 1")
    for i in range(4):
        A(f"  v_permlane16_swap_b32 v{P+i}, v{P+i+4}")
    A("  s_nop 1")
    for i in range(4):
        A(f"  v_add_f32 v{P+i}, v{P+i}, v{P+i+4}")
    A("  s_nop 1")
    for ror in (8,4,2,1):
        for i in range(4):
            A(f"  v_add_f32_dpp v{P+i}, v{P+i}, v{P+i} row_ror:{ror} row_mask:0xf bank_mask:0xf")
    A(f"  v_and_b32 v{vt0}, 63, v0")
    A(f"  v_and_b32 v{vt1}, 15, v{vt0}")
    A(f"  v_lshrrev_b32 v{vt0}, 4, v{vt0}")
    A(f"  v_lshlrev_b32 v{vt0}, 4, v{vt0}")
    A(f"  s_lshl_b32 s56, s{sw}, 6")
    A(f"  s_add_u32 s56, s56, {RED}")
    A(f"  v_add_u32 v{vt0}, s56, v{vt0}")
    A(f"  v_cmp_eq_u32 vcc, 0, v{vt1}")
    A(f"  s_and_saveexec_b64 s[58:59], vcc")
    A(f"  ds_write_b128 v{vt0}, {vr(P,4)}")
    A(f"  s_mov_b64 exec, s[58:59]")
    A("  s_waitcnt lgkmcnt(0)")
    A("  s_barrier")
    A(f"  v_lshlrev_b32 v{vt0}, 2, v0")
    A(f"  v_add_u32 v{vt1}, {RED}, v{vt0}")
    A(f"  v_cmp_gt_u32 vcc, 16, v0")
    A(f"  s_and_saveexec_b64 s[58:59], vcc")
    A(f"  s_cbranch_execz {name}_end")
    for i in range(4):
        A(f"  ds_read_b32 v{U+i}, v{vt1} offset:{64*i}")
    A("  s_waitcnt lgkmcnt(0)")
    A(f"  v_add_f32 v{U}, v{U}, v{U+1}")
    A(f"  v_add_f32 v{U+2}, v{U+2}, v{U+3}")
    A(f"  v_add_f32 v{U}, v{U}, v{U+2}")
    A(f"  v_cvt_pk_bf16_f32 v{U}, v{U}, v{U}")
    A(f"  v_lshlrev_b32 v{U}, 16, v{U}")
    A(f"  s_lshr_b32 s56, s{scol}, 9")
    A(f"  s_cmp_eq_u32 s56, 1")
    A(f"  s_cselect_b32 s57, 1, 0")
    A(f"  s_cmp_eq_u32 s56, 4")
    A(f"  s_cselect_b32 s57, 1, s57")
    A(f"  s_cmp_eq_u32 s57, 0")
    A(f"  s_cbranch_scc1 {name}_noone")
    A(f"  v_add_f32 v{U}, 1.0, v{U}")
    A(f"  v_cvt_pk_bf16_f32 v{U}, v{U}, v{U}")
    A(f"  v_lshlrev_b32 v{U}, 16, v{U}")
    A(f"{name}_noone:")
    A(f"  s_lshl_b32 s56, s{scol}, 2")
    A(f"  buffer_store_dword v{U}, v{vt0}, {sr(sMOD,4)}, s56 offen")
    A(f"{name}_end:")
    A("  s_endpgm")
    return dict(name=name, grid=256, block=256, lds=LDS, nvgpr=176, accum=176)
```

```python
from common import *

def gen_k2(A, name="conv_kernel"):
    XR = [0, 4608]
    HC = 9216
    HCH = 4*4160
    EX = 43008
    LDS = EX + 32768
    kernel_header(A, name)
    sKV, sH, sY = 8, 12, 16
    sw, sc, sch, sqh, sD = 30, 31, 32, 33, 34
    A("  s_cmp_ge_u32 s2, 256")
    A(f"  s_cbranch_scc1 {name}_end")
    A(f"  s_load_dwordx4 s[4:7], s[0:1], {KA['ssm']}")
    A(f"  s_load_dwordx2 s[20:21], s[0:1], {KA['ws']}")
    vl, vt0, vt1, vt2, vt3 = 1, 2, 3, 4, 5
    vT16, vZ, vH, vEXw, vEXr, vYo, vHCw = 6, 7, 8, 9, 10, 11, 12
    vHD = 16
    vZero = 20
    vL = 24
    vE = 48
    vAcc = 56
    vZf = 88
    vHf = 152
    A(f"  v_and_b32 v{vl}, 63, v0")
    A(f"  v_lshrrev_b32 v{vt0}, 6, v0")
    A(f"  v_lshlrev_b32 v{vT16}, 4, v0")
    A(f"  v_readfirstlane_b32 s{sw}, v{vt0}")
    A("  s_and_b32 s3, s2, 7")
    A("  s_lshl_b32 s3, s3, 5")
    A("  s_lshr_b32 s35, s2, 3")
    A(f"  s_add_u32 s{sc}, s3, s35")
    A(f"  s_lshr_b32 s{sch}, s{sw}, 1")
    A(f"  s_and_b32 s{sqh}, s{sw}, 1")
    A("  s_waitcnt lgkmcnt(0)")
    A(f"  s_lshl_b32 s35, s{sc}, 2")
    A(f"  s_load_dword s{sD}, s[6:7], s35")
    srd(A, sH, 4, 0, SZ2M)
    srd(A, sKV, 20, WS_KVR, SZ2M)
    srd(A, sY, 20, WS_YL, SZ2M)
    A(f"  s_lshl_b32 s36, s{sc}, 13")
    A(f"  s_add_u32 s37, s36, 4096")
    for ch in range(2):
        for k in range(3):
            A(f"  buffer_load_dwordx4 {vr(vL+12*ch+4*k,4)}, v{vT16}, {sr(sH,4)}, s{36+ch} offen offset:{4*k}")
    A(f"  v_lshlrev_b32 v{vt0}, 4, v{vl}")
    A(f"  s_lshl_b32 s38, s{sw}, 11")
    A(f"  s_add_u32 s38, s38, s36")
    A(f"  s_mul_i32 s39, s{sch}, 4608")
    A(f"  s_lshl_b32 s40, s{sqh}, 11")
    A(f"  s_add_u32 s39, s39, s40")
    A(f"  s_mov_b32 m0, s39")
    A(f"  s_add_u32 s40, s38, 1024")
    A(f"  buffer_load_dwordx4 v{vt0}, {sr(sKV,4)}, s38 offen lds")
    A(f"  s_add_u32 m0, s39, 1024")
    A("  s_nop 0")
    A(f"  buffer_load_dwordx4 v{vt0}, {sr(sKV,4)}, s40 offen lds")
    for i in range(4):
        A(f"  v_mov_b32 v{vZero+i}, 0")
    A(f"  v_lshrrev_b32 v{vt1}, 5, v{vl}")
    A(f"  v_mul_u32_u24 v{vt1}, 4608, v{vt1}")
    A(f"  v_and_b32 v{vt2}, 31, v{vl}")
    A(f"  v_lshl_add_u32 v{vt1}, v{vt2}, 4, v{vt1}")
    A(f"  ds_write_b128 v{vt1}, {vr(vZero,4)} offset:4096")
    for i in range(32):
        A(f"  v_mov_b32 v{vAcc+i}, 0")
    A(f"  v_and_b32 v{vt0}, 15, v{vl}")
    A(f"  v_lshrrev_b32 v{vt1}, 4, v{vl}")
    A(f"  v_lshlrev_b32 v{vt2}, 5, v{vt0}")
    A(f"  v_sub_u32 v{vt2}, 480, v{vt2}")
    A(f"  v_lshl_add_u32 v{vt2}, v{vt1}, 4, v{vt2}")
    A(f"  s_mul_i32 s39, s{sch}, 4608")
    A(f"  s_lshl_b32 s40, s{sqh}, 8")
    A(f"  s_add_u32 s39, s39, s40")
    A(f"  v_add_u32 v{vZ}, s39, v{vt2}")
    A(f"  v_add_u32 v{vt2}, 1, v{vt0}")
    A(f"  v_and_b32 v{vt3}, 3, v{vt2}")
    A(f"  v_sub_u32 v{vt2}, v{vt2}, v{vt3}")
    A(f"  v_lshl_add_u32 v{vt2}, v{vt1}, 3, v{vt2}")
    A(f"  v_lshlrev_b32 v{vt2}, 1, v{vt2}")
    A(f"  v_mul_u32_u24 v{vt3}, 4160, v{vt3}")
    A(f"  v_add_u32 v{vt2}, v{vt2}, v{vt3}")
    A(f"  s_mul_i32 s39, s{sch}, {HCH}")
    A(f"  s_add_u32 s39, s39, s40")
    A(f"  s_add_u32 s39, s39, {HC}")
    A(f"  v_add_u32 v{vH}, s39, v{vt2}")
    A(f"  v_lshlrev_b32 v{vt2}, 4, v{vl}")
    A(f"  s_lshl_b32 s39, s{sw}, 13")
    A(f"  s_add_u32 s39, s39, {EX}")
    A(f"  v_add_u32 v{vEXw}, s39, v{vt2}")
    A(f"  s_lshl_b32 s39, s{sw}, 11")
    A(f"  s_add_u32 s39, s39, {EX}")
    A(f"  v_add_u32 v{vEXr}, s39, v{vt2}")
    A(f"  s_lshr_b32 s39, s{sc}, 2")
    A(f"  s_lshl_b32 s39, s39, 15")
    A(f"  s_and_b32 s40, s{sc}, 3")
    A(f"  s_lshl_b32 s40, s40, 2")
    A(f"  s_add_u32 s39, s39, s40")
    A(f"  s_lshl_b32 s40, s{sw}, 13")
    A(f"  s_add_u32 s39, s39, s40")
    A(f"  v_lshl_add_u32 v{vt2}, v{vt1}, 6, v{vt0}")
    A(f"  v_lshlrev_b32 v{vt2}, 4, v{vt2}")
    A(f"  v_add_u32 v{vYo}, s39, v{vt2}")
    A("  s_waitcnt lgkmcnt(0)")
    A(f"  s_lshr_b32 s39, s{sD}, 16")
    A(f"  s_and_b32 s40, s{sD}, 0xffff")
    A(f"  s_cmp_eq_u32 s{sch}, 0")
    A(f"  s_cselect_b32 s39, s40, s39")
    A(f"  s_lshl_b32 s40, s39, 16")
    A(f"  v_lshlrev_b32 v{vt2}, 3, v{vt1}")
    A(f"  v_add_u32 v{vt2}, v{vt2}, v{vt0}")
    A(f"  v_sub_u32 v{vt2}, 15, v{vt2}")
    A(f"  v_and_b32 v{vt3}, 1, v{vt2}")
    A(f"  v_cmp_eq_u32 vcc, 1, v{vt3}")
    A(f"  v_mov_b32 v{vt0}, s39")
    A(f"  v_mov_b32 v{vt1}, s40")
    A(f"  v_cndmask_b32 v{vt3}, v{vt0}, v{vt1}, vcc")
    A(f"  v_ashrrev_i32 v{vt2}, 1, v{vt2}")
    for i in range(4):
        A(f"  v_cmp_eq_u32 vcc, {i}, v{vt2}")
        A("  s_nop 1")
        A(f"  v_cndmask_b32 v{vHD+i}, 0, v{vt3}, vcc")
    A(f"  v_add_u32 v{vHCw}, {HC+32}, v{vT16}")
    for ch in range(2):
        La, Lb, Lc = vL+12*ch, vL+12*ch+4, vL+12*ch+8
        A(f"  s_waitcnt vmcnt({5 if ch==0 else 2})")
        for i in range(4):
            A(f"  v_alignbit_b32 v{vE+i}, v{Lb+i}, v{La+i}, 16")
        for i in range(4):
            A(f"  v_alignbit_b32 v{vE+4+i}, v{Lc+i}, v{Lb+i}, 16")
        base = ch*HCH
        A(f"  ds_write_b128 v{vHCw}, {vr(La,4)} offset:{base}")
        A(f"  ds_write_b128 v{vHCw}, {vr(Lb,4)} offset:{base+2*4160}")
        A(f"  ds_write_b128 v{vHCw}, {vr(vE,4)} offset:{base+4160}")
        A(f"  ds_write_b128 v{vHCw}, {vr(vE+4,4)} offset:{base+3*4160}")
    A(f"  v_cmp_eq_u32 vcc, 0, v0")
    A(f"  s_and_saveexec_b64 s[42:43], vcc")
    A(f"  s_cbranch_execz {name}_noneg")
    A(f"  v_mov_b32 v{vt0}, {HC}")
    for ch in range(2):
        La = vL+12*ch
        base = ch*HCH
        for phi in range(4):
            A(f"  ds_write_b128 v{vt0}, {vr(vZero,4)} offset:{base+phi*4160}")
        A(f"  ds_write_b128 v{vt0}, {vr(vZero,4)} offset:{base+16}")
        T = vZf + 16*ch
        for i in range(12):
            A(f"  v_mov_b32 v{T+i}, 0")
        A(f"  v_lshlrev_b32 v{T+3}, 16, v{La}")
        A(f"  v_mov_b32 v{T+7}, v{La}")
        A(f"  v_lshlrev_b32 v{T+10}, 16, v{La}")
        A(f"  v_alignbit_b32 v{T+11}, v{La+1}, v{La}, 16")
        A(f"  ds_write_b128 v{vt0}, {vr(T,4)} offset:{base+4160+16}")
        A(f"  ds_write_b128 v{vt0}, {vr(T+4,4)} offset:{base+2*4160+16}")
        A(f"  ds_write_b128 v{vt0}, {vr(T+8,4)} offset:{base+3*4160+16}")
    A(f"{name}_noneg:")
    A(f"  s_mov_b64 exec, s[42:43]")
    A("  s_waitcnt vmcnt(0) lgkmcnt(0)")
    A("  s_barrier")
    def reads(it):
        buf = it & 1
        L = []
        for G in range(8):
            L.append(f"  ds_read_b128 {vr(vZf+32*buf+4*G,4)}, v{vZ} offset:{64*it+512*(7-G)}")
        for m in range(8):
            for hh in range(2):
                L.append(f"  ds_read_b64 {vr(vHf+32*buf+4*m+2*hh,2)}, v{vH} offset:{64*it+512*m+8*hh}")
        return L
    for s in reads(0):
        A(s)
    for it in range(4):
        buf = it & 1
        A("  s_waitcnt lgkmcnt(0)")
        nxt = reads(it+1) if it < 3 else []
        if it == 0:
            A(f"  s_cmp_lg_u32 s{sqh}, 0")
            A(f"  s_cbranch_scc1 {name}_noD")
            for G in range(8):
                A(f"  v_mfma_f32_16x16x32_bf16 {vr(vAcc+4*G,4)}, {vr(vZf+4*G,4)}, {vr(vHD,4)}, {vr(vAcc+4*G,4)}")
            A(f"{name}_noD:")
        for m in range(8):
            for Gz in range(8-m):
                G = Gz+m
                A(f"  v_mfma_f32_16x16x32_bf16 {vr(vAcc+4*G,4)}, {vr(vZf+32*buf+4*Gz,4)}, {vr(vHf+32*buf+4*m,4)}, {vr(vAcc+4*G,4)}")
                if nxt:
                    A(nxt.pop(0))
    A("  s_nop 15")
    for G in range(8):
        A(f"  ds_write_b128 v{vEXw}, {vr(vAcc+4*G,4)} offset:{G*1024}")
    A("  s_waitcnt lgkmcnt(0)")
    A("  s_barrier")
    vR = vZf
    for s in range(4):
        for gg in range(2):
            A(f"  ds_read_b128 {vr(vR+8*s+4*gg,4)}, v{vEXr} offset:{s*8192+gg*1024}")
    A("  s_waitcnt lgkmcnt(0)")
    for i in range(8):
        A(f"  v_add_f32 v{vR+i}, v{vR+i}, v{vR+8+i}")
        A(f"  v_add_f32 v{vR+16+i}, v{vR+16+i}, v{vR+24+i}")
    for i in range(8):
        A(f"  v_cvt_pk_bf16_f32 v{vR+8+i}, v{vR+i}, v{vR+16+i}")
    A("  s_movk_i32 s39, 4096")
    for gg in range(2):
        for r in range(4):
            so = "s39" if gg else "0"
            A(f"  buffer_store_dword v{vR+8+4*gg+r}, v{vYo}, {sr(sY,4)}, {so} offen offset:{256*r}")
    A(f"{name}_end:")
    A("  s_endpgm")
    return dict(name=name, grid=256, block=256, lds=LDS, nvgpr=224, accum=224)
```

```python
from common import *

def wave_reduce(A, regs):
    pad = max(0, 3-len(regs))
    def step(ctrl):
        for r in regs:
            A(f"  v_add_f32_dpp v{r}, v{r}, v{r} {ctrl}")
        for _ in range(pad):
            A("  s_nop 0")
    A("  s_nop 1")
    step("row_ror:8 row_mask:0xf bank_mask:0xf")
    step("row_ror:4 row_mask:0xf bank_mask:0xf")
    step("row_ror:2 row_mask:0xf bank_mask:0xf")
    step("row_ror:1 row_mask:0xf bank_mask:0xf")
    step("row_bcast:15 row_mask:0xa bank_mask:0xf")
    step("row_bcast:31 row_mask:0xc bank_mask:0xf")

def gen_k3(A, name="norm_kernel"):
    kernel_header(A, name)
    sX, sY, sMOD, sX1, sH2 = 8, 12, 16, 20, 24
    sw = 30
    A("  s_cmp_ge_u32 s2, 256")
    A(f"  s_cbranch_scc1 {name}_end")
    A(f"  s_load_dwordx2 s[4:5], s[0:1], {KA['q']}")
    A(f"  s_load_dwordx2 s[6:7], s[0:1], {KA['ws']}")
    vl, vXo, vYo, vMo, vHo, vt0, vt1 = 1,2,3,4,5,6,7
    vX = 8
    vY = 16
    vM = 24
    vF = 64
    vG = 80
    vS = 96
    vP = 100
    vQ = 108
    A(f"  v_and_b32 v{vl}, 63, v0")
    A(f"  v_lshrrev_b32 v{vt0}, 6, v0")
    A("  s_nop 0")
    A(f"  v_readfirstlane_b32 s{sw}, v{vt0}")
    A(f"  s_lshl_b32 s3, s2, 3")
    A(f"  s_lshl_b32 s31, s{sw}, 1")
    A(f"  s_add_u32 s3, s3, s31")
    A(f"  s_lshl_b32 s31, s3, 10")
    A(f"  v_lshlrev_b32 v{vt0}, 4, v{vl}")
    A(f"  v_add_u32 v{vXo}, s31, v{vt0}")
    A(f"  s_lshl_b32 s31, s3, 4")
    A(f"  v_lshlrev_b32 v{vt1}, 15, v{vl}")
    A(f"  v_add_u32 v{vYo}, s31, v{vt1}")
    A(f"  v_lshlrev_b32 v{vMo}, 5, v{vl}")
    A(f"  s_lshr_b32 s31, s3, 5")
    A(f"  s_lshl_b32 s31, s31, 15")
    A(f"  s_and_b32 s32, s3, 31")
    A(f"  s_lshl_b32 s32, s32, 4")
    A(f"  s_add_u32 s31, s31, s32")
    A(f"  v_lshrrev_b32 v{vt0}, 1, v{vl}")
    A(f"  v_lshlrev_b32 v{vt0}, 10, v{vt0}")
    A(f"  v_and_b32 v{vt1}, 1, v{vl}")
    A(f"  v_lshl_add_u32 v{vt0}, v{vt1}, 9, v{vt0}")
    A(f"  v_add_u32 v{vHo}, s31, v{vt0}")
    A("  s_waitcnt lgkmcnt(0)")
    srd(A, sX, 4, 0, SZ2M)
    srd(A, sY, 6, WS_YL, SZ2M)
    srd(A, sMOD, 6, WS_MOD, 3072*4)
    srd(A, sX1, 6, WS_X1, SZ2M)
    srd(A, sH2, 6, WS_H2, SZ2M)
    for t in range(2):
        A(f"  buffer_load_dwordx4 {vr(vX+4*t,4)}, v{vXo}, {sr(sX,4)}, 0 offen offset:{1024*t}")
    for t in range(2):
        A(f"  buffer_load_dwordx4 {vr(vY+4*t,4)}, v{vYo}, {sr(sY,4)}, 0 offen offset:{16*t}")
    for c in range(5):
        A(f"  s_movk_i32 s31, {c*2048}")
        for hh in range(2):
            A(f"  buffer_load_dwordx4 {vr(vM+8*c+4*hh,4)}, v{vMo}, {sr(sMOD,4)}, s31 offen offset:{16*hh}")
    def unpack(dst, src):
        for i in range(4):
            A(f"  v_lshlrev_b32 v{dst+2*i}, 16, v{src+i}")
            A(f"  v_and_b32 v{dst+2*i+1}, 0xffff0000, v{src+i}")
    def stats():
        for t in range(2):
            F = vF+8*t
            A(f"  v_add_f32 v{vS+t}, v{F}, v{F+1}")
            A(f"  v_mul_f32 v{vS+2+t}, v{F}, v{F}")
        for i in range(1,8):
            for t in range(2):
                F = vF+8*t
                if i >= 2:
                    A(f"  v_add_f32 v{vS+t}, v{vS+t}, v{F+i}")
                A(f"  v_fma_f32 v{vS+2+t}, v{F+i}, v{F+i}, v{vS+2+t}")
        wave_reduce(A, [vS, vS+1, vS+2, vS+3])
        A("  s_nop 0")
        for i in range(4):
            A(f"  v_readlane_b32 s{40+i}, v{vS+i}, 63")
        A("  s_mov_b32 s44, 0x3b000000   ; 1/512")
        A("  s_mov_b32 s45, 0x3727c5ac   ; 1e-5")
        A("  s_nop 1")
        for t in range(2):
            A(f"  v_mov_b32 v{vS+t}, s{40+t}")
            A(f"  v_mov_b32 v{vS+2+t}, s{42+t}")
        for t in range(2):
            A(f"  v_mul_f32 v{vS+t}, s44, v{vS+t}")
            A(f"  v_mul_f32 v{vS+2+t}, s44, v{vS+2+t}")
        for t in range(2):
            A(f"  v_fma_f32 v{vS+2+t}, -v{vS+t}, v{vS+t}, v{vS+2+t}")
        for t in range(2):
            A(f"  v_max_f32 v{vS+2+t}, 0, v{vS+2+t}")
        for t in range(2):
            A(f"  v_add_f32 v{vS+2+t}, s45, v{vS+2+t}")
        for t in range(2):
            A(f"  v_rsq_f32 v{vS+2+t}, v{vS+2+t}")
        A("  s_nop 0")
        for t in range(2):
            A(f"  v_mul_f32 v{vS+t}, v{vS+t}, v{vS+2+t}")
    A("  s_waitcnt vmcnt(12)")
    for t in range(2):
        unpack(vF+8*t, vX+4*t)
    stats()
    A("  s_waitcnt vmcnt(0)")
    for t in range(2):
        unpack(vG+8*t, vY+4*t)
    vU = 116
    for t in range(2):
        for i in range(8):
            A(f"  v_fma_f32 v{vU+8*t+i}, v{vF+8*t+i}, v{vS+2+t}, -v{vS+t}")
    for t in range(2):
        for i in range(8):
            A(f"  v_fma_f32 v{vU+8*t+i}, v{vU+8*t+i}, v{vM+8+i}, v{vM+i}")
    for t in range(2):
        for i in range(8):
            A(f"  v_mul_f32 v{vU+8*t+i}, v{vU+8*t+i}, v{vG+8*t+i}")
    for t in range(2):
        for i in range(8):
            A(f"  v_fma_f32 v{vU+8*t+i}, v{vU+8*t+i}, v{vM+16+i}, v{vF+8*t+i}")
    for t in range(2):
        for i in range(4):
            A(f"  v_cvt_pk_bf16_f32 v{vP+4*t+i}, v{vU+8*t+2*i}, v{vU+8*t+2*i+1}")
    for t in range(2):
        A(f"  buffer_store_dwordx4 {vr(vP+4*t,4)}, v{vXo}, {sr(sX1,4)}, 0 offen offset:{1024*t}")
    for t in range(2):
        unpack(vF+8*t, vP+4*t)
    stats()
    for t in range(2):
        for i in range(8):
            A(f"  v_fma_f32 v{vU+8*t+i}, v{vF+8*t+i}, v{vS+2+t}, -v{vS+t}")
    for t in range(2):
        for i in range(8):
            A(f"  v_fma_f32 v{vU+8*t+i}, v{vU+8*t+i}, v{vM+32+i}, v{vM+24+i}")
    for t in range(2):
        for i in range(4):
            A(f"  v_cvt_pk_bf16_f32 v{vQ+4*t+i}, v{vU+8*t+2*i}, v{vU+8*t+2*i+1}")
    for t in range(2):
        A(f"  buffer_store_dwordx4 {vr(vQ+4*t,4)}, v{vHo}, {sr(sH2,4)}, 0 offen offset:{16*t}")
    A(f"{name}_end:")
    A("  s_endpgm")
    return dict(name=name, grid=256, block=256, lds=0, nvgpr=136, accum=136)
```

```python
from common import *

def gen_k4(A, name="gemm1_kernel"):
    LDS = 131072
    kernel_header(A, name)
    sW, sH, sACT = 8, 12, 16
    sw, sm, sWo, sM0, sf0, stb, sHo = 30, 31, 32, 33, 34, 35, 36
    A("  s_cmp_ge_u32 s2, 224")
    A(f"  s_cbranch_scc1 {name}_end")
    A(f"  s_load_dwordx4 s[4:7], s[0:1], {KA['wg']}")
    A(f"  s_load_dwordx2 s[20:21], s[0:1], {KA['ws']}")
    vl, vWoff, vH, vAct, vt0, vt1, vt2, vt3 = 1,2,3,4,5,6,7,8
    vA = 10
    vAf = 16
    vAcc = 48
    vT = 112
    A(f"  v_and_b32 v{vl}, 63, v0")
    A(f"  v_lshrrev_b32 v{vt0}, 6, v0")
    A("  s_nop 0")
    A(f"  v_readfirstlane_b32 s{sw}, v{vt0}")
    A("  s_and_b32 s3, s2, 7")
    A("  s_lshr_b32 s38, s2, 3")
    A("  s_mul_i32 s39, s38, 37")
    A("  s_lshr_b32 s39, s39, 8")
    A("  s_mul_i32 s40, s39, 7")
    A("  s_sub_u32 s40, s38, s40")
    A("  s_and_b32 s41, s3, 1")
    A("  s_lshl_b32 s41, s41, 2")
    A(f"  s_add_u32 s{stb}, s41, s39")
    A("  s_lshr_b32 s41, s3, 1")
    A("  s_mul_i32 s41, s41, 7")
    A("  s_add_u32 s41, s41, s40")
    A(f"  s_lshl_b32 s{sf0}, s41, 6")
    A(f"  s_and_b32 s{sm}, s{sw}, 1")
    A(f"  v_lshrrev_b32 v{vt0}, 3, v{vl}")
    A(f"  v_bfe_u32 v{vt1}, v{vl}, 4, 1")
    A(f"  s_lshl_b32 s38, s{sm}, 1")
    A(f"  v_or_b32 v{vt1}, s38, v{vt1}")
    A(f"  v_bfe_u32 v{vt2}, v{vl}, 1, 2")
    A(f"  v_xor_b32 v{vt1}, v{vt1}, v{vt2}")
    A(f"  v_lshlrev_b32 v{vt1}, 5, v{vt1}")
    A(f"  v_and_b32 v{vt2}, 1, v{vl}")
    A(f"  v_lshl_add_u32 v{vt1}, v{vt2}, 4, v{vt1}")
    A(f"  s_movk_i32 s38, 3584")
    A(f"  v_mad_u32_u24 v{vWoff}, v{vt0}, s38, v{vt1}")
    A(f"  v_bfe_u32 v{vt0}, v{vl}, 4, 1")
    A(f"  v_bfe_u32 v{vt1}, v{vl}, 2, 2")
    A(f"  v_lshrrev_b32 v{vt2}, 5, v{vl}")
    A(f"  v_lshl_add_u32 v{vt2}, v{vt2}, 3, v{vt1}")
    A(f"  v_lshlrev_b32 v{vt2}, 7, v{vt2}")
    A(f"  v_lshl_add_u32 v{vt2}, v{vt0}, 16, v{vt2}")
    A(f"  v_and_b32 v{vt3}, 1, v{vl}")
    A(f"  v_lshl_add_u32 v{vt2}, v{vt3}, 4, v{vt2}")
    A(f"  v_bfe_u32 v{vt3}, v{vl}, 1, 1")
    A(f"  v_lshl_add_u32 v{vt2}, v{vt3}, 3, v{vt2}")
    A(f"  v_lshrrev_b32 v{vt1}, 1, v{vt1}")
    A(f"  v_lshl_or_b32 v{vt1}, v{vt0}, 1, v{vt1}")
    for tau in range(4):
        A(f"  v_xor_b32 v{vt3}, {tau}, v{vt1}")
        A(f"  v_lshl_add_u32 v{vA+tau}, v{vt3}, 5, v{vt2}")
    A(f"  s_lshl_b32 s38, s{stb}, 3")
    A(f"  s_add_u32 s38, s38, s{sw}")
    A(f"  s_lshl_b32 s39, s38, 15")
    A(f"  v_lshlrev_b32 v{vt0}, 4, v{vl}")
    A(f"  v_add_u32 v{vH}, s39, v{vt0}")
    A(f"  s_mul_i32 s38, s38, 112")
    A(f"  s_lshr_b32 s39, s{sf0}, 4")
    A(f"  s_add_u32 s38, s38, s39")
    A(f"  s_lshl_b32 s38, s38, 10")
    A(f"  v_add_u32 v{vAct}, s38, v{vt0}")
    for i in range(64):
        A(f"  v_mov_b32 v{vAcc+i}, 0")
    A("  s_waitcnt lgkmcnt(0)")
    A(f"  s_cmp_eq_u32 s{sm}, 0")
    A(f"  s_cselect_b32 s{sW}, s4, s6")
    A(f"  s_cselect_b32 s{sW+1}, s5, s7")
    A(f"  s_mov_b32 s{sW+2}, {512*1792*2}")
    A(f"  s_mov_b32 s{sW+3}, 0x20000")
    srd(A, sH, 20, WS_H2, SZ2M)
    srd(A, sACT, 20, WS_ACT, SZ_ACT)
    A(f"  s_lshr_b32 s38, s{sw}, 1")
    A(f"  s_mul_i32 s{sWo}, s38, {16*3584}")
    A(f"  s_lshl_b32 s39, s{sf0}, 1")
    A(f"  s_add_u32 s{sWo}, s{sWo}, s39")
    A(f"  s_lshl_b32 s{sM0}, s38, 11")
    A(f"  s_lshl_b32 s39, s{sm}, 16")
    A(f"  s_add_u32 s{sM0}, s{sM0}, s39")
    A(f"  s_mov_b32 s{sHo}, 0")
    for st in range(8):
        for ii in range(2):
            A(f"  s_add_u32 m0, s{sM0}, {st*64*128 + ii*1024}")
            if st or ii:
                inc = 8*3584 if ii else (64-8)*3584
                A(f"  s_add_u32 s{sWo}, s{sWo}, {inc}")
            else:
                A("  s_nop 0")
            A(f"  buffer_load_dwordx4 v{vWoff}, {sr(sW,4)}, s{sWo} offen lds")
        for qq in range(4):
            q = 4*st+qq
            A(f"  buffer_load_dwordx4 {ar(4*q,4)}, v{vH}, {sr(sH,4)}, s{sHo} offen offset:{qq*1024}")
        if st < 7:
            A(f"  s_add_u32 s{sHo}, s{sHo}, 4096")
    def trread(q):
        buf = q & 1
        for tau in range(4):
            for rd in range(2):
                A(f"  ds_read_b64_tr_b16 {vr(vAf+buf*16+tau*4+rd*2,2)}, v{vA+tau} offset:{q*2048+rd*512}")
    A("  s_waitcnt vmcnt(42)")
    A("  s_barrier")
    trread(0)
    for q in range(32):
        if q+1 < 32:
            if (q+1) % 4 == 0:
                st = (q+1)//4
                A(f"  s_waitcnt vmcnt({48-6*(st+1)})")
                A("  s_barrier")
            trread(q+1)
            A("  s_waitcnt lgkmcnt(8)")
        else:
            A("  s_waitcnt lgkmcnt(0)")
        buf = q & 1
        for tau in range(4):
            A(f"  v_mfma_f32_32x32x16_bf16 {vr(vAcc+16*tau,16)}, {vr(vAf+buf*16+tau*4,4)}, {ar(4*q,4)}, {vr(vAcc+16*tau,16)}")
    A("  s_nop 15")
    A("  s_mov_b32 s38, 0xbfb8aa3b   ; -log2(e)")
    for tau in range(4):
        g = vAcc+16*tau
        u = g+8
        E = vAf if (tau & 1) == 0 else vAf+16
        for r in range(8):
            A(f"  v_mul_f32 v{E+r}, s38, v{g+r}")
        for r in range(8):
            A(f"  v_exp_f32 v{E+r}, v{E+r}")
        for r in range(8):
            A(f"  v_mul_f32 v{u+r}, v{g+r}, v{u+r}")
        for r in range(8):
            A(f"  v_add_f32 v{E+r}, 1.0, v{E+r}")
        for r in range(8):
            A(f"  v_rcp_f32 v{E+r}, v{E+r}")
        A("  s_nop 0")
        for r in range(8):
            A(f"  v_mul_f32 v{u+r}, v{u+r}, v{E+r}")
        for i in range(4):
            A(f"  v_cvt_pk_bf16_f32 v{E+8+i}, v{u+2*i}, v{u+2*i+1}")
        A(f"  buffer_store_dwordx4 {vr(E+8,4)}, v{vAct}, {sr(sACT,4)}, 0 offen offset:{tau*1024}")
    A(f"{name}_end:")
    A("  s_endpgm")
    return dict(name=name, grid=224, block=512, lds=LDS, nvgpr=256, accum=128)
```

```python
from common import *

def gen_k5(A, name="gemm2_kernel", x1_layout="row"):
    D = 10
    NK = 28
    RING = 4*D*2048
    EX = RING
    LDS = EX + 65536
    kernel_header(A, name)
    sW, sACT, sX1, sMOD, sOUT = 8, 12, 16, 20, 24
    sw, sLds, sWo, sK = 30, 31, 32, 33
    stb, sdb = 34, 35
    A("  s_cmp_ge_u32 s2, 256")
    A(f"  s_cbranch_scc1 {name}_end")
    A(f"  s_load_dwordx2 s[4:5], s[0:1], {KA['wd']}")
    A(f"  s_load_dwordx2 s[6:7], s[0:1], {KA['ws']}")
    A(f"  s_load_dwordx2 s[28:29], s[0:1], {KA['out']}")
    vl, vWoff, vA0, vA1, vB0, vB1, vXO, vG, vEXw, vEXr, vt0, vt1, vt2 = 1,2,3,4,5,6,7,8,9,10,11,12,13
    vX1 = 16
    vGB = 24
    vAf = 40
    vB  = 56
    vAcc = vB + D*8
    assert vAcc + 64 <= 256
    A(f"  v_and_b32 v{vl}, 63, v0")
    A(f"  v_lshrrev_b32 v{vt0}, 6, v0")
    A("  s_nop 0")
    A(f"  v_readfirstlane_b32 s{sw}, v{vt0}")
    A("  s_and_b32 s3, s2, 7")
    A("  s_lshr_b32 s36, s2, 3")
    A(f"  s_and_b32 s{sdb}, s36, 7")
    A("  s_lshr_b32 s36, s36, 3")
    A("  s_lshl_b32 s3, s3, 2")
    A(f"  s_add_u32 s{stb}, s3, s36")
    A(f"  v_lshrrev_b32 v{vt0}, 3, v{vl}")
    A(f"  v_lshrrev_b32 v{vt1}, 1, v{vt0}")
    A(f"  v_lshrrev_b32 v{vt2}, 2, v{vl}")
    A(f"  v_xor_b32 v{vt1}, v{vt1}, v{vt2}")
    A(f"  v_and_b32 v{vt1}, 1, v{vt1}")
    A(f"  v_lshlrev_b32 v{vt1}, 6, v{vt1}")
    A(f"  v_and_b32 v{vt2}, 3, v{vl}")
    A(f"  v_lshl_add_u32 v{vt1}, v{vt2}, 4, v{vt1}")
    A(f"  v_lshl_add_u32 v{vWoff}, v{vt0}, 10, v{vt1}")
    A(f"  v_lshrrev_b32 v{vt0}, 5, v{vl}")
    A(f"  v_lshlrev_b32 v{vt0}, 3, v{vt0}")
    A(f"  v_bfe_u32 v{vt1}, v{vl}, 2, 2")
    A(f"  v_add_u32 v{vt0}, v{vt0}, v{vt1}")
    A(f"  v_lshlrev_b32 v{vA0}, 7, v{vt0}")
    A(f"  v_lshrrev_b32 v{vt1}, 1, v{vt1}")
    A(f"  v_lshlrev_b32 v{vt1}, 6, v{vt1}")
    A(f"  v_and_b32 v{vt0}, 1, v{vl}")
    A(f"  v_lshlrev_b32 v{vt0}, 5, v{vt0}")
    A(f"  v_bfe_u32 v{vt2}, v{vl}, 1, 1")
    A(f"  v_lshl_add_u32 v{vt0}, v{vt2}, 3, v{vt0}")
    A(f"  v_bfe_u32 v{vt2}, v{vl}, 4, 1")
    A(f"  v_lshl_add_u32 v{vt0}, v{vt2}, 4, v{vt0}")
    A(f"  v_add_u32 v{vA0}, v{vA0}, v{vt0}")
    A(f"  s_mul_i32 s{sLds}, s{sw}, {D*2048}")
    A(f"  v_add_u32 v{vA0}, s{sLds}, v{vA0}")
    A(f"  v_xor_b32 v{vt2}, 64, v{vt1}")
    A(f"  v_add_u32 v{vA1}, v{vA0}, v{vt2}")
    A(f"  v_add_u32 v{vA0}, v{vA0}, v{vt1}")
    A(f"  s_lshl_b32 s36, s{stb}, 1")
    A(f"  s_mul_i32 s36, s36, 112")
    A(f"  s_mul_i32 s37, s{sw}, 28")
    A(f"  s_add_u32 s36, s36, s37")
    A(f"  s_lshl_b32 s36, s36, 10")
    A(f"  v_lshlrev_b32 v{vt0}, 4, v{vl}")
    A(f"  v_add_u32 v{vB0}, s36, v{vt0}")
    A(f"  v_add_u32 v{vB1}, {112*1024}, v{vB0}")
    A(f"  s_lshl_b32 s36, s{sw}, 12")
    A(f"  s_add_u32 s36, s36, {EX}")
    A(f"  v_add_u32 v{vEXw}, s36, v{vt0}")
    A(f"  s_lshl_b32 s36, s{sw}, 14")
    A(f"  s_add_u32 s36, s36, {EX}")
    A(f"  v_add_u32 v{vEXr}, s36, v{vt0}")
    A(f"  s_and_b32 s36, s{sw}, 1")
    A(f"  s_lshl_b32 s36, s36, 5")
    A(f"  s_lshl_b32 s37, s{stb}, 6")
    A(f"  s_add_u32 s36, s36, s37")
    A(f"  v_and_b32 v{vt0}, 31, v{vl}")
    A(f"  v_add_u32 v{vt0}, s36, v{vt0}")
    A(f"  s_lshr_b32 s36, s{sw}, 1")
    A(f"  s_lshl_b32 s36, s36, 5")
    A(f"  s_lshl_b32 s37, s{sdb}, 6")
    A(f"  s_add_u32 s36, s36, s37")
    A(f"  v_lshrrev_b32 v{vt1}, 5, v{vl}")
    A(f"  v_lshlrev_b32 v{vt1}, 4, v{vt1}")
    A(f"  v_add_u32 v{vt1}, s36, v{vt1}")
    A(f"  v_lshlrev_b32 v{vXO}, 10, v{vt0}")
    A(f"  v_lshl_add_u32 v{vXO}, v{vt1}, 1, v{vXO}")
    A(f"  v_lshlrev_b32 v{vG}, 2, v{vt1}")
    for i in range(64):
        A(f"  v_mov_b32 v{vAcc+i}, 0")
    A("  s_waitcnt lgkmcnt(0)")
    srd(A, sW, 4, 0, 1792*512*2)
    srd(A, sACT, 6, WS_ACT, SZ_ACT)
    srd(A, sX1, 6, WS_X1, SZ2M)
    srd(A, sMOD, 6, WS_MOD + 5*512*4, 512*4)
    srd(A, sOUT, 28, 0, SZ2M)
    A(f"  s_mul_i32 s{sWo}, s{sw}, {16*28*1024}")
    A(f"  s_lshl_b32 s36, s{sdb}, 7")
    A(f"  s_add_u32 s{sWo}, s{sWo}, s36")
    A(f"  s_sub_u32 s{sWo}, s{sWo}, 8192")
    A(f"  s_mov_b32 s{sK}, 0")
    A(f"  buffer_load_dwordx4 {vr(vX1,4)}, v{vXO}, {sr(sX1,4)}, 0 offen")
    A(f"  buffer_load_dwordx4 {vr(vX1+4,4)}, v{vXO}, {sr(sX1,4)}, 0 offen offset:16")
    for i in range(4):
        A(f"  buffer_load_dwordx4 {vr(vGB+4*i,4)}, v{vG}, {sr(sMOD,4)}, 0 offen offset:{16*i}")
    def issue(p):
        slot = p % D
        for ii in range(2):
            A(f"  s_add_u32 m0, s{sLds}, {slot*2048+ii*1024}")
            A(f"  s_add_u32 s{sWo}, s{sWo}, 8192")
            A(f"  buffer_load_dwordx4 v{vWoff}, {sr(sW,4)}, s{sWo} offen lds")
        for tt in range(2):
            A(f"  buffer_load_dwordx4 {vr(vB+slot*8+tt*4,4)}, v{vB0+tt}, {sr(sACT,4)}, s{sK} offen offset:{(p&3)*1024}")
        if (p & 3) == 3:
            A(f"  s_add_u32 s{sK}, s{sK}, 4096")
    def trread(p):
        slot = p % D
        buf = p & 1
        for tau in range(2):
            for rd in range(2):
                A(f"  ds_read_b64_tr_b16 {vr(vAf+buf*8+tau*4+rd*2,2)}, v{vA0+tau} offset:{slot*2048+rd*512}")
    for p in range(D):
        issue(p)
    A(f"  s_waitcnt vmcnt({4*(D-1)})")
    trread(0)
    for kk in range(NK):
        if kk+1 < NK:
            n = 4*(min(kk+D-1, NK-1) - (kk+1))
            A(f"  s_waitcnt vmcnt({n})")
            trread(kk+1)
            A("  s_waitcnt lgkmcnt(4)")
        else:
            A("  s_waitcnt lgkmcnt(0)")
        slot = kk % D
        buf = kk & 1
        for tau in range(2):
            for tt in range(2):
                o = 2*tau+tt
                A(f"  v_mfma_f32_32x32x16_bf16 {vr(vAcc+16*o,16)}, {vr(vAf+buf*8+tau*4,4)}, {vr(vB+slot*8+tt*4,4)}, {vr(vAcc+16*o,16)}")
        if kk+D < NK:
            issue(kk+D)
    A("  s_nop 15")
    for o in range(4):
        for a in range(4):
            A(f"  ds_write_b128 v{vEXw}, {vr(vAcc+16*o+4*a,4)} offset:{o*16384+a*1024}")
    A("  s_waitcnt lgkmcnt(0)")
    A("  s_barrier")
    vT = vB
    for s in range(4):
        for a in range(4):
            A(f"  ds_read_b128 {vr(vT+16*s+4*a,4)}, v{vEXr} offset:{s*4096+a*1024}")
    A("  s_waitcnt lgkmcnt(8)")
    for r in range(16):
        A(f"  v_add_f32 v{vT+r}, v{vT+r}, v{vT+16+r}")
    A("  s_waitcnt lgkmcnt(0)")
    for r in range(16):
        A(f"  v_add_f32 v{vT+32+r}, v{vT+32+r}, v{vT+48+r}")
    for r in range(16):
        A(f"  v_add_f32 v{vT+r}, v{vT+r}, v{vT+32+r}")
    vU = vT + 16
    for i in range(8):
        A(f"  v_lshlrev_b32 v{vU+2*i}, 16, v{vX1+i}")
        A(f"  v_and_b32 v{vU+2*i+1}, 0xffff0000, v{vX1+i}")
    for r in range(16):
        A(f"  v_fma_f32 v{vT+r}, v{vT+r}, v{vGB+r}, v{vU+r}")
    for i in range(8):
        A(f"  v_cvt_pk_bf16_f32 v{vU+i}, v{vT+2*i}, v{vT+2*i+1}")
    A(f"  buffer_store_dwordx4 {vr(vU,4)}, v{vXO}, {sr(sOUT,4)}, 0 offen")
    A(f"  buffer_store_dwordx4 {vr(vU+4,4)}, v{vXO}, {sr(sOUT,4)}, 0 offen offset:16")
    A(f"{name}_end:")
    A("  s_endpgm")
    return dict(name=name, grid=256, block=256, lds=LDS, nvgpr=256, accum=256)
```

```python
import sys
from common import *
from k1 import gen_k1
from k2 import gen_k2
from k3 import gen_k3
from k4 import gen_k4
from k5 import gen_k5

HEADER = open('adaLN_cond__ssm_conv_h3__swiglu_ffn__prompt.s.ref').read().split("; Override launch geometry")[0]

def build(kernels, extra_header=""):
    body = Asm()
    infos = []
    for g in kernels:
        infos.append(g(body))
    out = HEADER
    for inf in infos:
        out += f"; @launch kernel={inf['name']} grid=({inf['grid']},1,1) block=({inf['block']},1,1) lds={inf['lds']}\n"
    out += extra_header
    out += '.amdgcn_target "amdgcn-amd-amdhsa--gfx950"\n'
    out += body.text()
    d = Asm()
    seen = set()
    for inf in infos:
        if inf['name'] in seen: continue
        seen.add(inf['name'])
        kernel_desc(d, inf['name'], inf['nvgpr'], inf['accum'])
    out += d.text()
    return out

if __name__ == "__main__":
    dst = sys.argv[1] if len(sys.argv) > 1 else 'adaLN_cond__ssm_conv_h3__swiglu_ffn__prompt.s'
    txt = build([gen_k1, gen_k2, gen_k3, gen_k4, gen_k5])
    open(dst, 'w').write(txt)
    print("wrote", dst, len(txt), "bytes")
```

```python
KA = dict(q=0,k=8,v=16,shift=24,ssm=32,D=40,bx=48,wg=56,wu=64,wd=72,c=80,wmod=88,out=96,dbg=104,ws=112)

WS_KVR = 0x000000
WS_YL  = 0x200000
WS_X1  = 0x400000
WS_H2  = 0x600000
WS_ACT = 0x800000
WS_MOD = 0x1000000
SZ2M = 0x200000
SZ_ACT = 64*112*1024

class Asm:
    def __init__(self):
        self.l = []
    def __call__(self, s=""):
        for line in s.split("\n"):
            self.l.append(line)
    def text(self):
        return "\n".join(self.l) + "\n"

def vr(a, n=1):
    return f"v{a}" if n == 1 else f"v[{a}:{a+n-1}]"
def ar(a, n=1):
    return f"a{a}" if n == 1 else f"a[{a}:{a+n-1}]"
def sr(a, n=1):
    return f"s{a}" if n == 1 else f"s[{a}:{a+n-1}]"

def srd(A, d, p, off, size):
    if off:
        A(f"  s_add_u32 s{d}, s{p}, {hex(off)}")
        A(f"  s_addc_u32 s{d+1}, s{p+1}, 0")
    else:
        A(f"  s_mov_b32 s{d}, s{p}")
        A(f"  s_mov_b32 s{d+1}, s{p+1}")
    A(f"  s_mov_b32 s{d+2}, {hex(size)}")
    A(f"  s_mov_b32 s{d+3}, 0x20000")

def kernel_header(A, name):
    A(f".text")
    A(f".globl {name}")
    A(f".p2align 8")
    A(f".type {name},@function")
    A(f"{name}:")

def kernel_desc(A, name, nvgpr, accum, nsgpr=102):
    A('.section .rodata,"a"')
    A(".p2align 6")
    A(f".amdhsa_kernel {name}")
    A(f"  .amdhsa_next_free_vgpr {nvgpr}")
    A(f"  .amdhsa_next_free_sgpr {nsgpr}")
    A(f"  .amdhsa_accum_offset {accum}")
    A("  .amdhsa_group_segment_fixed_size 0")
    A("  .amdhsa_kernarg_size 120")
    A("  .amdhsa_user_sgpr_count 2")
    A("  .amdhsa_user_sgpr_kernarg_segment_ptr 1")
    A("  .amdhsa_system_sgpr_workgroup_id_x 1")
    A("  .amdhsa_float_denorm_mode_32 3")
    A(".end_amdhsa_kernel")

STAMPS = False
WS_TS = 0x2000000
class Stamper:
    def __init__(self, A, kidx, base=64):
        self.A, self.kidx, self.base, self.n = A, kidx, base, 0
    def stamp(self):
        if not STAMPS: return
        import os
        op = "s_memtime" if os.environ.get("STAMPCYC") else "s_memrealtime"
        self.A(f"  {op} s[{self.base+2*self.n}:{self.base+2*self.n+1}]")
        self.n += 1
    def flush(self, vtmp, ws_pair_reload=True):
        if not STAMPS: return
        A = self.A
        self.stamp()
        lab = f"stampskip_{self.kidx}"
        A(f"  s_load_dwordx2 s[96:97], s[0:1], {KA['ws']}")
        A(f"  v_readfirstlane_b32 s98, v0")
        A("  s_waitcnt lgkmcnt(0)")
        A(f"  s_cmp_ge_u32 s98, 64")
        A(f"  s_cbranch_scc1 {lab}")
        A(f"  s_mov_b64 exec, -1")
        A(f"  s_add_u32 s96, s96, {WS_TS + self.kidx*256*128}")
        A(f"  s_addc_u32 s97, s97, 0")
        A(f"  s_cmp_ge_u32 s2, 256")
        A(f"  s_cbranch_scc1 {lab}")
        A(f"  s_lshl_b32 s98, s2, 7")
        A(f"  s_add_u32 s96, s96, s98")
        A(f"  s_addc_u32 s97, s97, 0")
        A(f"  v_mov_b32 v{vtmp}, 0")
        for i in range(2*self.n):
            A(f"  v_writelane_b32 v{vtmp}, s{self.base+i}, {i}")
        A(f"  v_mbcnt_lo_u32_b32 v{vtmp+1}, -1, 0")
        A(f"  v_mbcnt_hi_u32_b32 v{vtmp+1}, -1, v{vtmp+1}")
        A(f"  v_cmp_gt_u32 vcc, 32, v{vtmp+1}")
        A(f"  v_lshlrev_b32 v{vtmp+1}, 2, v{vtmp+1}")
        A(f"  s_and_saveexec_b64 s[100:101], vcc")
        A(f"  global_store_dword v{vtmp+1}, v{vtmp}, s[96:97]")
        A(f"{lab}:")

import os as _os
def STM():
    m = _os.environ.get("STM", "")
    return (" " + m.replace("_", " ")) if m else ""
```

```python
from common import *

def gen_k1(A, name="prep_kernel", kidx=0):
    RED = 8192
    LDS = 8192
    kernel_header(A, name)
    ST = Stamper(A, kidx); ST.stamp()
    sK, sV, sSH, sKV, sC, sWM, sMOD = 8, 12, 16, 20, 24, 28, 32
    stb, scb, sw, scol = 40, 41, 42, 43
    A("  s_cmp_ge_u32 s2, 256")
    A(f"  s_cbranch_scc1 {name}_end")
    A(f"  s_load_dwordx4 s[44:47], s[0:1], {KA['k']}")
    A(f"  s_load_dwordx2 s[48:49], s[0:1], {KA['shift']}")
    A(f"  s_load_dwordx2 s[50:51], s[0:1], {KA['ws']}")
    vb, vt0, vt1, vt2, vW, vR0, vR1, vG, vSo, vWm, vCo = 1,2,3,4,5,6,7,8,9,10,11
    vKo = 12
    vK = 16
    vV = 36
    vS = 44
    vC = 60
    vM = 64
    vKf = 80
    vSf = 120
    vO = 152
    vP = 168
    A("  s_lshr_b32 s40, s2, 3")
    A("  s_and_b32 s41, s2, 7")
    A(f"  v_and_b32 v{vt0}, 7, v0")
    A(f"  v_lshrrev_b32 v{vt1}, 3, v0")
    A(f"  v_lshrrev_b32 v{vt2}, 6, v0")
    A("  s_nop 0")
    A(f"  v_readfirstlane_b32 s{sw}, v{vt2}")
    A(f"  s_lshl_b32 s56, s{stb}, 16")
    A(f"  s_lshl_b32 s57, s{scb}, 7")
    A(f"  s_add_u32 s56, s56, s57")
    A(f"  v_lshlrev_b32 v{vb}, 11, v{vt1}")
    A(f"  v_lshl_add_u32 v{vb}, v{vt0}, 4, v{vb}")
    A(f"  v_add_u32 v{vb}, s56, v{vb}")
    for i in range(3):
        A(f"  v_add_u32 v{vKo+i}, {hex((-(3-i)*1024) & 0xffffffff)}, v{vb}")
    A(f"  s_lshl_b32 s57, s{scb}, 9")
    A(f"  v_lshlrev_b32 v{vSo}, 6, v{vt0}")
    A(f"  v_add_u32 v{vSo}, s57, v{vSo}")
    A(f"  v_sub_u32 v{vt2}, 31, v{vt1}")
    A(f"  v_lshrrev_b32 v{vW}, 2, v{vt2}")
    A(f"  v_xor_b32 v{vW}, v{vW}, v{vt0}")
    A(f"  v_lshlrev_b32 v{vW}, 4, v{vW}")
    A(f"  v_and_b32 v{vt2}, 3, v{vt2}")
    A(f"  v_lshl_add_u32 v{vW}, v{vt2}, 2, v{vW}")
    A(f"  v_lshl_add_u32 v{vW}, v{vt0}, 10, v{vW}")
    A(f"  v_xor_b32 v{vt2}, s{sw}, v{vt0}")
    A(f"  v_lshlrev_b32 v{vt2}, 4, v{vt2}")
    A(f"  v_lshl_add_u32 v{vR0}, v{vt1}, 7, v{vt2}")
    A(f"  v_xor_b32 v{vt2}, 64, v{vt2}")
    A(f"  v_lshl_add_u32 v{vR1}, v{vt1}, 7, v{vt2}")
    A(f"  s_lshl_b32 s56, s{scb}, 18")
    A(f"  s_lshl_b32 s57, s{stb}, 7")
    A(f"  s_sub_u32 s56, s56, s57")
    A(f"  s_add_u32 s56, s56, 3968")
    A(f"  v_lshlrev_b32 v{vG}, 12, v{vt1}")
    A(f"  v_lshl_add_u32 v{vG}, v{vt0}, 4, v{vG}")
    A(f"  v_add_u32 v{vG}, s56, v{vG}")
    A("  s_waitcnt lgkmcnt(0)")
    srd(A, sK, 44, 0, SZ2M)
    srd(A, sV, 46, 0, SZ2M)
    srd(A, sSH, 48, 0, 512*4*2)
    srd(A, sKV, 50, WS_KVR, SZ2M)
    for i in range(3):
        A(f"  buffer_load_dwordx4 {vr(vK+4*i,4)}, v{vKo+i}, {sr(sK,4)}, 0 offen")
    for i in range(2):
        A(f"  buffer_load_dwordx4 {vr(vK+12+4*i,4)}, v{vb}, {sr(sK,4)}, 0 offen offset:{1024*i}")
    for i in range(2):
        A(f"  buffer_load_dwordx4 {vr(vV+4*i,4)}, v{vb}, {sr(sV,4)}, 0 offen offset:{1024*i}")
    for i in range(4):
        A(f"  buffer_load_dwordx4 {vr(vS+4*i,4)}, v{vSo}, {sr(sSH,4)}, 0 offen offset:{16*i}")
    A(f"  s_waitcnt vmcnt(0)")
    ST.stamp()
    for c in range(8):
        for hh in range(2):
            src = vS + 2*c + hh
            A(f"  v_lshlrev_b32 v{vSf+4*c+2*hh}, 16, v{src}")
            A(f"  v_and_b32 v{vSf+4*c+2*hh+1}, 0xffff0000, v{src}")
    for r in range(5):
        for i in range(4):
            A(f"  v_lshlrev_b32 v{vKf+8*r+2*i}, 16, v{vK+4*r+i}")
            A(f"  v_and_b32 v{vKf+8*r+2*i+1}, 0xffff0000, v{vK+4*r+i}")
    for tk in range(2):
        for c in range(8):
            A(f"  v_mul_f32 v{vO+8*tk+c}, v{vKf+8*(3+tk)+c}, v{vSf+4*c}")
        for j in range(1,4):
            for c in range(8):
                A(f"  v_fma_f32 v{vO+8*tk+c}, v{vKf+8*(3+tk-j)+c}, v{vSf+4*c+j}, v{vO+8*tk+c}")
    for tk in range(2):
        for i in range(4):
            A(f"  v_lshlrev_b32 v{vKf+8*tk+2*i}, 16, v{vV+4*tk+i}")
            A(f"  v_and_b32 v{vKf+8*tk+2*i+1}, 0xffff0000, v{vV+4*tk+i}")
    for tk in range(2):
        for c in range(8):
            A(f"  v_mul_f32 v{vO+8*tk+c}, v{vO+8*tk+c}, v{vKf+8*tk+c}")
    for c in range(8):
        A(f"  v_cvt_pk_bf16_f32 v{vP+c}, v{vO+8+c}, v{vO+c}")
    for c in range(8):
        A(f"  ds_write_b32 v{vW}, v{vP+c} offset:{128*c}")
    A("  s_waitcnt lgkmcnt(0)")
    A("  s_barrier")
    A(f"  ds_read_b128 {vr(vO,4)}, v{vR0}")
    A(f"  ds_read_b128 {vr(vO+4,4)}, v{vR1} offset:4096")
    A(f"  s_mov_b32 s56, {32*4096}")
    A("  s_waitcnt lgkmcnt(1)")
    A(f"  buffer_store_dwordx4 {vr(vO,4)}, v{vG}, {sr(sKV,4)}, 0 offen{STM()}")
    A("  s_waitcnt lgkmcnt(0)")
    A(f"  buffer_store_dwordx4 {vr(vO+4,4)}, v{vG}, {sr(sKV,4)}, s56 offen{STM()}")
    ST.stamp()
    A(f"{name}_end:")
    ST.flush(2)
    A("  s_endpgm")
    return dict(name=name, grid=256, block=256, lds=LDS, nvgpr=176, accum=176)
```

```python
from common import *

def gen_k2(A, name="conv_kernel", kidx=1, PREFETCH=True):
    XR = [0, 4608]
    HC = 9216
    HCH = 4*4160
    EX = 43008
    LDS = EX + 32768
    kernel_header(A, name)
    ST = Stamper(A, kidx); ST.stamp()
    sKV, sH, sY = 8, 12, 16
    sw, sc, sch, sqh, sD = 30, 31, 32, 33, 34
    A("  s_cmp_ge_u32 s2, 256")
    A(f"  s_cbranch_scc1 {name}_mod")
    A(f"  s_load_dwordx4 s[4:7], s[0:1], {KA['ssm']}")
    A(f"  s_load_dwordx2 s[20:21], s[0:1], {KA['ws']}")
    vl, vt0, vt1, vt2, vt3 = 1, 2, 3, 4, 5
    vT16, vZ, vH, vEXw, vEXr, vYo, vHCw = 6, 7, 8, 9, 10, 11, 12
    vHD = 16
    vZero = 20
    vL = 24
    vE = 48
    vAcc = 56
    vZf = 88
    vHf = 152
    A(f"  v_and_b32 v{vl}, 63, v0")
    A(f"  v_lshrrev_b32 v{vt0}, 6, v0")
    A(f"  v_lshlrev_b32 v{vT16}, 4, v0")
    A(f"  v_readfirstlane_b32 s{sw}, v{vt0}")
    A("  s_and_b32 s3, s2, 7")
    A("  s_lshl_b32 s3, s3, 5")
    A("  s_lshr_b32 s35, s2, 3")
    A(f"  s_add_u32 s{sc}, s3, s35")
    A(f"  s_lshr_b32 s{sch}, s{sw}, 1")
    A(f"  s_and_b32 s{sqh}, s{sw}, 1")
    A("  s_waitcnt lgkmcnt(0)")
    A(f"  s_lshl_b32 s35, s{sc}, 2")
    A(f"  s_load_dword s{sD}, s[6:7], s35")
    srd(A, sH, 4, 0, SZ2M)
    srd(A, sKV, 20, WS_KVR, SZ2M)
    srd(A, sY, 20, WS_YL, SZ2M)
    A(f"  s_lshl_b32 s36, s{sc}, 13")
    A(f"  s_add_u32 s37, s36, 4096")
    for ch in range(2):
        for k in range(3):
            A(f"  buffer_load_dwordx4 {vr(vL+12*ch+4*k,4)}, v{vT16}, {sr(sH,4)}, s{36+ch} offen offset:{4*k}")
    A(f"  v_lshlrev_b32 v{vt0}, 4, v{vl}")
    A(f"  s_lshl_b32 s38, s{sw}, 11")
    A(f"  s_add_u32 s38, s38, s36")
    A(f"  s_mul_i32 s39, s{sch}, 4608")
    A(f"  s_lshl_b32 s40, s{sqh}, 11")
    A(f"  s_add_u32 s39, s39, s40")
    A(f"  s_mov_b32 m0, s39")
    A(f"  s_add_u32 s40, s38, 1024")
    A(f"  buffer_load_dwordx4 v{vt0}, {sr(sKV,4)}, s38 offen lds")
    A(f"  s_add_u32 m0, s39, 1024")
    A("  s_nop 0")
    A(f"  buffer_load_dwordx4 v{vt0}, {sr(sKV,4)}, s40 offen lds")
    npf = 0
    if PREFETCH:
        A(f"  s_load_dwordx4 s[44:47], s[0:1], {KA['wg']}")
        A(f"  v_and_b32 v{vt1}, 64, v0")
        A(f"  v_add_u32 v{vt1}, v{vt1}, v{vl}")
        A(f"  v_mul_u32_u24 v{vt2}, 147, v{vt1}")
        A(f"  v_lshrrev_b32 v{vt2}, 10, v{vt2}")
        A(f"  v_mul_u32_u24 v{vt3}, 7, v{vt2}")
        A(f"  v_sub_u32 v{vt3}, v{vt1}, v{vt3}")
        A(f"  s_lshr_b32 s48, s2, 3")
        A(f"  s_lshl_b32 s48, s48, 4")
        A(f"  v_add_u32 v{vt2}, s48, v{vt2}")
        A(f"  v_mul_u32_u24 v{vt2}, 3584, v{vt2}")
        A(f"  v_lshl_add_u32 v13, v{vt3}, 7, v{vt2}")
        A(f"  s_bfe_u32 s48, s2, 0x20001")
        A(f"  s_mul_i32 s48, s48, 896")
        A("  s_waitcnt lgkmcnt(0)")
        A(f"  s_cmp_eq_u32 s{sch}, 0")
        A(f"  s_cselect_b32 s52, s44, s46")
        A(f"  s_cselect_b32 s53, s45, s47")
        A(f"  s_mov_b32 s54, {512*1792*2}")
        A(f"  s_mov_b32 s55, 0x20000")
        A(f"  buffer_load_dword v14, v13, s[52:55], s48 offen")
        npf = 1
    for i in range(4):
        A(f"  v_mov_b32 v{vZero+i}, 0")
    A(f"  v_lshrrev_b32 v{vt1}, 5, v{vl}")
    A(f"  v_mul_u32_u24 v{vt1}, 4608, v{vt1}")
    A(f"  v_and_b32 v{vt2}, 31, v{vl}")
    A(f"  v_lshl_add_u32 v{vt1}, v{vt2}, 4, v{vt1}")
    A(f"  ds_write_b128 v{vt1}, {vr(vZero,4)} offset:4096")
    for i in range(32):
        A(f"  v_mov_b32 v{vAcc+i}, 0")
    A(f"  v_and_b32 v{vt0}, 15, v{vl}")
    A(f"  v_lshrrev_b32 v{vt1}, 4, v{vl}")
    A(f"  v_lshlrev_b32 v{vt2}, 5, v{vt0}")
    A(f"  v_sub_u32 v{vt2}, 480, v{vt2}")
    A(f"  v_lshl_add_u32 v{vt2}, v{vt1}, 4, v{vt2}")
    A(f"  s_mul_i32 s39, s{sch}, 4608")
    A(f"  s_lshl_b32 s40, s{sqh}, 8")
    A(f"  s_add_u32 s39, s39, s40")
    A(f"  v_add_u32 v{vZ}, s39, v{vt2}")
    A(f"  v_add_u32 v{vt2}, 1, v{vt0}")
    A(f"  v_and_b32 v{vt3}, 3, v{vt2}")
    A(f"  v_sub_u32 v{vt2}, v{vt2}, v{vt3}")
    A(f"  v_lshl_add_u32 v{vt2}, v{vt1}, 3, v{vt2}")
    A(f"  v_lshlrev_b32 v{vt2}, 1, v{vt2}")
    A(f"  v_mul_u32_u24 v{vt3}, 4160, v{vt3}")
    A(f"  v_add_u32 v{vt2}, v{vt2}, v{vt3}")
    A(f"  s_mul_i32 s39, s{sch}, {HCH}")
    A(f"  s_add_u32 s39, s39, s40")
    A(f"  s_add_u32 s39, s39, {HC}")
    A(f"  v_add_u32 v{vH}, s39, v{vt2}")
    A(f"  v_lshlrev_b32 v{vt2}, 4, v{vl}")
    A(f"  s_lshl_b32 s39, s{sw}, 13")
    A(f"  s_add_u32 s39, s39, {EX}")
    A(f"  v_add_u32 v{vEXw}, s39, v{vt2}")
    A(f"  s_lshl_b32 s39, s{sw}, 11")
    A(f"  s_add_u32 s39, s39, {EX}")
    A(f"  v_add_u32 v{vEXr}, s39, v{vt2}")
    A(f"  s_lshr_b32 s39, s{sc}, 2")
    A(f"  s_lshl_b32 s39, s39, 15")
    A(f"  s_and_b32 s40, s{sc}, 3")
    A(f"  s_lshl_b32 s40, s40, 2")
    A(f"  s_add_u32 s39, s39, s40")
    A(f"  s_lshl_b32 s40, s{sw}, 13")
    A(f"  s_add_u32 s39, s39, s40")
    A(f"  v_lshl_add_u32 v{vt2}, v{vt1}, 6, v{vt0}")
    A(f"  v_lshlrev_b32 v{vt2}, 4, v{vt2}")
    A(f"  v_add_u32 v{vYo}, s39, v{vt2}")
    A("  s_waitcnt lgkmcnt(0)")
    A(f"  s_lshr_b32 s39, s{sD}, 16")
    A(f"  s_and_b32 s40, s{sD}, 0xffff")
    A(f"  s_cmp_eq_u32 s{sch}, 0")
    A(f"  s_cselect_b32 s39, s40, s39")
    A(f"  s_lshl_b32 s40, s39, 16")
    A(f"  v_lshlrev_b32 v{vt2}, 3, v{vt1}")
    A(f"  v_add_u32 v{vt2}, v{vt2}, v{vt0}")
    A(f"  v_sub_u32 v{vt2}, 15, v{vt2}")
    A(f"  v_and_b32 v{vt3}, 1, v{vt2}")
    A(f"  v_cmp_eq_u32 vcc, 1, v{vt3}")
    A(f"  v_mov_b32 v{vt0}, s39")
    A(f"  v_mov_b32 v{vt1}, s40")
    A(f"  v_cndmask_b32 v{vt3}, v{vt0}, v{vt1}, vcc")
    A(f"  v_ashrrev_i32 v{vt2}, 1, v{vt2}")
    for i in range(4):
        A(f"  v_cmp_eq_u32 vcc, {i}, v{vt2}")
        A("  s_nop 1")
        A(f"  v_cndmask_b32 v{vHD+i}, 0, v{vt3}, vcc")
    A(f"  v_add_u32 v{vHCw}, {HC+32}, v{vT16}")
    for ch in range(2):
        La, Lb, Lc = vL+12*ch, vL+12*ch+4, vL+12*ch+8
        A(f"  s_waitcnt vmcnt({(5 if ch==0 else 2)+npf})")
        for i in range(4):
            A(f"  v_alignbit_b32 v{vE+i}, v{Lb+i}, v{La+i}, 16")
        for i in range(4):
            A(f"  v_alignbit_b32 v{vE+4+i}, v{Lc+i}, v{Lb+i}, 16")
        base = ch*HCH
        A(f"  ds_write_b128 v{vHCw}, {vr(La,4)} offset:{base}")
        A(f"  ds_write_b128 v{vHCw}, {vr(Lb,4)} offset:{base+2*4160}")
        A(f"  ds_write_b128 v{vHCw}, {vr(vE,4)} offset:{base+4160}")
        A(f"  ds_write_b128 v{vHCw}, {vr(vE+4,4)} offset:{base+3*4160}")
    ST.stamp()
    A(f"  v_cmp_eq_u32 vcc, 0, v0")
    A(f"  s_and_saveexec_b64 s[42:43], vcc")
    A(f"  s_cbranch_execz {name}_noneg")
    A(f"  v_mov_b32 v{vt0}, {HC}")
    for ch in range(2):
        La = vL+12*ch
        base = ch*HCH
        for phi in range(4):
            A(f"  ds_write_b128 v{vt0}, {vr(vZero,4)} offset:{base+phi*4160}")
        A(f"  ds_write_b128 v{vt0}, {vr(vZero,4)} offset:{base+16}")
        T = vZf + 16*ch
        for i in range(12):
            A(f"  v_mov_b32 v{T+i}, 0")
        A(f"  v_lshlrev_b32 v{T+3}, 16, v{La}")
        A(f"  v_mov_b32 v{T+7}, v{La}")
        A(f"  v_lshlrev_b32 v{T+10}, 16, v{La}")
        A(f"  v_alignbit_b32 v{T+11}, v{La+1}, v{La}, 16")
        A(f"  ds_write_b128 v{vt0}, {vr(T,4)} offset:{base+4160+16}")
        A(f"  ds_write_b128 v{vt0}, {vr(T+4,4)} offset:{base+2*4160+16}")
        A(f"  ds_write_b128 v{vt0}, {vr(T+8,4)} offset:{base+3*4160+16}")
    A(f"{name}_noneg:")
    A(f"  s_mov_b64 exec, s[42:43]")
    A(f"  s_waitcnt vmcnt({npf}) lgkmcnt(0)")
    A("  s_barrier")
    ST.stamp()
    def reads(it):
        buf = it & 1
        L = []
        for G in range(8):
            L.append(f"  ds_read_b128 {vr(vZf+32*buf+4*G,4)}, v{vZ} offset:{64*it+512*(7-G)}")
        for m in range(8):
            for hh in range(2):
                L.append(f"  ds_read_b64 {vr(vHf+32*buf+4*m+2*hh,2)}, v{vH} offset:{64*it+512*m+8*hh}")
        return L
    for s in reads(0):
        A(s)
    for it in range(4):
        buf = it & 1
        A("  s_waitcnt lgkmcnt(0)")
        nxt = reads(it+1) if it < 3 else []
        if it == 0:
            A(f"  s_cmp_lg_u32 s{sqh}, 0")
            A(f"  s_cbranch_scc1 {name}_noD")
            for G in range(8):
                A(f"  v_mfma_f32_16x16x32_bf16 {vr(vAcc+4*G,4)}, {vr(vZf+4*G,4)}, {vr(vHD,4)}, {vr(vAcc+4*G,4)}")
            A(f"{name}_noD:")
        for m in range(8):
            for Gz in range(8-m):
                G = Gz+m
                A(f"  v_mfma_f32_16x16x32_bf16 {vr(vAcc+4*G,4)}, {vr(vZf+32*buf+4*Gz,4)}, {vr(vHf+32*buf+4*m,4)}, {vr(vAcc+4*G,4)}")
                if nxt:
                    A(nxt.pop(0))
    A("  s_nop 15")
    ST.stamp()
    for G in range(8):
        A(f"  ds_write_b128 v{vEXw}, {vr(vAcc+4*G,4)} offset:{G*1024}")
    A("  s_waitcnt lgkmcnt(0)")
    A("  s_barrier")
    vR = vZf
    for s in range(4):
        for gg in range(2):
            A(f"  ds_read_b128 {vr(vR+8*s+4*gg,4)}, v{vEXr} offset:{s*8192+gg*1024}")
    A("  s_waitcnt lgkmcnt(0)")
    for i in range(8):
        A(f"  v_add_f32 v{vR+i}, v{vR+i}, v{vR+8+i}")
        A(f"  v_add_f32 v{vR+16+i}, v{vR+16+i}, v{vR+24+i}")
    for i in range(8):
        A(f"  v_cvt_pk_bf16_f32 v{vR+8+i}, v{vR+i}, v{vR+16+i}")
    A("  s_movk_i32 s39, 4096")
    for gg in range(2):
        for r in range(4):
            so = "s39" if gg else "0"
            A(f"  buffer_store_dword v{vR+8+4*gg+r}, v{vYo}, {sr(sY,4)}, {so} offen offset:{256*r}{STM()}")
    A(f"  s_branch {name}_end")
    gen_mod_job(A, name)
    A(f"{name}_end:")
    ST.flush(2)
    A("  s_endpgm")
    return dict(name=name, grid=256+48, block=256, lds=LDS, nvgpr=224, accum=224)


def gen_mod_job(A, name):
    sC, sWM, sMOD = 8, 12, 16
    RED = 1024
    A(f"{name}_mod:")
    A("  s_cmp_ge_u32 s2, 304")
    A(f"  s_cbranch_scc1 {name}_end")
    A(f"  s_load_dwordx4 s[4:7], s[0:1], {KA['c']}")
    A(f"  s_load_dwordx2 s[20:21], s[0:1], {KA['ws']}")
    vt0, vt1, vt2, vWo, vCo = 1, 2, 3, 4, 5
    vW = 8
    vC = 72
    vS = 76
    vP = 84
    vT = 92
    A("  s_sub_u32 s3, s2, 256")
    A("  s_lshl_b32 s22, s3, 6")
    A(f"  v_and_b32 v{vt0}, 7, v0")
    A(f"  v_lshrrev_b32 v{vt1}, 3, v0")
    A(f"  s_mov_b32 s23, {16*6144}")
    A(f"  v_mul_lo_u32 v{vWo}, v{vt1}, s23")
    A(f"  v_lshl_add_u32 v{vWo}, v{vt0}, 4, v{vWo}")
    A(f"  v_lshlrev_b32 v{vCo}, 2, v0")
    A(f"  v_lshrrev_b32 v{vt2}, 6, v0")
    A("  s_lshl_b32 s24, s22, 1")
    A(f"  v_readfirstlane_b32 s25, v{vt2}")
    A("  s_waitcnt lgkmcnt(0)")
    srd(A, sC, 4, 0, 1024)
    srd(A, sWM, 6, 0, 512*3072*2)
    srd(A, sMOD, 20, WS_MOD, 3072*4)
    A(f"  buffer_load_dword v{vC}, v{vCo}, {sr(sC,4)}, 0 offen")
    for i in range(16):
        A(f"  buffer_load_dwordx4 {vr(vW+4*i,4)}, v{vWo}, {sr(sWM,4)}, s24 offen")
        if i < 15:
            A("  s_add_u32 s24, s24, 6144")
    A("  s_waitcnt vmcnt(16)")
    c0, c1, e0, e1 = vT, vT+1, vT+2, vT+3
    A(f"  v_lshlrev_b32 v{c0}, 16, v{vC}")
    A(f"  v_and_b32 v{c1}, 0xffff0000, v{vC}")
    A("  s_mov_b32 s26, 0xbfb8aa3b")
    A(f"  v_mul_f32 v{e0}, s26, v{c0}")
    A(f"  v_mul_f32 v{e1}, s26, v{c1}")
    A(f"  v_exp_f32 v{e0}, v{e0}")
    A(f"  v_exp_f32 v{e1}, v{e1}")
    A("  s_nop 0")
    A(f"  v_add_f32 v{e0}, 1.0, v{e0}")
    A(f"  v_add_f32 v{e1}, 1.0, v{e1}")
    A(f"  v_rcp_f32 v{e0}, v{e0}")
    A(f"  v_rcp_f32 v{e1}, v{e1}")
    A("  s_nop 0")
    A(f"  v_mul_f32 v{c0}, v{c0}, v{e0}")
    A(f"  v_mul_f32 v{c1}, v{c1}, v{e1}")
    A(f"  v_cvt_pk_bf16_f32 v{e0}, v{c0}, v{c1}")
    A(f"  ds_write_b32 v{vCo}, v{e0}")
    A("  s_waitcnt lgkmcnt(0)")
    A("  s_barrier")
    A(f"  v_lshlrev_b32 v{vt2}, 5, v{vt1}")
    A(f"  ds_read_b128 {vr(vS,4)}, v{vt2}")
    A(f"  ds_read_b128 {vr(vS+4,4)}, v{vt2} offset:16")
    A("  s_mov_b32 s26, 0x05040100")
    A("  s_mov_b32 s27, 0x07060302")
    for n in range(8):
        A(f"  v_mov_b32 v{vP+n}, 0")
    A("  s_waitcnt lgkmcnt(0)")
    for p in range(8):
        A(f"  s_waitcnt vmcnt({14-2*p})")
        ra, rb = vW+8*p, vW+8*p+4
        for a in range(4):
            A(f"  v_perm_b32 v{vT+2*a}, v{rb+a}, v{ra+a}, s26")
            A(f"  v_perm_b32 v{vT+2*a+1}, v{rb+a}, v{ra+a}, s27")
        for n in range(8):
            A(f"  v_dot2_f32_bf16 v{vP+n}, v{vT+n}, v{vS+p}, v{vP+n}")
    A("  s_nop 1")
    for i in range(4):
        A(f"  v_permlane32_swap_b32 v{vP+i}, v{vP+i+4}")
    A("  s_nop 1")
    for i in range(4):
        A(f"  v_add_f32 v{vP+i}, v{vP+i}, v{vP+i+4}")
    A("  s_nop 1")
    for i in range(2):
        A(f"  v_permlane16_swap_b32 v{vP+i}, v{vP+i+2}")
    A("  s_nop 1")
    for i in range(2):
        A(f"  v_add_f32 v{vP+i}, v{vP+i}, v{vP+i+2}")
    A("  s_nop 1")
    for i in range(2):
        A(f"  v_add_f32_dpp v{vP+i}, v{vP+i}, v{vP+i} row_ror:8 row_mask:0xf bank_mask:0xf")
    A(f"  v_bfe_u32 v{vt2}, v0, 4, 2")
    A(f"  v_lshlrev_b32 v{vt2}, 3, v{vt2}")
    A(f"  v_lshl_add_u32 v{vt2}, v{vt0}, 5, v{vt2}")
    A(f"  s_lshl_b32 s26, s25, 8")
    A(f"  s_add_u32 s26, s26, {RED}")
    A(f"  v_add_u32 v{vt2}, s26, v{vt2}")
    A(f"  v_and_b32 v{vt1}, 8, v0")
    A(f"  v_cmp_eq_u32 vcc, 0, v{vt1}")
    A(f"  s_and_saveexec_b64 s[28:29], vcc")
    A(f"  ds_write_b64 v{vt2}, {vr(vP,2)}")
    A(f"  s_mov_b64 exec, s[28:29]")
    A("  s_waitcnt lgkmcnt(0)")
    A("  s_barrier")
    A(f"  v_cmp_gt_u32 vcc, 64, v0")
    A(f"  s_and_saveexec_b64 s[28:29], vcc")
    A(f"  s_cbranch_execz {name}_end")
    for i in range(4):
        A(f"  ds_read_b32 v{vT+i}, v{vCo} offset:{RED+256*i}")
    A("  s_waitcnt lgkmcnt(0)")
    U = vT
    A(f"  v_add_f32 v{U}, v{U}, v{U+1}")
    A(f"  v_add_f32 v{U+2}, v{U+2}, v{U+3}")
    A(f"  v_add_f32 v{U}, v{U}, v{U+2}")
    A(f"  v_cvt_pk_bf16_f32 v{U}, v{U}, v{U}")
    A(f"  v_lshlrev_b32 v{U}, 16, v{U}")
    A(f"  s_lshr_b32 s26, s22, 9")
    A(f"  s_cmp_eq_u32 s26, 1")
    A(f"  s_cselect_b32 s27, 1, 0")
    A(f"  s_cmp_eq_u32 s26, 4")
    A(f"  s_cselect_b32 s27, 1, s27")
    A(f"  s_cmp_eq_u32 s27, 0")
    A(f"  s_cbranch_scc1 {name}_noone")
    A(f"  v_add_f32 v{U}, 1.0, v{U}")
    A(f"  v_cvt_pk_bf16_f32 v{U}, v{U}, v{U}")
    A(f"  v_lshlrev_b32 v{U}, 16, v{U}")
    A(f"{name}_noone:")
    A(f"  s_lshl_b32 s26, s22, 2")
    A(f"  buffer_store_dword v{U}, v{vCo}, {sr(sMOD,4)}, s26 offen{STM()}")
```

```python
from common import *

def wave_reduce(A, regs):
    pad = max(0, 3-len(regs))
    def step(ctrl):
        for r in regs:
            A(f"  v_add_f32_dpp v{r}, v{r}, v{r} {ctrl}")
        for _ in range(pad):
            A("  s_nop 0")
    A("  s_nop 1")
    step("row_ror:8 row_mask:0xf bank_mask:0xf")
    step("row_ror:4 row_mask:0xf bank_mask:0xf")
    step("row_ror:2 row_mask:0xf bank_mask:0xf")
    step("row_ror:1 row_mask:0xf bank_mask:0xf")
    step("row_bcast:15 row_mask:0xa bank_mask:0xf")
    step("row_bcast:31 row_mask:0xc bank_mask:0xf")

def gen_k3(A, name="norm_kernel", kidx=2):
    kernel_header(A, name)
    ST = Stamper(A, kidx); ST.stamp()
    sX, sY, sMOD, sX1, sH2 = 8, 12, 16, 20, 24
    sw = 30
    A("  s_cmp_ge_u32 s2, 256")
    A(f"  s_cbranch_scc1 {name}_end")
    A(f"  s_load_dwordx2 s[4:5], s[0:1], {KA['q']}")
    A(f"  s_load_dwordx2 s[6:7], s[0:1], {KA['ws']}")
    vl, vXo, vYo, vMo, vHo, vt0, vt1 = 1,2,3,4,5,6,7
    vX = 8
    vY = 16
    vM = 24
    vF = 64
    vG = 80
    vS = 96
    vP = 100
    vQ = 108
    A(f"  v_and_b32 v{vl}, 63, v0")
    A(f"  v_lshrrev_b32 v{vt0}, 6, v0")
    A("  s_nop 0")
    A(f"  v_readfirstlane_b32 s{sw}, v{vt0}")
    A(f"  s_lshl_b32 s3, s2, 3")
    A(f"  s_lshl_b32 s31, s{sw}, 1")
    A(f"  s_add_u32 s3, s3, s31")
    A(f"  s_lshl_b32 s31, s3, 10")
    A(f"  v_lshlrev_b32 v{vt0}, 4, v{vl}")
    A(f"  v_add_u32 v{vXo}, s31, v{vt0}")
    A(f"  s_lshl_b32 s31, s3, 4")
    A(f"  v_lshlrev_b32 v{vt1}, 15, v{vl}")
    A(f"  v_add_u32 v{vYo}, s31, v{vt1}")
    A(f"  v_lshlrev_b32 v{vMo}, 5, v{vl}")
    A(f"  s_lshr_b32 s31, s3, 5")
    A(f"  s_lshl_b32 s31, s31, 15")
    A(f"  s_and_b32 s32, s3, 31")
    A(f"  s_lshl_b32 s32, s32, 4")
    A(f"  s_add_u32 s31, s31, s32")
    A(f"  v_lshrrev_b32 v{vt0}, 1, v{vl}")
    A(f"  v_lshlrev_b32 v{vt0}, 10, v{vt0}")
    A(f"  v_and_b32 v{vt1}, 1, v{vl}")
    A(f"  v_lshl_add_u32 v{vt0}, v{vt1}, 9, v{vt0}")
    A(f"  v_add_u32 v{vHo}, s31, v{vt0}")
    A("  s_waitcnt lgkmcnt(0)")
    srd(A, sX, 4, 0, SZ2M)
    srd(A, sY, 6, WS_YL, SZ2M)
    srd(A, sMOD, 6, WS_MOD, 3072*4)
    srd(A, sX1, 6, WS_X1, SZ2M)
    srd(A, sH2, 6, WS_H2, SZ2M)
    for t in range(2):
        A(f"  buffer_load_dwordx4 {vr(vX+4*t,4)}, v{vXo}, {sr(sX,4)}, 0 offen offset:{1024*t}")
    for t in range(2):
        A(f"  buffer_load_dwordx4 {vr(vY+4*t,4)}, v{vYo}, {sr(sY,4)}, 0 offen offset:{16*t}")
    for c in range(5):
        A(f"  s_movk_i32 s31, {c*2048}")
        for hh in range(2):
            A(f"  buffer_load_dwordx4 {vr(vM+8*c+4*hh,4)}, v{vMo}, {sr(sMOD,4)}, s31 offen offset:{16*hh}")
    def unpack(dst, src):
        for i in range(4):
            A(f"  v_lshlrev_b32 v{dst+2*i}, 16, v{src+i}")
            A(f"  v_and_b32 v{dst+2*i+1}, 0xffff0000, v{src+i}")
    def stats():
        for t in range(2):
            F = vF+8*t
            A(f"  v_add_f32 v{vS+t}, v{F}, v{F+1}")
            A(f"  v_mul_f32 v{vS+2+t}, v{F}, v{F}")
        for i in range(1,8):
            for t in range(2):
                F = vF+8*t
                if i >= 2:
                    A(f"  v_add_f32 v{vS+t}, v{vS+t}, v{F+i}")
                A(f"  v_fma_f32 v{vS+2+t}, v{F+i}, v{F+i}, v{vS+2+t}")
        wave_reduce(A, [vS, vS+1, vS+2, vS+3])
        A("  s_nop 0")
        for i in range(4):
            A(f"  v_readlane_b32 s{40+i}, v{vS+i}, 63")
        A("  s_mov_b32 s44, 0x3b000000   ; 1/512")
        A("  s_mov_b32 s45, 0x3727c5ac   ; 1e-5")
        A("  s_nop 1")
        for t in range(2):
            A(f"  v_mov_b32 v{vS+t}, s{40+t}")
            A(f"  v_mov_b32 v{vS+2+t}, s{42+t}")
        for t in range(2):
            A(f"  v_mul_f32 v{vS+t}, s44, v{vS+t}")
            A(f"  v_mul_f32 v{vS+2+t}, s44, v{vS+2+t}")
        for t in range(2):
            A(f"  v_fma_f32 v{vS+2+t}, -v{vS+t}, v{vS+t}, v{vS+2+t}")
        for t in range(2):
            A(f"  v_max_f32 v{vS+2+t}, 0, v{vS+2+t}")
        for t in range(2):
            A(f"  v_add_f32 v{vS+2+t}, s45, v{vS+2+t}")
        for t in range(2):
            A(f"  v_rsq_f32 v{vS+2+t}, v{vS+2+t}")
        A("  s_nop 0")
        for t in range(2):
            A(f"  v_mul_f32 v{vS+t}, v{vS+t}, v{vS+2+t}")
    A("  s_waitcnt vmcnt(12)")
    ST.stamp()
    for t in range(2):
        unpack(vF+8*t, vX+4*t)
    stats()
    A("  s_waitcnt vmcnt(0)")
    ST.stamp()
    for t in range(2):
        unpack(vG+8*t, vY+4*t)
    vU = 116
    for t in range(2):
        for i in range(8):
            A(f"  v_fma_f32 v{vU+8*t+i}, v{vF+8*t+i}, v{vS+2+t}, -v{vS+t}")
    for t in range(2):
        for i in range(8):
            A(f"  v_fma_f32 v{vU+8*t+i}, v{vU+8*t+i}, v{vM+8+i}, v{vM+i}")
    for t in range(2):
        for i in range(8):
            A(f"  v_mul_f32 v{vU+8*t+i}, v{vU+8*t+i}, v{vG+8*t+i}")
    for t in range(2):
        for i in range(8):
            A(f"  v_fma_f32 v{vU+8*t+i}, v{vU+8*t+i}, v{vM+16+i}, v{vF+8*t+i}")
    for t in range(2):
        for i in range(4):
            A(f"  v_cvt_pk_bf16_f32 v{vP+4*t+i}, v{vU+8*t+2*i}, v{vU+8*t+2*i+1}")
    for t in range(2):
        A(f"  buffer_store_dwordx4 {vr(vP+4*t,4)}, v{vXo}, {sr(sX1,4)}, 0 offen offset:{1024*t}{STM()}")
    for t in range(2):
        unpack(vF+8*t, vP+4*t)
    stats()
    for t in range(2):
        for i in range(8):
            A(f"  v_fma_f32 v{vU+8*t+i}, v{vF+8*t+i}, v{vS+2+t}, -v{vS+t}")
    for t in range(2):
        for i in range(8):
            A(f"  v_fma_f32 v{vU+8*t+i}, v{vU+8*t+i}, v{vM+32+i}, v{vM+24+i}")
    for t in range(2):
        for i in range(4):
            A(f"  v_cvt_pk_bf16_f32 v{vQ+4*t+i}, v{vU+8*t+2*i}, v{vU+8*t+2*i+1}")
    for t in range(2):
        A(f"  buffer_store_dwordx4 {vr(vQ+4*t,4)}, v{vHo}, {sr(sH2,4)}, 0 offen offset:{16*t}{STM()}")
    A(f"{name}_end:")
    ST.flush(2)
    A("  s_endpgm")
    return dict(name=name, grid=256, block=256, lds=0, nvgpr=136, accum=136)
```

```python
from common import *

def gen_k4(A, name="gemm1_kernel", kidx=3, AHEAD=3, PREFETCH_WD=True):
    LDS = 131072
    kernel_header(A, name)
    ST = Stamper(A, kidx); ST.stamp()
    sW, sH, sACT = 8, 12, 16
    sw, sm, sWo, sM0, sf0, stb, sHo = 30, 31, 32, 33, 34, 35, 36
    A(f"  s_load_dwordx4 s[4:7], s[0:1], {KA['wg']}")
    A(f"  s_load_dwordx2 s[20:21], s[0:1], {KA['ws']}")
    A("  s_cmp_ge_u32 s2, 224")
    A(f"  s_cbranch_scc1 {name}_helper")
    vl, vWoff, vH, vAct, vt0, vt1, vt2, vt3 = 1,2,3,4,5,6,7,8
    vA = 10
    vAf = 16
    vAcc = 48
    A(f"  v_lshrrev_b32 v{vt0}, 6, v0")
    A(f"  v_and_b32 v{vl}, 63, v0")
    A(f"  v_readfirstlane_b32 s{sw}, v{vt0}")
    A("  s_and_b32 s3, s2, 7")
    A("  s_lshr_b32 s38, s2, 3")
    A("  s_mul_i32 s39, s38, 37")
    A("  s_lshr_b32 s39, s39, 8")
    A("  s_mul_i32 s40, s39, 7")
    A("  s_sub_u32 s40, s38, s40")
    A("  s_and_b32 s41, s3, 1")
    A("  s_lshl_b32 s41, s41, 2")
    A(f"  s_add_u32 s{stb}, s41, s39")
    A("  s_lshr_b32 s41, s3, 1")
    A("  s_mul_i32 s41, s41, 7")
    A("  s_add_u32 s41, s41, s40")
    A(f"  s_lshl_b32 s{sf0}, s41, 6")
    A(f"  s_and_b32 s{sm}, s{sw}, 1")
    A(f"  v_lshrrev_b32 v{vt0}, 3, v{vl}")
    A(f"  v_bfe_u32 v{vt1}, v{vl}, 4, 1")
    A(f"  s_lshl_b32 s38, s{sm}, 1")
    A(f"  v_bfe_u32 v{vt2}, v{vl}, 1, 2")
    A(f"  v_or_b32 v{vt1}, s38, v{vt1}")
    A(f"  v_xor_b32 v{vt1}, v{vt1}, v{vt2}")
    A(f"  v_and_b32 v{vt2}, 1, v{vl}")
    A(f"  v_lshlrev_b32 v{vt1}, 5, v{vt1}")
    A(f"  v_lshl_add_u32 v{vt1}, v{vt2}, 4, v{vt1}")
    A(f"  s_movk_i32 s38, 3584")
    A(f"  v_mad_u32_u24 v{vWoff}, v{vt0}, s38, v{vt1}")
    A(f"  s_lshl_b32 s42, s{stb}, 3")
    A(f"  s_add_u32 s42, s42, s{sw}")
    A(f"  s_lshl_b32 s39, s42, 15")
    A(f"  v_lshlrev_b32 v{vt0}, 4, v{vl}")
    A(f"  v_add_u32 v{vH}, s39, v{vt0}")
    A(f"  s_lshr_b32 s38, s{sw}, 1")
    A(f"  s_mul_i32 s{sWo}, s38, {16*3584}")
    A(f"  s_lshl_b32 s39, s{sf0}, 1")
    A(f"  s_add_u32 s{sWo}, s{sWo}, s39")
    A(f"  s_lshl_b32 s{sM0}, s38, 11")
    A(f"  s_lshl_b32 s39, s{sm}, 16")
    A(f"  s_add_u32 s{sM0}, s{sM0}, s39")
    A(f"  s_mov_b32 s{sHo}, 0")
    A("  s_waitcnt lgkmcnt(0)")
    A(f"  s_cmp_eq_u32 s{sm}, 0")
    A(f"  s_cselect_b32 s{sW}, s4, s6")
    A(f"  s_cselect_b32 s{sW+1}, s5, s7")
    A(f"  s_mov_b32 s{sW+2}, {512*1792*2}")
    A(f"  s_mov_b32 s{sW+3}, 0x20000")
    srd(A, sH, 20, WS_H2, SZ2M)
    def issue(st):
        for ii in range(2):
            A(f"  s_add_u32 m0, s{sM0}, {st*64*128 + ii*1024}")
            if st or ii:
                inc = 8*3584 if ii else (64-8)*3584
                A(f"  s_add_u32 s{sWo}, s{sWo}, {inc}")
            else:
                A("  s_nop 0")
            A(f"  buffer_load_dwordx4 v{vWoff}, {sr(sW,4)}, s{sWo} offen lds")
        for qq in range(4):
            q = 4*st+qq
            A(f"  buffer_load_dwordx4 {ar(4*q,4)}, v{vH}, {sr(sH,4)}, s{sHo} offen offset:{qq*1024}")
        if st < 7:
            A(f"  s_add_u32 s{sHo}, s{sHo}, 4096")
    issue(0)
    srd(A, sACT, 20, WS_ACT, SZ_ACT)
    A(f"  v_bfe_u32 v{vt1}, v{vl}, 2, 2")
    A(f"  v_lshrrev_b32 v{vt2}, 5, v{vl}")
    A(f"  v_lshl_add_u32 v{vt2}, v{vt2}, 3, v{vt1}")
    A(f"  v_bfe_u32 v{vt3}, v{vl}, 4, 1")
    A(f"  v_lshlrev_b32 v{vt2}, 7, v{vt2}")
    A(f"  v_lshl_add_u32 v{vt2}, v{vt3}, 16, v{vt2}")
    A(f"  v_lshrrev_b32 v{vt1}, 1, v{vt1}")
    A(f"  v_lshl_or_b32 v{vt1}, v{vt3}, 1, v{vt1}")
    A(f"  v_and_b32 v{vt3}, 1, v{vl}")
    A(f"  v_lshl_add_u32 v{vt2}, v{vt3}, 4, v{vt2}")
    A(f"  v_bfe_u32 v{vt3}, v{vl}, 1, 1")
    A(f"  v_lshl_add_u32 v{vt2}, v{vt3}, 3, v{vt2}")
    for tau in range(4):
        A(f"  v_xor_b32 v{vt3}, {tau}, v{vt1}")
        A(f"  v_lshl_add_u32 v{vA+tau}, v{vt3}, 5, v{vt2}")
    A(f"  s_mul_i32 s38, s42, 112")
    A(f"  s_lshr_b32 s39, s{sf0}, 4")
    A(f"  s_add_u32 s38, s38, s39")
    A(f"  s_lshl_b32 s38, s38, 10")
    A(f"  v_add_u32 v{vAct}, s38, v{vt0}")
    for st in range(1, AHEAD):
        issue(st)
    def rd(q, tau):
        buf = q & 1
        return [f"  ds_read_b64_tr_b16 {vr(vAf+buf*16+tau*4+r*2,2)}, v{vA+tau} offset:{q*2048+r*512}" for r in range(2)]
    ST.stamp()
    issued = AHEAD
    def wait_stage(st):
        A(f"  s_waitcnt vmcnt({6*(issued-1-st)})")
        A("  s_barrier")
    wait_stage(0)
    ST.stamp()
    issue(issued); issued += 1
    for tau in range(4):
        for s in rd(0, tau): A(s)
    nout = 8
    for q in range(32):
        nxt = q+1 < 32
        if nxt and (q+1) % 4 == 0:
            st = (q+1)//4
            wait_stage(st)
            if st in (2,4,6): ST.stamp()
            if issued < 8:
                issue(issued); issued += 1
        buf = q & 1
        for tau in range(4):
            A(f"  s_waitcnt lgkmcnt({nout-2})")
            nout -= 2
            c = "0" if q == 0 else vr(vAcc+16*tau,16)
            A(f"  v_mfma_f32_32x32x16_bf16 {vr(vAcc+16*tau,16)}, {vr(vAf+buf*16+tau*4,4)}, {ar(4*q,4)}, {c}")
            if nxt:
                for s in rd(q+1, tau): A(s)
                nout += 2
    A("  s_nop 15")
    ST.stamp()
    A("  s_mov_b32 s38, 0xbfb8aa3b   ; -log2(e)")
    for tau in range(4):
        g = vAcc+16*tau
        u = g+8
        E = vAf if (tau & 1) == 0 else vAf+16
        for r in range(8):
            A(f"  v_mul_f32 v{E+r}, s38, v{g+r}")
        for r in range(8):
            A(f"  v_exp_f32 v{E+r}, v{E+r}")
        for r in range(8):
            A(f"  v_mul_f32 v{u+r}, v{g+r}, v{u+r}")
        for r in range(8):
            A(f"  v_add_f32 v{E+r}, 1.0, v{E+r}")
        for r in range(8):
            A(f"  v_rcp_f32 v{E+r}, v{E+r}")
        A("  s_nop 0")
        for r in range(8):
            A(f"  v_mul_f32 v{u+r}, v{u+r}, v{E+r}")
        for i in range(4):
            A(f"  v_cvt_pk_bf16_f32 v{E+8+i}, v{u+2*i}, v{u+2*i+1}")
        A(f"  buffer_store_dwordx4 {vr(E+8,4)}, v{vAct}, {sr(sACT,4)}, 0 offen offset:{tau*1024}{STM()}")
    A(f"  s_branch {name}_end")
    A(f"{name}_helper:")
    A("  s_cmp_ge_u32 s2, 256")
    A(f"  s_cbranch_scc1 {name}_end")
    if PREFETCH_WD:
        A(f"  s_load_dwordx2 s[4:5], s[0:1], {KA['wd']}")
        A("  s_sub_u32 s3, s2, 224")
        A("  s_lshr_b32 s3, s3, 3")
        A("  s_mul_i32 s3, s3, 458752")
        A(f"  v_lshlrev_b32 v1, 7, v0")
        A("  s_waitcnt lgkmcnt(0)")
        srd(A, 8, 4, 0, 1792*512*2)
        for i in range(7):
            A(f"  buffer_load_dword v{2+i}, v1, s[8:11], s3 offen")
            if i < 6:
                A("  s_add_u32 s3, s3, 65536")
        A("  s_waitcnt vmcnt(0)")
    A(f"{name}_end:")
    ST.flush(2)
    A("  s_endpgm")
    return dict(name=name, grid=256 if PREFETCH_WD else 224, block=512, lds=LDS, nvgpr=256, accum=128)
```

```python
from common import *

def gen_k5(A, name="gemm2_kernel", kidx=4, x1_layout="row", D=12):
    NK = 28
    RING = 4*D*2048
    EX = 0
    LDS = max(RING, 65536)
    kernel_header(A, name)
    ST = Stamper(A, kidx); ST.stamp()
    sW, sACT, sX1, sMOD, sOUT = 8, 12, 16, 20, 24
    sw, sLds, sWo, sK = 30, 31, 32, 33
    stb, sdb = 34, 35
    A("  s_cmp_ge_u32 s2, 256")
    A(f"  s_cbranch_scc1 {name}_end")
    A(f"  s_load_dwordx2 s[4:5], s[0:1], {KA['wd']}")
    A(f"  s_load_dwordx2 s[6:7], s[0:1], {KA['ws']}")
    A(f"  s_load_dwordx2 s[28:29], s[0:1], {KA['out']}")
    vl, vWoff, vA0, vA1, vB0, vB1, vXO, vG, vEXw, vEXr, vt0, vt1, vt2 = 1,2,3,4,5,6,7,8,9,10,11,12,13
    vX1 = 16
    vGB = 24
    vAf = 40
    vB  = 56
    vAcc = vB + max(D*8,64)
    assert vAcc + 64 <= 256
    A(f"  v_and_b32 v{vl}, 63, v0")
    A(f"  v_lshrrev_b32 v{vt0}, 6, v0")
    A("  s_nop 0")
    A(f"  v_readfirstlane_b32 s{sw}, v{vt0}")
    A("  s_and_b32 s3, s2, 7")
    A("  s_lshr_b32 s36, s2, 3")
    A(f"  s_and_b32 s{sdb}, s36, 7")
    A("  s_lshr_b32 s36, s36, 3")
    A("  s_lshl_b32 s3, s3, 2")
    A(f"  s_add_u32 s{stb}, s3, s36")
    A(f"  v_lshrrev_b32 v{vt0}, 3, v{vl}")
    A(f"  v_lshrrev_b32 v{vt1}, 1, v{vt0}")
    A(f"  v_lshrrev_b32 v{vt2}, 2, v{vl}")
    A(f"  v_xor_b32 v{vt1}, v{vt1}, v{vt2}")
    A(f"  v_and_b32 v{vt1}, 1, v{vt1}")
    A(f"  v_lshlrev_b32 v{vt1}, 6, v{vt1}")
    A(f"  v_and_b32 v{vt2}, 3, v{vl}")
    A(f"  v_lshl_add_u32 v{vt1}, v{vt2}, 4, v{vt1}")
    A(f"  v_lshl_add_u32 v{vWoff}, v{vt0}, 10, v{vt1}")
    A(f"  v_lshrrev_b32 v{vt0}, 5, v{vl}")
    A(f"  v_lshlrev_b32 v{vt0}, 3, v{vt0}")
    A(f"  v_bfe_u32 v{vt1}, v{vl}, 2, 2")
    A(f"  v_add_u32 v{vt0}, v{vt0}, v{vt1}")
    A(f"  v_lshlrev_b32 v{vA0}, 7, v{vt0}")
    A(f"  v_lshrrev_b32 v{vt1}, 1, v{vt1}")
    A(f"  v_lshlrev_b32 v{vt1}, 6, v{vt1}")
    A(f"  v_and_b32 v{vt0}, 1, v{vl}")
    A(f"  v_lshlrev_b32 v{vt0}, 5, v{vt0}")
    A(f"  v_bfe_u32 v{vt2}, v{vl}, 1, 1")
    A(f"  v_lshl_add_u32 v{vt0}, v{vt2}, 3, v{vt0}")
    A(f"  v_bfe_u32 v{vt2}, v{vl}, 4, 1")
    A(f"  v_lshl_add_u32 v{vt0}, v{vt2}, 4, v{vt0}")
    A(f"  v_add_u32 v{vA0}, v{vA0}, v{vt0}")
    A(f"  s_mul_i32 s{sLds}, s{sw}, {D*2048}")
    A(f"  v_add_u32 v{vA0}, s{sLds}, v{vA0}")
    A(f"  v_xor_b32 v{vt2}, 64, v{vt1}")
    A(f"  v_add_u32 v{vA1}, v{vA0}, v{vt2}")
    A(f"  v_add_u32 v{vA0}, v{vA0}, v{vt1}")
    A(f"  s_lshl_b32 s36, s{stb}, 1")
    A(f"  s_mul_i32 s36, s36, 112")
    A(f"  s_mul_i32 s37, s{sw}, 28")
    A(f"  s_add_u32 s36, s36, s37")
    A(f"  s_lshl_b32 s36, s36, 10")
    A(f"  v_lshlrev_b32 v{vt0}, 4, v{vl}")
    A(f"  v_add_u32 v{vB0}, s36, v{vt0}")
    A(f"  v_add_u32 v{vB1}, {112*1024}, v{vB0}")
    A(f"  s_lshl_b32 s36, s{sw}, 12")
    A(f"  s_add_u32 s36, s36, {EX}")
    A(f"  v_add_u32 v{vEXw}, s36, v{vt0}")
    A(f"  s_lshl_b32 s36, s{sw}, 14")
    A(f"  s_add_u32 s36, s36, {EX}")
    A(f"  v_add_u32 v{vEXr}, s36, v{vt0}")
    A(f"  s_and_b32 s36, s{sw}, 1")
    A(f"  s_lshl_b32 s36, s36, 5")
    A(f"  s_lshl_b32 s37, s{stb}, 6")
    A(f"  s_add_u32 s36, s36, s37")
    A(f"  v_and_b32 v{vt0}, 31, v{vl}")
    A(f"  v_add_u32 v{vt0}, s36, v{vt0}")
    A(f"  s_lshr_b32 s36, s{sw}, 1")
    A(f"  s_lshl_b32 s36, s36, 5")
    A(f"  s_lshl_b32 s37, s{sdb}, 6")
    A(f"  s_add_u32 s36, s36, s37")
    A(f"  v_lshrrev_b32 v{vt1}, 5, v{vl}")
    A(f"  v_lshlrev_b32 v{vt1}, 4, v{vt1}")
    A(f"  v_add_u32 v{vt1}, s36, v{vt1}")
    A(f"  v_lshlrev_b32 v{vXO}, 10, v{vt0}")
    A(f"  v_lshl_add_u32 v{vXO}, v{vt1}, 1, v{vXO}")
    A(f"  v_lshlrev_b32 v{vG}, 2, v{vt1}")
    A("  s_waitcnt lgkmcnt(0)")
    srd(A, sW, 4, 0, 1792*512*2)
    srd(A, sACT, 6, WS_ACT, SZ_ACT)
    srd(A, sX1, 6, WS_X1, SZ2M)
    srd(A, sMOD, 6, WS_MOD + 5*512*4, 512*4)
    srd(A, sOUT, 28, 0, SZ2M)
    A(f"  s_mul_i32 s{sWo}, s{sw}, {16*28*1024}")
    A(f"  s_lshl_b32 s36, s{sdb}, 7")
    A(f"  s_add_u32 s{sWo}, s{sWo}, s36")
    A(f"  s_sub_u32 s{sWo}, s{sWo}, 8192")
    A(f"  s_mov_b32 s{sK}, 0")
    A(f"  buffer_load_dwordx4 {vr(vX1,4)}, v{vXO}, {sr(sX1,4)}, 0 offen")
    A(f"  buffer_load_dwordx4 {vr(vX1+4,4)}, v{vXO}, {sr(sX1,4)}, 0 offen offset:16")
    for i in range(4):
        A(f"  buffer_load_dwordx4 {vr(vGB+4*i,4)}, v{vG}, {sr(sMOD,4)}, 0 offen offset:{16*i}")
    def issue(p):
        slot = p % D
        for ii in range(2):
            A(f"  s_add_u32 m0, s{sLds}, {slot*2048+ii*1024}")
            A(f"  s_add_u32 s{sWo}, s{sWo}, 8192")
            A(f"  buffer_load_dwordx4 v{vWoff}, {sr(sW,4)}, s{sWo} offen lds")
        for tt in range(2):
            A(f"  buffer_load_dwordx4 {vr(vB+slot*8+tt*4,4)}, v{vB0+tt}, {sr(sACT,4)}, s{sK} offen offset:{(p&3)*1024}")
        if (p & 3) == 3:
            A(f"  s_add_u32 s{sK}, s{sK}, 4096")
    def trread(p):
        slot = p % D
        buf = p & 1
        for tau in range(2):
            for rd in range(2):
                A(f"  ds_read_b64_tr_b16 {vr(vAf+buf*8+tau*4+rd*2,2)}, v{vA0+tau} offset:{slot*2048+rd*512}")
    for p in range(D):
        issue(p)
    ST.stamp()
    A(f"  s_waitcnt vmcnt({4*(D-1)})")
    ST.stamp()
    trread(0)
    for kk in range(NK):
        if kk+1 < NK:
            n = 4*(min(kk+D-1, NK-1) - (kk+1))
            A(f"  s_waitcnt vmcnt({n})")
            trread(kk+1)
            A("  s_waitcnt lgkmcnt(4)")
        else:
            A("  s_waitcnt lgkmcnt(0)")
        slot = kk % D
        buf = kk & 1
        for tau in range(2):
            for tt in range(2):
                o = 2*tau+tt
                cc = "0" if kk == 0 else vr(vAcc+16*o,16)
                A(f"  v_mfma_f32_32x32x16_bf16 {vr(vAcc+16*o,16)}, {vr(vAf+buf*8+tau*4,4)}, {vr(vB+slot*8+tt*4,4)}, {cc}")
        if kk+D < NK:
            issue(kk+D)
        if kk in (9,18): ST.stamp()
    A("  s_nop 15")
    ST.stamp()
    A("  s_barrier")
    for o in range(4):
        for a in range(4):
            A(f"  ds_write_b128 v{vEXw}, {vr(vAcc+16*o+4*a,4)} offset:{o*16384+a*1024}")
    A("  s_waitcnt lgkmcnt(0)")
    A("  s_barrier")
    vT = vB
    for s in range(4):
        for a in range(4):
            A(f"  ds_read_b128 {vr(vT+16*s+4*a,4)}, v{vEXr} offset:{s*4096+a*1024}")
    A("  s_waitcnt lgkmcnt(8)")
    for r in range(16):
        A(f"  v_add_f32 v{vT+r}, v{vT+r}, v{vT+16+r}")
    A("  s_waitcnt lgkmcnt(0)")
    for r in range(16):
        A(f"  v_add_f32 v{vT+32+r}, v{vT+32+r}, v{vT+48+r}")
    for r in range(16):
        A(f"  v_add_f32 v{vT+r}, v{vT+r}, v{vT+32+r}")
    vU = vT + 16
    for i in range(8):
        A(f"  v_lshlrev_b32 v{vU+2*i}, 16, v{vX1+i}")
        A(f"  v_and_b32 v{vU+2*i+1}, 0xffff0000, v{vX1+i}")
    for r in range(16):
        A(f"  v_fma_f32 v{vT+r}, v{vT+r}, v{vGB+r}, v{vU+r}")
    for i in range(8):
        A(f"  v_cvt_pk_bf16_f32 v{vU+i}, v{vT+2*i}, v{vT+2*i+1}")
    A(f"  buffer_store_dwordx4 {vr(vU,4)}, v{vXO}, {sr(sOUT,4)}, 0 offen{STM()}")
    A(f"  buffer_store_dwordx4 {vr(vU+4,4)}, v{vXO}, {sr(sOUT,4)}, 0 offen offset:16{STM()}")
    A(f"{name}_end:")
    ST.flush(2)
    A("  s_endpgm")
    return dict(name=name, grid=256, block=256, lds=LDS, nvgpr=256, accum=256)
```

```python
import sys, os
from common import *
import common
from k1 import gen_k1
from k2 import gen_k2
from k3 import gen_k3
from k4 import gen_k4
from k5 import gen_k5

HEADER = open('adaLN_cond__ssm_conv_h3__swiglu_ffn__prompt.s.ref').read().split("; Override launch geometry")[0]

def build(kernels, extra_header=""):
    body = Asm()
    infos = []
    for g in kernels:
        infos.append(g(body))
    out = HEADER
    for inf in infos:
        out += f"; @launch kernel={inf['name']} grid=({inf['grid']},1,1) block=({inf['block']},1,1) lds={inf['lds']}\n"
    out += extra_header
    out += '.amdgcn_target "amdgcn-amd-amdhsa--gfx950"\n'
    out += body.text()
    d = Asm()
    seen = set()
    for inf in infos:
        if inf['name'] in seen: continue
        seen.add(inf['name'])
        kernel_desc(d, inf['name'], inf['nvgpr'], inf['accum'])
    out += d.text()
    return out

def E(k, d):
    return type(d)(int(os.environ.get(k, d)))

def default_list():
    return [lambda A: gen_k1(A),
            lambda A: gen_k2(A, PREFETCH=E("PF_GU", 1)),
            lambda A: gen_k3(A),
            lambda A: gen_k4(A, AHEAD=E("AHEAD", 3), PREFETCH_WD=E("PF_WD", 1)),
            lambda A: gen_k5(A, D=E("D5", 12))]

if __name__ == "__main__":
    if os.environ.get("STAMPS"): common.STAMPS = True
    dst = sys.argv[1] if len(sys.argv) > 1 else 'adaLN_cond__ssm_conv_h3__swiglu_ffn__prompt.s'
    txt = build(default_list())
    open(dst, 'w').write(txt)
    print("wrote", dst, len(txt), "bytes")
```

```python
import sys, os
import gen as G
from common import *
def empty(A, name):
    kernel_header(A, name)
    A("  s_endpgm")
    return dict(name=name, grid=256, block=256, lds=0, nvgpr=8, accum=8)
base = G.default_list()
kind = sys.argv[1]
if kind == "e4":
    L = base + [lambda A, i=i: empty(A, f"empty{i}_kernel") for i in range(4)]
elif kind == "e4pre":
    L = [lambda A, i=i: empty(A, f"empty{i}_kernel") for i in range(4)] + base
else:
    L = base
open(sys.argv[2], 'w').write(G.build(L))
```

```python
from common import *

def gen_k2(A, name="conv_kernel", kidx=1, PREFETCH=True):
    XR = [0, 4608]
    HC = 9216
    HCH = 4*4160
    EX = 43008
    LDS = EX + 32768
    kernel_header(A, name)
    ST = Stamper(A, kidx); ST.stamp()
    sKV, sH, sY = 8, 12, 16
    sw, sc, sch, sqh, sD = 30, 31, 32, 33, 34
    A("  s_cmp_ge_u32 s2, 256")
    A(f"  s_cbranch_scc1 {name}_mod")
    A(f"  s_load_dwordx4 s[4:7], s[0:1], {KA['ssm']}")
    A(f"  s_load_dwordx2 s[20:21], s[0:1], {KA['ws']}")
    vl, vt0, vt1, vt2, vt3 = 1, 2, 3, 4, 5
    vT16, vZ, vH, vEXw, vEXr, vYo, vHCw = 6, 7, 8, 9, 10, 11, 12
    vHD = 16
    vZero = 20
    vL = 24
    vE = 48
    vAcc = 56
    vZf = 88
    vHf = 152
    A(f"  v_and_b32 v{vl}, 63, v0")
    A(f"  v_lshrrev_b32 v{vt0}, 6, v0")
    A(f"  v_lshlrev_b32 v{vT16}, 4, v0")
    A(f"  v_readfirstlane_b32 s{sw}, v{vt0}")
    A("  s_and_b32 s3, s2, 7")
    A("  s_lshl_b32 s3, s3, 5")
    A("  s_lshr_b32 s35, s2, 3")
    A(f"  s_add_u32 s{sc}, s3, s35")
    A(f"  s_lshr_b32 s{sch}, s{sw}, 1")
    A(f"  s_and_b32 s{sqh}, s{sw}, 1")
    A("  s_waitcnt lgkmcnt(0)")
    A(f"  s_lshl_b32 s35, s{sc}, 2")
    A(f"  s_load_dword s{sD}, s[6:7], s35")
    srd(A, sH, 4, 0, SZ2M)
    srd(A, sKV, 20, WS_KVR, SZ2M)
    srd(A, sY, 20, WS_YL, SZ2M)
    A(f"  s_lshl_b32 s36, s{sc}, 13")
    A(f"  s_add_u32 s37, s36, 4096")
    for ch in range(2):
        for k in range(3):
            A(f"  buffer_load_dwordx4 {vr(vL+12*ch+4*k,4)}, v{vT16}, {sr(sH,4)}, s{36+ch} offen offset:{4*k}")
    A(f"  v_lshlrev_b32 v{vt0}, 4, v{vl}")
    A(f"  s_lshl_b32 s38, s{sw}, 11")
    A(f"  s_add_u32 s38, s38, s36")
    A(f"  s_mul_i32 s39, s{sch}, 4608")
    A(f"  s_lshl_b32 s40, s{sqh}, 11")
    A(f"  s_add_u32 s39, s39, s40")
    A(f"  s_mov_b32 m0, s39")
    A(f"  s_add_u32 s40, s38, 1024")
    A(f"  buffer_load_dwordx4 v{vt0}, {sr(sKV,4)}, s38 offen lds")
    A(f"  s_add_u32 m0, s39, 1024")
    A("  s_nop 0")
    A(f"  buffer_load_dwordx4 v{vt0}, {sr(sKV,4)}, s40 offen lds")
    npf = 0
    if PREFETCH:
        A(f"  s_load_dwordx4 s[44:47], s[0:1], {KA['wg']}")
        A(f"  v_and_b32 v{vt1}, 64, v0")
        A(f"  v_add_u32 v{vt1}, v{vt1}, v{vl}")
        A(f"  v_mul_u32_u24 v{vt2}, 147, v{vt1}")
        A(f"  v_lshrrev_b32 v{vt2}, 10, v{vt2}")
        A(f"  v_mul_u32_u24 v{vt3}, 7, v{vt2}")
        A(f"  v_sub_u32 v{vt3}, v{vt1}, v{vt3}")
        A(f"  s_lshr_b32 s48, s2, 3")
        A(f"  s_lshl_b32 s48, s48, 4")
        A(f"  v_add_u32 v{vt2}, s48, v{vt2}")
        A(f"  v_mul_u32_u24 v{vt2}, 3584, v{vt2}")
        A(f"  v_lshl_add_u32 v13, v{vt3}, 7, v{vt2}")
        if PREFETCH == 2:
            A(f"  s_add_u32 s48, s2, 2")
            A(f"  s_bfe_u32 s48, s48, 0x20001")
        else:
            A(f"  s_bfe_u32 s48, s2, 0x20001")
        A(f"  s_mul_i32 s48, s48, 896")
        A("  s_waitcnt lgkmcnt(0)")
        A(f"  s_cmp_eq_u32 s{sch}, 0")
        A(f"  s_cselect_b32 s52, s44, s46")
        A(f"  s_cselect_b32 s53, s45, s47")
        A(f"  s_mov_b32 s54, {512*1792*2}")
        A(f"  s_mov_b32 s55, 0x20000")
        A(f"  buffer_load_dword v14, v13, s[52:55], s48 offen")
        npf = 1
    for i in range(4):
        A(f"  v_mov_b32 v{vZero+i}, 0")
    A(f"  v_lshrrev_b32 v{vt1}, 5, v{vl}")
    A(f"  v_mul_u32_u24 v{vt1}, 4608, v{vt1}")
    A(f"  v_and_b32 v{vt2}, 31, v{vl}")
    A(f"  v_lshl_add_u32 v{vt1}, v{vt2}, 4, v{vt1}")
    A(f"  ds_write_b128 v{vt1}, {vr(vZero,4)} offset:4096")
    for i in range(32):
        A(f"  v_mov_b32 v{vAcc+i}, 0")
    A(f"  v_and_b32 v{vt0}, 15, v{vl}")
    A(f"  v_lshrrev_b32 v{vt1}, 4, v{vl}")
    A(f"  v_lshlrev_b32 v{vt2}, 5, v{vt0}")
    A(f"  v_sub_u32 v{vt2}, 480, v{vt2}")
    A(f"  v_lshl_add_u32 v{vt2}, v{vt1}, 4, v{vt2}")
    A(f"  s_mul_i32 s39, s{sch}, 4608")
    A(f"  s_lshl_b32 s40, s{sqh}, 8")
    A(f"  s_add_u32 s39, s39, s40")
    A(f"  v_add_u32 v{vZ}, s39, v{vt2}")
    A(f"  v_add_u32 v{vt2}, 1, v{vt0}")
    A(f"  v_and_b32 v{vt3}, 3, v{vt2}")
    A(f"  v_sub_u32 v{vt2}, v{vt2}, v{vt3}")
    A(f"  v_lshl_add_u32 v{vt2}, v{vt1}, 3, v{vt2}")
    A(f"  v_lshlrev_b32 v{vt2}, 1, v{vt2}")
    A(f"  v_mul_u32_u24 v{vt3}, 4160, v{vt3}")
    A(f"  v_add_u32 v{vt2}, v{vt2}, v{vt3}")
    A(f"  s_mul_i32 s39, s{sch}, {HCH}")
    A(f"  s_add_u32 s39, s39, s40")
    A(f"  s_add_u32 s39, s39, {HC}")
    A(f"  v_add_u32 v{vH}, s39, v{vt2}")
    A(f"  v_lshlrev_b32 v{vt2}, 4, v{vl}")
    A(f"  s_lshl_b32 s39, s{sw}, 13")
    A(f"  s_add_u32 s39, s39, {EX}")
    A(f"  v_add_u32 v{vEXw}, s39, v{vt2}")
    A(f"  s_lshl_b32 s39, s{sw}, 11")
    A(f"  s_add_u32 s39, s39, {EX}")
    A(f"  v_add_u32 v{vEXr}, s39, v{vt2}")
    A(f"  s_lshr_b32 s39, s{sc}, 2")
    A(f"  s_lshl_b32 s39, s39, 15")
    A(f"  s_and_b32 s40, s{sc}, 3")
    A(f"  s_lshl_b32 s40, s40, 2")
    A(f"  s_add_u32 s39, s39, s40")
    A(f"  s_lshl_b32 s40, s{sw}, 13")
    A(f"  s_add_u32 s39, s39, s40")
    A(f"  v_lshl_add_u32 v{vt2}, v{vt1}, 6, v{vt0}")
    A(f"  v_lshlrev_b32 v{vt2}, 4, v{vt2}")
    A(f"  v_add_u32 v{vYo}, s39, v{vt2}")
    A("  s_waitcnt lgkmcnt(0)")
    A(f"  s_lshr_b32 s39, s{sD}, 16")
    A(f"  s_and_b32 s40, s{sD}, 0xffff")
    A(f"  s_cmp_eq_u32 s{sch}, 0")
    A(f"  s_cselect_b32 s39, s40, s39")
    A(f"  s_lshl_b32 s40, s39, 16")
    A(f"  v_lshlrev_b32 v{vt2}, 3, v{vt1}")
    A(f"  v_add_u32 v{vt2}, v{vt2}, v{vt0}")
    A(f"  v_sub_u32 v{vt2}, 15, v{vt2}")
    A(f"  v_and_b32 v{vt3}, 1, v{vt2}")
    A(f"  v_cmp_eq_u32 vcc, 1, v{vt3}")
    A(f"  v_mov_b32 v{vt0}, s39")
    A(f"  v_mov_b32 v{vt1}, s40")
    A(f"  v_cndmask_b32 v{vt3}, v{vt0}, v{vt1}, vcc")
    A(f"  v_ashrrev_i32 v{vt2}, 1, v{vt2}")
    for i in range(4):
        A(f"  v_cmp_eq_u32 vcc, {i}, v{vt2}")
        A("  s_nop 1")
        A(f"  v_cndmask_b32 v{vHD+i}, 0, v{vt3}, vcc")
    A(f"  v_add_u32 v{vHCw}, {HC+32}, v{vT16}")
    for ch in range(2):
        La, Lb, Lc = vL+12*ch, vL+12*ch+4, vL+12*ch+8
        A(f"  s_waitcnt vmcnt({(5 if ch==0 else 2)+npf})")
        for i in range(4):
            A(f"  v_alignbit_b32 v{vE+i}, v{Lb+i}, v{La+i}, 16")
        for i in range(4):
            A(f"  v_alignbit_b32 v{vE+4+i}, v{Lc+i}, v{Lb+i}, 16")
        base = ch*HCH
        A(f"  ds_write_b128 v{vHCw}, {vr(La,4)} offset:{base}")
        A(f"  ds_write_b128 v{vHCw}, {vr(Lb,4)} offset:{base+2*4160}")
        A(f"  ds_write_b128 v{vHCw}, {vr(vE,4)} offset:{base+4160}")
        A(f"  ds_write_b128 v{vHCw}, {vr(vE+4,4)} offset:{base+3*4160}")
    ST.stamp()
    A(f"  v_cmp_eq_u32 vcc, 0, v0")
    A(f"  s_and_saveexec_b64 s[42:43], vcc")
    A(f"  s_cbranch_execz {name}_noneg")
    A(f"  v_mov_b32 v{vt0}, {HC}")
    for ch in range(2):
        La = vL+12*ch
        base = ch*HCH
        for phi in range(4):
            A(f"  ds_write_b128 v{vt0}, {vr(vZero,4)} offset:{base+phi*4160}")
        A(f"  ds_write_b128 v{vt0}, {vr(vZero,4)} offset:{base+16}")
        T = vZf + 16*ch
        for i in range(12):
            A(f"  v_mov_b32 v{T+i}, 0")
        A(f"  v_lshlrev_b32 v{T+3}, 16, v{La}")
        A(f"  v_mov_b32 v{T+7}, v{La}")
        A(f"  v_lshlrev_b32 v{T+10}, 16, v{La}")
        A(f"  v_alignbit_b32 v{T+11}, v{La+1}, v{La}, 16")
        A(f"  ds_write_b128 v{vt0}, {vr(T,4)} offset:{base+4160+16}")
        A(f"  ds_write_b128 v{vt0}, {vr(T+4,4)} offset:{base+2*4160+16}")
        A(f"  ds_write_b128 v{vt0}, {vr(T+8,4)} offset:{base+3*4160+16}")
    A(f"{name}_noneg:")
    A(f"  s_mov_b64 exec, s[42:43]")
    A(f"  s_waitcnt vmcnt({npf}) lgkmcnt(0)")
    A("  s_barrier")
    ST.stamp()
    def reads(it):
        buf = it & 1
        L = []
        for G in range(8):
            L.append(f"  ds_read_b128 {vr(vZf+32*buf+4*G,4)}, v{vZ} offset:{64*it+512*(7-G)}")
        for m in range(8):
            for hh in range(2):
                L.append(f"  ds_read_b64 {vr(vHf+32*buf+4*m+2*hh,2)}, v{vH} offset:{64*it+512*m+8*hh}")
        return L
    for s in reads(0):
        A(s)
    for it in range(4):
        buf = it & 1
        A("  s_waitcnt lgkmcnt(0)")
        nxt = reads(it+1) if it < 3 else []
        if it == 0:
            A(f"  s_cmp_lg_u32 s{sqh}, 0")
            A(f"  s_cbranch_scc1 {name}_noD")
            for G in range(8):
                A(f"  v_mfma_f32_16x16x32_bf16 {vr(vAcc+4*G,4)}, {vr(vZf+4*G,4)}, {vr(vHD,4)}, {vr(vAcc+4*G,4)}")
            A(f"{name}_noD:")
        for m in range(8):
            for Gz in range(8-m):
                G = Gz+m
                A(f"  v_mfma_f32_16x16x32_bf16 {vr(vAcc+4*G,4)}, {vr(vZf+32*buf+4*Gz,4)}, {vr(vHf+32*buf+4*m,4)}, {vr(vAcc+4*G,4)}")
                if nxt:
                    A(nxt.pop(0))
    A("  s_nop 15")
    ST.stamp()
    for G in range(8):
        A(f"  ds_write_b128 v{vEXw}, {vr(vAcc+4*G,4)} offset:{G*1024}")
    A("  s_waitcnt lgkmcnt(0)")
    A("  s_barrier")
    vR = vZf
    for s in range(4):
        for gg in range(2):
            A(f"  ds_read_b128 {vr(vR+8*s+4*gg,4)}, v{vEXr} offset:{s*8192+gg*1024}")
    A("  s_waitcnt lgkmcnt(0)")
    for i in range(8):
        A(f"  v_add_f32 v{vR+i}, v{vR+i}, v{vR+8+i}")
        A(f"  v_add_f32 v{vR+16+i}, v{vR+16+i}, v{vR+24+i}")
    for i in range(8):
        A(f"  v_cvt_pk_bf16_f32 v{vR+8+i}, v{vR+i}, v{vR+16+i}")
    A("  s_movk_i32 s39, 4096")
    for gg in range(2):
        for r in range(4):
            so = "s39" if gg else "0"
            A(f"  buffer_store_dword v{vR+8+4*gg+r}, v{vYo}, {sr(sY,4)}, {so} offen offset:{256*r}{STM()}")
    A(f"  s_branch {name}_end")
    gen_mod_job(A, name)
    A(f"{name}_end:")
    ST.flush(2)
    A("  s_endpgm")
    return dict(name=name, grid=256+48, block=256, lds=LDS, nvgpr=224, accum=224)


def gen_mod_job(A, name):
    sC, sWM, sMOD = 8, 12, 16
    RED = 1024
    A(f"{name}_mod:")
    A("  s_cmp_ge_u32 s2, 304")
    A(f"  s_cbranch_scc1 {name}_end")
    A(f"  s_load_dwordx4 s[4:7], s[0:1], {KA['c']}")
    A(f"  s_load_dwordx2 s[20:21], s[0:1], {KA['ws']}")
    vt0, vt1, vt2, vWo, vCo = 1, 2, 3, 4, 5
    vW = 8
    vC = 72
    vS = 76
    vP = 84
    vT = 92
    A("  s_sub_u32 s3, s2, 256")
    A("  s_lshl_b32 s22, s3, 6")
    A(f"  v_and_b32 v{vt0}, 7, v0")
    A(f"  v_lshrrev_b32 v{vt1}, 3, v0")
    A(f"  s_mov_b32 s23, {16*6144}")
    A(f"  v_mul_lo_u32 v{vWo}, v{vt1}, s23")
    A(f"  v_lshl_add_u32 v{vWo}, v{vt0}, 4, v{vWo}")
    A(f"  v_lshlrev_b32 v{vCo}, 2, v0")
    A(f"  v_lshrrev_b32 v{vt2}, 6, v0")
    A("  s_lshl_b32 s24, s22, 1")
    A(f"  v_readfirstlane_b32 s25, v{vt2}")
    A("  s_waitcnt lgkmcnt(0)")
    srd(A, sC, 4, 0, 1024)
    srd(A, sWM, 6, 0, 512*3072*2)
    srd(A, sMOD, 20, WS_MOD, 3072*4)
    A(f"  buffer_load_dword v{vC}, v{vCo}, {sr(sC,4)}, 0 offen")
    for i in range(16):
        A(f"  buffer_load_dwordx4 {vr(vW+4*i,4)}, v{vWo}, {sr(sWM,4)}, s24 offen")
        if i < 15:
            A("  s_add_u32 s24, s24, 6144")
    A("  s_waitcnt vmcnt(16)")
    c0, c1, e0, e1 = vT, vT+1, vT+2, vT+3
    A(f"  v_lshlrev_b32 v{c0}, 16, v{vC}")
    A(f"  v_and_b32 v{c1}, 0xffff0000, v{vC}")
    A("  s_mov_b32 s26, 0xbfb8aa3b")
    A(f"  v_mul_f32 v{e0}, s26, v{c0}")
    A(f"  v_mul_f32 v{e1}, s26, v{c1}")
    A(f"  v_exp_f32 v{e0}, v{e0}")
    A(f"  v_exp_f32 v{e1}, v{e1}")
    A("  s_nop 0")
    A(f"  v_add_f32 v{e0}, 1.0, v{e0}")
    A(f"  v_add_f32 v{e1}, 1.0, v{e1}")
    A(f"  v_rcp_f32 v{e0}, v{e0}")
    A(f"  v_rcp_f32 v{e1}, v{e1}")
    A("  s_nop 0")
    A(f"  v_mul_f32 v{c0}, v{c0}, v{e0}")
    A(f"  v_mul_f32 v{c1}, v{c1}, v{e1}")
    A(f"  v_cvt_pk_bf16_f32 v{e0}, v{c0}, v{c1}")
    A(f"  ds_write_b32 v{vCo}, v{e0}")
    A("  s_waitcnt lgkmcnt(0)")
    A("  s_barrier")
    A(f"  v_lshlrev_b32 v{vt2}, 5, v{vt1}")
    A(f"  ds_read_b128 {vr(vS,4)}, v{vt2}")
    A(f"  ds_read_b128 {vr(vS+4,4)}, v{vt2} offset:16")
    A("  s_mov_b32 s26, 0x05040100")
    A("  s_mov_b32 s27, 0x07060302")
    for n in range(8):
        A(f"  v_mov_b32 v{vP+n}, 0")
    A("  s_waitcnt lgkmcnt(0)")
    for p in range(8):
        A(f"  s_waitcnt vmcnt({14-2*p})")
        ra, rb = vW+8*p, vW+8*p+4
        for a in range(4):
            A(f"  v_perm_b32 v{vT+2*a}, v{rb+a}, v{ra+a}, s26")
            A(f"  v_perm_b32 v{vT+2*a+1}, v{rb+a}, v{ra+a}, s27")
        for n in range(8):
            A(f"  v_dot2_f32_bf16 v{vP+n}, v{vT+n}, v{vS+p}, v{vP+n}")
    A("  s_nop 1")
    for i in range(4):
        A(f"  v_permlane32_swap_b32 v{vP+i}, v{vP+i+4}")
    A("  s_nop 1")
    for i in range(4):
        A(f"  v_add_f32 v{vP+i}, v{vP+i}, v{vP+i+4}")
    A("  s_nop 1")
    for i in range(2):
        A(f"  v_permlane16_swap_b32 v{vP+i}, v{vP+i+2}")
    A("  s_nop 1")
    for i in range(2):
        A(f"  v_add_f32 v{vP+i}, v{vP+i}, v{vP+i+2}")
    A("  s_nop 1")
    for i in range(2):
        A(f"  v_add_f32_dpp v{vP+i}, v{vP+i}, v{vP+i} row_ror:8 row_mask:0xf bank_mask:0xf")
    A(f"  v_bfe_u32 v{vt2}, v0, 4, 2")
    A(f"  v_lshlrev_b32 v{vt2}, 3, v{vt2}")
    A(f"  v_lshl_add_u32 v{vt2}, v{vt0}, 5, v{vt2}")
    A(f"  s_lshl_b32 s26, s25, 8")
    A(f"  s_add_u32 s26, s26, {RED}")
    A(f"  v_add_u32 v{vt2}, s26, v{vt2}")
    A(f"  v_and_b32 v{vt1}, 8, v0")
    A(f"  v_cmp_eq_u32 vcc, 0, v{vt1}")
    A(f"  s_and_saveexec_b64 s[28:29], vcc")
    A(f"  ds_write_b64 v{vt2}, {vr(vP,2)}")
    A(f"  s_mov_b64 exec, s[28:29]")
    A("  s_waitcnt lgkmcnt(0)")
    A("  s_barrier")
    A(f"  v_cmp_gt_u32 vcc, 64, v0")
    A(f"  s_and_saveexec_b64 s[28:29], vcc")
    A(f"  s_cbranch_execz {name}_end")
    for i in range(4):
        A(f"  ds_read_b32 v{vT+i}, v{vCo} offset:{RED+256*i}")
    A("  s_waitcnt lgkmcnt(0)")
    U = vT
    A(f"  v_add_f32 v{U}, v{U}, v{U+1}")
    A(f"  v_add_f32 v{U+2}, v{U+2}, v{U+3}")
    A(f"  v_add_f32 v{U}, v{U}, v{U+2}")
    A(f"  v_cvt_pk_bf16_f32 v{U}, v{U}, v{U}")
    A(f"  v_lshlrev_b32 v{U}, 16, v{U}")
    A(f"  s_lshr_b32 s26, s22, 9")
    A(f"  s_cmp_eq_u32 s26, 1")
    A(f"  s_cselect_b32 s27, 1, 0")
    A(f"  s_cmp_eq_u32 s26, 4")
    A(f"  s_cselect_b32 s27, 1, s27")
    A(f"  s_cmp_eq_u32 s27, 0")
    A(f"  s_cbranch_scc1 {name}_noone")
    A(f"  v_add_f32 v{U}, 1.0, v{U}")
    A(f"  v_cvt_pk_bf16_f32 v{U}, v{U}, v{U}")
    A(f"  v_lshlrev_b32 v{U}, 16, v{U}")
    A(f"{name}_noone:")
    A(f"  s_lshl_b32 s26, s22, 2")
    A(f"  buffer_store_dword v{U}, v{vCo}, {sr(sMOD,4)}, s26 offen{STM()}")
```

```python
from common import *

def gen_k4(A, name="gemm1_kernel", kidx=3, AHEAD=3, PREFETCH_WD=True):
    LDS = 131072
    kernel_header(A, name)
    ST = Stamper(A, kidx); ST.stamp()
    sW, sH, sACT = 8, 12, 16
    sw, sm, sWo, sM0, sf0, stb, sHo = 30, 31, 32, 33, 34, 35, 36
    A(f"  s_load_dwordx4 s[4:7], s[0:1], {KA['wg']}")
    A(f"  s_load_dwordx2 s[20:21], s[0:1], {KA['ws']}")
    A("  s_cmp_ge_u32 s2, 224")
    A(f"  s_cbranch_scc1 {name}_helper")
    vl, vWoff, vH, vAct, vt0, vt1, vt2, vt3 = 1,2,3,4,5,6,7,8
    vA = 10
    vAf = 16
    vAcc = 48
    A(f"  v_lshrrev_b32 v{vt0}, 6, v0")
    A(f"  v_and_b32 v{vl}, 63, v0")
    A(f"  v_readfirstlane_b32 s{sw}, v{vt0}")
    A("  s_and_b32 s3, s2, 7")
    A("  s_lshr_b32 s38, s2, 3")
    A("  s_mul_i32 s39, s38, 37")
    A("  s_lshr_b32 s39, s39, 8")
    A("  s_mul_i32 s40, s39, 7")
    A("  s_sub_u32 s40, s38, s40")
    A("  s_and_b32 s41, s3, 1")
    A("  s_lshl_b32 s41, s41, 2")
    A(f"  s_add_u32 s{stb}, s41, s39")
    A("  s_lshr_b32 s41, s3, 1")
    A("  s_mul_i32 s41, s41, 7")
    A("  s_add_u32 s41, s41, s40")
    A(f"  s_lshl_b32 s{sf0}, s41, 6")
    A(f"  s_and_b32 s{sm}, s{sw}, 1")
    A(f"  v_lshrrev_b32 v{vt0}, 3, v{vl}")
    A(f"  v_bfe_u32 v{vt1}, v{vl}, 4, 1")
    A(f"  s_lshl_b32 s38, s{sm}, 1")
    A(f"  v_bfe_u32 v{vt2}, v{vl}, 1, 2")
    A(f"  v_or_b32 v{vt1}, s38, v{vt1}")
    A(f"  v_xor_b32 v{vt1}, v{vt1}, v{vt2}")
    A(f"  v_and_b32 v{vt2}, 1, v{vl}")
    A(f"  v_lshlrev_b32 v{vt1}, 5, v{vt1}")
    A(f"  v_lshl_add_u32 v{vt1}, v{vt2}, 4, v{vt1}")
    A(f"  s_movk_i32 s38, 3584")
    A(f"  v_mad_u32_u24 v{vWoff}, v{vt0}, s38, v{vt1}")
    A(f"  s_lshl_b32 s42, s{stb}, 3")
    A(f"  s_add_u32 s42, s42, s{sw}")
    A(f"  s_lshl_b32 s39, s42, 15")
    A(f"  v_lshlrev_b32 v{vt0}, 4, v{vl}")
    A(f"  v_add_u32 v{vH}, s39, v{vt0}")
    A(f"  s_lshr_b32 s38, s{sw}, 1")
    A(f"  s_mul_i32 s{sWo}, s38, {16*3584}")
    A(f"  s_lshl_b32 s39, s{sf0}, 1")
    A(f"  s_add_u32 s{sWo}, s{sWo}, s39")
    A(f"  s_lshl_b32 s{sM0}, s38, 11")
    A(f"  s_lshl_b32 s39, s{sm}, 16")
    A(f"  s_add_u32 s{sM0}, s{sM0}, s39")
    A(f"  s_mov_b32 s{sHo}, 0")
    A("  s_waitcnt lgkmcnt(0)")
    A(f"  s_cmp_eq_u32 s{sm}, 0")
    A(f"  s_cselect_b32 s{sW}, s4, s6")
    A(f"  s_cselect_b32 s{sW+1}, s5, s7")
    A(f"  s_mov_b32 s{sW+2}, {512*1792*2}")
    A(f"  s_mov_b32 s{sW+3}, 0x20000")
    srd(A, sH, 20, WS_H2, SZ2M)
    def issue(st):
        for ii in range(2):
            A(f"  s_add_u32 m0, s{sM0}, {st*64*128 + ii*1024}")
            if st or ii:
                inc = 8*3584 if ii else (64-8)*3584
                A(f"  s_add_u32 s{sWo}, s{sWo}, {inc}")
            else:
                A("  s_nop 0")
            A(f"  buffer_load_dwordx4 v{vWoff}, {sr(sW,4)}, s{sWo} offen lds")
        for qq in range(4):
            q = 4*st+qq
            A(f"  buffer_load_dwordx4 {ar(4*q,4)}, v{vH}, {sr(sH,4)}, s{sHo} offen offset:{qq*1024}")
        if st < 7:
            A(f"  s_add_u32 s{sHo}, s{sHo}, 4096")
    issue(0)
    srd(A, sACT, 20, WS_ACT, SZ_ACT)
    A(f"  v_bfe_u32 v{vt1}, v{vl}, 2, 2")
    A(f"  v_lshrrev_b32 v{vt2}, 5, v{vl}")
    A(f"  v_lshl_add_u32 v{vt2}, v{vt2}, 3, v{vt1}")
    A(f"  v_bfe_u32 v{vt3}, v{vl}, 4, 1")
    A(f"  v_lshlrev_b32 v{vt2}, 7, v{vt2}")
    A(f"  v_lshl_add_u32 v{vt2}, v{vt3}, 16, v{vt2}")
    A(f"  v_lshrrev_b32 v{vt1}, 1, v{vt1}")
    A(f"  v_lshl_or_b32 v{vt1}, v{vt3}, 1, v{vt1}")
    A(f"  v_and_b32 v{vt3}, 1, v{vl}")
    A(f"  v_lshl_add_u32 v{vt2}, v{vt3}, 4, v{vt2}")
    A(f"  v_bfe_u32 v{vt3}, v{vl}, 1, 1")
    A(f"  v_lshl_add_u32 v{vt2}, v{vt3}, 3, v{vt2}")
    for tau in range(4):
        A(f"  v_xor_b32 v{vt3}, {tau}, v{vt1}")
        A(f"  v_lshl_add_u32 v{vA+tau}, v{vt3}, 5, v{vt2}")
    A(f"  s_mul_i32 s38, s42, 112")
    A(f"  s_lshr_b32 s39, s{sf0}, 4")
    A(f"  s_add_u32 s38, s38, s39")
    A(f"  s_lshl_b32 s38, s38, 10")
    A(f"  v_add_u32 v{vAct}, s38, v{vt0}")
    for st in range(1, AHEAD):
        issue(st)
    def rd(q, tau):
        buf = q & 1
        return [f"  ds_read_b64_tr_b16 {vr(vAf+buf*16+tau*4+r*2,2)}, v{vA+tau} offset:{q*2048+r*512}" for r in range(2)]
    ST.stamp()
    issued = AHEAD
    def wait_stage(st):
        A(f"  s_waitcnt vmcnt({6*(issued-1-st)})")
        A("  s_barrier")
    wait_stage(0)
    ST.stamp()
    issue(issued); issued += 1
    for tau in range(4):
        for s in rd(0, tau): A(s)
    nout = 8
    for q in range(32):
        nxt = q+1 < 32
        if nxt and (q+1) % 4 == 0:
            st = (q+1)//4
            wait_stage(st)
            if st in (2,4,6): ST.stamp()
            if issued < 8:
                issue(issued); issued += 1
        buf = q & 1
        for tau in range(4):
            A(f"  s_waitcnt lgkmcnt({nout-2})")
            nout -= 2
            c = "0" if q == 0 else vr(vAcc+16*tau,16)
            A(f"  v_mfma_f32_32x32x16_bf16 {vr(vAcc+16*tau,16)}, {vr(vAf+buf*16+tau*4,4)}, {ar(4*q,4)}, {c}")
            if nxt:
                for s in rd(q+1, tau): A(s)
                nout += 2
    A("  s_nop 15")
    ST.stamp()
    A("  s_mov_b32 s38, 0xbfb8aa3b   ; -log2(e)")
    for tau in range(4):
        g = vAcc+16*tau
        u = g+8
        E = vAf if (tau & 1) == 0 else vAf+16
        for r in range(8):
            A(f"  v_mul_f32 v{E+r}, s38, v{g+r}")
        for r in range(8):
            A(f"  v_exp_f32 v{E+r}, v{E+r}")
        for r in range(8):
            A(f"  v_mul_f32 v{u+r}, v{g+r}, v{u+r}")
        for r in range(8):
            A(f"  v_add_f32 v{E+r}, 1.0, v{E+r}")
        for r in range(8):
            A(f"  v_rcp_f32 v{E+r}, v{E+r}")
        A("  s_nop 0")
        for r in range(8):
            A(f"  v_mul_f32 v{u+r}, v{u+r}, v{E+r}")
        for i in range(4):
            A(f"  v_cvt_pk_bf16_f32 v{E+8+i}, v{u+2*i}, v{u+2*i+1}")
        A(f"  buffer_store_dwordx4 {vr(E+8,4)}, v{vAct}, {sr(sACT,4)}, 0 offen offset:{tau*1024}{STM()}")
    A(f"  s_branch {name}_end")
    A(f"{name}_helper:")
    A("  s_cmp_ge_u32 s2, 256")
    A(f"  s_cbranch_scc1 {name}_end")
    if PREFETCH_WD:
        if PREFETCH_WD == 2:
            A("  s_and_b32 s3, s2, 7")
            A("  s_cmp_lg_u32 s3, 0")
            A(f"  s_cbranch_scc1 {name}_end")
        A(f"  s_load_dwordx2 s[4:5], s[0:1], {KA['wd']}")
        A("  s_sub_u32 s3, s2, 224")
        A("  s_lshr_b32 s3, s3, 3")
        A("  s_mul_i32 s3, s3, 458752")
        A(f"  v_lshlrev_b32 v1, 7, v0")
        A("  s_waitcnt lgkmcnt(0)")
        srd(A, 8, 4, 0, 1792*512*2)
        for i in range(7):
            A(f"  buffer_load_dword v{2+i}, v1, s[8:11], s3 offen")
            if i < 6:
                A("  s_add_u32 s3, s3, 65536")
        A("  s_waitcnt vmcnt(0)")
    A(f"{name}_end:")
    ST.flush(2)
    A("  s_endpgm")
    return dict(name=name, grid=256 if PREFETCH_WD else 224, block=512, lds=LDS, nvgpr=256, accum=128)
```

```python
KA = dict(q=0,k=8,v=16,shift=24,ssm=32,D=40,bx=48,wg=56,wu=64,wd=72,c=80,wmod=88,out=96,dbg=104,ws=112)

WS_KVR = 0x000000
WS_YL  = 0x200000
WS_X1  = 0x400000
WS_H2  = 0x600000
WS_ACT = 0x800000
WS_MOD = 0x1000000
WS_MODH = 0x1008000
WS_AEXT = 0x1010000
WS_BEXT = 0x1020000
WS_RS  = 0x1030000
WS_CNT = 0x1040000
SZ2M = 0x200000
SZ_ACT = 64*112*1024

import os as _o
def _os_env(k, d): return _o.environ.get(k, d)
class Asm:
    def __init__(self):
        self.l = []
    def __call__(self, s=""):
        for line in s.split("\n"):
            self.l.append(line)
    def text(self):
        return "\n".join(self.l) + "\n"

def vr(a, n=1):
    return f"v{a}" if n == 1 else f"v[{a}:{a+n-1}]"
def ar(a, n=1):
    return f"a{a}" if n == 1 else f"a[{a}:{a+n-1}]"
def sr(a, n=1):
    return f"s{a}" if n == 1 else f"s[{a}:{a+n-1}]"

def srd(A, d, p, off, size):
    if off:
        A(f"  s_add_u32 s{d}, s{p}, {hex(off)}")
        A(f"  s_addc_u32 s{d+1}, s{p+1}, 0")
    else:
        A(f"  s_mov_b32 s{d}, s{p}")
        A(f"  s_mov_b32 s{d+1}, s{p+1}")
    A(f"  s_mov_b32 s{d+2}, {hex(size)}")
    A(f"  s_mov_b32 s{d+3}, 0x20000")

def kernel_header(A, name):
    A(f".text")
    A(f".globl {name}")
    A(f".p2align 8")
    A(f".type {name},@function")
    A(f"{name}:")

def kernel_desc(A, name, nvgpr, accum, nsgpr=102):
    A('.section .rodata,"a"')
    A(".p2align 6")
    A(f".amdhsa_kernel {name}")
    A(f"  .amdhsa_next_free_vgpr {nvgpr}")
    A(f"  .amdhsa_next_free_sgpr {nsgpr}")
    A(f"  .amdhsa_accum_offset {accum}")
    A("  .amdhsa_group_segment_fixed_size 0")
    A("  .amdhsa_kernarg_size 120")
    A("  .amdhsa_user_sgpr_count 2")
    A("  .amdhsa_user_sgpr_kernarg_segment_ptr 1")
    A("  .amdhsa_system_sgpr_workgroup_id_x 1")
    A("  .amdhsa_float_denorm_mode_32 3")
    A(".end_amdhsa_kernel")

STAMPS = False
WS_TS = 0x2000000
class Stamper:
    def __init__(self, A, kidx, base=64):
        self.A, self.kidx, self.base, self.n = A, kidx, base, 0
    def stamp(self):
        if not STAMPS: return
        import os
        op = "s_memtime" if os.environ.get("STAMPCYC") else "s_memrealtime"
        self.A(f"  {op} s[{self.base+2*self.n}:{self.base+2*self.n+1}]")
        self.n += 1
    def flush(self, vtmp, ws_pair_reload=True):
        if not STAMPS: return
        A = self.A
        self.stamp()
        lab = f"stampskip_{self.kidx}"
        A(f"  s_load_dwordx2 s[96:97], s[0:1], {KA['ws']}")
        A(f"  v_readfirstlane_b32 s98, v0")
        A("  s_waitcnt lgkmcnt(0)")
        wv = int(_os_env("STAMPWAVE", "0"))
        A(f"  s_cmp_lg_u32 s98, {64*wv}")
        A(f"  s_cbranch_scc1 {lab}")
        A(f"  s_mov_b64 exec, -1")
        A(f"  s_add_u32 s96, s96, {WS_TS + self.kidx*256*128}")
        A(f"  s_addc_u32 s97, s97, 0")
        A(f"  s_cmp_ge_u32 s2, 256")
        A(f"  s_cbranch_scc1 {lab}")
        A(f"  s_lshl_b32 s98, s2, 7")
        A(f"  s_add_u32 s96, s96, s98")
        A(f"  s_addc_u32 s97, s97, 0")
        A(f"  v_mov_b32 v{vtmp}, 0")
        for i in range(2*self.n):
            A(f"  v_writelane_b32 v{vtmp}, s{self.base+i}, {i}")
        A(f"  v_mbcnt_lo_u32_b32 v{vtmp+1}, -1, 0")
        A(f"  v_mbcnt_hi_u32_b32 v{vtmp+1}, -1, v{vtmp+1}")
        A(f"  v_cmp_gt_u32 vcc, 32, v{vtmp+1}")
        A(f"  v_lshlrev_b32 v{vtmp+1}, 2, v{vtmp+1}")
        A(f"  s_and_saveexec_b64 s[100:101], vcc")
        A(f"  global_store_dword v{vtmp+1}, v{vtmp}, s[96:97]")
        A(f"{lab}:")

import os as _os
def STM():
    m = _os.environ.get("STM", "")
    return (" " + m.replace("_", " ")) if m else ""
```

```python
import sys, os
from common import *
import common
from k1 import gen_k1
from k2 import gen_k2
from k3 import gen_k3
from k4 import gen_k4
from k5 import gen_k5

HEADER = open('adaLN_cond__ssm_conv_h3__swiglu_ffn__prompt.s.ref').read().split("; Override launch geometry")[0]

def build(kernels, extra_header=""):
    body = Asm()
    infos = []
    done = {}
    for g in kernels:
        tmp = Asm()
        inf = g(tmp)
        if inf['name'] not in done:
            done[inf['name']] = 1
            body.l += tmp.l
        infos.append(inf)
    out = HEADER
    for inf in infos:
        out += f"; @launch kernel={inf['name']} grid=({inf['grid']},1,1) block=({inf['block']},1,1) lds={inf['lds']}\n"
    out += extra_header
    out += '.amdgcn_target "amdgcn-amd-amdhsa--gfx950"\n'
    out += body.text()
    d = Asm()
    seen = set()
    for inf in infos:
        if inf['name'] in seen: continue
        seen.add(inf['name'])
        kernel_desc(d, inf['name'], inf['nvgpr'], inf['accum'])
    out += d.text()
    return out

def E(k, d):
    return type(d)(int(os.environ.get(k, d)))

def default_list():
    return [lambda A: gen_k1(A),
            lambda A: gen_k2(A, PREFETCH=E("PF_GU", 1)),
            lambda A: gen_k3(A),
            lambda A: gen_k4(A, AHEAD=E("AHEAD", 3), PREFETCH_WD=E("PF_WD", 1), ORDER=E("ORDER", 1), SPACE=E("SPACE", 2)),
            lambda A: gen_k5(A, D=E("D5", 12))]

if __name__ == "__main__":
    if os.environ.get("STAMPS"): common.STAMPS = True
    dst = sys.argv[1] if len(sys.argv) > 1 else 'adaLN_cond__ssm_conv_h3__swiglu_ffn__prompt.s'
    txt = build(default_list())
    open(dst, 'w').write(txt)
    print("wrote", dst, len(txt), "bytes")
```

```python
from common import *

def gen_k2(A, name="conv_kernel", kidx=1, PREFETCH=True):
    XR = [0, 4608]
    HC = 9216
    HCH = 4*4160
    EX = 43008
    LDS = EX + 32768
    kernel_header(A, name)
    ST = Stamper(A, kidx); ST.stamp()
    sKV, sH, sY = 8, 12, 16
    sw, sc, sch, sqh, sD = 30, 31, 32, 33, 34
    A("  s_cmp_ge_u32 s2, 256")
    A(f"  s_cbranch_scc1 {name}_mod")
    A(f"  s_load_dwordx4 s[4:7], s[0:1], {KA['ssm']}")
    A(f"  s_load_dwordx2 s[20:21], s[0:1], {KA['ws']}")
    vl, vt0, vt1, vt2, vt3 = 1, 2, 3, 4, 5
    vT16, vZ, vH, vEXw, vEXr, vYo, vHCw = 6, 7, 8, 9, 10, 11, 12
    vHD = 16
    vZero = 20
    vL = 24
    vE = 48
    vAcc = 56
    vZf = 88
    vHf = 152
    A(f"  v_and_b32 v{vl}, 63, v0")
    A(f"  v_lshrrev_b32 v{vt0}, 6, v0")
    A(f"  v_lshlrev_b32 v{vT16}, 4, v0")
    A(f"  v_readfirstlane_b32 s{sw}, v{vt0}")
    A("  s_and_b32 s3, s2, 7")
    A("  s_lshl_b32 s3, s3, 5")
    A("  s_lshr_b32 s35, s2, 3")
    A(f"  s_add_u32 s{sc}, s3, s35")
    A(f"  s_lshr_b32 s{sch}, s{sw}, 1")
    A(f"  s_and_b32 s{sqh}, s{sw}, 1")
    A("  s_waitcnt lgkmcnt(0)")
    A(f"  s_lshl_b32 s35, s{sc}, 2")
    A(f"  s_load_dword s{sD}, s[6:7], s35")
    srd(A, sH, 4, 0, SZ2M)
    srd(A, sKV, 20, WS_KVR, SZ2M)
    srd(A, sY, 20, WS_YL, SZ2M)
    A(f"  s_lshl_b32 s36, s{sc}, 13")
    A(f"  s_add_u32 s37, s36, 4096")
    for ch in range(2):
        for k in range(3):
            A(f"  buffer_load_dwordx4 {vr(vL+12*ch+4*k,4)}, v{vT16}, {sr(sH,4)}, s{36+ch} offen offset:{4*k}")
    A(f"  v_lshlrev_b32 v{vt0}, 4, v{vl}")
    A(f"  s_lshl_b32 s38, s{sw}, 11")
    A(f"  s_add_u32 s38, s38, s36")
    A(f"  s_mul_i32 s39, s{sch}, 4608")
    A(f"  s_lshl_b32 s40, s{sqh}, 11")
    A(f"  s_add_u32 s39, s39, s40")
    A(f"  s_mov_b32 m0, s39")
    A(f"  s_add_u32 s40, s38, 1024")
    A(f"  buffer_load_dwordx4 v{vt0}, {sr(sKV,4)}, s38 offen lds")
    A(f"  s_add_u32 m0, s39, 1024")
    A("  s_nop 0")
    A(f"  buffer_load_dwordx4 v{vt0}, {sr(sKV,4)}, s40 offen lds")
    npf = 0
    if PREFETCH:
        A(f"  s_load_dwordx4 s[44:47], s[0:1], {KA['wg']}")
        A(f"  v_and_b32 v{vt1}, 64, v0")
        A(f"  v_add_u32 v{vt1}, v{vt1}, v{vl}")
        A(f"  v_mul_u32_u24 v{vt2}, 147, v{vt1}")
        A(f"  v_lshrrev_b32 v{vt2}, 10, v{vt2}")
        A(f"  v_mul_u32_u24 v{vt3}, 7, v{vt2}")
        A(f"  v_sub_u32 v{vt3}, v{vt1}, v{vt3}")
        A(f"  s_lshr_b32 s48, s2, 3")
        A(f"  s_lshl_b32 s48, s48, 4")
        A(f"  v_add_u32 v{vt2}, s48, v{vt2}")
        A(f"  v_mul_u32_u24 v{vt2}, 3584, v{vt2}")
        A(f"  v_lshl_add_u32 v13, v{vt3}, 7, v{vt2}")
        if PREFETCH == 2:
            A(f"  s_add_u32 s48, s2, 2")
            A(f"  s_bfe_u32 s48, s48, 0x20001")
        else:
            A(f"  s_bfe_u32 s48, s2, 0x20001")
        A(f"  s_mul_i32 s48, s48, 896")
        A("  s_waitcnt lgkmcnt(0)")
        A(f"  s_cmp_eq_u32 s{sch}, 0")
        A(f"  s_cselect_b32 s52, s44, s46")
        A(f"  s_cselect_b32 s53, s45, s47")
        A(f"  s_mov_b32 s54, {512*1792*2}")
        A(f"  s_mov_b32 s55, 0x20000")
        A(f"  buffer_load_dword v14, v13, s[52:55], s48 offen")
        npf = 1
    for i in range(4):
        A(f"  v_mov_b32 v{vZero+i}, 0")
    A(f"  v_lshrrev_b32 v{vt1}, 5, v{vl}")
    A(f"  v_mul_u32_u24 v{vt1}, 4608, v{vt1}")
    A(f"  v_and_b32 v{vt2}, 31, v{vl}")
    A(f"  v_lshl_add_u32 v{vt1}, v{vt2}, 4, v{vt1}")
    A(f"  ds_write_b128 v{vt1}, {vr(vZero,4)} offset:4096")
    for i in range(32):
        A(f"  v_mov_b32 v{vAcc+i}, 0")
    A(f"  v_and_b32 v{vt0}, 15, v{vl}")
    A(f"  v_lshrrev_b32 v{vt1}, 4, v{vl}")
    A(f"  v_lshlrev_b32 v{vt2}, 5, v{vt0}")
    A(f"  v_sub_u32 v{vt2}, 480, v{vt2}")
    A(f"  v_lshl_add_u32 v{vt2}, v{vt1}, 4, v{vt2}")
    A(f"  s_mul_i32 s39, s{sch}, 4608")
    A(f"  s_lshl_b32 s40, s{sqh}, 8")
    A(f"  s_add_u32 s39, s39, s40")
    A(f"  v_add_u32 v{vZ}, s39, v{vt2}")
    A(f"  v_add_u32 v{vt2}, 1, v{vt0}")
    A(f"  v_and_b32 v{vt3}, 3, v{vt2}")
    A(f"  v_sub_u32 v{vt2}, v{vt2}, v{vt3}")
    A(f"  v_lshl_add_u32 v{vt2}, v{vt1}, 3, v{vt2}")
    A(f"  v_lshlrev_b32 v{vt2}, 1, v{vt2}")
    A(f"  v_mul_u32_u24 v{vt3}, 4160, v{vt3}")
    A(f"  v_add_u32 v{vt2}, v{vt2}, v{vt3}")
    A(f"  s_mul_i32 s39, s{sch}, {HCH}")
    A(f"  s_add_u32 s39, s39, s40")
    A(f"  s_add_u32 s39, s39, {HC}")
    A(f"  v_add_u32 v{vH}, s39, v{vt2}")
    A(f"  v_lshlrev_b32 v{vt2}, 4, v{vl}")
    A(f"  s_lshl_b32 s39, s{sw}, 13")
    A(f"  s_add_u32 s39, s39, {EX}")
    A(f"  v_add_u32 v{vEXw}, s39, v{vt2}")
    A(f"  s_lshl_b32 s39, s{sw}, 11")
    A(f"  s_add_u32 s39, s39, {EX}")
    A(f"  v_add_u32 v{vEXr}, s39, v{vt2}")
    A(f"  s_lshr_b32 s39, s{sc}, 2")
    A(f"  s_lshl_b32 s39, s39, 15")
    A(f"  s_and_b32 s40, s{sc}, 3")
    A(f"  s_lshl_b32 s40, s40, 2")
    A(f"  s_add_u32 s39, s39, s40")
    A(f"  s_lshl_b32 s40, s{sw}, 13")
    A(f"  s_add_u32 s39, s39, s40")
    A(f"  v_lshl_add_u32 v{vt2}, v{vt1}, 6, v{vt0}")
    A(f"  v_lshlrev_b32 v{vt2}, 4, v{vt2}")
    A(f"  v_add_u32 v{vYo}, s39, v{vt2}")
    A("  s_waitcnt lgkmcnt(0)")
    A(f"  s_lshr_b32 s39, s{sD}, 16")
    A(f"  s_and_b32 s40, s{sD}, 0xffff")
    A(f"  s_cmp_eq_u32 s{sch}, 0")
    A(f"  s_cselect_b32 s39, s40, s39")
    A(f"  s_lshl_b32 s40, s39, 16")
    A(f"  v_lshlrev_b32 v{vt2}, 3, v{vt1}")
    A(f"  v_add_u32 v{vt2}, v{vt2}, v{vt0}")
    A(f"  v_sub_u32 v{vt2}, 15, v{vt2}")
    A(f"  v_and_b32 v{vt3}, 1, v{vt2}")
    A(f"  v_cmp_eq_u32 vcc, 1, v{vt3}")
    A(f"  v_mov_b32 v{vt0}, s39")
    A(f"  v_mov_b32 v{vt1}, s40")
    A(f"  v_cndmask_b32 v{vt3}, v{vt0}, v{vt1}, vcc")
    A(f"  v_ashrrev_i32 v{vt2}, 1, v{vt2}")
    for i in range(4):
        A(f"  v_cmp_eq_u32 vcc, {i}, v{vt2}")
        A("  s_nop 1")
        A(f"  v_cndmask_b32 v{vHD+i}, 0, v{vt3}, vcc")
    A(f"  v_add_u32 v{vHCw}, {HC+32}, v{vT16}")
    for ch in range(2):
        La, Lb, Lc = vL+12*ch, vL+12*ch+4, vL+12*ch+8
        A(f"  s_waitcnt vmcnt({(5 if ch==0 else 2)+npf})")
        for i in range(4):
            A(f"  v_alignbit_b32 v{vE+i}, v{Lb+i}, v{La+i}, 16")
        for i in range(4):
            A(f"  v_alignbit_b32 v{vE+4+i}, v{Lc+i}, v{Lb+i}, 16")
        base = ch*HCH
        A(f"  ds_write_b128 v{vHCw}, {vr(La,4)} offset:{base}")
        A(f"  ds_write_b128 v{vHCw}, {vr(Lb,4)} offset:{base+2*4160}")
        A(f"  ds_write_b128 v{vHCw}, {vr(vE,4)} offset:{base+4160}")
        A(f"  ds_write_b128 v{vHCw}, {vr(vE+4,4)} offset:{base+3*4160}")
    ST.stamp()
    A(f"  v_cmp_eq_u32 vcc, 0, v0")
    A(f"  s_and_saveexec_b64 s[42:43], vcc")
    A(f"  s_cbranch_execz {name}_noneg")
    A(f"  v_mov_b32 v{vt0}, {HC}")
    for ch in range(2):
        La = vL+12*ch
        base = ch*HCH
        for phi in range(4):
            A(f"  ds_write_b128 v{vt0}, {vr(vZero,4)} offset:{base+phi*4160}")
        A(f"  ds_write_b128 v{vt0}, {vr(vZero,4)} offset:{base+16}")
        T = vZf + 16*ch
        for i in range(12):
            A(f"  v_mov_b32 v{T+i}, 0")
        A(f"  v_lshlrev_b32 v{T+3}, 16, v{La}")
        A(f"  v_mov_b32 v{T+7}, v{La}")
        A(f"  v_lshlrev_b32 v{T+10}, 16, v{La}")
        A(f"  v_alignbit_b32 v{T+11}, v{La+1}, v{La}, 16")
        A(f"  ds_write_b128 v{vt0}, {vr(T,4)} offset:{base+4160+16}")
        A(f"  ds_write_b128 v{vt0}, {vr(T+4,4)} offset:{base+2*4160+16}")
        A(f"  ds_write_b128 v{vt0}, {vr(T+8,4)} offset:{base+3*4160+16}")
    A(f"{name}_noneg:")
    A(f"  s_mov_b64 exec, s[42:43]")
    A(f"  s_waitcnt vmcnt({npf}) lgkmcnt(0)")
    A("  s_barrier")
    ST.stamp()
    def reads(it):
        buf = it & 1
        L = []
        for G in range(8):
            L.append(f"  ds_read_b128 {vr(vZf+32*buf+4*G,4)}, v{vZ} offset:{64*it+512*(7-G)}")
        for m in range(8):
            for hh in range(2):
                L.append(f"  ds_read_b64 {vr(vHf+32*buf+4*m+2*hh,2)}, v{vH} offset:{64*it+512*m+8*hh}")
        return L
    for s in reads(0):
        A(s)
    for it in range(4):
        buf = it & 1
        A("  s_waitcnt lgkmcnt(0)")
        nxt = reads(it+1) if it < 3 else []
        if it == 0:
            A(f"  s_cmp_lg_u32 s{sqh}, 0")
            A(f"  s_cbranch_scc1 {name}_noD")
            for G in range(8):
                A(f"  v_mfma_f32_16x16x32_bf16 {vr(vAcc+4*G,4)}, {vr(vZf+4*G,4)}, {vr(vHD,4)}, {vr(vAcc+4*G,4)}")
            A(f"{name}_noD:")
        for m in range(8):
            for Gz in range(8-m):
                G = Gz+m
                A(f"  v_mfma_f32_16x16x32_bf16 {vr(vAcc+4*G,4)}, {vr(vZf+32*buf+4*Gz,4)}, {vr(vHf+32*buf+4*m,4)}, {vr(vAcc+4*G,4)}")
                if nxt:
                    A(nxt.pop(0))
    A("  s_nop 15")
    ST.stamp()
    for G in range(8):
        A(f"  ds_write_b128 v{vEXw}, {vr(vAcc+4*G,4)} offset:{G*1024}")
    A("  s_waitcnt lgkmcnt(0)")
    A("  s_barrier")
    vR = vZf
    for s in range(4):
        for gg in range(2):
            A(f"  ds_read_b128 {vr(vR+8*s+4*gg,4)}, v{vEXr} offset:{s*8192+gg*1024}")
    A("  s_waitcnt lgkmcnt(0)")
    for i in range(8):
        A(f"  v_add_f32 v{vR+i}, v{vR+i}, v{vR+8+i}")
        A(f"  v_add_f32 v{vR+16+i}, v{vR+16+i}, v{vR+24+i}")
    for i in range(8):
        A(f"  v_cvt_pk_bf16_f32 v{vR+8+i}, v{vR+i}, v{vR+16+i}")
    A("  s_movk_i32 s39, 4096")
    for gg in range(2):
        for r in range(4):
            so = "s39" if gg else "0"
            A(f"  buffer_store_dword v{vR+8+4*gg+r}, v{vYo}, {sr(sY,4)}, {so} offen offset:{256*r}{STM()}")
    A(f"  s_branch {name}_end")
    gen_mod_job(A, name)
    A(f"{name}_end:")
    ST.flush(2)
    A("  s_endpgm")
    return dict(name=name, grid=256+48, block=256, lds=LDS, nvgpr=224, accum=224)


def gen_mod_job(A, name):
    sC, sWM, sMOD = 8, 12, 16
    RED = 1024
    A(f"{name}_mod:")
    A("  s_cmp_ge_u32 s2, 304")
    A(f"  s_cbranch_scc1 {name}_end")
    A(f"  s_load_dwordx4 s[4:7], s[0:1], {KA['c']}")
    A(f"  s_load_dwordx2 s[20:21], s[0:1], {KA['ws']}")
    vt0, vt1, vt2, vWo, vCo = 1, 2, 3, 4, 5
    vW = 8
    vC = 72
    vS = 76
    vP = 84
    vT = 92
    A("  s_sub_u32 s3, s2, 256")
    A("  s_lshl_b32 s22, s3, 6")
    A(f"  v_and_b32 v{vt0}, 7, v0")
    A(f"  v_lshrrev_b32 v{vt1}, 3, v0")
    A(f"  s_mov_b32 s23, {16*6144}")
    A(f"  v_mul_lo_u32 v{vWo}, v{vt1}, s23")
    A(f"  v_lshl_add_u32 v{vWo}, v{vt0}, 4, v{vWo}")
    A(f"  v_lshlrev_b32 v{vCo}, 2, v0")
    A(f"  v_lshrrev_b32 v{vt2}, 6, v0")
    A("  s_lshl_b32 s24, s22, 1")
    A(f"  v_readfirstlane_b32 s25, v{vt2}")
    A("  s_waitcnt lgkmcnt(0)")
    srd(A, sC, 4, 0, 1024)
    srd(A, sWM, 6, 0, 512*3072*2)
    srd(A, sMOD, 20, WS_MOD, 3072*4)
    A(f"  buffer_load_dword v{vC}, v{vCo}, {sr(sC,4)}, 0 offen")
    for i in range(16):
        A(f"  buffer_load_dwordx4 {vr(vW+4*i,4)}, v{vWo}, {sr(sWM,4)}, s24 offen")
        if i < 15:
            A("  s_add_u32 s24, s24, 6144")
    A("  s_waitcnt vmcnt(16)")
    c0, c1, e0, e1 = vT, vT+1, vT+2, vT+3
    A(f"  v_lshlrev_b32 v{c0}, 16, v{vC}")
    A(f"  v_and_b32 v{c1}, 0xffff0000, v{vC}")
    A("  s_mov_b32 s26, 0xbfb8aa3b")
    A(f"  v_mul_f32 v{e0}, s26, v{c0}")
    A(f"  v_mul_f32 v{e1}, s26, v{c1}")
    A(f"  v_exp_f32 v{e0}, v{e0}")
    A(f"  v_exp_f32 v{e1}, v{e1}")
    A("  s_nop 0")
    A(f"  v_add_f32 v{e0}, 1.0, v{e0}")
    A(f"  v_add_f32 v{e1}, 1.0, v{e1}")
    A(f"  v_rcp_f32 v{e0}, v{e0}")
    A(f"  v_rcp_f32 v{e1}, v{e1}")
    A("  s_nop 0")
    A(f"  v_mul_f32 v{c0}, v{c0}, v{e0}")
    A(f"  v_mul_f32 v{c1}, v{c1}, v{e1}")
    A(f"  v_cvt_pk_bf16_f32 v{e0}, v{c0}, v{c1}")
    A(f"  ds_write_b32 v{vCo}, v{e0}")
    A("  s_waitcnt lgkmcnt(0)")
    A("  s_barrier")
    A(f"  v_lshlrev_b32 v{vt2}, 5, v{vt1}")
    A(f"  ds_read_b128 {vr(vS,4)}, v{vt2}")
    A(f"  ds_read_b128 {vr(vS+4,4)}, v{vt2} offset:16")
    A("  s_mov_b32 s26, 0x05040100")
    A("  s_mov_b32 s27, 0x07060302")
    for n in range(8):
        A(f"  v_mov_b32 v{vP+n}, 0")
    A("  s_waitcnt lgkmcnt(0)")
    for p in range(8):
        A(f"  s_waitcnt vmcnt({14-2*p})")
        ra, rb = vW+8*p, vW+8*p+4
        for a in range(4):
            A(f"  v_perm_b32 v{vT+2*a}, v{rb+a}, v{ra+a}, s26")
            A(f"  v_perm_b32 v{vT+2*a+1}, v{rb+a}, v{ra+a}, s27")
        for n in range(8):
            A(f"  v_dot2_f32_bf16 v{vP+n}, v{vT+n}, v{vS+p}, v{vP+n}")
    A("  s_nop 1")
    for i in range(4):
        A(f"  v_permlane32_swap_b32 v{vP+i}, v{vP+i+4}")
    A("  s_nop 1")
    for i in range(4):
        A(f"  v_add_f32 v{vP+i}, v{vP+i}, v{vP+i+4}")
    A("  s_nop 1")
    for i in range(2):
        A(f"  v_permlane16_swap_b32 v{vP+i}, v{vP+i+2}")
    A("  s_nop 1")
    for i in range(2):
        A(f"  v_add_f32 v{vP+i}, v{vP+i}, v{vP+i+2}")
    A("  s_nop 1")
    for i in range(2):
        A(f"  v_add_f32_dpp v{vP+i}, v{vP+i}, v{vP+i} row_ror:8 row_mask:0xf bank_mask:0xf")
    A(f"  v_bfe_u32 v{vt2}, v0, 4, 2")
    A(f"  v_lshlrev_b32 v{vt2}, 3, v{vt2}")
    A(f"  v_lshl_add_u32 v{vt2}, v{vt0}, 5, v{vt2}")
    A(f"  s_lshl_b32 s26, s25, 8")
    A(f"  s_add_u32 s26, s26, {RED}")
    A(f"  v_add_u32 v{vt2}, s26, v{vt2}")
    A(f"  v_and_b32 v{vt1}, 8, v0")
    A(f"  v_cmp_eq_u32 vcc, 0, v{vt1}")
    A(f"  s_and_saveexec_b64 s[28:29], vcc")
    A(f"  ds_write_b64 v{vt2}, {vr(vP,2)}")
    A(f"  s_mov_b64 exec, s[28:29]")
    A("  s_waitcnt lgkmcnt(0)")
    A("  s_barrier")
    A(f"  v_cmp_gt_u32 vcc, 64, v0")
    A(f"  s_and_saveexec_b64 s[28:29], vcc")
    A(f"  s_cbranch_execz {name}_end")
    for i in range(4):
        A(f"  ds_read_b32 v{vT+i}, v{vCo} offset:{RED+256*i}")
    A("  s_waitcnt lgkmcnt(0)")
    U = vT
    A(f"  v_add_f32 v{U}, v{U}, v{U+1}")
    A(f"  v_add_f32 v{U+2}, v{U+2}, v{U+3}")
    A(f"  v_add_f32 v{U}, v{U}, v{U+2}")
    A(f"  v_cvt_pk_bf16_f32 v{U}, v{U}, v{U}")
    A(f"  v_lshlrev_b32 v{U}, 16, v{U}")
    A(f"  s_lshr_b32 s26, s22, 9")
    A(f"  s_cmp_eq_u32 s26, 1")
    A(f"  s_cselect_b32 s27, 1, 0")
    A(f"  s_cmp_eq_u32 s26, 4")
    A(f"  s_cselect_b32 s27, 1, s27")
    A(f"  s_cmp_eq_u32 s27, 0")
    A(f"  s_cbranch_scc1 {name}_noone")
    A(f"  v_add_f32 v{U}, 1.0, v{U}")
    A(f"  v_cvt_pk_bf16_f32 v{U}, v{U}, v{U}")
    A(f"  v_lshlrev_b32 v{U}, 16, v{U}")
    A(f"{name}_noone:")
    A(f"  s_lshl_b32 s26, s22, 2")
    A(f"  buffer_store_dword v{U}, v{vCo}, {sr(sMOD,4)}, s26 offen{STM()}")
    srd(A, sC, 20, WS_MODH, 3072*2)
    A(f"  v_lshrrev_b32 v{U+1}, 16, v{U}")
    A(f"  v_lshlrev_b32 v{U+2}, 1, v0")
    A(f"  s_lshl_b32 s26, s22, 1")
    A(f"  buffer_store_short v{U+1}, v{U+2}, {sr(sC,4)}, s26 offen")
```

```python
from common import *

def wave_reduce(A, regs):
    pad = max(0, 3-len(regs))
    def step(ctrl):
        for r in regs:
            A(f"  v_add_f32_dpp v{r}, v{r}, v{r} {ctrl}")
        for _ in range(pad):
            A("  s_nop 0")
    A("  s_nop 1")
    step("row_ror:8 row_mask:0xf bank_mask:0xf")
    step("row_ror:4 row_mask:0xf bank_mask:0xf")
    step("row_ror:2 row_mask:0xf bank_mask:0xf")
    step("row_ror:1 row_mask:0xf bank_mask:0xf")
    step("row_bcast:15 row_mask:0xa bank_mask:0xf")
    step("row_bcast:31 row_mask:0xc bank_mask:0xf")

def gen_k3(A, name="norm_kernel", kidx=2, ZMODE=False):
    kernel_header(A, name)
    ST = Stamper(A, kidx); ST.stamp()
    sX, sY, sMOD, sX1, sH2 = 8, 12, 16, 20, 24
    sw = 30
    A("  s_cmp_ge_u32 s2, 256")
    A(f"  s_cbranch_scc1 {name}_end")
    A(f"  s_load_dwordx2 s[4:5], s[0:1], {KA['q']}")
    A(f"  s_load_dwordx2 s[6:7], s[0:1], {KA['ws']}")
    vl, vXo, vYo, vMo, vHo, vt0, vt1 = 1,2,3,4,5,6,7
    vX = 8
    vY = 16
    vM = 24
    vF = 64
    vG = 80
    vS = 96
    vP = 100
    vQ = 108
    A(f"  v_and_b32 v{vl}, 63, v0")
    A(f"  v_lshrrev_b32 v{vt0}, 6, v0")
    A("  s_nop 0")
    A(f"  v_readfirstlane_b32 s{sw}, v{vt0}")
    A(f"  s_lshl_b32 s3, s2, 3")
    A(f"  s_lshl_b32 s31, s{sw}, 1")
    A(f"  s_add_u32 s3, s3, s31")
    A(f"  s_lshl_b32 s31, s3, 10")
    A(f"  v_lshlrev_b32 v{vt0}, 4, v{vl}")
    A(f"  v_add_u32 v{vXo}, s31, v{vt0}")
    A(f"  s_lshl_b32 s31, s3, 4")
    A(f"  v_lshlrev_b32 v{vt1}, 15, v{vl}")
    A(f"  v_add_u32 v{vYo}, s31, v{vt1}")
    A(f"  v_lshlrev_b32 v{vMo}, 5, v{vl}")
    A(f"  s_lshr_b32 s31, s3, 5")
    A(f"  s_lshl_b32 s31, s31, 15")
    A(f"  s_and_b32 s32, s3, 31")
    A(f"  s_lshl_b32 s32, s32, 4")
    A(f"  s_add_u32 s31, s31, s32")
    A(f"  v_lshrrev_b32 v{vt0}, 1, v{vl}")
    A(f"  v_lshlrev_b32 v{vt0}, 10, v{vt0}")
    A(f"  v_and_b32 v{vt1}, 1, v{vl}")
    A(f"  v_lshl_add_u32 v{vt0}, v{vt1}, 9, v{vt0}")
    A(f"  v_add_u32 v{vHo}, s31, v{vt0}")
    A("  s_waitcnt lgkmcnt(0)")
    srd(A, sX, 4, 0, SZ2M)
    srd(A, sY, 6, WS_YL, SZ2M)
    srd(A, sMOD, 6, WS_MOD, 3072*4)
    srd(A, sX1, 6, WS_X1, SZ2M)
    srd(A, sH2, 6, WS_H2, SZ2M)
    for t in range(2):
        A(f"  buffer_load_dwordx4 {vr(vX+4*t,4)}, v{vXo}, {sr(sX,4)}, 0 offen offset:{1024*t}")
    for t in range(2):
        A(f"  buffer_load_dwordx4 {vr(vY+4*t,4)}, v{vYo}, {sr(sY,4)}, 0 offen offset:{16*t}")
    for c in range(5):
        A(f"  s_movk_i32 s31, {c*2048}")
        for hh in range(2):
            A(f"  buffer_load_dwordx4 {vr(vM+8*c+4*hh,4)}, v{vMo}, {sr(sMOD,4)}, s31 offen offset:{16*hh}")
    def unpack(dst, src):
        for i in range(4):
            A(f"  v_lshlrev_b32 v{dst+2*i}, 16, v{src+i}")
            A(f"  v_and_b32 v{dst+2*i+1}, 0xffff0000, v{src+i}")
    def stats():
        for t in range(2):
            F = vF+8*t
            A(f"  v_add_f32 v{vS+t}, v{F}, v{F+1}")
            A(f"  v_mul_f32 v{vS+2+t}, v{F}, v{F}")
        for i in range(1,8):
            for t in range(2):
                F = vF+8*t
                if i >= 2:
                    A(f"  v_add_f32 v{vS+t}, v{vS+t}, v{F+i}")
                A(f"  v_fma_f32 v{vS+2+t}, v{F+i}, v{F+i}, v{vS+2+t}")
        wave_reduce(A, [vS, vS+1, vS+2, vS+3])
        A("  s_nop 0")
        for i in range(4):
            A(f"  v_readlane_b32 s{40+i}, v{vS+i}, 63")
        A("  s_mov_b32 s44, 0x3b000000   ; 1/512")
        A("  s_mov_b32 s45, 0x3727c5ac   ; 1e-5")
        A("  s_nop 1")
        for t in range(2):
            A(f"  v_mov_b32 v{vS+t}, s{40+t}")
            A(f"  v_mov_b32 v{vS+2+t}, s{42+t}")
        for t in range(2):
            A(f"  v_mul_f32 v{vS+t}, s44, v{vS+t}")
            A(f"  v_mul_f32 v{vS+2+t}, s44, v{vS+2+t}")
        for t in range(2):
            A(f"  v_fma_f32 v{vS+2+t}, -v{vS+t}, v{vS+t}, v{vS+2+t}")
        for t in range(2):
            A(f"  v_max_f32 v{vS+2+t}, 0, v{vS+2+t}")
        for t in range(2):
            A(f"  v_add_f32 v{vS+2+t}, s45, v{vS+2+t}")
        for t in range(2):
            A(f"  v_rsq_f32 v{vS+2+t}, v{vS+2+t}")
        A("  s_nop 0")
        for t in range(2):
            A(f"  v_mul_f32 v{vS+t}, v{vS+t}, v{vS+2+t}")
    A("  s_waitcnt vmcnt(12)")
    ST.stamp()
    for t in range(2):
        unpack(vF+8*t, vX+4*t)
    stats()
    A("  s_waitcnt vmcnt(0)")
    ST.stamp()
    for t in range(2):
        unpack(vG+8*t, vY+4*t)
    vU = 116
    for t in range(2):
        for i in range(8):
            A(f"  v_fma_f32 v{vU+8*t+i}, v{vF+8*t+i}, v{vS+2+t}, -v{vS+t}")
    for t in range(2):
        for i in range(8):
            A(f"  v_fma_f32 v{vU+8*t+i}, v{vU+8*t+i}, v{vM+8+i}, v{vM+i}")
    for t in range(2):
        for i in range(8):
            A(f"  v_mul_f32 v{vU+8*t+i}, v{vU+8*t+i}, v{vG+8*t+i}")
    for t in range(2):
        for i in range(8):
            A(f"  v_fma_f32 v{vU+8*t+i}, v{vU+8*t+i}, v{vM+16+i}, v{vF+8*t+i}")
    for t in range(2):
        for i in range(4):
            A(f"  v_cvt_pk_bf16_f32 v{vP+4*t+i}, v{vU+8*t+2*i}, v{vU+8*t+2*i+1}")
    if ZMODE:
        for t in range(2):
            A(f"  buffer_store_dwordx4 {vr(vP+4*t,4)}, v{vHo}, {sr(sX1,4)}, 0 offen offset:{16*t}")
        for t in range(2):
            unpack(vF+8*t, vP+4*t)
        for t in range(2):
            for i in range(8):
                A(f"  v_mul_f32 v{vU+8*t+i}, v{vF+8*t+i}, v{vM+32+i}")
        for t in range(2):
            for i in range(4):
                A(f"  v_cvt_pk_bf16_f32 v{vQ+4*t+i}, v{vU+8*t+2*i}, v{vU+8*t+2*i+1}")
        for t in range(2):
            A(f"  buffer_store_dwordx4 {vr(vQ+4*t,4)}, v{vHo}, {sr(sH2,4)}, 0 offen offset:{16*t}")
        A("  s_cmp_lg_u32 s2, 0")
        A(f"  s_cbranch_scc1 {name}_end")
        srd(A, sX, 6, WS_CNT, 4096)
        A(f"  v_lshlrev_b32 v{vt0}, 4, v0")
        for i in range(4): A(f"  v_mov_b32 v{vQ+8+i}, 0")
        A(f"  buffer_store_dwordx4 {vr(vQ+8,4)}, v{vt0}, {sr(sX,4)}, 0 offen")
        A(f"{name}_end:")
        ST.flush(2)
        A("  s_endpgm")
        return dict(name=name, grid=256, block=256, lds=0, nvgpr=136, accum=136)
    for t in range(2):
        A(f"  buffer_store_dwordx4 {vr(vP+4*t,4)}, v{vXo}, {sr(sX1,4)}, 0 offen offset:{1024*t}{STM()}")
    for t in range(2):
        unpack(vF+8*t, vP+4*t)
    stats()
    for t in range(2):
        for i in range(8):
            A(f"  v_fma_f32 v{vU+8*t+i}, v{vF+8*t+i}, v{vS+2+t}, -v{vS+t}")
    for t in range(2):
        for i in range(8):
            A(f"  v_fma_f32 v{vU+8*t+i}, v{vU+8*t+i}, v{vM+32+i}, v{vM+24+i}")
    for t in range(2):
        for i in range(4):
            A(f"  v_cvt_pk_bf16_f32 v{vQ+4*t+i}, v{vU+8*t+2*i}, v{vU+8*t+2*i+1}")
    for t in range(2):
        A(f"  buffer_store_dwordx4 {vr(vQ+4*t,4)}, v{vHo}, {sr(sH2,4)}, 0 offen offset:{16*t}{STM()}")
    A(f"{name}_end:")
    ST.flush(2)
    A("  s_endpgm")
    return dict(name=name, grid=256, block=256, lds=0, nvgpr=136, accum=136)
```

```python
from common import *

def gen_k4(A, name="gemm1_kernel", kidx=3, AHEAD=3, PREFETCH_WD=True, ORDER=1, SPACE=2):
    LDS = 131072
    kernel_header(A, name)
    ST = Stamper(A, kidx); ST.stamp()
    sW, sH, sACT = 8, 12, 16
    sw, sm, sWo, sM0, sf0, stb, sHo = 30, 31, 32, 33, 34, 35, 36
    A(f"  s_load_dwordx4 s[4:7], s[0:1], {KA['wg']}")
    A(f"  s_load_dwordx2 s[20:21], s[0:1], {KA['ws']}")
    A("  s_cmp_ge_u32 s2, 224")
    A(f"  s_cbranch_scc1 {name}_helper")
    vl, vWoff, vH, vAct, vt0, vt1, vt2, vt3 = 1,2,3,4,5,6,7,8
    vA = 10
    vAf = 16
    vAcc = 48
    A(f"  v_lshrrev_b32 v{vt0}, 6, v0")
    A(f"  v_and_b32 v{vl}, 63, v0")
    A(f"  v_readfirstlane_b32 s{sw}, v{vt0}")
    A("  s_and_b32 s3, s2, 7")
    A("  s_lshr_b32 s38, s2, 3")
    A("  s_mul_i32 s39, s38, 37")
    A("  s_lshr_b32 s39, s39, 8")
    A("  s_mul_i32 s40, s39, 7")
    A("  s_sub_u32 s40, s38, s40")
    A("  s_and_b32 s41, s3, 1")
    A("  s_lshl_b32 s41, s41, 2")
    A(f"  s_add_u32 s{stb}, s41, s39")
    A("  s_lshr_b32 s41, s3, 1")
    A("  s_mul_i32 s41, s41, 7")
    A("  s_add_u32 s41, s41, s40")
    A(f"  s_lshl_b32 s{sf0}, s41, 6")
    A(f"  s_and_b32 s{sm}, s{sw}, 1")
    A(f"  v_lshrrev_b32 v{vt0}, 3, v{vl}")
    A(f"  v_bfe_u32 v{vt1}, v{vl}, 4, 1")
    A(f"  s_lshl_b32 s38, s{sm}, 1")
    A(f"  v_bfe_u32 v{vt2}, v{vl}, 1, 2")
    A(f"  v_or_b32 v{vt1}, s38, v{vt1}")
    A(f"  v_xor_b32 v{vt1}, v{vt1}, v{vt2}")
    A(f"  v_and_b32 v{vt2}, 1, v{vl}")
    A(f"  v_lshlrev_b32 v{vt1}, 5, v{vt1}")
    A(f"  v_lshl_add_u32 v{vt1}, v{vt2}, 4, v{vt1}")
    A(f"  s_movk_i32 s38, 3584")
    A(f"  v_mad_u32_u24 v{vWoff}, v{vt0}, s38, v{vt1}")
    A(f"  s_lshl_b32 s42, s{stb}, 3")
    A(f"  s_add_u32 s42, s42, s{sw}")
    A(f"  s_lshl_b32 s39, s42, 15")
    A(f"  v_lshlrev_b32 v{vt0}, 4, v{vl}")
    A(f"  v_add_u32 v{vH}, s39, v{vt0}")
    A(f"  s_lshr_b32 s38, s{sw}, 1")
    A(f"  s_mul_i32 s{sWo}, s38, {16*3584}")
    A(f"  s_lshl_b32 s39, s{sf0}, 1")
    A(f"  s_add_u32 s{sWo}, s{sWo}, s39")
    A(f"  s_lshl_b32 s{sM0}, s38, 11")
    A(f"  s_lshl_b32 s39, s{sm}, 16")
    A(f"  s_add_u32 s{sM0}, s{sM0}, s39")
    A(f"  s_mov_b32 s{sHo}, 0")
    A("  s_waitcnt lgkmcnt(0)")
    A(f"  s_cmp_eq_u32 s{sm}, 0")
    A(f"  s_cselect_b32 s{sW}, s4, s6")
    A(f"  s_cselect_b32 s{sW+1}, s5, s7")
    A(f"  s_mov_b32 s{sW+2}, {512*1792*2}")
    A(f"  s_mov_b32 s{sW+3}, 0x20000")
    srd(A, sH, 20, WS_H2, SZ2M)
    loadops = []
    for st in range(8):
        for ii in range(2):
            L = [f"  s_add_u32 m0, s{sM0}, {st*64*128 + ii*1024}"]
            if st or ii:
                inc = 8*3584 if ii else (64-8)*3584
                L.append(f"  s_add_u32 s{sWo}, s{sWo}, {inc}")
            else:
                L.append("  s_nop 0")
            L.append(f"  buffer_load_dwordx4 v{vWoff}, {sr(sW,4)}, s{sWo} offen lds")
            loadops.append(L)
        for qq in range(4):
            q = 4*st+qq
            L = [f"  buffer_load_dwordx4 {ar(4*q,4)}, v{vH}, {sr(sH,4)}, s{sHo} offen offset:{qq*1024}"]
            if qq == 3 and st < 7:
                L.append(f"  s_add_u32 s{sHo}, s{sHo}, 4096")
            loadops.append(L)
    state = dict(n=0)
    def emit_load():
        if state['n'] < 48:
            for x in loadops[state['n']]: A(x)
            state['n'] += 1
    def issue(st):
        assert state['n'] == 6*st
        for _ in range(6): emit_load()
    issue(0)
    srd(A, sACT, 20, WS_ACT, SZ_ACT)
    A(f"  v_bfe_u32 v{vt1}, v{vl}, 2, 2")
    A(f"  v_lshrrev_b32 v{vt2}, 5, v{vl}")
    A(f"  v_lshl_add_u32 v{vt2}, v{vt2}, 3, v{vt1}")
    A(f"  v_bfe_u32 v{vt3}, v{vl}, 4, 1")
    A(f"  v_lshlrev_b32 v{vt2}, 7, v{vt2}")
    A(f"  v_lshl_add_u32 v{vt2}, v{vt3}, 16, v{vt2}")
    A(f"  v_lshrrev_b32 v{vt1}, 1, v{vt1}")
    A(f"  v_lshl_or_b32 v{vt1}, v{vt3}, 1, v{vt1}")
    A(f"  v_and_b32 v{vt3}, 1, v{vl}")
    A(f"  v_lshl_add_u32 v{vt2}, v{vt3}, 4, v{vt2}")
    A(f"  v_bfe_u32 v{vt3}, v{vl}, 1, 1")
    A(f"  v_lshl_add_u32 v{vt2}, v{vt3}, 3, v{vt2}")
    for tau in range(4):
        A(f"  v_xor_b32 v{vt3}, {tau}, v{vt1}")
        A(f"  v_lshl_add_u32 v{vA+tau}, v{vt3}, 5, v{vt2}")
    A(f"  s_mul_i32 s38, s42, 112")
    A(f"  s_lshr_b32 s39, s{sf0}, 4")
    A(f"  s_add_u32 s38, s38, s39")
    A(f"  s_lshl_b32 s38, s38, 10")
    A(f"  v_add_u32 v{vAct}, s38, v{vt0}")
    for st in range(1, AHEAD):
        if ORDER: A("  s_barrier")
        issue(st)
    def rd(q, tau):
        buf = q & 1
        return [f"  ds_read_b64_tr_b16 {vr(vAf+buf*16+tau*4+r*2,2)}, v{vA+tau} offset:{q*2048+r*512}" for r in range(2)]
    ST.stamp()
    def wait_stage(st):
        A(f"  s_waitcnt vmcnt({state['n']-6*(st+1)})")
        A("  s_barrier")
    wait_stage(0)
    ST.stamp()
    for tau in range(4):
        for x in rd(0, tau): A(x)
    nout = 8
    slot = 0
    for q in range(32):
        nxt = q+1 < 32
        if nxt and (q+1) % 4 == 0:
            st = (q+1)//4
            assert state['n'] >= 6*(st+1), (q, state)
            wait_stage(st)
            if st in (2,4,6): ST.stamp()
        buf = q & 1
        for tau in range(4):
            A(f"  s_waitcnt lgkmcnt({nout-2})")
            nout -= 2
            c = "0" if q == 0 else vr(vAcc+16*tau,16)
            A(f"  v_mfma_f32_32x32x16_bf16 {vr(vAcc+16*tau,16)}, {vr(vAf+buf*16+tau*4,4)}, {ar(4*q,4)}, {c}")
            if nxt:
                for x in rd(q+1, tau): A(x)
                nout += 2
            if slot % SPACE == SPACE-1: emit_load()
            slot += 1
    assert state['n'] == 48
    A("  s_nop 15")
    ST.stamp()
    A("  s_mov_b32 s38, 0xbfb8aa3b   ; -log2(e)")
    for tau in range(4):
        g = vAcc+16*tau
        u = g+8
        E = vAf if (tau & 1) == 0 else vAf+16
        for r in range(8):
            A(f"  v_mul_f32 v{E+r}, s38, v{g+r}")
        for r in range(8):
            A(f"  v_exp_f32 v{E+r}, v{E+r}")
        for r in range(8):
            A(f"  v_mul_f32 v{u+r}, v{g+r}, v{u+r}")
        for r in range(8):
            A(f"  v_add_f32 v{E+r}, 1.0, v{E+r}")
        for r in range(8):
            A(f"  v_rcp_f32 v{E+r}, v{E+r}")
        A("  s_nop 0")
        for r in range(8):
            A(f"  v_mul_f32 v{u+r}, v{u+r}, v{E+r}")
        for i in range(4):
            A(f"  v_cvt_pk_bf16_f32 v{E+8+i}, v{u+2*i}, v{u+2*i+1}")
        A(f"  buffer_store_dwordx4 {vr(E+8,4)}, v{vAct}, {sr(sACT,4)}, 0 offen offset:{tau*1024}{STM()}")
    A(f"  s_branch {name}_end")
    A(f"{name}_helper:")
    A("  s_cmp_ge_u32 s2, 256")
    A(f"  s_cbranch_scc1 {name}_end")
    if PREFETCH_WD:
        if PREFETCH_WD == 2:
            A("  s_and_b32 s3, s2, 7")
            A("  s_cmp_lg_u32 s3, 0")
            A(f"  s_cbranch_scc1 {name}_end")
        A(f"  s_load_dwordx2 s[4:5], s[0:1], {KA['wd']}")
        A("  s_sub_u32 s3, s2, 224")
        A("  s_lshr_b32 s3, s3, 3")
        A("  s_mul_i32 s3, s3, 458752")
        A(f"  v_lshlrev_b32 v1, 7, v0")
        A("  s_waitcnt lgkmcnt(0)")
        srd(A, 8, 4, 0, 1792*512*2)
        for i in range(7):
            A(f"  buffer_load_dword v{2+i}, v1, s[8:11], s3 offen")
            if i < 6:
                A("  s_add_u32 s3, s3, 65536")
        A("  s_waitcnt vmcnt(0)")
    A(f"{name}_end:")
    ST.flush(2)
    A("  s_endpgm")
    return dict(name=name, grid=256 if PREFETCH_WD else 224, block=512, lds=LDS, nvgpr=256, accum=128)
```

```python
from common import *

NHELP = 32
def gen_kb(A, name="ffn_kernel", kidx=3, AHEAD=2, SPACE=2, NSLOT=20, SPIN=200000, B0=10, BR=2, QFL=24, QCK=27, EARLY=0, QPF=18):
    LDS = 4*NSLOT*2048
    assert LDS >= 131072
    REG = NSLOT*2048
    kernel_header(A, name)
    ST = Stamper(A, kidx); ST.stamp()
    sW, sH, sACT, sWD, sCNT, sX = 8, 12, 16, 20, 24, 28
    sw, sm, sWo, sM0, sf0, stb, sHo = 40, 41, 42, 43, 44, 45, 46
    sT0, sT1, sT2, sT3 = 47, 48, 49, 50
    sdb, stb64, skq, stt, sDo, sLb = 51, 52, 53, 54, 55, 56
    pWG, pWU, pWD, pWS, pOUT = 4, 6, 32, 34, 36
    A("  s_cmp_ge_u32 s2, 256")
    A(f"  s_cbranch_scc1 {name}_end")
    A(f"  s_load_dwordx4 s[4:7], s[0:1], {KA['wg']}")
    A(f"  s_load_dwordx2 s[{pWD}:{pWD+1}], s[0:1], {KA['wd']}")
    A(f"  s_load_dwordx2 s[{pWS}:{pWS+1}], s[0:1], {KA['ws']}")
    A(f"  s_load_dwordx2 s[{pOUT}:{pOUT+1}], s[0:1], {KA['out']}")
    vl, vWoff, vH, vAct, vt0, vt1, vt2, vt3, vRS = 1,2,3,4,5,6,7,8,14
    vA = 10
    vAf = 16
    vAcc = 48
    vX = 112
    A(f"  v_lshrrev_b32 v{vt0}, 6, v0")
    A(f"  v_and_b32 v{vl}, 63, v0")
    A(f"  v_readfirstlane_b32 s{sw}, v{vt0}")
    A("  s_and_b32 s3, s2, 7")
    A(f"  s_lshr_b32 s{sT0}, s2, 3")
    A(f"  s_and_b32 s{sdb}, s{sT0}, 7")
    A(f"  s_lshr_b32 s{sT1}, s{sT0}, 3")
    A(f"  s_lshl_b32 s{stb64}, s3, 2")
    A(f"  s_add_u32 s{stb64}, s{stb64}, s{sT1}")
    A(f"  s_lshr_b32 s{skq}, s{sw}, 1")
    A(f"  s_and_b32 s{stt}, s{sw}, 1")
    A(f"  s_mov_b32 s{sm}, s{stt}")
    A("  s_cmp_ge_u32 s2, 224")
    A(f"  s_cbranch_scc1 {name}_helper")
    A(f"  s_mul_i32 s{sT1}, s{sT0}, 37")
    A(f"  s_lshr_b32 s{sT1}, s{sT1}, 8")
    A(f"  s_mul_i32 s{sT2}, s{sT1}, 7")
    A(f"  s_sub_u32 s{sT2}, s{sT0}, s{sT2}")
    A(f"  s_and_b32 s{sT3}, s3, 1")
    A(f"  s_lshl_b32 s{sT3}, s{sT3}, 2")
    A(f"  s_add_u32 s{stb}, s{sT3}, s{sT1}")
    A(f"  s_lshr_b32 s{sT3}, s3, 1")
    A(f"  s_mul_i32 s{sT3}, s{sT3}, 7")
    A(f"  s_add_u32 s{sT3}, s{sT3}, s{sT2}")
    A(f"  s_lshl_b32 s{sf0}, s{sT3}, 6")
    A(f"  v_lshrrev_b32 v{vt0}, 3, v{vl}")
    A(f"  v_bfe_u32 v{vt1}, v{vl}, 4, 1")
    A(f"  s_lshl_b32 s{sT0}, s{sm}, 1")
    A(f"  v_bfe_u32 v{vt2}, v{vl}, 1, 2")
    A(f"  v_or_b32 v{vt1}, s{sT0}, v{vt1}")
    A(f"  v_xor_b32 v{vt1}, v{vt1}, v{vt2}")
    A(f"  v_and_b32 v{vt2}, 1, v{vl}")
    A(f"  v_lshlrev_b32 v{vt1}, 5, v{vt1}")
    A(f"  v_lshl_add_u32 v{vt1}, v{vt2}, 4, v{vt1}")
    A(f"  s_movk_i32 s{sT0}, 3584")
    A(f"  v_mad_u32_u24 v{vWoff}, v{vt0}, s{sT0}, v{vt1}")
    sTB32 = 57
    A(f"  s_lshl_b32 s{sTB32}, s{stb}, 3")
    A(f"  s_add_u32 s{sTB32}, s{sTB32}, s{sw}")
    A(f"  s_lshl_b32 s{sT1}, s{sTB32}, 15")
    A(f"  v_lshlrev_b32 v{vt0}, 4, v{vl}")
    A(f"  v_add_u32 v{vH}, s{sT1}, v{vt0}")
    A(f"  s_mul_i32 s{sWo}, s{skq}, {16*3584}")
    A(f"  s_lshl_b32 s{sT1}, s{sf0}, 1")
    A(f"  s_add_u32 s{sWo}, s{sWo}, s{sT1}")
    A(f"  s_lshl_b32 s{sM0}, s{skq}, 11")
    A(f"  s_lshl_b32 s{sT1}, s{sm}, 16")
    A(f"  s_add_u32 s{sM0}, s{sM0}, s{sT1}")
    A(f"  s_mov_b32 s{sHo}, 0")
    A("  s_waitcnt lgkmcnt(0)")
    A(f"  s_cmp_eq_u32 s{sm}, 0")
    A(f"  s_cselect_b32 s{sW}, s4, s6")
    A(f"  s_cselect_b32 s{sW+1}, s5, s7")
    A(f"  s_mov_b32 s{sW+2}, {512*1792*2}")
    A(f"  s_mov_b32 s{sW+3}, 0x20000")
    srd(A, sH, pWS, WS_H2, SZ2M)
    loadops = []
    for st in range(8):
        for ii in range(2):
            L = [f"  s_add_u32 m0, s{sM0}, {st*64*128 + ii*1024}"]
            if st or ii:
                inc = 8*3584 if ii else (64-8)*3584
                L.append(f"  s_add_u32 s{sWo}, s{sWo}, {inc}")
            else:
                L.append("  s_nop 0")
            L.append(f"  buffer_load_dwordx4 v{vWoff}, {sr(sW,4)}, s{sWo} offen lds")
            loadops.append(L)
        for qq in range(4):
            q = 4*st+qq
            L = [f"  buffer_load_dwordx4 {ar(4*q,4)}, v{vH}, {sr(sH,4)}, s{sHo} offen offset:{qq*1024}"]
            if qq == 3 and st < 7:
                L.append(f"  s_add_u32 s{sHo}, s{sHo}, 4096")
            loadops.append(L)
    state = dict(n=0, vm=0)
    mark = {}
    def emit_load():
        if state['n'] < 48:
            for x in loadops[state['n']]: A(x)
            state['n'] += 1; state['vm'] += 1
            if state['n'] % 6 == 0: mark[state['n']//6-1] = state['vm']
    def other_vm(line):
        A(line); state['vm'] += 1
        return state['vm']
    def wait_vm(idx):
        A(f"  s_waitcnt vmcnt({state['vm']-idx})")
    for _ in range(6): emit_load()
    srd(A, sACT, pWS, WS_ACT, SZ_ACT)
    srd(A, sWD, pWD, 0, 1792*512*2)
    srd(A, sCNT, pWS, WS_CNT, 4096)
    A(f"  v_bfe_u32 v{vt1}, v{vl}, 2, 2")
    A(f"  v_lshrrev_b32 v{vt2}, 5, v{vl}")
    A(f"  v_lshl_add_u32 v{vt2}, v{vt2}, 3, v{vt1}")
    A(f"  v_bfe_u32 v{vt3}, v{vl}, 4, 1")
    A(f"  v_lshlrev_b32 v{vt2}, 7, v{vt2}")
    A(f"  v_lshl_add_u32 v{vt2}, v{vt3}, 16, v{vt2}")
    A(f"  v_lshrrev_b32 v{vt1}, 1, v{vt1}")
    A(f"  v_lshl_or_b32 v{vt1}, v{vt3}, 1, v{vt1}")
    A(f"  v_and_b32 v{vt3}, 1, v{vl}")
    A(f"  v_lshl_add_u32 v{vt2}, v{vt3}, 4, v{vt2}")
    A(f"  v_bfe_u32 v{vt3}, v{vl}, 1, 1")
    A(f"  v_lshl_add_u32 v{vt2}, v{vt3}, 3, v{vt2}")
    for tau in range(4):
        A(f"  v_xor_b32 v{vt3}, {tau}, v{vt1}")
        A(f"  v_lshl_add_u32 v{vA+tau}, v{vt3}, 5, v{vt2}")
    A(f"  s_mul_i32 s{sT0}, s{sTB32}, 112")
    A(f"  s_lshr_b32 s{sT1}, s{sf0}, 4")
    A(f"  s_add_u32 s{sT0}, s{sT0}, s{sT1}")
    A(f"  s_lshl_b32 s{sT0}, s{sT0}, 10")
    A(f"  v_add_u32 v{vAct}, s{sT0}, v{vt0}")
    for st in range(1, AHEAD):
        A("  s_barrier")
        for _ in range(6): emit_load()
    vAE, vBE, vRo = vX+1, vX+2, vX+3
    A(f"  v_and_b32 v{vt1}, 3, v{vl}")
    A(f"  v_bfe_u32 v{vt2}, v{vl}, 2, 1")
    A(f"  v_lshl_add_u32 v{vt1}, v{vt2}, 3, v{vt1}")
    A(f"  v_bfe_u32 v{vt2}, v{vl}, 3, 1")
    A(f"  v_lshl_add_u32 v{vt1}, v{vt2}, 2, v{vt1}")
    A(f"  v_add_u32 v{vt1}, s{sf0}, v{vt1}")
    A(f"  v_bfe_u32 v{vt2}, v{vl}, 4, 1")
    A(f"  v_mul_u32_u24 v{vt2}, 1792, v{vt2}")
    A(f"  v_add_u32 v{vt1}, v{vt1}, v{vt2}")
    A(f"  v_lshlrev_b32 v{vAE}, 4, v{vt1}")
    A(f"  v_lshrrev_b32 v{vt2}, 5, v{vl}")
    A(f"  v_lshl_or_b32 v{vAE}, v{vt2}, 30, v{vAE}")
    A(f"  v_and_b32 v{vt1}, 31, v{vl}")
    A(f"  s_lshl_b32 s{sT0}, s{sTB32}, 5")
    A(f"  v_add_u32 v{vt1}, s{sT0}, v{vt1}")
    A(f"  v_lshlrev_b32 v{vRo}, 3, v{vt1}")
    A(f"  v_lshlrev_b32 v{vBE}, 4, v{vt1}")
    A(f"  v_lshl_or_b32 v{vBE}, v{vt2}, 30, v{vBE}")
    def rd(q, tau):
        buf = q & 1
        return [f"  ds_read_b64_tr_b16 {vr(vAf+buf*16+tau*4+r*2,2)}, v{vA+tau} offset:{q*2048+r*512}" for r in range(2)]
    ST.stamp()
    def wait_stage(st):
        wait_vm(mark[st])
        A("  s_barrier")
    wait_stage(0)
    ST.stamp()
    for tau in range(4):
        for x in rd(0, tau): A(x)
    nout = 8
    slot = 0
    vFl = vX+4
    aE = 0
    for q in range(32):
        nxt = q+1 < 32
        if nxt and (q+1) % 4 == 0:
            st = (q+1)//4
            wait_stage(st)
            if st in (2,4,6): ST.stamp()
        if q == QFL:
            assert state['n'] == 48
            A(f"  v_mov_b32 v{vt1}, {8*256}")
            fl_idx = other_vm(f"  buffer_load_dword v{vFl}, v{vt1}, {sr(sCNT,4)}, 0 offen sc1")
        if q == QCK:
            wait_vm(fl_idx)
            A(f"  v_readfirstlane_b32 s{sT0}, v{vFl}")
            A(f"  s_mov_b32 s{sT1}, {SPIN}")
            A(f"{name}_hchk:")
            A(f"  s_cmp_ge_u32 s{sT0}, {NHELP}")
            A(f"  s_cbranch_scc1 {name}_hok")
            A("  s_sleep 8")
            A(f"  buffer_load_dword v{vFl}, v{vt1}, {sr(sCNT,4)}, 0 offen sc1")
            A("  s_waitcnt vmcnt(0)")
            A(f"  v_readfirstlane_b32 s{sT0}, v{vFl}")
            A(f"  s_sub_u32 s{sT1}, s{sT1}, 1")
            A(f"  s_cmp_lg_u32 s{sT1}, 0")
            A(f"  s_cbranch_scc1 {name}_hchk")
            A(f"{name}_hok:")
            srd(A, sX, pWS, WS_AEXT, 2*1792*16)
            for tau in range(4):
                other_vm(f"  buffer_load_dwordx4 {ar(aE+4*tau,4)}, v{vAE}, {sr(sX,4)}, 0 offen offset:{256*tau} sc1")
            srd(A, sH, pWS, WS_BEXT, 2048*16)
            other_vm(f"  buffer_load_dwordx4 {ar(aE+16,4)}, v{vBE}, {sr(sH,4)}, 0 offen sc1")
            srd(A, sW, pWS, WS_RS, 2048*8)
            ext_idx = other_vm(f"  buffer_load_dwordx2 {vr(vRS,2)}, v{vRo}, {sr(sW,4)}, 0 offen sc1")
        if QPF and q == QPF:
            assert state['n'] == 48
            A(f"  s_lshr_b32 s{sT0}, s2, 3")
            A(f"  s_lshl_b32 s{sT0}, s{sT0}, 16")
            A(f"  v_lshlrev_b32 v{vt2}, 7, v0")
            other_vm(f"  buffer_load_dword v{vX}, v{vt2}, {sr(sWD,4)}, s{sT0} offen")
        buf = q & 1
        for tau in range(4):
            A(f"  s_waitcnt lgkmcnt({nout-2})")
            nout -= 2
            c = "0" if q == 0 else vr(vAcc+16*tau,16)
            A(f"  v_mfma_f32_32x32x16_bf16 {vr(vAcc+16*tau,16)}, {vr(vAf+buf*16+tau*4,4)}, {ar(4*q,4)}, {c}")
            if nxt:
                for x in rd(q+1, tau): A(x)
                nout += 2
            if slot % SPACE == SPACE-1: emit_load()
            slot += 1
    wait_vm(ext_idx)
    for tau in range(4):
        A(f"  v_mfma_f32_32x32x16_bf16 {vr(vAcc+16*tau,16)}, {ar(aE+4*tau,4)}, {ar(aE+16,4)}, {vr(vAcc+16*tau,16)}")
    A("  s_barrier")
    ST.stamp()
    phase2_setup(A, locals())
    pre = phase2_preload_ops(locals()) if EARLY else []
    def dma():
        if pre:
            for x in pre.pop(0): A(x)
    k1, sd2 = vRS, vRS+1
    for tau in range(4):
        g = vAcc+16*tau
        u = g+8
        E = vAf if (tau & 1) == 0 else vAf+16
        for r in range(8):
            A(f"  v_mul_f32 v{E+r}, v{k1}, v{g+r}")
        dma()
        for r in range(8):
            A(f"  v_exp_f32 v{E+r}, v{E+r}")
        dma()
        for r in range(8):
            A(f"  v_mul_f32 v{u+r}, v{g+r}, v{u+r}")
        dma()
        for r in range(8):
            A(f"  v_fma_f32 v{E+r}, v{E+r}, v{sd2}, v{sd2}")
        for r in range(8):
            A(f"  v_rcp_f32 v{E+r}, v{E+r}")
        dma()
        for r in range(8):
            A(f"  v_mul_f32 v{u+r}, v{u+r}, v{E+r}")
        for i in range(4):
            A(f"  v_cvt_pk_bf16_f32 v{E+8+i}, v{u+2*i}, v{u+2*i+1}")
        A(f"  buffer_store_dwordx4 {vr(E+8,4)}, v{vAct}, {sr(sACT,4)}, 0 offen offset:{tau*1024} sc1")
        dma()
    while pre: dma()
    A("  s_waitcnt vmcnt(0)")
    A("  s_barrier")
    ST.stamp()
    A(f"  s_cmp_lg_u32 s{sw}, 0")
    A(f"  s_cbranch_scc1 {name}_p2")
    A(f"  s_lshl_b32 s{sT0}, s{stb}, 8")
    A(f"  v_mov_b32 v{vt0}, s{sT0}")
    A(f"  v_mov_b32 v{vt1}, 1")
    A(f"  s_mov_b64 exec, 1")
    A(f"  buffer_atomic_add v{vt1}, v{vt0}, {sr(sCNT,4)}, 0 offen sc1")
    A(f"  s_mov_b64 exec, -1")
    A(f"  s_branch {name}_p2")
    A(f"{name}_helper:")
    gen_helper(A, locals())
    phase2_setup(A, locals())
    if EARLY: phase2_preload(A, locals())
    A(f"{name}_p2:")
    if not EARLY: phase2_preload(A, locals())
    gen_phase2(A, locals())
    A(f"{name}_end:")
    ST.flush(2)
    A("  s_endpgm")
    return dict(name=name, grid=256, block=512, lds=LDS, nvgpr=256, accum=128)

P2 = dict(vWd=2, vA0=10, vA1=11, vB=3, vXO=12, vEXw=13, vEXr=9, vX1=112, vGB=116)
def phase2_setup(A, L):
    vl, vt0, vt1, vt2 = L['vl'], L['vt0'], L['vt1'], L['vt2']
    sT0, sT1, skq, stt, sdb, stb64, sDo, sLb, REG = (L[k] for k in "sT0 sT1 skq stt sdb stb64 sDo sLb REG".split())
    vWd, vA0, vA1, vB, vXO, vEXw, vEXr = (P2[k] for k in "vWd vA0 vA1 vB vXO vEXw vEXr".split())
    A(f"  v_lshrrev_b32 v{vt0}, 3, v{vl}")
    A(f"  v_lshrrev_b32 v{vt1}, 1, v{vt0}")
    A(f"  v_lshrrev_b32 v{vt2}, 2, v{vl}")
    A(f"  v_xor_b32 v{vt1}, v{vt1}, v{vt2}")
    A(f"  v_and_b32 v{vt1}, 1, v{vt1}")
    A(f"  v_lshlrev_b32 v{vt1}, 6, v{vt1}")
    A(f"  v_and_b32 v{vt2}, 3, v{vl}")
    A(f"  v_lshl_add_u32 v{vt1}, v{vt2}, 4, v{vt1}")
    A(f"  v_lshl_add_u32 v{vWd}, v{vt0}, 10, v{vt1}")
    A(f"  s_mul_i32 s{sDo}, s{skq}, {28*16*1024}")
    A(f"  s_lshl_b32 s{sT0}, s{stt}, 13")
    A(f"  s_add_u32 s{sDo}, s{sDo}, s{sT0}")
    A(f"  s_lshl_b32 s{sT0}, s{sdb}, 7")
    A(f"  s_add_u32 s{sDo}, s{sDo}, s{sT0}")
    A(f"  s_mul_i32 s{sLb}, s{skq}, {REG}")
    A(f"  s_lshl_b32 s{sT0}, s{stt}, 10")
    A(f"  s_add_u32 s{sLb}, s{sLb}, s{sT0}")

def phase2_preload_ops(L):
    NSLOT, sLb, sDo, sWD = L['NSLOT'], L['sLb'], L['sDo'], L['sWD']
    ops = []
    for p in range(NSLOT):
        o = [f"  s_add_u32 m0, s{sLb}, {p*2048}"]
        o.append(f"  s_add_u32 s{sDo}, s{sDo}, 16384" if p else "  s_nop 0")
        o.append(f"  buffer_load_dwordx4 v{P2['vWd']}, {sr(sWD,4)}, s{sDo} offen lds")
        ops.append(o)
    return ops
def phase2_preload(A, L):
    for o in phase2_preload_ops(L):
        for x in o: A(x)

def bf16_split(A, x, hi, lo, tmp):
    A(f"  v_cvt_pk_bf16_f32 v{hi}, v{x}, v{x}")
    A(f"  v_lshlrev_b32 v{tmp}, 16, v{hi}")
    A(f"  v_sub_f32 v{tmp}, v{x}, v{tmp}")
    A(f"  v_cvt_pk_bf16_f32 v{lo}, v{tmp}, v{tmp}")
    A(f"  v_and_b32 v{hi}, 0xffff, v{hi}")
    A(f"  v_and_b32 v{lo}, 0xffff, v{lo}")

def lane0_atomic_inc(A, name, sCNT, idx_bytes, vt0, vt1):
    A(f"  v_mov_b32 v{vt0}, {idx_bytes}")
    A(f"  v_mov_b32 v{vt1}, 1")
    A(f"  s_mov_b64 exec, 1")
    A(f"  buffer_atomic_add v{vt1}, v{vt0}, {sr(sCNT,4)}, 0 offen sc1")
    A(f"  s_mov_b64 exec, -1")

def gen_helper(A, L):
    name = L['name']
    vl, vt0, vt1, vt2, vt3 = L['vl'], L['vt0'], L['vt1'], L['vt2'], L['vt3']
    sw, sm, skq, sT0, sT1, sT2, sT3 = (L[k] for k in "sw sm skq sT0 sT1 sT2 sT3".split())
    sW, sH, sX, sWD, sCNT, sACT, pWS, pWD = (L[k] for k in "sW sH sX sWD sCNT sACT pWS pWD".split())
    sh = 57
    RED, RED2 = 131072, 133120
    vXs = 16
    vWl = 48
    vMc = 112
    A(f"  s_sub_u32 s{sh}, s2, 224")
    A("  s_waitcnt lgkmcnt(0)")
    srd(A, sH, pWS, WS_X1, SZ2M)
    srd(A, sWD, pWD, 0, 1792*512*2)
    srd(A, sCNT, pWS, WS_CNT, 4096)
    A(f"  s_cmp_eq_u32 s{sm}, 0")
    A(f"  s_cselect_b32 s{sW}, s4, s6")
    A(f"  s_cselect_b32 s{sW+1}, s5, s7")
    A(f"  s_mov_b32 s{sW+2}, {512*1792*2}")
    A(f"  s_mov_b32 s{sW+3}, 0x20000")
    A(f"  s_lshl_b32 s{sT0}, s{sh}, 1")
    A(f"  s_add_u32 s{sT0}, s{sT0}, s{sm}")
    A(f"  s_lshl_b32 s{sT0}, s{sT0}, 15")
    A(f"  s_lshl_b32 s{sT1}, s{skq}, 13")
    A(f"  s_add_u32 s{sT0}, s{sT0}, s{sT1}")
    A(f"  v_lshlrev_b32 v{vt0}, 4, v{vl}")
    for i in range(8):
        if i == 4: A(f"  s_add_u32 s{sT0}, s{sT0}, 4096")
        A(f"  buffer_load_dwordx4 {vr(vXs+4*i,4)}, v{vt0}, {sr(sH,4)}, s{sT0} offen offset:{(i&3)*1024}")
    vBo, vW0, vW1 = 9, 10, 11
    vAh = 112
    srd(A, sX, pWS, WS_MODH, 3072*2)
    A(f"  v_and_b32 v{vt1}, 31, v{vl}")
    A(f"  v_lshrrev_b32 v{vt2}, 5, v{vl}")
    A(f"  v_lshlrev_b32 v{vBo}, 4, v{vt2}")
    A(f"  v_lshlrev_b32 v{vt2}, 10, v{vt1}")
    A(f"  v_sub_u32 v{vt2}, 4096, v{vt2}")
    A(f"  v_add_u32 v{vBo}, v{vBo}, v{vt2}")
    A(f"  v_cmp_lt_u32 vcc, 1, v{vt1}")
    A(f"  v_mov_b32 v{vt2}, 0x40000000")
    A(f"  s_lshl_b32 s{sT0}, s{sw}, 7")
    A(f"  v_cndmask_b32 v{vBo}, v{vBo}, v{vt2}, vcc")
    for qq in range(4):
        A(f"  buffer_load_dwordx4 {ar(4*qq,4)}, v{vBo}, {sr(sX,4)}, s{sT0} offen offset:{32*qq}")
    A(f"  v_lshrrev_b32 v{vt0}, 3, v{vl}")
    A(f"  v_bfe_u32 v{vt1}, v{vl}, 4, 1")
    A(f"  v_bfe_u32 v{vt2}, v{vl}, 1, 2")
    A(f"  v_xor_b32 v{vt1}, v{vt1}, v{vt2}")
    A(f"  v_and_b32 v{vt2}, 1, v{vl}")
    A(f"  v_lshlrev_b32 v{vt2}, 4, v{vt2}")
    A(f"  s_movk_i32 s{sT1}, 3584")
    A(f"  v_mad_u32_u24 v{vt0}, v{vt0}, s{sT1}, v{vt2}")
    A(f"  v_lshl_add_u32 v{vW0}, v{vt1}, 5, v{vt0}")
    A(f"  v_xor_b32 v{vt1}, 2, v{vt1}")
    A(f"  v_lshl_add_u32 v{vW1}, v{vt1}, 5, v{vt0}")
    A(f"  s_and_b32 s{sT1}, s{sh}, 1")
    A(f"  s_lshl_b32 s{sT1}, s{sT1}, 2")
    A(f"  s_lshr_b32 s{sT2}, s{sh}, 3")
    A(f"  s_add_u32 s60, s{sT1}, s{sT2}")
    A(f"  s_bfe_u32 s{sT1}, s{sh}, 0x20001")
    A(f"  s_mul_i32 s{sT1}, s{sT1}, 7")
    A(f"  s_min_u32 s{sT2}, s60, 6")
    A(f"  s_add_u32 s61, s{sT1}, s{sT2}")
    A(f"  s_lshl_b32 s{sT2}, s61, 7")
    A(f"  s_mul_i32 s{sT1}, s{sw}, {64*3584}")
    A(f"  s_add_u32 s{sT2}, s{sT2}, s{sT1}")
    A(f"  s_lshl_b32 s{sT3}, s{sw}, 13")
    srd(A, sW, 4, 0, 512*1792*2)
    srd(A, sACT, 6, 0, 512*1792*2)
    for ii in range(8):
        A(f"  s_add_u32 m0, s{sT3}, {ii*1024}")
        A("  s_nop 0")
        A(f"  buffer_load_dwordx4 v{vW0}, {sr(sW,4)}, s{sT2} offen lds")
        A(f"  s_add_u32 m0, s{sT3}, {65536+ii*1024}")
        A("  s_nop 0")
        A(f"  buffer_load_dwordx4 v{vW1}, {sr(sACT,4)}, s{sT2} offen lds")
        if ii < 7: A(f"  s_add_u32 s{sT2}, s{sT2}, {8*3584}")
    A(f"  v_bfe_u32 v{vt1}, v{vl}, 2, 2")
    A(f"  v_lshrrev_b32 v{vt2}, 5, v{vl}")
    A(f"  v_lshl_add_u32 v{vt2}, v{vt2}, 3, v{vt1}")
    A(f"  v_bfe_u32 v{vt3}, v{vl}, 4, 1")
    A(f"  v_lshlrev_b32 v{vt2}, 7, v{vt2}")
    A(f"  v_lshl_add_u32 v{vt2}, v{vt3}, 16, v{vt2}")
    A(f"  v_lshrrev_b32 v{vt1}, 1, v{vt1}")
    A(f"  v_lshl_or_b32 v{vt1}, v{vt3}, 1, v{vt1}")
    A(f"  v_and_b32 v{vt3}, 1, v{vl}")
    A(f"  v_lshl_add_u32 v{vt2}, v{vt3}, 4, v{vt2}")
    A(f"  v_bfe_u32 v{vt3}, v{vl}, 1, 1")
    A(f"  v_lshl_add_u32 v{vt2}, v{vt3}, 3, v{vt2}")
    A(f"  v_add_u32 v{vt2}, s{sT3}, v{vt2}")
    for tau in range(4):
        A(f"  v_xor_b32 v{vt3}, {tau}, v{vt1}")
        A(f"  v_lshl_add_u32 v{vAh+tau}, v{vt3}, 5, v{vt2}")
    s1, s2 = 12, 13
    pa, pb, xx = 48, 50, 52
    for r in (pa, pa+1, pb, pb+1): A(f"  v_mov_b32 v{r}, 0")
    A(f"  s_waitcnt vmcnt({4+16})")
    L['ST'].stamp()
    for i in range(32):
        t = xx + 2*(i & 1)
        A(f"  v_lshlrev_b32 v{t}, 16, v{vXs+i}")
        A(f"  v_and_b32 v{t+1}, 0xffff0000, v{vXs+i}")
        A(f"  v_pk_add_f32 {vr(pa,2)}, {vr(pa,2)}, {vr(t,2)}")
        A(f"  v_pk_fma_f32 {vr(pb,2)}, {vr(t,2)}, {vr(t,2)}, {vr(pb,2)}")
    A(f"  v_add_f32 v{s1}, v{pa}, v{pa+1}")
    A(f"  v_add_f32 v{s2}, v{pb}, v{pb+1}")
    A("  s_nop 1")
    A(f"  v_permlane32_swap_b32 v{s1}, v{s2}")
    A("  s_nop 1")
    A(f"  v_add_f32 v{s1}, v{s1}, v{s2}")
    A(f"  s_lshl_b32 s{sT0}, s{sm}, 2")
    A(f"  s_add_u32 s{sT0}, s{sT0}, s{skq}")
    A(f"  s_lshl_b32 s{sT0}, s{sT0}, 8")
    A(f"  s_add_u32 s{sT0}, s{sT0}, {RED}")
    A(f"  v_lshlrev_b32 v{vt0}, 2, v{vl}")
    A(f"  v_add_u32 v{vt0}, s{sT0}, v{vt0}")
    A(f"  ds_write_b32 v{vt0}, v{s1} offset:0")
    vAf, vAcc = 16, 48
    A("  s_waitcnt vmcnt(0)")
    L['ST'].stamp()
    def hrd(qq):
        for tau in range(4):
            for r in range(2):
                A(f"  ds_read_b64_tr_b16 {vr(vAf+16*(qq&1)+tau*4+r*2,2)}, v{vAh+tau} offset:{qq*2048+r*512}")
    hrd(0)
    for qq in range(4):
        if qq < 3:
            hrd(qq+1)
            A("  s_waitcnt lgkmcnt(8)")
        else:
            A("  s_waitcnt lgkmcnt(0)")
        for tau in range(4):
            c = "0" if qq == 0 else vr(vAcc+16*tau,16)
            A(f"  v_mfma_f32_32x32x16_bf16 {vr(vAcc+16*tau,16)}, {ar(4*qq,4)}, {vr(vAf+16*(qq&1)+tau*4,4)}, {c}")
    L['ST'].stamp()
    A(f"  s_lshl_b32 s{sT0}, s{sw}, 10")
    A(f"  s_add_u32 s{sT0}, s{sT0}, {RED2}")
    A(f"  v_lshlrev_b32 v{vt0}, 3, v{vl}")
    A(f"  v_add_u32 v{vt0}, s{sT0}, v{vt0}")
    A(f"  s_mov_b32 s58, -1")
    A(f"  s_mov_b32 s59, 0")
    A("  s_nop 7")
    A(f"  s_mov_b64 exec, s[58:59]")
    for tau in range(4):
        A(f"  ds_write_b64 v{vt0}, {vr(vAcc+16*tau,2)} offset:{tau*256}")
    A(f"  s_mov_b64 exec, -1")
    A("  s_waitcnt lgkmcnt(0)")
    A("  s_barrier")
    L['ST'].stamp()
    U = 16
    A(f"  s_cmp_eq_u32 s{sw}, 0")
    A(f"  s_cbranch_scc1 {name}_hstat")
    A(f"  s_cmp_eq_u32 s{skq}, 1")
    A(f"  s_cbranch_scc0 {name}_hdone")
    A(f"  s_lshl_b32 s{sT0}, s{sm}, 9")
    A(f"  s_add_u32 s{sT0}, s{sT0}, {RED2}")
    A(f"  v_lshlrev_b32 v{vt0}, 3, v{vl}")
    A(f"  v_add_u32 v{vt0}, s{sT0}, v{vt0}")
    R = 48
    for w8 in range(8):
        A(f"  ds_read_b64 {vr(R+2*w8,2)}, v{vt0} offset:{w8*1024}")
    A("  s_waitcnt lgkmcnt(0)")
    for k in range(1,8):
        A(f"  v_add_f32 v{R}, v{R}, v{R+2*k}")
        A(f"  v_add_f32 v{R+1}, v{R+1}, v{R+2*k+1}")
    A(f"  v_mov_b32 v{U}, v{R}")
    A(f"  v_mov_b32 v{U+4}, v{R+1}")
    bf16_split(A, U, U+8, U+9, U+10)
    bf16_split(A, U+4, U+11, U+12, U+10)
    O = U+16
    A(f"  v_lshl_or_b32 v{O}, v{U+8}, 16, v{U+8}")
    A(f"  v_mov_b32 v{O+1}, v{U+9}")
    A(f"  v_lshl_or_b32 v{O+2}, v{U+11}, 16, v{U+11}")
    A(f"  v_mov_b32 v{O+3}, v{U+12}")
    srd(A, sX, pWS, WS_AEXT, 2*1792*16)
    A(f"  s_cmp_ge_u32 s60, 7")
    A(f"  s_cbranch_scc1 {name}_hdone")
    A(f"  v_and_b32 v{vt1}, 3, v{vl}")
    A(f"  v_bfe_u32 v{vt2}, v{vl}, 2, 1")
    A(f"  v_lshl_add_u32 v{vt1}, v{vt2}, 3, v{vt1}")
    A(f"  v_bfe_u32 v{vt2}, v{vl}, 3, 1")
    A(f"  v_lshl_add_u32 v{vt1}, v{vt2}, 2, v{vt1}")
    A(f"  v_lshrrev_b32 v{vt2}, 5, v{vl}")
    A(f"  v_lshl_add_u32 v{vt1}, v{vt2}, 4, v{vt1}")
    A(f"  v_bfe_u32 v{vt2}, v{vl}, 4, 1")
    A(f"  v_mul_u32_u24 v{vt2}, 1792, v{vt2}")
    A(f"  v_add_u32 v{vt1}, v{vt1}, v{vt2}")
    A(f"  s_lshl_b32 s{sT0}, s{sm}, 5")
    A(f"  s_lshl_b32 s{sT1}, s61, 6")
    A(f"  s_add_u32 s{sT0}, s{sT0}, s{sT1}")
    A(f"  s_lshl_b32 s{sT0}, s{sT0}, 4")
    A(f"  v_lshlrev_b32 v{vt0}, 4, v{vt1}")
    A(f"  buffer_store_dwordx4 {vr(O,4)}, v{vt0}, {sr(sX,4)}, s{sT0} offen sc1")
    A(f"  s_branch {name}_hdone")
    A(f"{name}_hstat:")
    A(f"  v_lshrrev_b32 v{vt0}, 5, v{vl}")
    A(f"  v_lshlrev_b32 v{vt0}, 10, v{vt0}")
    A(f"  v_and_b32 v{vt1}, 31, v{vl}")
    A(f"  v_lshl_add_u32 v{vt0}, v{vt1}, 2, v{vt0}")
    A(f"  v_add_u32 v{vt0}, {RED}, v{vt0}")
    for p in range(4):
        A(f"  ds_read_b32 v{U+p}, v{vt0} offset:{p*256}")
        A(f"  ds_read_b32 v{U+4+p}, v{vt0} offset:{p*256+128}")
    A("  s_waitcnt lgkmcnt(0)")
    for b in (U, U+4):
        A(f"  v_add_f32 v{b}, v{b}, v{b+1}")
        A(f"  v_add_f32 v{b+2}, v{b+2}, v{b+3}")
        A(f"  v_add_f32 v{b}, v{b}, v{b+2}")
    A(f"  s_mov_b32 s{sT0}, 0x3b000000")
    A(f"  s_mov_b32 s{sT1}, 0x3727c5ac")
    A(f"  v_mul_f32 v{U}, s{sT0}, v{U}")
    A(f"  v_mul_f32 v{U+4}, s{sT0}, v{U+4}")
    A(f"  v_fma_f32 v{U+4}, -v{U}, v{U}, v{U+4}")
    A(f"  v_max_f32 v{U+4}, 0, v{U+4}")
    A(f"  v_add_f32 v{U+4}, s{sT1}, v{U+4}")
    A(f"  v_sqrt_f32 v{U+5}, v{U+4}")
    A(f"  v_rsq_f32 v{U+6}, v{U+4}")
    A(f"  v_sub_f32 v{U}, 0, v{U}")
    A(f"  s_mov_b32 s{sT0}, 0xbfb8aa3b")
    A(f"  v_mul_f32 v{U+2}, s{sT0}, v{U+6}")
    A(f"  v_mov_b32 v{U+3}, v{U+4}")
    bf16_split(A, U, U+8, U+9, U+10)
    bf16_split(A, U+5, U+11, U+12, U+10)
    O = U+16
    A(f"  v_lshl_or_b32 v{O}, v{U+9}, 16, v{U+8}")
    A(f"  v_mov_b32 v{O+1}, v{U+8}")
    A(f"  v_lshl_or_b32 v{O+2}, v{U+12}, 16, v{U+11}")
    A(f"  v_mov_b32 v{O+3}, v{U+11}")
    srd(A, sX, pWS, WS_BEXT, 2048*16)
    srd(A, sH, pWS, WS_RS, 2048*8)
    A(f"  s_lshl_b32 s{sT0}, s{sh}, 10")
    A(f"  v_lshlrev_b32 v{vt0}, 4, v{vl}")
    A(f"  buffer_store_dwordx4 {vr(O,4)}, v{vt0}, {sr(sX,4)}, s{sT0} offen sc1")
    A(f"  s_lshl_b32 s{sT0}, s{sh}, 9")
    A(f"  v_lshlrev_b32 v{vt0}, 3, v{vl}")
    A(f"  buffer_store_dwordx2 {vr(U+2,2)}, v{vt0}, {sr(sH,4)}, s{sT0} offen sc1")
    A(f"{name}_hdone:")
    L['ST'].stamp()
    A("  s_waitcnt vmcnt(0)")
    A("  s_barrier")
    A(f"  s_cmp_lg_u32 s{sw}, 0")
    A(f"  s_cbranch_scc1 {name}_hsig")
    lane0_atomic_inc(A, name, sCNT, 8*256, vt0, vt1)
    A(f"{name}_hsig:")
    if not L['QPF']:
        A(f"  s_lshr_b32 s{sT0}, s{sh}, 3")
        A(f"  s_mul_i32 s{sT0}, s{sT0}, 458752")
        A(f"  v_lshlrev_b32 v{vt0}, 7, v0")
        for i in range(7):
            A(f"  buffer_load_dword v{16+i}, v{vt0}, {sr(sWD,4)}, s{sT0} offen")
            if i < 6: A(f"  s_add_u32 s{sT0}, s{sT0}, 65536")

def gen_phase2(A, L):
    name, ST, NSLOT, SPIN, REG = L['name'], L['ST'], L['NSLOT'], L['SPIN'], L['REG']
    vl, vt0, vt1, vt2 = L['vl'], L['vt0'], L['vt1'], L['vt2']
    sw, skq, stt, sdb, stb64, sT0, sT1, sT2, sLb, sDo = (L[k] for k in "sw skq stt sdb stb64 sT0 sT1 sT2 sLb sDo".split())
    sW, sH, sX, sWD, sCNT, sACT, pWS, pOUT = (L[k] for k in "sW sH sX sWD sCNT sACT pWS pOUT".split())
    vWd, vA0, vA1, vB, vXO, vEXw, vEXr, vX1, vGB = (P2[k] for k in "vWd vA0 vA1 vB vXO vEXw vEXr vX1 vGB".split())
    vAf, vAcc = 16, 48
    A(f"  v_lshrrev_b32 v{vt0}, 5, v{vl}")
    A(f"  v_lshlrev_b32 v{vt0}, 3, v{vt0}")
    A(f"  v_bfe_u32 v{vt1}, v{vl}, 2, 2")
    A(f"  v_add_u32 v{vt0}, v{vt0}, v{vt1}")
    A(f"  v_lshlrev_b32 v{vA0}, 7, v{vt0}")
    A(f"  v_lshrrev_b32 v{vt1}, 1, v{vt1}")
    A(f"  v_lshlrev_b32 v{vt1}, 6, v{vt1}")
    A(f"  v_and_b32 v{vt0}, 1, v{vl}")
    A(f"  v_lshlrev_b32 v{vt0}, 5, v{vt0}")
    A(f"  v_bfe_u32 v{vt2}, v{vl}, 1, 1")
    A(f"  v_lshl_add_u32 v{vt0}, v{vt2}, 3, v{vt0}")
    A(f"  v_bfe_u32 v{vt2}, v{vl}, 4, 1")
    A(f"  v_lshl_add_u32 v{vt0}, v{vt2}, 4, v{vt0}")
    A(f"  v_add_u32 v{vA0}, v{vA0}, v{vt0}")
    A(f"  s_mul_i32 s{sT0}, s{skq}, {REG}")
    A(f"  v_add_u32 v{vA0}, s{sT0}, v{vA0}")
    A(f"  v_xor_b32 v{vt2}, 64, v{vt1}")
    A(f"  v_add_u32 v{vA1}, v{vA0}, v{vt2}")
    A(f"  v_add_u32 v{vA0}, v{vA0}, v{vt1}")
    A(f"  s_lshl_b32 s{sT0}, s{stb64}, 1")
    A(f"  s_add_u32 s{sT2}, s{sT0}, s{stt}")
    A(f"  s_mul_i32 s{sT0}, s{sT2}, 112")
    A(f"  s_mul_i32 s{sT1}, s{skq}, 28")
    A(f"  s_add_u32 s{sT0}, s{sT0}, s{sT1}")
    A(f"  s_lshl_b32 s{sT0}, s{sT0}, 10")
    A(f"  v_lshlrev_b32 v{vt0}, 4, v{vl}")
    A(f"  v_add_u32 v{vB}, s{sT0}, v{vt0}")
    A(f"  s_lshl_b32 s{sT0}, s{stt}, 15")
    A(f"  s_lshl_b32 s{sT1}, s{skq}, 11")
    A(f"  s_add_u32 s{sT1}, s{sT1}, s{sT0}")
    A(f"  v_add_u32 v{vEXw}, s{sT1}, v{vt0}")
    A(f"  s_lshl_b32 s{sT1}, s{skq}, 13")
    A(f"  s_add_u32 s{sT1}, s{sT1}, s{sT0}")
    A(f"  v_add_u32 v{vEXr}, s{sT1}, v{vt0}")
    A(f"  s_lshr_b32 s{sT0}, s{skq}, 1")
    A(f"  s_lshl_b32 s{sT0}, s{sT0}, 5")
    A(f"  s_and_b32 s{sT1}, s{skq}, 1")
    A(f"  s_lshl_b32 s{sT1}, s{sT1}, 3")
    A(f"  s_add_u32 s{sT0}, s{sT0}, s{sT1}")
    A(f"  s_lshl_b32 s{sT1}, s{sdb}, 6")
    A(f"  s_add_u32 s{sT0}, s{sT0}, s{sT1}")
    A(f"  v_lshrrev_b32 v{vt1}, 5, v{vl}")
    A(f"  v_lshlrev_b32 v{vt1}, 4, v{vt1}")
    A(f"  v_add_u32 v{vt1}, s{sT0}, v{vt1}")
    A(f"  v_and_b32 v{vt0}, 31, v{vl}")
    A(f"  s_lshl_b32 s{sT1}, s{sT2}, 15")
    A(f"  v_lshrrev_b32 v{vt2}, 4, v{vt1}")
    A(f"  v_lshlrev_b32 v{vt2}, 10, v{vt2}")
    A(f"  v_lshl_add_u32 v{vt2}, v{vt0}, 4, v{vt2}")
    A(f"  v_bfe_u32 v{vXO}, v{vt1}, 3, 1")
    A(f"  v_lshl_add_u32 v{vt2}, v{vXO}, 9, v{vt2}")
    srd(A, sH, pWS, WS_X1, SZ2M)
    A(f"  buffer_load_dwordx4 {vr(vX1,4)}, v{vt2}, {sr(sH,4)}, s{sT1} offen")
    srd(A, sX, pWS, WS_MOD + 5*2048, 2048)
    A(f"  v_lshlrev_b32 v{vt2}, 2, v{vt1}")
    A(f"  buffer_load_dwordx4 {vr(vGB,4)}, v{vt2}, {sr(sX,4)}, 0 offen")
    A(f"  buffer_load_dwordx4 {vr(vGB+4,4)}, v{vt2}, {sr(sX,4)}, 0 offen offset:16")
    A(f"  s_lshl_b32 s{sT1}, s{sT2}, 15")
    A(f"  v_lshlrev_b32 v{vXO}, 10, v{vt0}")
    A(f"  v_lshl_add_u32 v{vXO}, v{vt1}, 1, v{vXO}")
    A(f"  v_add_u32 v{vXO}, s{sT1}, v{vXO}")
    srd(A, sACT, pWS, WS_ACT, SZ_ACT)
    srd(A, sW, pOUT, 0, SZ2M)
    A(f"  s_cmp_lg_u32 s{sw}, 0")
    A(f"  s_cbranch_scc1 {name}_s3w")
    A(f"  s_lshr_b32 s{sT0}, s{stb64}, 2")
    A(f"  s_lshl_b32 s{sT0}, s{sT0}, 8")
    A(f"  v_mov_b32 v{vt0}, s{sT0}")
    A(f"  s_mov_b32 s{sT1}, {SPIN}")
    A(f"{name}_s3:")
    A(f"  buffer_load_dword v{vt1}, v{vt0}, {sr(sCNT,4)}, 0 offen sc1")
    A("  s_waitcnt vmcnt(0)")
    A(f"  v_readfirstlane_b32 s{sT0}, v{vt1}")
    A(f"  s_cmp_ge_u32 s{sT0}, 28")
    A(f"  s_cbranch_scc1 {name}_s3w")
    A(f"  s_sub_u32 s{sT1}, s{sT1}, 1")
    A(f"  s_cmp_lg_u32 s{sT1}, 0")
    A(f"  s_cbranch_scc1 {name}_s3")
    A(f"{name}_s3w:")
    A("  s_waitcnt vmcnt(0)")
    A("  s_barrier")
    ST.stamp()
    A(f"  s_mov_b32 s{sT0}, 0")
    vm = dict(n=0)
    bidx = {}
    def bload():
        kk = len(bidx)
        if kk >= 28: return
        A(f"  buffer_load_dwordx4 {ar(4*kk,4)}, v{vB}, {sr(sACT,4)}, s{sT0} offen offset:{(kk&3)*1024} sc1")
        if (kk & 3) == 3: A(f"  s_add_u32 s{sT0}, s{sT0}, 4096")
        vm['n'] += 1
        bidx[kk] = vm['n']
    def rd(kk):
        slot = kk % NSLOT
        buf = kk & 1
        return [f"  ds_read_b64_tr_b16 {vr(vAf+buf*8+tau*4+r*2,2)}, v{vA0+tau} offset:{slot*2048+r*512}" for tau in range(2) for r in range(2)]
    NLATE = 28-NSLOT
    B0 = L['B0']; BR = L['BR']
    for _ in range(B0): bload()
    for x in rd(0): A(x)
    late_idx = None
    for kk in range(28):
        if kk == NLATE and NLATE > 0:
            A("  s_barrier")
            for p in range(NLATE):
                A(f"  s_add_u32 m0, s{sLb}, {p*2048}")
                A(f"  s_add_u32 s{sDo}, s{sDo}, 16384")
                A(f"  buffer_load_dwordx4 v{vWd}, {sr(sWD,4)}, s{sDo} offen lds")
                vm['n'] += 1
            late_idx = vm['n']
        waited = 0
        if kk+1 == NSLOT and NLATE > 0:
            A(f"  s_waitcnt vmcnt({vm['n']-late_idx})")
            A("  s_barrier")
        if kk+1 < 28:
            for x in rd(kk+1): A(x)
        assert kk in bidx, kk
        A(f"  s_waitcnt vmcnt({vm['n']-bidx[kk]})")
        A(f"  s_waitcnt lgkmcnt({4 if kk+1 < 28 else 0})")
        buf = kk & 1
        for tau in range(2):
            c = "0" if kk == 0 else vr(vAcc+16*tau,16)
            A(f"  v_mfma_f32_32x32x16_bf16 {vr(vAcc+16*tau,16)}, {vr(vAf+buf*8+tau*4,4)}, {ar(4*kk,4)}, {c}")
            if tau < BR: bload()
    ST.stamp()
    A("  s_nop 7")
    A("  s_barrier")
    A("  s_nop 3")
    for o in range(4):
        for a in range(2):
            A(f"  ds_write_b128 v{vEXw}, {vr(vAcc+16*(o>>1)+8*(o&1)+4*a,4)} offset:{o*8192+a*1024}")
    A("  s_waitcnt lgkmcnt(0)")
    A("  s_barrier")
    vT = 16
    for s in range(4):
        for a in range(2):
            A(f"  ds_read_b128 {vr(vT+8*s+4*a,4)}, v{vEXr} offset:{s*2048+a*1024}")
    vU = 80
    for i in range(4):
        A(f"  v_lshlrev_b32 v{vU+2*i}, 16, v{vX1+i}")
        A(f"  v_and_b32 v{vU+2*i+1}, 0xffff0000, v{vX1+i}")
    A("  s_waitcnt lgkmcnt(4)")
    for r in range(8):
        A(f"  v_add_f32 v{vT+r}, v{vT+r}, v{vT+8+r}")
    A("  s_waitcnt lgkmcnt(0)")
    for r in range(8):
        A(f"  v_add_f32 v{vT+16+r}, v{vT+16+r}, v{vT+24+r}")
    for r in range(8):
        A(f"  v_add_f32 v{vT+r}, v{vT+r}, v{vT+16+r}")
    for r in range(8):
        A(f"  v_fma_f32 v{vT+r}, v{vT+r}, v{vGB+r}, v{vU+r}")
    for i in range(4):
        A(f"  v_cvt_pk_bf16_f32 v{vU+i}, v{vT+2*i}, v{vT+2*i+1}")
    A(f"  buffer_store_dwordx4 {vr(vU,4)}, v{vXO}, {sr(sW,4)}, 0 offen")
```

```python
import sys, os
from common import *
import common
import gen as G
from k1 import gen_k1
from k2 import gen_k2
from k3 import gen_k3
from kb import gen_kb
E = G.E
def lst():
    return [lambda A: gen_k1(A),
            lambda A: gen_k2(A, PREFETCH=E("PF_GU", 1)),
            lambda A: gen_k3(A, ZMODE=True),
            lambda A: gen_kb(A, AHEAD=E("AHEAD", 2), SPACE=E("SPACE", 2), NSLOT=E("NSLOT", 20), B0=E("B0", 6), BR=E("BR", 1), QFL=E("QFL", 24), QCK=E("QCK", 27), EARLY=E("EARLY", 0), QPF=E("QPF", 0))]
if __name__ == "__main__":
    if os.environ.get("STAMPS"): common.STAMPS = True
    dst = sys.argv[1] if len(sys.argv) > 1 else 'adaLN_cond__ssm_conv_h3__swiglu_ffn__prompt.s'
    txt = G.build(lst())
    open(dst, 'w').write(txt)
    print("wrote", dst, len(txt), "bytes")
```

```python
KA = dict(q=0,k=8,v=16,shift=24,ssm=32,D=40,bx=48,wg=56,wu=64,wd=72,c=80,wmod=88,out=96,dbg=104,ws=112)

WS_KVR = 0x000000
WS_YL  = 0x200000
WS_X1  = 0x400000
WS_H2  = 0x600000
WS_ACT = 0x800000
WS_MOD = 0x1000000
WS_MODH = 0x1008000
WS_AEXT = 0x1010000
WS_BEXT = 0x1020000
WS_RS  = 0x1030000
WS_CNT = 0x1040000
WS_PART = 0x1080000
WS_XP  = 0x1100000
WS_ST1 = 0x1050000
SZ2M = 0x200000
SZ_ACT = 64*112*1024

import os as _o
def _os_env(k, d): return _o.environ.get(k, d)
class Asm:
    def __init__(self):
        self.l = []
    def __call__(self, s=""):
        for line in s.split("\n"):
            self.l.append(line)
    def text(self):
        return "\n".join(self.l) + "\n"

def vr(a, n=1):
    return f"v{a}" if n == 1 else f"v[{a}:{a+n-1}]"
def ar(a, n=1):
    return f"a{a}" if n == 1 else f"a[{a}:{a+n-1}]"
def sr(a, n=1):
    return f"s{a}" if n == 1 else f"s[{a}:{a+n-1}]"

def srd(A, d, p, off, size):
    if off:
        A(f"  s_add_u32 s{d}, s{p}, {hex(off)}")
        A(f"  s_addc_u32 s{d+1}, s{p+1}, 0")
    else:
        A(f"  s_mov_b32 s{d}, s{p}")
        A(f"  s_mov_b32 s{d+1}, s{p+1}")
    A(f"  s_mov_b32 s{d+2}, {hex(size)}")
    A(f"  s_mov_b32 s{d+3}, 0x20000")

def kernel_header(A, name):
    A(f".text")
    A(f".globl {name}")
    A(f".p2align 8")
    A(f".type {name},@function")
    A(f"{name}:")

def kernel_desc(A, name, nvgpr, accum, nsgpr=102):
    A('.section .rodata,"a"')
    A(".p2align 6")
    A(f".amdhsa_kernel {name}")
    A(f"  .amdhsa_next_free_vgpr {nvgpr}")
    A(f"  .amdhsa_next_free_sgpr {nsgpr}")
    A(f"  .amdhsa_accum_offset {accum}")
    A("  .amdhsa_group_segment_fixed_size 0")
    A("  .amdhsa_kernarg_size 120")
    A("  .amdhsa_user_sgpr_count 2")
    A("  .amdhsa_user_sgpr_kernarg_segment_ptr 1")
    A("  .amdhsa_system_sgpr_workgroup_id_x 1")
    A("  .amdhsa_float_denorm_mode_32 3")
    A(".end_amdhsa_kernel")

STAMPS = False
WS_TS = 0x2000000
class Stamper:
    def __init__(self, A, kidx, base=64):
        self.A, self.kidx, self.base, self.n = A, kidx, base, 0
    def stamp(self):
        if not STAMPS: return
        import os
        op = "s_memtime" if os.environ.get("STAMPCYC") else "s_memrealtime"
        self.A(f"  {op} s[{self.base+2*self.n}:{self.base+2*self.n+1}]")
        self.n += 1
    def flush(self, vtmp, ws_pair_reload=True, row="s2", limit=256):
        if not STAMPS: return
        A = self.A
        self.stamp()
        lab = f"stampskip_{self.kidx}"
        A(f"  s_load_dwordx2 s[96:97], s[0:1], {KA['ws']}")
        A(f"  v_readfirstlane_b32 s98, v0")
        A("  s_waitcnt lgkmcnt(0)")
        wv = int(_os_env("STAMPWAVE", "0"))
        A(f"  s_cmp_lg_u32 s98, {64*wv}")
        A(f"  s_cbranch_scc1 {lab}")
        A(f"  s_mov_b64 exec, -1")
        A(f"  s_add_u32 s96, s96, {WS_TS + self.kidx*256*128}")
        A(f"  s_addc_u32 s97, s97, 0")
        A(f"  s_cmp_ge_u32 {row}, {limit}")
        A(f"  s_cbranch_scc1 {lab}")
        A(f"  s_lshl_b32 s98, {row}, 7")
        A(f"  s_add_u32 s96, s96, s98")
        A(f"  s_addc_u32 s97, s97, 0")
        A(f"  v_mov_b32 v{vtmp}, 0")
        for i in range(2*self.n):
            A(f"  v_writelane_b32 v{vtmp}, s{self.base+i}, {i}")
        A(f"  v_mbcnt_lo_u32_b32 v{vtmp+1}, -1, 0")
        A(f"  v_mbcnt_hi_u32_b32 v{vtmp+1}, -1, v{vtmp+1}")
        A(f"  v_cmp_gt_u32 vcc, 32, v{vtmp+1}")
        A(f"  v_lshlrev_b32 v{vtmp+1}, 2, v{vtmp+1}")
        A(f"  s_and_saveexec_b64 s[100:101], vcc")
        A(f"  global_store_dword v{vtmp+1}, v{vtmp}, s[96:97]")
        A(f"{lab}:")

import os as _os
def STM():
    m = _os.environ.get("STM", "")
    return (" " + m.replace("_", " ")) if m else ""
```

```python
from common import *
from k3 import wave_reduce

C_KV, C_XS = 16, 24
NMOD = 192
def gen_ka(A, name="conv_kernel", kidx=0, SPIN=200000, PREFETCH=True, ITC=2, ITF=1, PRIO=1, LATE=0):
    XR = [0, 4608]
    HC = 9216
    HCH = 4*4160
    EX = 43008
    TT, XT, MS = EX, EX+8192, EX+8192+9216
    LDS = EX + 32768
    kernel_header(A, name)
    ST = Stamper(A, kidx); ST.stamp()
    sK, sV, sSH, sKV, sXq, sH, sCNT, sDBG, sX, sY = 8, 12, 16, 20, 24, 28, 32, 36, 40, 44
    pK, pV, pSH, pSSM, pD, pQ, pWS, pDBG, pC, pWM = 48, 50, 52, 54, 56, 58, 60, 62, 64+32, 66+32
    pC, pWM = 96, 98
    stb, scb, sw, sc, sch, sqh, sD = 4, 5, 6, 7, 3, 100, 101
    sRow = 47
    sT0, sT1, sT2 = "s60x", None, None
    A(f"  s_cmp_ge_u32 s2, 256")
    A(f"  s_cbranch_scc1 {name}_end")
    A(f"  s_load_dwordx4 s[48:51], s[0:1], {KA['k']}")
    A(f"  s_load_dwordx4 s[52:55], s[0:1], {KA['shift']}")
    A(f"  s_load_dwordx2 s[56:57], s[0:1], {KA['D']}")
    A(f"  s_load_dwordx2 s[58:59], s[0:1], {KA['q']}")
    A(f"  s_load_dwordx2 s[60:61], s[0:1], {KA['ws']}")
    A(f"  s_load_dwordx2 s[62:63], s[0:1], {KA['dbg']}")
    A(f"  s_load_dwordx4 s[96:99], s[0:1], {KA['c']}")
    vl, vt0, vt1, vt2, vt3 = 1, 2, 3, 4, 5
    vb, vW, vR0, vR1, vG, vSo = 6, 7, 8, 9, 10, 11
    vKo, vT16 = 12, 15
    vK, vV, vS, vXt, vXr, vL = 16, 36, 44, 60, 68, 76
    vKf, vSf, vO, vP = 100, 140, 172, 188
    vFl, vCg = 196, 197
    T0, T1, T2, T3 = "s45", "s46", "s47", "vcc_hi"
    t0, t1, t2, t3 = 40, 41, 42, 43
    A(f"  s_lshr_b32 s{stb}, s2, 3")
    A(f"  s_and_b32 s{scb}, s2, 7")
    A(f"  v_lshrrev_b32 v{vt2}, 6, v0")
    A(f"  v_and_b32 v{vl}, 63, v0")
    A(f"  v_readfirstlane_b32 s{sw}, v{vt2}")
    A(f"  v_and_b32 v{vt0}, 7, v0")
    A(f"  v_lshrrev_b32 v{vt1}, 3, v0")
    A(f"  v_lshlrev_b32 v{vT16}, 4, v0")
    A(f"  s_lshl_b32 s{t0}, s{stb}, 16")
    A(f"  s_lshl_b32 s{t1}, s{scb}, 7")
    A(f"  s_add_u32 s{t0}, s{t0}, s{t1}")
    A(f"  v_lshlrev_b32 v{vb}, 11, v{vt1}")
    A(f"  v_lshl_add_u32 v{vb}, v{vt0}, 4, v{vb}")
    A(f"  v_add_u32 v{vb}, s{t0}, v{vb}")
    for i in range(3):
        A(f"  v_add_u32 v{vKo+i}, {hex((-(3-i)*1024) & 0xffffffff)}, v{vb}")
    A(f"  s_lshl_b32 s{t1}, s{scb}, 9")
    A(f"  v_lshlrev_b32 v{vSo}, 6, v{vt0}")
    A(f"  v_add_u32 v{vSo}, s{t1}, v{vSo}")
    A(f"  s_lshl_b32 s{t2}, s2, 3")
    A(f"  s_lshl_b32 s{t3}, s{sw}, 1")
    A(f"  s_add_u32 s{t2}, s{t2}, s{t3}")
    A(f"  s_lshl_b32 s{t3}, s{t2}, 10")
    A(f"  v_lshlrev_b32 v{vt3}, 4, v{vl}")
    A(f"  s_lshl_b32 s{sc}, s{scb}, 5")
    A(f"  s_add_u32 s{sc}, s{sc}, s{stb}")
    A(f"  s_lshr_b32 s{sch}, s{sw}, 1")
    A(f"  s_and_b32 s{sqh}, s{sw}, 1")
    A("  s_waitcnt lgkmcnt(0)")
    srd(A, sCNT, 60, WS_CNT, 16384)
    srd(A, sDBG, 62, 0, 256)
    A("  s_cmp_lg_u32 s2, 0")
    A(f"  s_cbranch_scc1 {name}_nozero")
    for i in range(4): A(f"  v_mov_b32 v{vO+i}, 0")
    NZ = 0
    for (off, size) in ((WS_CNT, 8192), (WS_ST1, 16384)):
        srd(A, sH, 60, off, size)
        for i in range(size//4096):
            A(f"  s_movk_i32 s44, {4096*i}")
            A(f"  buffer_store_dwordx4 {vr(vO,4)}, v{vT16}, {sr(sH,4)}, s44 offen sc1"); NZ += 1
    A(f"{name}_nozero:")
    srd(A, sK, 48, 0, SZ2M)
    srd(A, sV, 50, 0, SZ2M)
    for i in range(3):
        A(f"  buffer_load_dwordx4 {vr(vK+4*i,4)}, v{vKo+i}, {sr(sK,4)}, 0 offen")
    for i in range(2):
        A(f"  buffer_load_dwordx4 {vr(vK+12+4*i,4)}, v{vb}, {sr(sK,4)}, 0 offen offset:{1024*i}")
    for i in range(2):
        A(f"  buffer_load_dwordx4 {vr(vV+4*i,4)}, v{vb}, {sr(sV,4)}, 0 offen offset:{1024*i}")
    srd(A, sSH, 52, 0, 512*4*2)
    for i in range(4):
        A(f"  buffer_load_dwordx4 {vr(vS+4*i,4)}, v{vSo}, {sr(sSH,4)}, 0 offen offset:{16*i}")
    srd(A, sXq, 58, 0, SZ2M)
    for i in range(2):
        A(f"  buffer_load_dwordx4 {vr(vXt+4*i,4)}, v{vb}, {sr(sXq,4)}, 0 offen offset:{1024*i}")
    for i in range(2):
        A(f"  buffer_load_dwordx4 {vr(vXr+4*i,4)}, v{vt3}, {sr(sXq,4)}, s{t3} offen offset:{1024*i}")
    ML = dict(sX=sX, sCNT=sCNT, sw=sw, sK=sSH, name=name, sM=sH, stb=stb, scb=scb)
    part_loads(A, ML)
    NP1 = 20
    A(f"  s_lshl_b32 s{t0}, s{sc}, 2")
    A(f"  s_load_dword s{sD}, s[56:57], s{t0}")
    srd(A, sH, 54, 0, SZ2M)
    A(f"  v_sub_u32 v{vt2}, 31, v{vt1}")
    A(f"  v_lshrrev_b32 v{vW}, 2, v{vt2}")
    A(f"  v_xor_b32 v{vW}, v{vW}, v{vt0}")
    A(f"  v_lshlrev_b32 v{vW}, 4, v{vW}")
    A(f"  v_and_b32 v{vt2}, 3, v{vt2}")
    A(f"  v_lshl_add_u32 v{vW}, v{vt2}, 2, v{vW}")
    A(f"  v_lshl_add_u32 v{vW}, v{vt0}, 10, v{vW}")
    A(f"  v_add_u32 v{vW}, {TT}, v{vW}")
    A(f"  v_xor_b32 v{vt2}, s{sw}, v{vt0}")
    A(f"  v_lshlrev_b32 v{vt2}, 4, v{vt2}")
    A(f"  v_lshl_add_u32 v{vR0}, v{vt1}, 7, v{vt2}")
    A(f"  v_xor_b32 v{vt2}, 64, v{vt2}")
    A(f"  v_lshl_add_u32 v{vR1}, v{vt1}, 7, v{vt2}")
    A(f"  v_add_u32 v{vR0}, {TT}, v{vR0}")
    A(f"  v_add_u32 v{vR1}, {TT+4096}, v{vR1}")
    A(f"  s_lshl_b32 s44, s{scb}, 18")
    A(f"  s_lshl_b32 s45, s{stb}, 7")
    A(f"  s_sub_u32 s44, s44, s45")
    A(f"  s_add_u32 s44, s44, 3968")
    A(f"  v_lshlrev_b32 v{vG}, 12, v{vt1}")
    A(f"  v_lshl_add_u32 v{vG}, v{vt0}, 4, v{vG}")
    A(f"  v_add_u32 v{vG}, s44, v{vG}")
    vXw = vSo
    A(f"  v_mul_u32_u24 v{vXw}, 288, v{vt1}")
    A(f"  v_lshl_add_u32 v{vXw}, v{vt0}, 4, v{vXw}")
    A(f"  v_add_u32 v{vXw}, {XT}, v{vXw}")
    srd(A, sKV, 60, WS_KVR, SZ2M)
    A("  s_cmp_lg_u32 s2, 0")
    A(f"  s_cbranch_scc1 {name}_nozero2")
    A(f"  s_waitcnt vmcnt({NP1})")
    A("  s_barrier")
    A(f"  s_cmp_lg_u32 s{sw}, 0")
    A(f"  s_cbranch_scc1 {name}_nozero2")
    A(f"  v_mov_b32 v{vt2}, 0")
    A(f"  v_mov_b32 v{vt3}, 1")
    A(f"  s_mov_b64 exec, 1")
    A(f"  buffer_store_dword v{vt3}, v{vt2}, {sr(sDBG,4)}, 0 offen sc1")
    A(f"  s_mov_b64 exec, -1")
    A(f"{name}_nozero2:")
    A(f"  s_waitcnt vmcnt(9)")
    ST.stamp()
    for c in range(8):
        for hh in range(2):
            src = vS + 2*c + hh
            A(f"  v_lshlrev_b32 v{vSf+4*c+2*hh}, 16, v{src}")
            A(f"  v_and_b32 v{vSf+4*c+2*hh+1}, 0xffff0000, v{src}")
    for r in range(5):
        for i in range(4):
            A(f"  v_lshlrev_b32 v{vKf+8*r+2*i}, 16, v{vK+4*r+i}")
            A(f"  v_and_b32 v{vKf+8*r+2*i+1}, 0xffff0000, v{vK+4*r+i}")
    for tk in range(2):
        for c in range(8):
            A(f"  v_mul_f32 v{vO+8*tk+c}, v{vKf+8*(3+tk)+c}, v{vSf+4*c}")
        for j in range(1,4):
            for c in range(8):
                A(f"  v_fma_f32 v{vO+8*tk+c}, v{vKf+8*(3+tk-j)+c}, v{vSf+4*c+j}, v{vO+8*tk+c}")
    for tk in range(2):
        for i in range(4):
            A(f"  v_lshlrev_b32 v{vKf+8*tk+2*i}, 16, v{vV+4*tk+i}")
            A(f"  v_and_b32 v{vKf+8*tk+2*i+1}, 0xffff0000, v{vV+4*tk+i}")
    for tk in range(2):
        for c in range(8):
            A(f"  v_mul_f32 v{vO+8*tk+c}, v{vO+8*tk+c}, v{vKf+8*tk+c}")
    for c in range(8):
        A(f"  v_cvt_pk_bf16_f32 v{vP+c}, v{vO+8+c}, v{vO+c}")
    for c in range(8):
        A(f"  ds_write_b32 v{vW}, v{vP+c} offset:{128*c}")
    A("  s_waitcnt lgkmcnt(0)")
    A("  s_barrier")
    A(f"  ds_read_b128 {vr(vO,4)}, v{vR0}")
    A(f"  ds_read_b128 {vr(vO+4,4)}, v{vR1}")
    A(f"  s_mov_b32 s44, {32*4096}")
    A("  s_waitcnt lgkmcnt(1)")
    A(f"  buffer_store_dwordx4 {vr(vO,4)}, v{vG}, {sr(sKV,4)}, 0 offen sc1")
    A("  s_waitcnt lgkmcnt(0)")
    A(f"  buffer_store_dwordx4 {vr(vO+4,4)}, v{vG}, {sr(sKV,4)}, s44 offen sc1")
    ST.stamp()
    A(f"  s_lshl_b32 s44, s{sc}, 13")
    A(f"  s_add_u32 s45, s44, 4096")
    for ch in range(2):
        for k in range(3):
            A(f"  buffer_load_dwordx4 {vr(vL+12*ch+4*k,4)}, v{vT16}, {sr(sH,4)}, s{44+ch} offen offset:{4*k}")
    A(f"  s_cmp_eq_u32 s{sw}, 0")
    A(f"  s_cselect_b32 s44, 0, 0x400")
    A(f"  v_mov_b32 v{vt2}, s44")
    A(f"  buffer_load_dword v{vFl}, v{vt2}, {sr(sDBG,4)}, 0 offen sc1")
    def check_ready(tag):
        A(f"  v_readfirstlane_b32 s44, v{vFl}")
        A(f"  s_mov_b32 s45, {SPIN}")
        A(f"{name}_rdy{tag}:")
        A(f"  s_cmp_lg_u32 s44, 0")
        A(f"  s_cbranch_scc1 {name}_rdyok{tag}")
        A(f"  v_mov_b32 v{vt2}, 0")
        A(f"  buffer_load_dword v{vFl}, v{vt2}, {sr(sDBG,4)}, 0 offen sc1")
        A("  s_waitcnt vmcnt(0)")
        A(f"  v_readfirstlane_b32 s44, v{vFl}")
        A(f"  s_sub_u32 s45, s45, 1")
        A(f"  s_cmp_lg_u32 s45, 0")
        A(f"  s_cbranch_scc1 {name}_rdy{tag}")
        A(f"{name}_rdyok{tag}:")
    def arrive(idx_expr_lines, tag):
        for x in idx_expr_lines: A(x)
        A(f"  v_mov_b32 v{vt2}, s44")
        A(f"  v_mov_b32 v{vt3}, 1")
        A(f"  s_mov_b64 exec, 1")
        A(f"  buffer_atomic_add v{vt3}, v{vt2}, {sr(sCNT,4)}, 0 offen sc1")
        A(f"  s_mov_b64 exec, -1")
    A("  s_waitcnt vmcnt(9)")
    for i in range(2):
        A(f"  ds_write_b128 v{vXw}, {vr(vXt+4*i,4)} offset:{144*i}")
    A("  s_waitcnt lgkmcnt(0)")
    A("  s_barrier")
    A(f"  v_and_b32 v{vt0}, 15, v0")
    A(f"  v_lshrrev_b32 v{vt1}, 4, v0")
    A(f"  v_mul_u32_u24 v{vt2}, 144, v{vt0}")
    A(f"  v_lshl_add_u32 v{vt2}, v{vt1}, 2, v{vt2}")
    A(f"  v_add_u32 v{vt2}, {XT}, v{vt2}")
    for hh in range(2):
        for r in range(4):
            A(f"  ds_read_b32 v{vO+4*hh+r}, v{vt2} offset:{r*16*144+hh*64}")
    srd(A, sX, 60, WS_XP, SZ2M)
    A(f"  s_lshl_b32 s44, s{scb}, 18")
    A(f"  s_lshl_b32 s45, s{stb}, 8")
    A(f"  s_add_u32 s44, s44, s45")
    A(f"  s_add_u32 s45, s44, {16*8192}")
    A(f"  v_lshlrev_b32 v{vt3}, 13, v{vt1}")
    A(f"  v_lshl_add_u32 v{vt3}, v{vt0}, 4, v{vt3}")
    vF, vSt = vKf, vKf+16
    for t in range(2):
        for i in range(4):
            A(f"  v_lshlrev_b32 v{vF+8*t+2*i}, 16, v{vXr+4*t+i}")
            A(f"  v_and_b32 v{vF+8*t+2*i+1}, 0xffff0000, v{vXr+4*t+i}")
    A("  s_waitcnt lgkmcnt(0)")
    A(f"  buffer_store_dwordx4 {vr(vO,4)}, v{vt3}, {sr(sX,4)}, s44 offen sc1")
    A(f"  buffer_store_dwordx4 {vr(vO+4,4)}, v{vt3}, {sr(sX,4)}, s45 offen sc1")
    for t in range(2):
        F = vF+8*t
        A(f"  v_add_f32 v{vSt+t}, v{F}, v{F+1}")
        A(f"  v_mul_f32 v{vSt+2+t}, v{F}, v{F}")
    for i in range(1,8):
        for t in range(2):
            F = vF+8*t
            if i >= 2: A(f"  v_add_f32 v{vSt+t}, v{vSt+t}, v{F+i}")
            A(f"  v_fma_f32 v{vSt+2+t}, v{F+i}, v{F+i}, v{vSt+2+t}")
    wave_reduce(A, [vSt, vSt+1, vSt+2, vSt+3])
    A("  s_mov_b32 s44, 0x3b000000")
    A("  s_mov_b32 s45, 0x3727c5ac")
    for t in range(2):
        A(f"  v_mul_f32 v{vSt+t}, s44, v{vSt+t}")
        A(f"  v_mul_f32 v{vSt+2+t}, s44, v{vSt+2+t}")
    for t in range(2):
        A(f"  v_fma_f32 v{vSt+2+t}, -v{vSt+t}, v{vSt+t}, v{vSt+2+t}")
    for t in range(2):
        A(f"  v_max_f32 v{vSt+2+t}, 0, v{vSt+2+t}")
    for t in range(2):
        A(f"  v_add_f32 v{vSt+2+t}, s45, v{vSt+2+t}")
    for t in range(2):
        A(f"  v_rsq_f32 v{vSt+2+t}, v{vSt+2+t}")
    A("  s_nop 0")
    Q = vKf+24
    for t in range(2):
        A(f"  v_mov_b32 v{Q+2*t}, v{vSt+2+t}")
        A(f"  v_mul_f32 v{Q+2*t+1}, -v{vSt+t}, v{vSt+2+t}")
    A(f"  s_lshl_b32 s44, s{sw}, 4")
    A(f"  s_add_u32 s44, s44, {MS}")
    A(f"  v_mov_b32 v{vt2}, s44")
    A("  s_mov_b32 s46, 0")
    A("  s_brev_b32 s47, 1")
    A("  s_mov_b64 exec, s[46:47]")
    A(f"  ds_write_b128 v{vt2}, {vr(Q,4)}")
    A("  s_mov_b64 exec, -1")
    ST.stamp()
    part_compute(A, ML)
    ST.stamp()
    A("  s_waitcnt vmcnt(0) lgkmcnt(0)")
    A("  s_barrier")
    A(f"  s_cmp_lg_u32 s{sw}, 0")
    A(f"  s_cbranch_scc1 {name}_arr1")
    check_ready("a")
    A(f"  v_lshlrev_b32 v{vt2}, 4, v{vl}")
    A(f"  ds_read_b128 {vr(vO,4)}, v{vt2} offset:{MS}")
    srd(A, sX, 60, WS_ST1, 2048*8)
    A(f"  s_lshl_b32 s44, s2, 6")
    A("  s_waitcnt lgkmcnt(0)")
    A(f"  s_mov_b64 exec, 0xf")
    A(f"  buffer_store_dwordx4 {vr(vO,4)}, v{vt2}, {sr(sX,4)}, s44 offen sc1")
    A(f"  s_mov_b64 exec, -1")
    arrive([f"  s_lshl_b32 s44, s{scb}, 8", f"  s_add_u32 s44, s44, {C_KV*256}"], "kv")
    A(f"{name}_arr1:")
    ST.stamp()
    vE, vZero, vHCw = vSf, vSf+8, vSf+12
    for i in range(4): A(f"  v_mov_b32 v{vZero+i}, 0")
    A(f"  v_add_u32 v{vHCw}, {HC+32}, v{vT16}")
    for ch in range(2):
        La, Lb, Lc = vL+12*ch, vL+12*ch+4, vL+12*ch+8
        for i in range(4):
            A(f"  v_alignbit_b32 v{vE+i}, v{Lb+i}, v{La+i}, 16")
        for i in range(4):
            A(f"  v_alignbit_b32 v{vE+4+i}, v{Lc+i}, v{Lb+i}, 16")
        base = ch*HCH
        A(f"  ds_write_b128 v{vHCw}, {vr(La,4)} offset:{base}")
        A(f"  ds_write_b128 v{vHCw}, {vr(Lb,4)} offset:{base+2*4160}")
        A(f"  ds_write_b128 v{vHCw}, {vr(vE,4)} offset:{base+4160}")
        A(f"  ds_write_b128 v{vHCw}, {vr(vE+4,4)} offset:{base+3*4160}")
        A("  s_nop 1")
    A(f"  v_lshrrev_b32 v{vt1}, 5, v{vl}")
    A(f"  v_mul_u32_u24 v{vt1}, 4608, v{vt1}")
    A(f"  v_and_b32 v{vt2}, 31, v{vl}")
    A(f"  v_lshl_add_u32 v{vt1}, v{vt2}, 4, v{vt1}")
    A(f"  ds_write_b128 v{vt1}, {vr(vZero,4)} offset:4096")
    A(f"  v_cmp_eq_u32 vcc, 0, v0")
    A(f"  s_and_saveexec_b64 s[46:47], vcc")
    A(f"  s_cbranch_execz {name}_noneg")
    A(f"  v_mov_b32 v{vt0}, {HC}")
    for ch in range(2):
        La = vL+12*ch
        base = ch*HCH
        for phi in range(4):
            A(f"  ds_write_b128 v{vt0}, {vr(vZero,4)} offset:{base+phi*4160}")
        A(f"  ds_write_b128 v{vt0}, {vr(vZero,4)} offset:{base+16}")
        T = vKf + 16*ch
        for i in range(12): A(f"  v_mov_b32 v{T+i}, 0")
        A(f"  v_lshlrev_b32 v{T+3}, 16, v{La}")
        A(f"  v_mov_b32 v{T+7}, v{La}")
        A(f"  v_lshlrev_b32 v{T+10}, 16, v{La}")
        A(f"  v_alignbit_b32 v{T+11}, v{La+1}, v{La}, 16")
        A(f"  ds_write_b128 v{vt0}, {vr(T,4)} offset:{base+4160+16}")
        A(f"  ds_write_b128 v{vt0}, {vr(T+4,4)} offset:{base+2*4160+16}")
        A(f"  ds_write_b128 v{vt0}, {vr(T+8,4)} offset:{base+3*4160+16}")
    A(f"{name}_noneg:")
    A(f"  s_mov_b64 exec, s[46:47]")
    conv_part(A, locals())
    A(f"{name}_end:")
    ST.flush(2)
    A("  s_endpgm")
    return dict(name=name, grid=256, block=256, lds=LDS, nvgpr=240, accum=240)

MV = dict(vC=198, vW=200, vT=140, vP=156, vOA=220, vOB=221)
def part_loads(A, L):
    sX, sK, sw, stb, scb = L['sX'], L['sK'], L['sw'], L['stb'], L['scb']
    vC, vW, vOA, vOB = MV['vC'], MV['vW'], MV['vOA'], MV['vOB']
    vt2, vl = 4, 1
    A(f"  v_lshrrev_b32 v{vt2}, 3, v{vl}")
    A(f"  s_lshl_b32 s44, s{stb}, 5")
    A(f"  v_lshl_add_u32 v{vOB}, v{vt2}, 2, s44")
    A(f"  s_mov_b32 s{sK}, s96")
    A(f"  s_mov_b32 s{sK+1}, s97")
    A(f"  s_mov_b32 s{sK+2}, 1024")
    A(f"  s_mov_b32 s{sK+3}, 0x20000")
    A(f"  buffer_load_dword v{vC}, v{vOB}, {sr(sK,4)}, 0 offen")
    srd(A, sX, 98, 0, 512*3072*2)
    A(f"  v_mul_u32_u24 v{vOA}, 12288, v{vt2}")
    A(f"  v_and_b32 v{vt2}, 7, v{vl}")
    A(f"  v_lshl_add_u32 v{vOA}, v{vt2}, 4, v{vOA}")
    A(f"  s_mul_i32 s44, s{stb}, {16*6144}")
    A(f"  s_lshl_b32 s45, s{scb}, 7")
    A(f"  s_add_u32 s44, s44, s45")
    A(f"  s_lshl_b32 s45, s{sw}, 10")
    A(f"  s_add_u32 s44, s44, s45")
    A(f"  s_add_u32 s45, s44, 6144")
    A(f"  buffer_load_dwordx4 {vr(vW,4)}, v{vOA}, {sr(sX,4)}, s44 offen")
    A(f"  buffer_load_dwordx4 {vr(vW+4,4)}, v{vOA}, {sr(sX,4)}, s45 offen")
    A(f"  s_add_u32 s44, s44, 4096")
    A(f"  s_cmp_lt_u32 s{sw}, 2")
    A(f"  s_cselect_b32 s44, s44, 0x40000000")
    A(f"  s_add_u32 s45, s44, 6144")
    A(f"  buffer_load_dwordx4 {vr(vW+8,4)}, v{vOA}, {sr(sX,4)}, s44 offen")
    A(f"  buffer_load_dwordx4 {vr(vW+12,4)}, v{vOA}, {sr(sX,4)}, s45 offen")

def part_compute(A, L):
    sM, sw = L['sM'], L['sw']
    vC, vW, vT, vP, vOA = MV['vC'], MV['vW'], MV['vT'], MV['vP'], MV['vOA']
    vl = 1
    c0, c1, e0, e1 = vT, vT+1, vT+2, vT+3
    vS = vT+8+8
    A(f"  v_lshlrev_b32 v{c0}, 16, v{vC}")
    A(f"  v_and_b32 v{c1}, 0xffff0000, v{vC}")
    A("  s_mov_b32 s44, 0xbfb8aa3b")
    A(f"  v_mul_f32 v{e0}, s44, v{c0}")
    A(f"  v_mul_f32 v{e1}, s44, v{c1}")
    A(f"  v_exp_f32 v{e0}, v{e0}")
    A(f"  v_exp_f32 v{e1}, v{e1}")
    A("  s_mov_b32 s44, 0x05040100")
    A(f"  v_add_f32 v{e0}, 1.0, v{e0}")
    A(f"  v_add_f32 v{e1}, 1.0, v{e1}")
    A(f"  v_rcp_f32 v{e0}, v{e0}")
    A(f"  v_rcp_f32 v{e1}, v{e1}")
    A("  s_mov_b32 s45, 0x07060302")
    A(f"  v_mul_f32 v{c0}, v{c0}, v{e0}")
    A(f"  v_mul_f32 v{c1}, v{c1}, v{e1}")
    A(f"  v_cvt_pk_bf16_f32 v{vC}, v{c0}, v{c1}")
    for it in range(2):
        ra, rb, P = vW+8*it, vW+8*it+4, vP+8*it
        for a in range(4):
            A(f"  v_perm_b32 v{vT+2*a}, v{rb+a}, v{ra+a}, s44")
            A(f"  v_perm_b32 v{vT+2*a+1}, v{rb+a}, v{ra+a}, s45")
        for n in range(8):
            A(f"  v_dot2_f32_bf16 v{P+n}, v{vT+n}, v{vC}, 0")
    A("  s_nop 3")
    for it in range(2):
        for i in range(4): A(f"  v_permlane32_swap_b32 v{vP+8*it+i}, v{vP+8*it+i+4}")
    A("  s_nop 0")
    for it in range(2):
        for i in range(4): A(f"  v_add_f32 v{vP+8*it+i}, v{vP+8*it+i}, v{vP+8*it+i+4}")
    A("  s_nop 0")
    for it in range(2):
        for i in range(2): A(f"  v_permlane16_swap_b32 v{vP+8*it+i}, v{vP+8*it+i+2}")
    A("  s_nop 0")
    for it in range(2):
        for i in range(2): A(f"  v_add_f32 v{vP+8*it+i}, v{vP+8*it+i}, v{vP+8*it+i+2}")
    A("  s_nop 0")
    for it in range(2):
        for i in range(2): A(f"  v_add_f32_dpp v{vP+8*it+i}, v{vP+8*it+i}, v{vP+8*it+i} row_ror:8 row_mask:0xf bank_mask:0xf")
    srd(A, sM, 60, WS_PART, 256*6*256)
    A(f"  v_and_b32 v{vOA}, 7, v{vl}")
    A(f"  v_lshlrev_b32 v{vOA}, 5, v{vOA}")
    A(f"  v_lshrrev_b32 v{vT}, 4, v{vl}")
    A(f"  v_lshl_add_u32 v{vOA}, v{vT}, 3, v{vOA}")
    A(f"  v_and_b32 v{vT}, 8, v{vl}")
    A(f"  v_lshl_or_b32 v{vOA}, v{vT}, 27, v{vOA}")
    A(f"  s_lshl_b32 s44, s{L['scb']}, 5")
    A(f"  s_add_u32 s44, s44, s{L['stb']}")
    A(f"  s_mul_i32 s44, s44, 1536")
    A(f"  s_lshl_b32 s45, s{sw}, 8")
    A(f"  s_add_u32 s44, s44, s45")
    A(f"  buffer_store_dwordx2 {vr(vP,2)}, v{vOA}, {sr(sM,4)}, s44 offen sc1")
    A(f"  s_add_u32 s44, s44, 1024")
    A(f"  s_cmp_lt_u32 s{sw}, 2")
    A(f"  s_cselect_b32 s44, s44, 0x40000000")
    A(f"  buffer_store_dwordx2 {vr(vP+8,2)}, v{vOA}, {sr(sM,4)}, s44 offen sc1")

def conv_part(A, L):
    name, ST, SPIN, PREFETCH = L['name'], L['ST'], L['SPIN'], L['PREFETCH']
    XR, HC, HCH, EX = L['XR'], L['HC'], L['HCH'], L['EX']
    vl, vt0, vt1, vt2, vt3, vT16 = (L[k] for k in "vl vt0 vt1 vt2 vt3 vT16".split())
    sKV, sCNT, sX, sH, sK, sV, sSH, sXq = (L[k] for k in "sKV sCNT sX sH sK sV sSH sXq".split())
    scb, sw, sc, sch, sqh, sD, stb = (L[k] for k in "scb sw sc sch sqh sD stb".split())
    vAcc, vZf, vHf = 16, 48, 112
    MD = 42496
    vXP, vS1, vMd, vPt = 176, 184, 200, 224
    vZ, vH, vEXw, vEXr, vYo, vHD, vKVo, vXRw, vFl = 208, 209, 210, 211, 212, 216, 213, 214, 215
    A(f"  v_and_b32 v{vt0}, 15, v{vl}")
    A(f"  v_lshrrev_b32 v{vt1}, 4, v{vl}")
    A(f"  v_lshlrev_b32 v{vt2}, 5, v{vt0}")
    A(f"  v_sub_u32 v{vt2}, 480, v{vt2}")
    A(f"  v_lshl_add_u32 v{vt2}, v{vt1}, 4, v{vt2}")
    A(f"  s_mul_i32 s44, s{sch}, 4608")
    A(f"  s_lshl_b32 s45, s{sqh}, 8")
    A(f"  s_add_u32 s44, s44, s45")
    A(f"  v_add_u32 v{vZ}, s44, v{vt2}")
    A(f"  v_add_u32 v{vt2}, 1, v{vt0}")
    A(f"  v_and_b32 v{vt3}, 3, v{vt2}")
    A(f"  v_sub_u32 v{vt2}, v{vt2}, v{vt3}")
    A(f"  v_lshl_add_u32 v{vt2}, v{vt1}, 3, v{vt2}")
    A(f"  v_lshlrev_b32 v{vt2}, 1, v{vt2}")
    A(f"  v_mul_u32_u24 v{vt3}, 4160, v{vt3}")
    A(f"  v_add_u32 v{vt2}, v{vt2}, v{vt3}")
    A(f"  s_mul_i32 s44, s{sch}, {HCH}")
    A(f"  s_add_u32 s44, s44, s45")
    A(f"  s_add_u32 s44, s44, {HC}")
    A(f"  v_add_u32 v{vH}, s44, v{vt2}")
    A(f"  v_lshlrev_b32 v{vt2}, 4, v{vl}")
    A(f"  s_lshl_b32 s44, s{sw}, 13")
    A(f"  s_add_u32 s44, s44, {EX}")
    A(f"  v_add_u32 v{vEXw}, s44, v{vt2}")
    A(f"  s_lshl_b32 s44, s{sw}, 11")
    A(f"  s_add_u32 s44, s44, {EX}")
    A(f"  v_add_u32 v{vEXr}, s44, v{vt2}")
    A(f"  s_lshl_b32 s44, s{sc}, 13")
    A(f"  s_lshl_b32 s45, s{sw}, 11")
    A(f"  s_add_u32 s44, s44, s45")
    A(f"  v_add_u32 v{vKVo}, s44, v{vt2}")
    A(f"  s_mul_i32 s44, s{sch}, 4608")
    A(f"  s_lshl_b32 s45, s{sqh}, 11")
    A(f"  s_add_u32 s44, s44, s45")
    A(f"  v_add_u32 v{vXRw}, s44, v{vt2}")
    A(f"  s_lshr_b32 s44, s{sc}, 3")
    A(f"  s_lshl_b32 s44, s44, 10")
    A(f"  s_bfe_u32 s45, s{sc}, 0x10002")
    A(f"  s_lshl_b32 s45, s45, 9")
    A(f"  s_add_u32 s44, s44, s45")
    A(f"  s_and_b32 s45, s{sc}, 3")
    A(f"  s_lshl_b32 s45, s45, 2")
    A(f"  s_add_u32 s44, s44, s45")
    A(f"  s_lshl_b32 s45, s{sw}, 19")
    A(f"  s_add_u32 s44, s44, s45")
    A(f"  v_lshlrev_b32 v{vt2}, 16, v{vt1}")
    A(f"  v_lshl_add_u32 v{vt2}, v{vt0}, 4, v{vt2}")
    A(f"  v_add_u32 v{vYo}, s44, v{vt2}")
    A("  s_waitcnt lgkmcnt(0)")
    A(f"  s_lshr_b32 s44, s{sD}, 16")
    A(f"  s_and_b32 s45, s{sD}, 0xffff")
    A(f"  s_cmp_eq_u32 s{sch}, 0")
    A(f"  s_cselect_b32 s44, s45, s44")
    A(f"  s_lshl_b32 s45, s44, 16")
    A(f"  v_lshlrev_b32 v{vt2}, 3, v{vt1}")
    A(f"  v_add_u32 v{vt2}, v{vt2}, v{vt0}")
    A(f"  v_sub_u32 v{vt2}, 15, v{vt2}")
    A(f"  v_and_b32 v{vt3}, 1, v{vt2}")
    A(f"  v_cmp_eq_u32 vcc, 1, v{vt3}")
    A(f"  v_mov_b32 v{vHD}, s44")
    A(f"  v_mov_b32 v{vHD+1}, s45")
    A(f"  v_cndmask_b32 v{vt3}, v{vHD}, v{vHD+1}, vcc")
    A(f"  v_ashrrev_i32 v{vt2}, 1, v{vt2}")
    for i in range(4):
        A(f"  v_cmp_eq_u32 vcc, {i}, v{vt2}")
        A("  s_nop 1")
        A(f"  v_cndmask_b32 v{vHD+i}, 0, v{vt3}, vcc")
    vXo, vSo_, vMo, vPf, vPd = L['vb'], L['vW'], L['vR0'], L['vR1'], L['vG']
    A(f"  v_and_b32 v{vt0}, 15, v{vl}")
    A(f"  v_lshrrev_b32 v{vt1}, 4, v{vl}")
    A(f"  v_lshlrev_b32 v{vt2}, 8, v{vt1}")
    A(f"  v_lshl_add_u32 v{vt2}, v{vt0}, 4, v{vt2}")
    A(f"  s_lshl_b32 s44, s{sc}, 13")
    A(f"  s_lshl_b32 s45, s{sw}, 11")
    A(f"  s_add_u32 s44, s44, s45")
    A(f"  v_add_u32 v{vXo}, s44, v{vt2}")
    A(f"  v_lshl_add_u32 v{vt2}, v{vt1}, 6, v{vt0}")
    A(f"  v_lshlrev_b32 v{vt2}, 3, v{vt2}")
    A(f"  s_lshl_b32 s44, s{sw}, 12")
    A(f"  v_add_u32 v{vSo_}, s44, v{vt2}")
    A(f"  s_lshl_b32 s44, s{scb}, 5")
    A(f"  v_add_u32 v{vMo}, s44, v{vl}")
    A(f"  v_mul_u32_u24 v{vMo}, 1536, v{vMo}")
    A(f"  s_lshl_b32 s44, s{stb}, 3")
    A(f"  v_add_u32 v{vMo}, s44, v{vMo}")
    A(f"  v_lshrrev_b32 v{vt2}, 5, v0")
    A(f"  v_min_u32 v{vt2}, 1, v{vt2}")
    A(f"  v_lshl_or_b32 v{vMo}, v{vt2}, 30, v{vMo}")
    srd(A, sX, 60, WS_XP, SZ2M)
    srd(A, sK, 60, WS_ST1, 2048*8)
    srd(A, sV, 60, WS_PART, 256*6*256)
    if PREFETCH:
        A(f"  s_load_dwordx4 s[48:51], s[0:1], {KA['wg']}")
        A(f"  s_load_dwordx2 s[52:53], s[0:1], {KA['wd']}")
        A(f"  v_and_b32 v{vt1}, 64, v0")
        A(f"  v_add_u32 v{vt1}, v{vt1}, v{vl}")
        A(f"  v_mul_u32_u24 v{vt2}, 147, v{vt1}")
        A(f"  v_lshrrev_b32 v{vt2}, 10, v{vt2}")
        A(f"  v_mul_u32_u24 v{vt3}, 7, v{vt2}")
        A(f"  v_sub_u32 v{vt3}, v{vt1}, v{vt3}")
        A(f"  s_lshl_b32 s44, s{stb}, 4")
        A(f"  v_add_u32 v{vt2}, s44, v{vt2}")
        A(f"  v_mul_u32_u24 v{vt2}, 3584, v{vt2}")
        A(f"  v_lshl_add_u32 v{vPf}, v{vt3}, 7, v{vt2}")
        A(f"  s_lshr_b32 s44, s{scb}, 1")
        A(f"  s_mul_i32 s44, s44, 896")
        A(f"  v_add_u32 v{vPf}, s44, v{vPf}")
        A(f"  s_mul_i32 s44, s2, 7168")
        A(f"  v_lshlrev_b32 v{vt1}, 5, v0")
        A(f"  v_and_b32 v{vt1}, 0xffffff80, v{vt1}")
        A(f"  v_add_u32 v{vPd}, s44, v{vt1}")
        A("  s_waitcnt lgkmcnt(0)")
        A(f"  s_cmp_eq_u32 s{sch}, 0")
        A(f"  s_cselect_b32 s{sSH}, s48, s50")
        A(f"  s_cselect_b32 s{sSH+1}, s49, s51")
        A(f"  s_mov_b32 s{sSH+2}, {512*1792*2}")
        A(f"  s_mov_b32 s{sSH+3}, 0x20000")
        srd(A, sXq, 52, 0, 1792*512*2)
    A(f"  s_cmp_lg_u32 s{sw}, 0")
    A(f"  s_cbranch_scc1 {name}_s1w")
    A(f"  s_lshl_b32 s44, s{scb}, 8")
    A(f"  s_add_u32 s44, s44, {C_KV*256}")
    A(f"  v_mov_b32 v{vt2}, s44")
    A(f"  s_mov_b32 s45, {SPIN}")
    A(f"{name}_s1:")
    A(f"  buffer_load_dword v{vt3}, v{vt2}, {sr(sCNT,4)}, 0 offen sc1")
    A("  s_waitcnt vmcnt(0)")
    A(f"  v_readfirstlane_b32 s44, v{vt3}")
    A(f"  s_cmp_ge_u32 s44, 32")
    A(f"  s_cbranch_scc1 {name}_s1w")
    A(f"  s_sub_u32 s45, s45, 1")
    A(f"  s_cmp_lg_u32 s45, 0")
    A(f"  s_cbranch_scc1 {name}_s1")
    A(f"{name}_s1w:")
    A("  s_waitcnt lgkmcnt(0)")
    A("  s_barrier")
    ST.stamp()
    vKV = vZf
    A(f"  buffer_load_dwordx4 {vr(vKV,4)}, v{vKVo}, {sr(sKV,4)}, 0 offen sc1")
    A(f"  buffer_load_dwordx4 {vr(vKV+4,4)}, v{vKVo}, {sr(sKV,4)}, 0 offen offset:1024 sc1")
    A("  s_waitcnt vmcnt(0)")
    A(f"  ds_write_b128 v{vXRw}, {vr(vKV,4)}")
    A(f"  ds_write_b128 v{vXRw}, {vr(vKV+4,4)} offset:1024")
    def epi_loads(xp=True, pf=True):
        for gg in range(2):
            if xp: A(f"  buffer_load_dwordx4 {vr(vXP+4*gg,4)}, v{vXo}, {sr(sX,4)}, 0 offen offset:{1024*gg} sc1")
        for gg in range(2):
            for r in range(4):
                A(f"  buffer_load_dwordx2 {vr(vS1+8*gg+2*r,2)}, v{vSo_}, {sr(sK,4)}, 0 offen offset:{2048*gg+128*r} sc1")
        if xp:
            for chk in range(6):
                A(f"  buffer_load_dwordx2 {vr(vPt+2*chk,2)}, v{vMo}, {sr(sV,4)}, 0 offen offset:{256*chk} sc1")
        if PREFETCH and pf:
            A(f"  buffer_load_dword v220, v{vPf}, {sr(sSH,4)}, 0 offen")
            A(f"  buffer_load_dword v221, v{vPd}, {sr(sXq,4)}, 0 offen")
    A("  s_waitcnt lgkmcnt(0)")
    A("  s_barrier")
    ST.stamp()
    def reads(it):
        buf = it & 1
        R = []
        for G in range(8):
            R.append(f"  ds_read_b128 {vr(vZf+32*buf+4*G,4)}, v{vZ} offset:{64*it+512*(7-G)}")
        for m in range(8):
            for hh in range(2):
                R.append(f"  ds_read_b64 {vr(vHf+32*buf+4*m+2*hh,2)}, v{vH} offset:{64*it+512*m+8*hh}")
        return R
    for s in reads(0): A(s)
    for it in range(4):
        buf = it & 1
        if it == L['ITC']: epi_loads()
        A("  s_waitcnt lgkmcnt(0)")
        nxt = reads(it+1) if it < 3 else []
        if it == 0:
            A(f"  s_cmp_lg_u32 s{sqh}, 0")
            A(f"  s_cbranch_scc1 {name}_noD")
            for G in range(8):
                A(f"  v_mfma_f32_16x16x32_bf16 {vr(vAcc+4*G,4)}, {vr(vZf+4*G,4)}, {vr(vHD,4)}, 0")
            A(f"  s_branch {name}_Dok")
            A(f"{name}_noD:")
            for i in range(32): A(f"  v_mov_b32 v{vAcc+i}, 0")
            A("  s_nop 1")
            A(f"{name}_Dok:")
        for m in range(8):
            for Gz in range(8-m):
                G = Gz+m
                A(f"  v_mfma_f32_16x16x32_bf16 {vr(vAcc+4*G,4)}, {vr(vZf+32*buf+4*Gz,4)}, {vr(vHf+32*buf+4*m,4)}, {vr(vAcc+4*G,4)}")
                if nxt: A(nxt.pop(0))
    A("  s_nop 7")
    ST.stamp()
    for G in range(8):
        A(f"  ds_write_b128 v{vEXw}, {vr(vAcc+4*G,4)} offset:{G*1024}")
    A(f"  s_cmp_lg_u32 s{sw}, 0")
    A(f"  s_cbranch_scc1 {name}_nored")
    A("  s_waitcnt vmcnt(2)" if PREFETCH else "  s_waitcnt vmcnt(0)")
    for k in range(6): A(f"  v_permlane16_swap_b32 v{vPt+2*k}, v{vPt+2*k+1}")
    A("  s_nop 0")
    for k in range(6): A(f"  v_add_f32 v{vPt+2*k}, v{vPt+2*k}, v{vPt+2*k+1}")
    for ror in (8, 4, 2, 1):
        for k in range(6):
            A(f"  v_add_f32_dpp v{vPt+2*k}, v{vPt+2*k}, v{vPt+2*k} row_ror:{ror} row_mask:0xf bank_mask:0xf")
    for k in range(6): A(f"  v_cvt_pk_bf16_f32 v{vPt+2*k}, v{vPt+2*k}, v{vPt+2*k}")
    for k in range(6): A(f"  v_lshlrev_b32 v{vPt+2*k}, 16, v{vPt+2*k}")
    for k in (1, 4): A(f"  v_add_f32 v{vPt+2*k}, 1.0, v{vPt+2*k}")
    for k in (1, 4): A(f"  v_cvt_pk_bf16_f32 v{vPt+2*k}, v{vPt+2*k}, v{vPt+2*k}")
    for k in (1, 4): A(f"  v_lshlrev_b32 v{vPt+2*k}, 16, v{vPt+2*k}")
    A(f"  v_lshrrev_b32 v{vPt+1}, 4, v{vl}")
    A(f"  v_lshlrev_b32 v{vPt+1}, 2, v{vPt+1}")
    A(f"  v_add_u32 v{vPt+1}, {MD}, v{vPt+1}")
    A(f"  s_mov_b64 exec, 0x10001")
    for i, k in enumerate((0, 1, 2, 4)):
        A(f"  ds_write_b32 v{vPt+1}, v{vPt+2*k} offset:{8*i}")
    A(f"  s_mov_b64 exec, -1")
    A(f"{name}_nored:")
    A("  s_waitcnt lgkmcnt(0)")
    A("  s_barrier")
    ST.stamp()
    A(f"  v_mov_b32 v{vt2}, {MD}")
    A(f"  ds_read_b128 {vr(vMd,4)}, v{vt2}")
    A(f"  ds_read_b128 {vr(vMd+4,4)}, v{vt2} offset:16")
    vR = vZf
    for s in range(4):
        for gg in range(2):
            A(f"  ds_read_b128 {vr(vR+8*s+4*gg,4)}, v{vEXr} offset:{s*8192+gg*1024}")
    X0, X1 = vHf, vHf+8
    A("  s_waitcnt vmcnt(2)" if PREFETCH else "  s_waitcnt vmcnt(0)")
    A(f"  s_mov_b32 s46, {SPIN}")
    A(f"{name}_val:")
    V = vHf+32
    A(f"  v_min_u32 v{V}, v{vS1}, v{vS1+2}")
    for i in range(2, 8): A(f"  v_min_u32 v{V}, v{V}, v{vS1+2*i}")
    A(f"  v_cmp_eq_u32 vcc, 0, v{V}")
    A("  s_nop 1")
    A(f"  s_cmp_eq_u64 vcc, 0")
    A(f"  s_cbranch_scc1 {name}_valok")
    A("  s_sleep 1")
    epi_loads(xp=False, pf=False)
    A("  s_waitcnt vmcnt(0)")
    A(f"  s_sub_u32 s46, s46, 1")
    A(f"  s_cmp_lg_u32 s46, 0")
    A(f"  s_cbranch_scc1 {name}_val")
    A(f"{name}_valok:")
    ST.stamp()
    srd(A, sK, 60, WS_X1, SZ2M)
    srd(A, sV, 60, WS_H2, SZ2M)
    for i in range(8):
        A(f"  v_lshlrev_b32 v{X0+i}, 16, v{vXP+i}")
        A(f"  v_and_b32 v{X1+i}, 0xffff0000, v{vXP+i}")
    N0, N1 = vHf+16, vHf+24
    for i in range(8):
        rs, nm = vS1+2*i, vS1+2*i+1
        A(f"  v_fma_f32 v{N0+i}, v{X0+i}, v{rs}, v{nm}")
        A(f"  v_fma_f32 v{N1+i}, v{X1+i}, v{rs}, v{nm}")
    sa, c1a, ga, c1b = vMd, vMd+2, vMd+4, vMd+6
    A("  s_waitcnt lgkmcnt(8)")
    for i in range(8):
        A(f"  v_fma_f32 v{N0+i}, v{N0+i}, v{c1a}, v{sa}")
        A(f"  v_fma_f32 v{N1+i}, v{N1+i}, v{c1a+1}, v{sa+1}")
    for i in range(8):
        A(f"  v_mul_f32 v{N0+i}, v{N0+i}, v{ga}")
        A(f"  v_mul_f32 v{N1+i}, v{N1+i}, v{ga+1}")
    A("  s_waitcnt lgkmcnt(0)")
    for i in range(8):
        A(f"  v_add_f32 v{vR+i}, v{vR+i}, v{vR+8+i}")
        A(f"  v_add_f32 v{vR+16+i}, v{vR+16+i}, v{vR+24+i}")
    for i in range(8):
        A(f"  v_fma_f32 v{X0+i}, v{N0+i}, v{vR+i}, v{X0+i}")
        A(f"  v_fma_f32 v{X1+i}, v{N1+i}, v{vR+16+i}, v{X1+i}")
    PX, PZ = vR, vR+8
    ST.stamp()
    for i in range(8):
        A(f"  v_cvt_pk_bf16_f32 v{PX+i}, v{X0+i}, v{X1+i}")
    so = {}
    for gg in range(2):
        for r2 in range(2):
            so[(gg, r2)] = 48+2*gg+r2
            A(f"  s_mov_b32 s{48+2*gg+r2}, {gg*262144+r2*32768}")
    for gg in range(2):
        for r in range(4):
            A(f"  buffer_store_dword v{PX+4*gg+r}, v{vYo}, {sr(sK,4)}, s{so[(gg,r>>1)]} offen offset:{256*(r&1)}")
    for i in range(8):
        A(f"  v_lshlrev_b32 v{X0+i}, 16, v{PX+i}")
        A(f"  v_and_b32 v{X1+i}, 0xffff0000, v{PX+i}")
    for i in range(8):
        A(f"  v_mul_f32 v{X0+i}, v{X0+i}, v{c1b}")
        A(f"  v_mul_f32 v{X1+i}, v{X1+i}, v{c1b+1}")
    for i in range(8):
        A(f"  v_cvt_pk_bf16_f32 v{PZ+i}, v{X0+i}, v{X1+i}")
    for gg in range(2):
        for r in range(4):
            A(f"  buffer_store_dword v{PZ+4*gg+r}, v{vYo}, {sr(sV,4)}, s{so[(gg,r>>1)]} offen offset:{256*(r&1)}")
    A(f"  s_cmp_lg_u32 s{sw}, 0")
    A(f"  s_cbranch_scc1 {name}_nopub")
    srd(A, sX, 60, WS_MOD, 3072*4)
    A(f"  v_lshrrev_b32 v{vPt+1}, 4, v{vl}")
    A(f"  s_lshl_b32 s44, s{sc}, 1")
    A(f"  v_add_u32 v{vPt+1}, s44, v{vPt+1}")
    A(f"  v_lshlrev_b32 v{vPt+3}, 2, v{vPt+1}")
    A(f"  v_lshlrev_b32 v{vPt+5}, 1, v{vPt+1}")
    A(f"  s_mov_b64 exec, 0x10001")
    for k in range(6):
        A(f"  s_movk_i32 s44, {k*2048}")
        A(f"  buffer_store_dword v{vPt+2*k}, v{vPt+3}, {sr(sX,4)}, s44 offen")
    srd(A, sX, 60, WS_MODH, 3072*2)
    for k in (3, 4):
        A(f"  v_lshrrev_b32 v{vPt+7}, 16, v{vPt+2*k}")
        A(f"  s_movk_i32 s44, {k*1024}")
        A(f"  buffer_store_short v{vPt+7}, v{vPt+5}, {sr(sX,4)}, s44 offen")
        A("  s_nop 0")
    A(f"  s_mov_b64 exec, -1")
    A(f"{name}_nopub:")
```

```python
from common import *

NHELP = 32
def gen_kb(A, name="ffn_kernel", kidx=3, AHEAD=2, SPACE=2, NSLOT=20, SPIN=200000, B0=10, BR=2, QFL=24, QCK=27, EARLY=0, QPF=18):
    LDS = 4*NSLOT*2048
    assert LDS >= 131072
    REG = NSLOT*2048
    kernel_header(A, name)
    ST = Stamper(A, kidx); ST.stamp()
    sW, sH, sACT, sWD, sCNT, sX = 8, 12, 16, 20, 24, 28
    sw, sm, sWo, sM0, sf0, stb, sHo = 40, 41, 42, 43, 44, 45, 46
    sT0, sT1, sT2, sT3 = 47, 48, 49, 50
    sdb, stb64, skq, stt, sDo, sLb = 51, 52, 53, 54, 55, 56
    pWG, pWU, pWD, pWS, pOUT = 4, 6, 32, 34, 36
    A("  s_cmp_ge_u32 s2, 256")
    A(f"  s_cbranch_scc1 {name}_end")
    A(f"  s_load_dwordx4 s[4:7], s[0:1], {KA['wg']}")
    A(f"  s_load_dwordx2 s[{pWD}:{pWD+1}], s[0:1], {KA['wd']}")
    A(f"  s_load_dwordx2 s[{pWS}:{pWS+1}], s[0:1], {KA['ws']}")
    A(f"  s_load_dwordx2 s[{pOUT}:{pOUT+1}], s[0:1], {KA['out']}")
    vl, vWoff, vH, vAct, vt0, vt1, vt2, vt3, vRS = 1,2,3,4,5,6,7,8,14
    vA = 10
    vAf = 16
    vAcc = 48
    vX = 112
    A(f"  v_lshrrev_b32 v{vt0}, 6, v0")
    A(f"  v_and_b32 v{vl}, 63, v0")
    A(f"  v_readfirstlane_b32 s{sw}, v{vt0}")
    A("  s_and_b32 s3, s2, 7")
    A(f"  s_lshr_b32 s{sT0}, s2, 3")
    A(f"  s_and_b32 s{sdb}, s{sT0}, 7")
    A(f"  s_lshr_b32 s{sT1}, s{sT0}, 3")
    A(f"  s_lshl_b32 s{stb64}, s3, 2")
    A(f"  s_add_u32 s{stb64}, s{stb64}, s{sT1}")
    A(f"  s_lshr_b32 s{skq}, s{sw}, 1")
    A(f"  s_and_b32 s{stt}, s{sw}, 1")
    A(f"  s_mov_b32 s{sm}, s{stt}")
    A("  s_cmp_ge_u32 s2, 224")
    A(f"  s_cbranch_scc1 {name}_helper")
    A(f"  s_mul_i32 s{sT1}, s{sT0}, 37")
    A(f"  s_lshr_b32 s{sT1}, s{sT1}, 8")
    A(f"  s_mul_i32 s{sT2}, s{sT1}, 7")
    A(f"  s_sub_u32 s{sT2}, s{sT0}, s{sT2}")
    A(f"  s_and_b32 s{sT3}, s3, 1")
    A(f"  s_lshl_b32 s{sT3}, s{sT3}, 2")
    A(f"  s_add_u32 s{stb}, s{sT3}, s{sT1}")
    A(f"  s_lshr_b32 s{sT3}, s3, 1")
    A(f"  s_mul_i32 s{sT3}, s{sT3}, 7")
    A(f"  s_add_u32 s{sT3}, s{sT3}, s{sT2}")
    A(f"  s_lshl_b32 s{sf0}, s{sT3}, 6")
    A(f"  v_lshrrev_b32 v{vt0}, 3, v{vl}")
    A(f"  v_bfe_u32 v{vt1}, v{vl}, 4, 1")
    A(f"  s_lshl_b32 s{sT0}, s{sm}, 1")
    A(f"  v_bfe_u32 v{vt2}, v{vl}, 1, 2")
    A(f"  v_or_b32 v{vt1}, s{sT0}, v{vt1}")
    A(f"  v_xor_b32 v{vt1}, v{vt1}, v{vt2}")
    A(f"  v_and_b32 v{vt2}, 1, v{vl}")
    A(f"  v_lshlrev_b32 v{vt1}, 5, v{vt1}")
    A(f"  v_lshl_add_u32 v{vt1}, v{vt2}, 4, v{vt1}")
    A(f"  s_movk_i32 s{sT0}, 3584")
    A(f"  v_mad_u32_u24 v{vWoff}, v{vt0}, s{sT0}, v{vt1}")
    sTB32 = 57
    A(f"  s_lshl_b32 s{sTB32}, s{stb}, 3")
    A(f"  s_add_u32 s{sTB32}, s{sTB32}, s{sw}")
    A(f"  s_lshl_b32 s{sT1}, s{sTB32}, 15")
    A(f"  v_lshlrev_b32 v{vt0}, 4, v{vl}")
    A(f"  v_add_u32 v{vH}, s{sT1}, v{vt0}")
    A(f"  s_mul_i32 s{sWo}, s{skq}, {16*3584}")
    A(f"  s_lshl_b32 s{sT1}, s{sf0}, 1")
    A(f"  s_add_u32 s{sWo}, s{sWo}, s{sT1}")
    A(f"  s_lshl_b32 s{sM0}, s{skq}, 11")
    A(f"  s_lshl_b32 s{sT1}, s{sm}, 16")
    A(f"  s_add_u32 s{sM0}, s{sM0}, s{sT1}")
    A(f"  s_mov_b32 s{sHo}, 0")
    A("  s_waitcnt lgkmcnt(0)")
    A(f"  s_cmp_eq_u32 s{sm}, 0")
    A(f"  s_cselect_b32 s{sW}, s4, s6")
    A(f"  s_cselect_b32 s{sW+1}, s5, s7")
    A(f"  s_mov_b32 s{sW+2}, {512*1792*2}")
    A(f"  s_mov_b32 s{sW+3}, 0x20000")
    srd(A, sH, pWS, WS_H2, SZ2M)
    loadops = []
    for st in range(8):
        for ii in range(2):
            L = [f"  s_add_u32 m0, s{sM0}, {st*64*128 + ii*1024}"]
            if st or ii:
                inc = 8*3584 if ii else (64-8)*3584
                L.append(f"  s_add_u32 s{sWo}, s{sWo}, {inc}")
            else:
                L.append("  s_nop 0")
            L.append(f"  buffer_load_dwordx4 v{vWoff}, {sr(sW,4)}, s{sWo} offen lds")
            loadops.append(L)
        for qq in range(4):
            q = 4*st+qq
            L = [f"  buffer_load_dwordx4 {ar(4*q,4)}, v{vH}, {sr(sH,4)}, s{sHo} offen offset:{qq*1024}"]
            if qq == 3 and st < 7:
                L.append(f"  s_add_u32 s{sHo}, s{sHo}, 4096")
            loadops.append(L)
    state = dict(n=0, vm=0)
    mark = {}
    def emit_load():
        if state['n'] < 48:
            for x in loadops[state['n']]: A(x)
            state['n'] += 1; state['vm'] += 1
            if state['n'] % 6 == 0: mark[state['n']//6-1] = state['vm']
    def other_vm(line):
        A(line); state['vm'] += 1
        return state['vm']
    def wait_vm(idx):
        A(f"  s_waitcnt vmcnt({state['vm']-idx})")
    for _ in range(6): emit_load()
    srd(A, sACT, pWS, WS_ACT, SZ_ACT)
    srd(A, sWD, pWD, 0, 1792*512*2)
    srd(A, sCNT, pWS, WS_CNT, 4096)
    A(f"  v_bfe_u32 v{vt1}, v{vl}, 2, 2")
    A(f"  v_lshrrev_b32 v{vt2}, 5, v{vl}")
    A(f"  v_lshl_add_u32 v{vt2}, v{vt2}, 3, v{vt1}")
    A(f"  v_bfe_u32 v{vt3}, v{vl}, 4, 1")
    A(f"  v_lshlrev_b32 v{vt2}, 7, v{vt2}")
    A(f"  v_lshl_add_u32 v{vt2}, v{vt3}, 16, v{vt2}")
    A(f"  v_lshrrev_b32 v{vt1}, 1, v{vt1}")
    A(f"  v_lshl_or_b32 v{vt1}, v{vt3}, 1, v{vt1}")
    A(f"  v_and_b32 v{vt3}, 1, v{vl}")
    A(f"  v_lshl_add_u32 v{vt2}, v{vt3}, 4, v{vt2}")
    A(f"  v_bfe_u32 v{vt3}, v{vl}, 1, 1")
    A(f"  v_lshl_add_u32 v{vt2}, v{vt3}, 3, v{vt2}")
    for tau in range(4):
        A(f"  v_xor_b32 v{vt3}, {tau}, v{vt1}")
        A(f"  v_lshl_add_u32 v{vA+tau}, v{vt3}, 5, v{vt2}")
    A(f"  s_mul_i32 s{sT0}, s{sTB32}, 112")
    A(f"  s_lshr_b32 s{sT1}, s{sf0}, 4")
    A(f"  s_add_u32 s{sT0}, s{sT0}, s{sT1}")
    A(f"  s_lshl_b32 s{sT0}, s{sT0}, 10")
    A(f"  v_add_u32 v{vAct}, s{sT0}, v{vt0}")
    for st in range(1, AHEAD):
        A("  s_barrier")
        for _ in range(6): emit_load()
    vAE, vBE, vRo = vX+1, vX+2, vX+3
    A(f"  v_and_b32 v{vt1}, 3, v{vl}")
    A(f"  v_bfe_u32 v{vt2}, v{vl}, 2, 1")
    A(f"  v_lshl_add_u32 v{vt1}, v{vt2}, 3, v{vt1}")
    A(f"  v_bfe_u32 v{vt2}, v{vl}, 3, 1")
    A(f"  v_lshl_add_u32 v{vt1}, v{vt2}, 2, v{vt1}")
    A(f"  v_add_u32 v{vt1}, s{sf0}, v{vt1}")
    A(f"  v_bfe_u32 v{vt2}, v{vl}, 4, 1")
    A(f"  v_mul_u32_u24 v{vt2}, 1792, v{vt2}")
    A(f"  v_add_u32 v{vt1}, v{vt1}, v{vt2}")
    A(f"  v_lshlrev_b32 v{vAE}, 4, v{vt1}")
    A(f"  v_lshrrev_b32 v{vt2}, 5, v{vl}")
    A(f"  v_lshl_or_b32 v{vAE}, v{vt2}, 30, v{vAE}")
    A(f"  v_and_b32 v{vt1}, 31, v{vl}")
    A(f"  s_lshl_b32 s{sT0}, s{sTB32}, 5")
    A(f"  v_add_u32 v{vt1}, s{sT0}, v{vt1}")
    A(f"  v_lshlrev_b32 v{vRo}, 3, v{vt1}")
    A(f"  v_lshlrev_b32 v{vBE}, 4, v{vt1}")
    A(f"  v_lshl_or_b32 v{vBE}, v{vt2}, 30, v{vBE}")
    def rd(q, tau):
        buf = q & 1
        return [f"  ds_read_b64_tr_b16 {vr(vAf+buf*16+tau*4+r*2,2)}, v{vA+tau} offset:{q*2048+r*512}" for r in range(2)]
    ST.stamp()
    def wait_stage(st):
        wait_vm(mark[st])
        A("  s_barrier")
    wait_stage(0)
    ST.stamp()
    for tau in range(4):
        for x in rd(0, tau): A(x)
    nout = 8
    slot = 0
    vFl = vX+4
    aE = 0
    for q in range(32):
        nxt = q+1 < 32
        if q == QFL:
            assert state['n'] == 48
            A(f"  s_and_b32 s{sT0}, s2, 7")
            A(f"  s_lshl_b32 s{sT0}, s{sT0}, 8")
            A(f"  s_add_u32 s{sT0}, s{sT0}, {8*256}")
            A(f"  s_cmp_eq_u32 s{sw}, 0")
            A(f"  s_cselect_b32 s{sT0}, s{sT0}, 0x4000")
            A(f"  v_mov_b32 v{vt1}, s{sT0}")
            fl_idx = other_vm(f"  buffer_load_dword v{vFl}, v{vt1}, {sr(sCNT,4)}, 0 offen sc1")
        if q == QCK:
            assert (q+1) % 4 == 0
            A(f"  s_cmp_lg_u32 s{sw}, 0")
            A(f"  s_cbranch_scc1 {name}_hok")
            wait_vm(fl_idx)
            A(f"  v_readfirstlane_b32 s{sT0}, v{vFl}")
            A(f"  s_mov_b32 s{sT1}, {SPIN}")
            A(f"{name}_hchk:")
            A(f"  s_cmp_ge_u32 s{sT0}, {NHELP}")
            A(f"  s_cbranch_scc1 {name}_hok")
            A("  s_sleep 2")
            A(f"  buffer_load_dword v{vFl}, v{vt1}, {sr(sCNT,4)}, 0 offen sc1")
            A("  s_waitcnt vmcnt(0)")
            A(f"  v_readfirstlane_b32 s{sT0}, v{vFl}")
            A(f"  s_sub_u32 s{sT1}, s{sT1}, 1")
            A(f"  s_cmp_lg_u32 s{sT1}, 0")
            A(f"  s_cbranch_scc1 {name}_hchk")
            A(f"{name}_hok:")
        if nxt and (q+1) % 4 == 0:
            st = (q+1)//4
            wait_stage(st)
            if st in (2,4,6): ST.stamp()
        if q == QCK:
            srd(A, sX, pWS, WS_AEXT, 2*1792*16)
            for tau in range(4):
                other_vm(f"  buffer_load_dwordx4 {ar(aE+4*tau,4)}, v{vAE}, {sr(sX,4)}, 0 offen offset:{256*tau} sc1")
            srd(A, sH, pWS, WS_BEXT, 2048*16)
            other_vm(f"  buffer_load_dwordx4 {ar(aE+16,4)}, v{vBE}, {sr(sH,4)}, 0 offen sc1")
            srd(A, sW, pWS, WS_RS, 2048*8)
            ext_idx = other_vm(f"  buffer_load_dwordx2 {vr(vRS,2)}, v{vRo}, {sr(sW,4)}, 0 offen sc1")
        if QPF and q == QPF:
            assert state['n'] == 48
            A(f"  s_lshr_b32 s{sT0}, s2, 3")
            A(f"  s_lshl_b32 s{sT0}, s{sT0}, 16")
            A(f"  v_lshlrev_b32 v{vt2}, 7, v0")
            other_vm(f"  buffer_load_dword v{vX}, v{vt2}, {sr(sWD,4)}, s{sT0} offen")
        buf = q & 1
        for tau in range(4):
            A(f"  s_waitcnt lgkmcnt({nout-2})")
            nout -= 2
            c = "0" if q == 0 else vr(vAcc+16*tau,16)
            A(f"  v_mfma_f32_32x32x16_bf16 {vr(vAcc+16*tau,16)}, {vr(vAf+buf*16+tau*4,4)}, {ar(4*q,4)}, {c}")
            if nxt:
                for x in rd(q+1, tau): A(x)
                nout += 2
            if slot % SPACE == SPACE-1: emit_load()
            slot += 1
    wait_vm(ext_idx)
    for tau in range(4):
        A(f"  v_mfma_f32_32x32x16_bf16 {vr(vAcc+16*tau,16)}, {ar(aE+4*tau,4)}, {ar(aE+16,4)}, {vr(vAcc+16*tau,16)}")
    A("  s_barrier")
    ST.stamp()
    phase2_setup(A, locals())
    pre = phase2_preload_ops(locals()) if EARLY else []
    def dma():
        if pre:
            for x in pre.pop(0): A(x)
    k1, sd2 = vRS, vRS+1
    for tau in range(4):
        g = vAcc+16*tau
        u = g+8
        E = vAf if (tau & 1) == 0 else vAf+16
        for r in range(8):
            A(f"  v_mul_f32 v{E+r}, v{k1}, v{g+r}")
        dma()
        for r in range(8):
            A(f"  v_exp_f32 v{E+r}, v{E+r}")
        dma()
        for r in range(8):
            A(f"  v_mul_f32 v{u+r}, v{g+r}, v{u+r}")
        dma()
        for r in range(8):
            A(f"  v_fma_f32 v{E+r}, v{E+r}, v{sd2}, v{sd2}")
        for r in range(8):
            A(f"  v_rcp_f32 v{E+r}, v{E+r}")
        dma()
        for r in range(8):
            A(f"  v_mul_f32 v{u+r}, v{u+r}, v{E+r}")
        for i in range(4):
            A(f"  v_cvt_pk_bf16_f32 v{E+8+i}, v{u+2*i}, v{u+2*i+1}")
        A(f"  buffer_store_dwordx4 {vr(E+8,4)}, v{vAct}, {sr(sACT,4)}, 0 offen offset:{tau*1024} sc1")
        dma()
    while pre: dma()
    A("  s_waitcnt vmcnt(0)")
    A("  s_barrier")
    ST.stamp()
    A(f"  s_cmp_lg_u32 s{sw}, 0")
    A(f"  s_cbranch_scc1 {name}_p2")
    A(f"  s_lshl_b32 s{sT0}, s{stb}, 8")
    A(f"  v_mov_b32 v{vt0}, s{sT0}")
    A(f"  v_mov_b32 v{vt1}, 1")
    A(f"  s_mov_b64 exec, 1")
    A(f"  buffer_atomic_add v{vt1}, v{vt0}, {sr(sCNT,4)}, 0 offen sc1")
    A(f"  s_mov_b64 exec, -1")
    A(f"  s_branch {name}_p2")
    A(f"{name}_helper:")
    gen_helper(A, locals())
    phase2_setup(A, locals())
    if EARLY: phase2_preload(A, locals())
    A(f"{name}_p2:")
    if not EARLY: phase2_preload(A, locals())
    gen_phase2(A, locals())
    A(f"{name}_end:")
    ST.flush(2)
    A("  s_endpgm")
    return dict(name=name, grid=256, block=512, lds=LDS, nvgpr=256, accum=128)

P2 = dict(vWd=2, vA0=10, vA1=11, vB=3, vXO=12, vEXw=13, vEXr=9, vX1=112, vGB=116)
def phase2_setup(A, L):
    vl, vt0, vt1, vt2 = L['vl'], L['vt0'], L['vt1'], L['vt2']
    sT0, sT1, skq, stt, sdb, stb64, sDo, sLb, REG = (L[k] for k in "sT0 sT1 skq stt sdb stb64 sDo sLb REG".split())
    vWd, vA0, vA1, vB, vXO, vEXw, vEXr = (P2[k] for k in "vWd vA0 vA1 vB vXO vEXw vEXr".split())
    A(f"  v_lshrrev_b32 v{vt0}, 3, v{vl}")
    A(f"  v_lshrrev_b32 v{vt1}, 1, v{vt0}")
    A(f"  v_lshrrev_b32 v{vt2}, 2, v{vl}")
    A(f"  v_xor_b32 v{vt1}, v{vt1}, v{vt2}")
    A(f"  v_and_b32 v{vt1}, 1, v{vt1}")
    A(f"  v_lshlrev_b32 v{vt1}, 6, v{vt1}")
    A(f"  v_and_b32 v{vt2}, 3, v{vl}")
    A(f"  v_lshl_add_u32 v{vt1}, v{vt2}, 4, v{vt1}")
    A(f"  v_lshl_add_u32 v{vWd}, v{vt0}, 10, v{vt1}")
    A(f"  s_mul_i32 s{sDo}, s{skq}, {28*16*1024}")
    A(f"  s_lshl_b32 s{sT0}, s{stt}, 13")
    A(f"  s_add_u32 s{sDo}, s{sDo}, s{sT0}")
    A(f"  s_lshl_b32 s{sT0}, s{sdb}, 7")
    A(f"  s_add_u32 s{sDo}, s{sDo}, s{sT0}")
    A(f"  s_mul_i32 s{sLb}, s{skq}, {REG}")
    A(f"  s_lshl_b32 s{sT0}, s{stt}, 10")
    A(f"  s_add_u32 s{sLb}, s{sLb}, s{sT0}")

def phase2_preload_ops(L):
    NSLOT, sLb, sDo, sWD = L['NSLOT'], L['sLb'], L['sDo'], L['sWD']
    ops = []
    for p in range(NSLOT):
        o = [f"  s_add_u32 m0, s{sLb}, {p*2048}"]
        o.append(f"  s_add_u32 s{sDo}, s{sDo}, 16384" if p else "  s_nop 0")
        o.append(f"  buffer_load_dwordx4 v{P2['vWd']}, {sr(sWD,4)}, s{sDo} offen lds")
        ops.append(o)
    return ops
def phase2_preload(A, L):
    for o in phase2_preload_ops(L):
        for x in o: A(x)

def bf16_split(A, x, hi, lo, tmp):
    A(f"  v_cvt_pk_bf16_f32 v{hi}, v{x}, v{x}")
    A(f"  v_lshlrev_b32 v{tmp}, 16, v{hi}")
    A(f"  v_sub_f32 v{tmp}, v{x}, v{tmp}")
    A(f"  v_cvt_pk_bf16_f32 v{lo}, v{tmp}, v{tmp}")
    A(f"  v_and_b32 v{hi}, 0xffff, v{hi}")
    A(f"  v_and_b32 v{lo}, 0xffff, v{lo}")

def lane0_atomic_inc(A, name, sCNT, idx_bytes, vt0, vt1):
    A(f"  v_mov_b32 v{vt0}, {idx_bytes}")
    A(f"  v_mov_b32 v{vt1}, 1")
    A(f"  s_mov_b64 exec, 1")
    A(f"  buffer_atomic_add v{vt1}, v{vt0}, {sr(sCNT,4)}, 0 offen sc1")
    A(f"  s_mov_b64 exec, -1")

def gen_helper(A, L):
    name = L['name']
    vl, vt0, vt1, vt2, vt3 = L['vl'], L['vt0'], L['vt1'], L['vt2'], L['vt3']
    sw, sm, skq, sT0, sT1, sT2, sT3 = (L[k] for k in "sw sm skq sT0 sT1 sT2 sT3".split())
    sW, sH, sX, sWD, sCNT, sACT, pWS, pWD = (L[k] for k in "sW sH sX sWD sCNT sACT pWS pWD".split())
    sh = 57
    RED, RED2 = 131072, 133120
    vXs = 16
    vWl = 48
    vMc = 112
    A(f"  s_sub_u32 s{sh}, s2, 224")
    A("  s_waitcnt lgkmcnt(0)")
    srd(A, sH, pWS, WS_X1, SZ2M)
    srd(A, sWD, pWD, 0, 1792*512*2)
    srd(A, sCNT, pWS, WS_CNT, 4096)
    A(f"  s_cmp_eq_u32 s{sm}, 0")
    A(f"  s_cselect_b32 s{sW}, s4, s6")
    A(f"  s_cselect_b32 s{sW+1}, s5, s7")
    A(f"  s_mov_b32 s{sW+2}, {512*1792*2}")
    A(f"  s_mov_b32 s{sW+3}, 0x20000")
    A(f"  s_lshl_b32 s{sT0}, s{sh}, 1")
    A(f"  s_add_u32 s{sT0}, s{sT0}, s{sm}")
    A(f"  s_lshl_b32 s{sT0}, s{sT0}, 15")
    A(f"  s_lshl_b32 s{sT1}, s{skq}, 13")
    A(f"  s_add_u32 s{sT0}, s{sT0}, s{sT1}")
    A(f"  v_lshlrev_b32 v{vt0}, 4, v{vl}")
    for i in range(8):
        if i == 4: A(f"  s_add_u32 s{sT0}, s{sT0}, 4096")
        A(f"  buffer_load_dwordx4 {vr(vXs+4*i,4)}, v{vt0}, {sr(sH,4)}, s{sT0} offen offset:{(i&3)*1024}")
    vBo, vW0, vW1 = 9, 10, 11
    vAh = 112
    srd(A, sX, pWS, WS_MODH, 3072*2)
    A(f"  v_and_b32 v{vt1}, 31, v{vl}")
    A(f"  v_lshrrev_b32 v{vt2}, 5, v{vl}")
    A(f"  v_lshlrev_b32 v{vBo}, 4, v{vt2}")
    A(f"  v_lshlrev_b32 v{vt2}, 10, v{vt1}")
    A(f"  v_sub_u32 v{vt2}, 4096, v{vt2}")
    A(f"  v_add_u32 v{vBo}, v{vBo}, v{vt2}")
    A(f"  v_cmp_lt_u32 vcc, 1, v{vt1}")
    A(f"  v_mov_b32 v{vt2}, 0x40000000")
    A(f"  s_lshl_b32 s{sT0}, s{sw}, 7")
    A(f"  v_cndmask_b32 v{vBo}, v{vBo}, v{vt2}, vcc")
    for qq in range(4):
        A(f"  buffer_load_dwordx4 {ar(4*qq,4)}, v{vBo}, {sr(sX,4)}, s{sT0} offen offset:{32*qq}")
    A(f"  v_lshrrev_b32 v{vt0}, 3, v{vl}")
    A(f"  v_bfe_u32 v{vt1}, v{vl}, 4, 1")
    A(f"  v_bfe_u32 v{vt2}, v{vl}, 1, 2")
    A(f"  v_xor_b32 v{vt1}, v{vt1}, v{vt2}")
    A(f"  v_and_b32 v{vt2}, 1, v{vl}")
    A(f"  v_lshlrev_b32 v{vt2}, 4, v{vt2}")
    A(f"  s_movk_i32 s{sT1}, 3584")
    A(f"  v_mad_u32_u24 v{vt0}, v{vt0}, s{sT1}, v{vt2}")
    A(f"  v_lshl_add_u32 v{vW0}, v{vt1}, 5, v{vt0}")
    A(f"  v_xor_b32 v{vt1}, 2, v{vt1}")
    A(f"  v_lshl_add_u32 v{vW1}, v{vt1}, 5, v{vt0}")
    A(f"  s_and_b32 s{sT1}, s{sh}, 1")
    A(f"  s_lshl_b32 s{sT1}, s{sT1}, 2")
    A(f"  s_lshr_b32 s{sT2}, s{sh}, 3")
    A(f"  s_add_u32 s60, s{sT1}, s{sT2}")
    A(f"  s_bfe_u32 s{sT1}, s{sh}, 0x20001")
    A(f"  s_mul_i32 s{sT1}, s{sT1}, 7")
    A(f"  s_min_u32 s{sT2}, s60, 6")
    A(f"  s_add_u32 s61, s{sT1}, s{sT2}")
    A(f"  s_lshl_b32 s{sT2}, s61, 7")
    A(f"  s_mul_i32 s{sT1}, s{sw}, {64*3584}")
    A(f"  s_add_u32 s{sT2}, s{sT2}, s{sT1}")
    A(f"  s_lshl_b32 s{sT3}, s{sw}, 13")
    srd(A, sW, 4, 0, 512*1792*2)
    srd(A, sACT, 6, 0, 512*1792*2)
    for ii in range(8):
        A(f"  s_add_u32 m0, s{sT3}, {ii*1024}")
        A("  s_nop 0")
        A(f"  buffer_load_dwordx4 v{vW0}, {sr(sW,4)}, s{sT2} offen lds")
        A(f"  s_add_u32 m0, s{sT3}, {65536+ii*1024}")
        A("  s_nop 0")
        A(f"  buffer_load_dwordx4 v{vW1}, {sr(sACT,4)}, s{sT2} offen lds")
        if ii < 7: A(f"  s_add_u32 s{sT2}, s{sT2}, {8*3584}")
    A(f"  v_bfe_u32 v{vt1}, v{vl}, 2, 2")
    A(f"  v_lshrrev_b32 v{vt2}, 5, v{vl}")
    A(f"  v_lshl_add_u32 v{vt2}, v{vt2}, 3, v{vt1}")
    A(f"  v_bfe_u32 v{vt3}, v{vl}, 4, 1")
    A(f"  v_lshlrev_b32 v{vt2}, 7, v{vt2}")
    A(f"  v_lshl_add_u32 v{vt2}, v{vt3}, 16, v{vt2}")
    A(f"  v_lshrrev_b32 v{vt1}, 1, v{vt1}")
    A(f"  v_lshl_or_b32 v{vt1}, v{vt3}, 1, v{vt1}")
    A(f"  v_and_b32 v{vt3}, 1, v{vl}")
    A(f"  v_lshl_add_u32 v{vt2}, v{vt3}, 4, v{vt2}")
    A(f"  v_bfe_u32 v{vt3}, v{vl}, 1, 1")
    A(f"  v_lshl_add_u32 v{vt2}, v{vt3}, 3, v{vt2}")
    A(f"  v_add_u32 v{vt2}, s{sT3}, v{vt2}")
    for tau in range(4):
        A(f"  v_xor_b32 v{vt3}, {tau}, v{vt1}")
        A(f"  v_lshl_add_u32 v{vAh+tau}, v{vt3}, 5, v{vt2}")
    s1, s2 = 12, 13
    pa, pb, xx = 48, 50, 52
    for r in (pa, pa+1, pb, pb+1): A(f"  v_mov_b32 v{r}, 0")
    A(f"  s_waitcnt vmcnt({4+16})")
    L['ST'].stamp()
    for i in range(32):
        t = xx + 2*(i & 1)
        A(f"  v_lshlrev_b32 v{t}, 16, v{vXs+i}")
        A(f"  v_and_b32 v{t+1}, 0xffff0000, v{vXs+i}")
        A(f"  v_pk_add_f32 {vr(pa,2)}, {vr(pa,2)}, {vr(t,2)}")
        A(f"  v_pk_fma_f32 {vr(pb,2)}, {vr(t,2)}, {vr(t,2)}, {vr(pb,2)}")
    A(f"  v_add_f32 v{s1}, v{pa}, v{pa+1}")
    A(f"  v_add_f32 v{s2}, v{pb}, v{pb+1}")
    A("  s_nop 1")
    A(f"  v_permlane32_swap_b32 v{s1}, v{s2}")
    A("  s_nop 1")
    A(f"  v_add_f32 v{s1}, v{s1}, v{s2}")
    A(f"  s_lshl_b32 s{sT0}, s{sm}, 2")
    A(f"  s_add_u32 s{sT0}, s{sT0}, s{skq}")
    A(f"  s_lshl_b32 s{sT0}, s{sT0}, 8")
    A(f"  s_add_u32 s{sT0}, s{sT0}, {RED}")
    A(f"  v_lshlrev_b32 v{vt0}, 2, v{vl}")
    A(f"  v_add_u32 v{vt0}, s{sT0}, v{vt0}")
    A(f"  ds_write_b32 v{vt0}, v{s1} offset:0")
    vAf, vAcc = 16, 48
    A("  s_waitcnt vmcnt(0)")
    L['ST'].stamp()
    def hrd(qq):
        for tau in range(4):
            for r in range(2):
                A(f"  ds_read_b64_tr_b16 {vr(vAf+16*(qq&1)+tau*4+r*2,2)}, v{vAh+tau} offset:{qq*2048+r*512}")
    hrd(0)
    for qq in range(4):
        if qq < 3:
            hrd(qq+1)
            A("  s_waitcnt lgkmcnt(8)")
        else:
            A("  s_waitcnt lgkmcnt(0)")
        for tau in range(4):
            c = "0" if qq == 0 else vr(vAcc+16*tau,16)
            A(f"  v_mfma_f32_32x32x16_bf16 {vr(vAcc+16*tau,16)}, {ar(4*qq,4)}, {vr(vAf+16*(qq&1)+tau*4,4)}, {c}")
    L['ST'].stamp()
    A(f"  s_lshl_b32 s{sT0}, s{sw}, 10")
    A(f"  s_add_u32 s{sT0}, s{sT0}, {RED2}")
    A(f"  v_lshlrev_b32 v{vt0}, 3, v{vl}")
    A(f"  v_add_u32 v{vt0}, s{sT0}, v{vt0}")
    A(f"  s_mov_b32 s58, -1")
    A(f"  s_mov_b32 s59, 0")
    A("  s_nop 7")
    A(f"  s_mov_b64 exec, s[58:59]")
    for tau in range(4):
        A(f"  ds_write_b64 v{vt0}, {vr(vAcc+16*tau,2)} offset:{tau*256}")
    A(f"  s_mov_b64 exec, -1")
    A("  s_waitcnt lgkmcnt(0)")
    A("  s_barrier")
    L['ST'].stamp()
    U = 16
    A(f"  s_cmp_eq_u32 s{sw}, 0")
    A(f"  s_cbranch_scc1 {name}_hstat")
    A(f"  s_cmp_eq_u32 s{skq}, 1")
    A(f"  s_cbranch_scc0 {name}_hdone")
    A(f"  s_lshl_b32 s{sT0}, s{sm}, 9")
    A(f"  s_add_u32 s{sT0}, s{sT0}, {RED2}")
    A(f"  v_lshlrev_b32 v{vt0}, 3, v{vl}")
    A(f"  v_add_u32 v{vt0}, s{sT0}, v{vt0}")
    R = 48
    for w8 in range(8):
        A(f"  ds_read_b64 {vr(R+2*w8,2)}, v{vt0} offset:{w8*1024}")
    A("  s_waitcnt lgkmcnt(0)")
    for k in range(1,8):
        A(f"  v_add_f32 v{R}, v{R}, v{R+2*k}")
        A(f"  v_add_f32 v{R+1}, v{R+1}, v{R+2*k+1}")
    A(f"  v_mov_b32 v{U}, v{R}")
    A(f"  v_mov_b32 v{U+4}, v{R+1}")
    bf16_split(A, U, U+8, U+9, U+10)
    bf16_split(A, U+4, U+11, U+12, U+10)
    O = U+16
    A(f"  v_lshl_or_b32 v{O}, v{U+8}, 16, v{U+8}")
    A(f"  v_mov_b32 v{O+1}, v{U+9}")
    A(f"  v_lshl_or_b32 v{O+2}, v{U+11}, 16, v{U+11}")
    A(f"  v_mov_b32 v{O+3}, v{U+12}")
    srd(A, sX, pWS, WS_AEXT, 2*1792*16)
    A(f"  s_cmp_ge_u32 s60, 7")
    A(f"  s_cbranch_scc1 {name}_hdone")
    A(f"  v_and_b32 v{vt1}, 3, v{vl}")
    A(f"  v_bfe_u32 v{vt2}, v{vl}, 2, 1")
    A(f"  v_lshl_add_u32 v{vt1}, v{vt2}, 3, v{vt1}")
    A(f"  v_bfe_u32 v{vt2}, v{vl}, 3, 1")
    A(f"  v_lshl_add_u32 v{vt1}, v{vt2}, 2, v{vt1}")
    A(f"  v_lshrrev_b32 v{vt2}, 5, v{vl}")
    A(f"  v_lshl_add_u32 v{vt1}, v{vt2}, 4, v{vt1}")
    A(f"  v_bfe_u32 v{vt2}, v{vl}, 4, 1")
    A(f"  v_mul_u32_u24 v{vt2}, 1792, v{vt2}")
    A(f"  v_add_u32 v{vt1}, v{vt1}, v{vt2}")
    A(f"  s_lshl_b32 s{sT0}, s{sm}, 5")
    A(f"  s_lshl_b32 s{sT1}, s61, 6")
    A(f"  s_add_u32 s{sT0}, s{sT0}, s{sT1}")
    A(f"  s_lshl_b32 s{sT0}, s{sT0}, 4")
    A(f"  v_lshlrev_b32 v{vt0}, 4, v{vt1}")
    A(f"  buffer_store_dwordx4 {vr(O,4)}, v{vt0}, {sr(sX,4)}, s{sT0} offen sc1")
    A(f"  s_branch {name}_hdone")
    A(f"{name}_hstat:")
    A(f"  v_lshrrev_b32 v{vt0}, 5, v{vl}")
    A(f"  v_lshlrev_b32 v{vt0}, 10, v{vt0}")
    A(f"  v_and_b32 v{vt1}, 31, v{vl}")
    A(f"  v_lshl_add_u32 v{vt0}, v{vt1}, 2, v{vt0}")
    A(f"  v_add_u32 v{vt0}, {RED}, v{vt0}")
    for p in range(4):
        A(f"  ds_read_b32 v{U+p}, v{vt0} offset:{p*256}")
        A(f"  ds_read_b32 v{U+4+p}, v{vt0} offset:{p*256+128}")
    A("  s_waitcnt lgkmcnt(0)")
    for b in (U, U+4):
        A(f"  v_add_f32 v{b}, v{b}, v{b+1}")
        A(f"  v_add_f32 v{b+2}, v{b+2}, v{b+3}")
        A(f"  v_add_f32 v{b}, v{b}, v{b+2}")
    A(f"  s_mov_b32 s{sT0}, 0x3b000000")
    A(f"  s_mov_b32 s{sT1}, 0x3727c5ac")
    A(f"  v_mul_f32 v{U}, s{sT0}, v{U}")
    A(f"  v_mul_f32 v{U+4}, s{sT0}, v{U+4}")
    A(f"  v_fma_f32 v{U+4}, -v{U}, v{U}, v{U+4}")
    A(f"  v_max_f32 v{U+4}, 0, v{U+4}")
    A(f"  v_add_f32 v{U+4}, s{sT1}, v{U+4}")
    A(f"  v_sqrt_f32 v{U+5}, v{U+4}")
    A(f"  v_rsq_f32 v{U+6}, v{U+4}")
    A(f"  v_sub_f32 v{U}, 0, v{U}")
    A(f"  s_mov_b32 s{sT0}, 0xbfb8aa3b")
    A(f"  v_mul_f32 v{U+2}, s{sT0}, v{U+6}")
    A(f"  v_mov_b32 v{U+3}, v{U+4}")
    bf16_split(A, U, U+8, U+9, U+10)
    bf16_split(A, U+5, U+11, U+12, U+10)
    O = U+16
    A(f"  v_lshl_or_b32 v{O}, v{U+9}, 16, v{U+8}")
    A(f"  v_mov_b32 v{O+1}, v{U+8}")
    A(f"  v_lshl_or_b32 v{O+2}, v{U+12}, 16, v{U+11}")
    A(f"  v_mov_b32 v{O+3}, v{U+11}")
    srd(A, sX, pWS, WS_BEXT, 2048*16)
    srd(A, sH, pWS, WS_RS, 2048*8)
    A(f"  s_lshl_b32 s{sT0}, s{sh}, 10")
    A(f"  v_lshlrev_b32 v{vt0}, 4, v{vl}")
    A(f"  buffer_store_dwordx4 {vr(O,4)}, v{vt0}, {sr(sX,4)}, s{sT0} offen sc1")
    A(f"  s_lshl_b32 s{sT0}, s{sh}, 9")
    A(f"  v_lshlrev_b32 v{vt0}, 3, v{vl}")
    A(f"  buffer_store_dwordx2 {vr(U+2,2)}, v{vt0}, {sr(sH,4)}, s{sT0} offen sc1")
    A(f"{name}_hdone:")
    L['ST'].stamp()
    A("  s_waitcnt vmcnt(0)")
    A("  s_barrier")
    A(f"  s_cmp_lg_u32 s{sw}, 0")
    A(f"  s_cbranch_scc1 {name}_hsig")
    A(f"  v_lshlrev_b32 v{vt0}, 8, v{vl}")
    A(f"  v_add_u32 v{vt0}, {8*256}, v{vt0}")
    A(f"  v_mov_b32 v{vt1}, 1")
    A(f"  s_mov_b64 exec, 0xff")
    A(f"  buffer_atomic_add v{vt1}, v{vt0}, {sr(sCNT,4)}, 0 offen sc1")
    A(f"  s_mov_b64 exec, -1")
    A(f"{name}_hsig:")
    if not L['QPF']:
        A(f"  s_lshr_b32 s{sT0}, s{sh}, 3")
        A(f"  s_mul_i32 s{sT0}, s{sT0}, 458752")
        A(f"  v_lshlrev_b32 v{vt0}, 7, v0")
        for i in range(7):
            A(f"  buffer_load_dword v{16+i}, v{vt0}, {sr(sWD,4)}, s{sT0} offen")
            if i < 6: A(f"  s_add_u32 s{sT0}, s{sT0}, 65536")

def gen_phase2(A, L):
    name, ST, NSLOT, SPIN, REG = L['name'], L['ST'], L['NSLOT'], L['SPIN'], L['REG']
    vl, vt0, vt1, vt2 = L['vl'], L['vt0'], L['vt1'], L['vt2']
    sw, skq, stt, sdb, stb64, sT0, sT1, sT2, sLb, sDo = (L[k] for k in "sw skq stt sdb stb64 sT0 sT1 sT2 sLb sDo".split())
    sW, sH, sX, sWD, sCNT, sACT, pWS, pOUT = (L[k] for k in "sW sH sX sWD sCNT sACT pWS pOUT".split())
    vWd, vA0, vA1, vB, vXO, vEXw, vEXr, vX1, vGB = (P2[k] for k in "vWd vA0 vA1 vB vXO vEXw vEXr vX1 vGB".split())
    vAf, vAcc = 16, 48
    A(f"  v_lshrrev_b32 v{vt0}, 5, v{vl}")
    A(f"  v_lshlrev_b32 v{vt0}, 3, v{vt0}")
    A(f"  v_bfe_u32 v{vt1}, v{vl}, 2, 2")
    A(f"  v_add_u32 v{vt0}, v{vt0}, v{vt1}")
    A(f"  v_lshlrev_b32 v{vA0}, 7, v{vt0}")
    A(f"  v_lshrrev_b32 v{vt1}, 1, v{vt1}")
    A(f"  v_lshlrev_b32 v{vt1}, 6, v{vt1}")
    A(f"  v_and_b32 v{vt0}, 1, v{vl}")
    A(f"  v_lshlrev_b32 v{vt0}, 5, v{vt0}")
    A(f"  v_bfe_u32 v{vt2}, v{vl}, 1, 1")
    A(f"  v_lshl_add_u32 v{vt0}, v{vt2}, 3, v{vt0}")
    A(f"  v_bfe_u32 v{vt2}, v{vl}, 4, 1")
    A(f"  v_lshl_add_u32 v{vt0}, v{vt2}, 4, v{vt0}")
    A(f"  v_add_u32 v{vA0}, v{vA0}, v{vt0}")
    A(f"  s_mul_i32 s{sT0}, s{skq}, {REG}")
    A(f"  v_add_u32 v{vA0}, s{sT0}, v{vA0}")
    A(f"  v_xor_b32 v{vt2}, 64, v{vt1}")
    A(f"  v_add_u32 v{vA1}, v{vA0}, v{vt2}")
    A(f"  v_add_u32 v{vA0}, v{vA0}, v{vt1}")
    A(f"  s_lshl_b32 s{sT0}, s{stb64}, 1")
    A(f"  s_add_u32 s{sT2}, s{sT0}, s{stt}")
    A(f"  s_mul_i32 s{sT0}, s{sT2}, 112")
    A(f"  s_mul_i32 s{sT1}, s{skq}, 28")
    A(f"  s_add_u32 s{sT0}, s{sT0}, s{sT1}")
    A(f"  s_lshl_b32 s{sT0}, s{sT0}, 10")
    A(f"  v_lshlrev_b32 v{vt0}, 4, v{vl}")
    A(f"  v_add_u32 v{vB}, s{sT0}, v{vt0}")
    A(f"  s_lshl_b32 s{sT0}, s{stt}, 15")
    A(f"  s_lshl_b32 s{sT1}, s{skq}, 11")
    A(f"  s_add_u32 s{sT1}, s{sT1}, s{sT0}")
    A(f"  v_add_u32 v{vEXw}, s{sT1}, v{vt0}")
    A(f"  s_lshl_b32 s{sT1}, s{skq}, 13")
    A(f"  s_add_u32 s{sT1}, s{sT1}, s{sT0}")
    A(f"  v_add_u32 v{vEXr}, s{sT1}, v{vt0}")
    A(f"  s_lshr_b32 s{sT0}, s{skq}, 1")
    A(f"  s_lshl_b32 s{sT0}, s{sT0}, 5")
    A(f"  s_and_b32 s{sT1}, s{skq}, 1")
    A(f"  s_lshl_b32 s{sT1}, s{sT1}, 3")
    A(f"  s_add_u32 s{sT0}, s{sT0}, s{sT1}")
    A(f"  s_lshl_b32 s{sT1}, s{sdb}, 6")
    A(f"  s_add_u32 s{sT0}, s{sT0}, s{sT1}")
    A(f"  v_lshrrev_b32 v{vt1}, 5, v{vl}")
    A(f"  v_lshlrev_b32 v{vt1}, 4, v{vt1}")
    A(f"  v_add_u32 v{vt1}, s{sT0}, v{vt1}")
    A(f"  v_and_b32 v{vt0}, 31, v{vl}")
    A(f"  s_lshl_b32 s{sT1}, s{sT2}, 15")
    A(f"  v_lshrrev_b32 v{vt2}, 4, v{vt1}")
    A(f"  v_lshlrev_b32 v{vt2}, 10, v{vt2}")
    A(f"  v_lshl_add_u32 v{vt2}, v{vt0}, 4, v{vt2}")
    A(f"  v_bfe_u32 v{vXO}, v{vt1}, 3, 1")
    A(f"  v_lshl_add_u32 v{vt2}, v{vXO}, 9, v{vt2}")
    srd(A, sH, pWS, WS_X1, SZ2M)
    A(f"  buffer_load_dwordx4 {vr(vX1,4)}, v{vt2}, {sr(sH,4)}, s{sT1} offen")
    srd(A, sX, pWS, WS_MOD + 5*2048, 2048)
    A(f"  v_lshlrev_b32 v{vt2}, 2, v{vt1}")
    A(f"  buffer_load_dwordx4 {vr(vGB,4)}, v{vt2}, {sr(sX,4)}, 0 offen")
    A(f"  buffer_load_dwordx4 {vr(vGB+4,4)}, v{vt2}, {sr(sX,4)}, 0 offen offset:16")
    A(f"  s_lshl_b32 s{sT1}, s{sT2}, 15")
    A(f"  v_lshlrev_b32 v{vXO}, 10, v{vt0}")
    A(f"  v_lshl_add_u32 v{vXO}, v{vt1}, 1, v{vXO}")
    A(f"  v_add_u32 v{vXO}, s{sT1}, v{vXO}")
    srd(A, sACT, pWS, WS_ACT, SZ_ACT)
    srd(A, sW, pOUT, 0, SZ2M)
    A(f"  s_cmp_lg_u32 s{sw}, 0")
    A(f"  s_cbranch_scc1 {name}_s3w")
    A(f"  s_lshr_b32 s{sT0}, s{stb64}, 2")
    A(f"  s_lshl_b32 s{sT0}, s{sT0}, 8")
    A(f"  v_mov_b32 v{vt0}, s{sT0}")
    A(f"  s_mov_b32 s{sT1}, {SPIN}")
    A(f"{name}_s3:")
    A(f"  buffer_load_dword v{vt1}, v{vt0}, {sr(sCNT,4)}, 0 offen sc1")
    A("  s_waitcnt vmcnt(0)")
    A(f"  v_readfirstlane_b32 s{sT0}, v{vt1}")
    A(f"  s_cmp_ge_u32 s{sT0}, 28")
    A(f"  s_cbranch_scc1 {name}_s3w")
    A(f"  s_sub_u32 s{sT1}, s{sT1}, 1")
    A(f"  s_cmp_lg_u32 s{sT1}, 0")
    A(f"  s_cbranch_scc1 {name}_s3")
    A(f"{name}_s3w:")
    A("  s_waitcnt vmcnt(0)")
    A("  s_barrier")
    ST.stamp()
    A(f"  s_mov_b32 s{sT0}, 0")
    vm = dict(n=0)
    bidx = {}
    def bload():
        kk = len(bidx)
        if kk >= 28: return
        A(f"  buffer_load_dwordx4 {ar(4*kk,4)}, v{vB}, {sr(sACT,4)}, s{sT0} offen offset:{(kk&3)*1024} sc1")
        if (kk & 3) == 3: A(f"  s_add_u32 s{sT0}, s{sT0}, 4096")
        vm['n'] += 1
        bidx[kk] = vm['n']
    def rd(kk):
        slot = kk % NSLOT
        buf = kk & 1
        return [f"  ds_read_b64_tr_b16 {vr(vAf+buf*8+tau*4+r*2,2)}, v{vA0+tau} offset:{slot*2048+r*512}" for tau in range(2) for r in range(2)]
    NLATE = 28-NSLOT
    B0 = L['B0']; BR = L['BR']
    for _ in range(B0): bload()
    for x in rd(0): A(x)
    late_idx = None
    for kk in range(28):
        if kk == NLATE and NLATE > 0:
            A("  s_barrier")
            for p in range(NLATE):
                A(f"  s_add_u32 m0, s{sLb}, {p*2048}")
                A(f"  s_add_u32 s{sDo}, s{sDo}, 16384")
                A(f"  buffer_load_dwordx4 v{vWd}, {sr(sWD,4)}, s{sDo} offen lds")
                vm['n'] += 1
            late_idx = vm['n']
        waited = 0
        if kk+1 == NSLOT and NLATE > 0:
            A(f"  s_waitcnt vmcnt({vm['n']-late_idx})")
            A("  s_barrier")
        if kk+1 < 28:
            for x in rd(kk+1): A(x)
        assert kk in bidx, kk
        A(f"  s_waitcnt vmcnt({vm['n']-bidx[kk]})")
        A(f"  s_waitcnt lgkmcnt({4 if kk+1 < 28 else 0})")
        buf = kk & 1
        for tau in range(2):
            c = "0" if kk == 0 else vr(vAcc+16*tau,16)
            A(f"  v_mfma_f32_32x32x16_bf16 {vr(vAcc+16*tau,16)}, {vr(vAf+buf*8+tau*4,4)}, {ar(4*kk,4)}, {c}")
            if tau < BR: bload()
    ST.stamp()
    A("  s_nop 7")
    A("  s_barrier")
    A("  s_nop 3")
    for o in range(4):
        for a in range(2):
            A(f"  ds_write_b128 v{vEXw}, {vr(vAcc+16*(o>>1)+8*(o&1)+4*a,4)} offset:{o*8192+a*1024}")
    A("  s_waitcnt lgkmcnt(0)")
    A("  s_barrier")
    vT = 16
    for s in range(4):
        for a in range(2):
            A(f"  ds_read_b128 {vr(vT+8*s+4*a,4)}, v{vEXr} offset:{s*2048+a*1024}")
    vU = 80
    for i in range(4):
        A(f"  v_lshlrev_b32 v{vU+2*i}, 16, v{vX1+i}")
        A(f"  v_and_b32 v{vU+2*i+1}, 0xffff0000, v{vX1+i}")
    A("  s_waitcnt lgkmcnt(4)")
    for r in range(8):
        A(f"  v_add_f32 v{vT+r}, v{vT+r}, v{vT+8+r}")
    A("  s_waitcnt lgkmcnt(0)")
    for r in range(8):
        A(f"  v_add_f32 v{vT+16+r}, v{vT+16+r}, v{vT+24+r}")
    for r in range(8):
        A(f"  v_add_f32 v{vT+r}, v{vT+r}, v{vT+16+r}")
    for r in range(8):
        A(f"  v_fma_f32 v{vT+r}, v{vT+r}, v{vGB+r}, v{vU+r}")
    for i in range(4):
        A(f"  v_cvt_pk_bf16_f32 v{vU+i}, v{vT+2*i}, v{vT+2*i+1}")
    A(f"  buffer_store_dwordx4 {vr(vU,4)}, v{vXO}, {sr(sW,4)}, 0 offen")
```

```python
import sys, os
from common import *
import common
import gen as G
from ka import gen_ka
from kb import gen_kb
E = G.E
def lst():
    return [lambda A: gen_ka(A, kidx=0, PREFETCH=E("PF_GU", 1), ITC=E("ITC", 2), ITF=E("ITF", 1), PRIO=E("PRIO", 1), LATE=E("LATE", 0)),
            lambda A: gen_kb(A, kidx=1, AHEAD=E("AHEAD", 2), SPACE=E("SPACE", 2), NSLOT=E("NSLOT", 20), B0=E("B0", 6), BR=E("BR", 1), QFL=E("QFL", 24), QCK=E("QCK", 27), EARLY=E("EARLY", 0), QPF=E("QPF", 27))]
if __name__ == "__main__":
    if os.environ.get("STAMPS"): common.STAMPS = True
    dst = sys.argv[1] if len(sys.argv) > 1 else 'adaLN_cond__ssm_conv_h3__swiglu_ffn__prompt.s'
    txt = G.build(lst())
    open(dst, 'w').write(txt)
    print("wrote", dst, len(txt), "bytes")
```

```python
from common import *
from k3 import wave_reduce
from poll import poll_ge

C_KV = 16
WS_ALL = 0x1300000

def gen_ka2(A, name="conv_kernel", kidx=0, SPIN=200000, PREFETCH=True, PSLEEP=2, ORD=1):
    XR1, HC, HCH, MD, EX = 4608, 9216, 4*4160, 42496, 43008
    TT, XT, MS = EX, EX+8192, EX+8192+9216
    LDS = EX + 65536
    kernel_header(A, name)
    ST = Stamper(A, kidx); ST.stamp()
    sK, sV, sSH, sXq, sH, sWS, sWM, sDBG, sPF = 8, 12, 16, 20, 24, 28, 32, 36, 40
    stb, scb, sw, sc, sch, sqq, sD = 4, 5, 6, 7, 3, 100, 101
    a, b, c_, d_ = 44, 45, 46, 47
    pD, pC, pWG, pWD = 48, 50, 52, 56
    A("  s_cmp_ge_u32 s2, 256")
    A(f"  s_cbranch_scc1 {name}_end")
    for dst, key in ((sK,'k'),(sV,'v'),(sSH,'shift'),(sXq,'q'),(sH,'ssm'),(sWS,'ws'),(sWM,'wmod'),(sDBG,'dbg'),(pD,'D'),(pC,'c')):
        A(f"  s_load_dwordx2 s[{dst}:{dst+1}], s[0:1], {KA[key]}")
    for dst, size in ((sK,SZ2M),(sV,SZ2M),(sSH,4096),(sXq,SZ2M),(sH,SZ2M),(sWS,WS_ALL),(sWM,512*3072*2),(sDBG,256)):
        A(f"  s_mov_b32 s{dst+2}, {hex(size)}")
        A(f"  s_mov_b32 s{dst+3}, 0x20000")
    vl, t0, t1, t2, t3 = 1, 2, 3, 4, 5
    vb, vW, vR, vG, vSo, vXro, vT16, vFl = 6, 7, 8, 9, 10, 11, 12, 13
    vKo = 14
    vK, vV, vS, vXt, vXr = 18, 28, 32, 40, 44
    vC, vWm, vOA = 48, 52, 49
    vL = 60
    vKf, vSf, vO = 72, 92, 108
    A(f"  s_lshr_b32 s{stb}, s2, 3")
    A(f"  s_and_b32 s{scb}, s2, 7")
    A(f"  v_lshrrev_b32 v{t2}, 6, v0")
    A(f"  v_and_b32 v{vl}, 63, v0")
    A(f"  v_readfirstlane_b32 s{sw}, v{t2}")
    A(f"  v_and_b32 v{t0}, 15, v0")
    A(f"  v_lshrrev_b32 v{t1}, 4, v0")
    A(f"  v_lshlrev_b32 v{vT16}, 4, v0")
    A(f"  s_lshl_b32 s{a}, s{stb}, 16")
    A(f"  s_lshl_b32 s{b}, s{scb}, 7")
    A(f"  s_add_u32 s{a}, s{a}, s{b}")
    A(f"  v_lshlrev_b32 v{vb}, 11, v{t1}")
    A(f"  v_lshl_add_u32 v{vb}, v{t0}, 3, v{vb}")
    A(f"  v_add_u32 v{vb}, s{a}, v{vb}")
    for i in range(3):
        A(f"  v_add_u32 v{vKo+i}, {hex((-(3-i)*1024) & 0xffffffff)}, v{vb}")
    A(f"  s_lshl_b32 s{b}, s{scb}, 9")
    A(f"  v_lshl_add_u32 v{vSo}, v{t0}, 5, s{b}")
    A(f"  s_lshl_b32 s{c_}, s2, 3")
    A(f"  s_add_u32 s{c_}, s{c_}, s{sw}")
    A(f"  s_lshl_b32 s{c_}, s{c_}, 10")
    A(f"  v_lshlrev_b32 v{vXro}, 4, v{vl}")
    A(f"  s_lshl_b32 s{sc}, s{scb}, 5")
    A(f"  s_add_u32 s{sc}, s{sc}, s{stb}")
    A(f"  s_lshr_b32 s{sch}, s{sw}, 2")
    A(f"  s_and_b32 s{sqq}, s{sw}, 3")
    A(f"  v_lshrrev_b32 v{t2}, 3, v{vl}")
    A(f"  s_lshl_b32 s{a}, s{stb}, 5")
    A(f"  v_lshl_add_u32 v{t3}, v{t2}, 2, s{a}")
    A(f"  v_mul_u32_u24 v{vOA}, 12288, v{t2}")
    A(f"  v_and_b32 v{t2}, 7, v{vl}")
    A(f"  v_lshl_add_u32 v{vOA}, v{t2}, 4, v{vOA}")
    A(f"  s_mul_i32 s{a}, s{stb}, {16*6144}")
    A(f"  s_lshl_b32 s{b}, s{scb}, 7")
    A(f"  s_add_u32 s{a}, s{a}, s{b}")
    A(f"  s_lshl_b32 s{b}, s{sw}, 10")
    A(f"  s_add_u32 s{a}, s{a}, s{b}")
    A(f"  s_cmp_lt_u32 s{sw}, 6")
    A(f"  s_cselect_b32 s{a}, s{a}, 0x40000000")
    A(f"  s_add_u32 s{b}, s{a}, 6144")
    A("  s_waitcnt lgkmcnt(0)")
    A("  s_cmp_lg_u32 s2, 0")
    A(f"  s_cbranch_scc1 {name}_nozs")
    for i in range(4): A(f"  v_mov_b32 v{vO+i}, 0")
    A(f"  s_mov_b32 s{d_}, {WS_CNT}")
    A(f"  buffer_store_dwordx4 {vr(vO,4)}, v{vT16}, {sr(sWS,4)}, s{d_} offen sc1")
    for i in range(2):
        A(f"  s_mov_b32 s{d_}, {WS_ST1+8192*i}")
        A(f"  buffer_store_dwordx4 {vr(vO,4)}, v{vT16}, {sr(sWS,4)}, s{d_} offen sc1")
    A(f"{name}_nozs:")
    for i in range(3):
        A(f"  buffer_load_dwordx2 {vr(vK+2*i,2)}, v{vKo+i}, {sr(sK,4)}, 0 offen")
    for i in range(2):
        A(f"  buffer_load_dwordx2 {vr(vK+6+2*i,2)}, v{vb}, {sr(sK,4)}, 0 offen offset:{1024*i}")
    for i in range(2):
        A(f"  buffer_load_dwordx2 {vr(vV+2*i,2)}, v{vb}, {sr(sV,4)}, 0 offen offset:{1024*i}")
    for i in range(2):
        A(f"  buffer_load_dwordx4 {vr(vS+4*i,4)}, v{vSo}, {sr(sSH,4)}, 0 offen offset:{16*i}")
    if ORD: A("  s_barrier")
    for i in range(2):
        A(f"  buffer_load_dwordx2 {vr(vXt+2*i,2)}, v{vb}, {sr(sXq,4)}, 0 offen offset:{1024*i}")
    A(f"  buffer_load_dwordx4 {vr(vXr,4)}, v{vXro}, {sr(sXq,4)}, s{c_} offen")
    A(f"  s_mov_b32 s{sSH}, s{pC}")
    A(f"  s_mov_b32 s{sSH+1}, s{pC+1}")
    A(f"  s_movk_i32 s{sSH+2}, 1024")
    A(f"  buffer_load_dword v{vC}, v{t3}, {sr(sSH,4)}, 0 offen")
    A(f"  buffer_load_dwordx4 {vr(vWm,4)}, v{vOA}, {sr(sWM,4)}, s{a} offen")
    A(f"  buffer_load_dwordx4 {vr(vWm+4,4)}, v{vOA}, {sr(sWM,4)}, s{b} offen")
    NP1 = 15
    A("  s_cmp_lg_u32 s2, 0")
    A(f"  s_cbranch_scc1 {name}_nozero")
    A(f"  s_waitcnt vmcnt({NP1})")
    A("  s_barrier")
    A(f"  s_cmp_lg_u32 s{sw}, 0")
    A(f"  s_cbranch_scc1 {name}_nozero")
    A(f"  v_mov_b32 v{t2}, 0")
    A(f"  v_mov_b32 v{t3}, 1")
    A(f"  s_mov_b64 exec, 1")
    A(f"  buffer_store_dword v{t3}, v{t2}, {sr(sDBG,4)}, 0 offen sc1")
    A(f"  s_mov_b64 exec, -1")
    A(f"{name}_nozero:")
    A(f"  s_lshl_b32 s{a}, s{sc}, 2")
    A(f"  s_load_dword s{sD}, s[{pD}:{pD+1}], s{a}")
    if PREFETCH:
        A(f"  s_load_dwordx4 s[{pWG}:{pWG+3}], s[0:1], {KA['wg']}")
        A(f"  s_load_dwordx2 s[{pWD}:{pWD+1}], s[0:1], {KA['wd']}")
    A(f"  v_sub_u32 v{t2}, 31, v{t1}")
    A(f"  v_lshrrev_b32 v{vW}, 2, v{t2}")
    A(f"  v_and_b32 v{t3}, 7, v{t0}")
    A(f"  v_xor_b32 v{vW}, v{vW}, v{t3}")
    A(f"  v_lshlrev_b32 v{vW}, 4, v{vW}")
    A(f"  v_and_b32 v{t2}, 3, v{t2}")
    A(f"  v_lshl_add_u32 v{vW}, v{t2}, 2, v{vW}")
    A(f"  v_lshl_add_u32 v{vW}, v{t0}, 9, v{vW}")
    A(f"  v_add_u32 v{vW}, {TT}, v{vW}")
    A(f"  v_lshrrev_b32 v{t2}, 3, v0")
    A(f"  v_and_b32 v{t3}, 7, v0")
    A(f"  v_bfe_u32 v{vR}, v0, 5, 3")
    A(f"  v_xor_b32 v{vR}, v{vR}, v{t3}")
    A(f"  v_lshlrev_b32 v{vR}, 4, v{vR}")
    A(f"  v_lshl_add_u32 v{vR}, v{t2}, 7, v{vR}")
    A(f"  v_add_u32 v{vR}, {TT}, v{vR}")
    A(f"  s_lshl_b32 s{a}, s{scb}, 18")
    A(f"  s_lshl_b32 s{b}, s{stb}, 7")
    A(f"  s_sub_u32 s{a}, s{a}, s{b}")
    A(f"  s_add_u32 s{a}, s{a}, {3968+WS_KVR}")
    A(f"  v_lshlrev_b32 v{vG}, 12, v{t2}")
    A(f"  v_lshl_add_u32 v{vG}, v{t3}, 4, v{vG}")
    A(f"  v_add_u32 v{vG}, s{a}, v{vG}")
    vXw = vSo
    A(f"  v_mul_u32_u24 v{vXw}, 288, v{t1}")
    A(f"  v_lshl_add_u32 v{vXw}, v{t0}, 3, v{vXw}")
    A(f"  v_add_u32 v{vXw}, {XT}, v{vXw}")
    A(f"  s_waitcnt vmcnt(6)")
    ST.stamp()
    for ch in range(4):
        for dd in range(2):
            src = vS + 2*ch + dd
            p, e = ch >> 1, ch & 1
            A(f"  v_lshlrev_b32 v{vSf+((2*dd)*2+p)*2+e}, 16, v{src}")
            A(f"  v_and_b32 v{vSf+((2*dd+1)*2+p)*2+e}, 0xffff0000, v{src}")
    for r in range(5):
        for p in range(2):
            A(f"  v_lshlrev_b32 v{vKf+(r*2+p)*2}, 16, v{vK+2*r+p}")
            A(f"  v_and_b32 v{vKf+(r*2+p)*2+1}, 0xffff0000, v{vK+2*r+p}")
    O = vO
    for j in range(4):
        for tk in range(2):
            for p in range(2):
                kk = vKf+((3+tk-j)*2+p)*2; ww = vSf+(j*2+p)*2; o = O+(tk*2+p)*2
                if j == 0: A(f"  v_pk_mul_f32 {vr(o,2)}, {vr(kk,2)}, {vr(ww,2)}")
                else: A(f"  v_pk_fma_f32 {vr(o,2)}, {vr(kk,2)}, {vr(ww,2)}, {vr(o,2)}")
    for tk in range(2):
        for p in range(2):
            A(f"  v_lshlrev_b32 v{vKf+(tk*2+p)*2}, 16, v{vV+2*tk+p}")
            A(f"  v_and_b32 v{vKf+(tk*2+p)*2+1}, 0xffff0000, v{vV+2*tk+p}")
    for tk in range(2):
        for p in range(2):
            o = O+(tk*2+p)*2
            A(f"  v_pk_mul_f32 {vr(o,2)}, {vr(o,2)}, {vr(vKf+(tk*2+p)*2,2)}")
    for ch in range(4):
        p, e = ch >> 1, ch & 1
        A(f"  v_cvt_pk_bf16_f32 v{vKf+8+ch}, v{O+(2+p)*2+e}, v{O+p*2+e}")
    for ch in range(4):
        A(f"  ds_write_b32 v{vW}, v{vKf+8+ch} offset:{128*ch}")
    A("  s_waitcnt lgkmcnt(0)")
    A("  s_barrier")
    A(f"  ds_read_b128 {vr(vO,4)}, v{vR}")
    A(f"  v_and_b32 v{t0}, 15, v0")
    A(f"  v_lshrrev_b32 v{t1}, 4, v0")
    A(f"  v_mul_u32_u24 v{t2}, 144, v{t0}")
    A(f"  v_lshl_add_u32 v{t2}, v{t1}, 2, v{t2}")
    A(f"  v_add_u32 v{vR}, {XT}, v{t2}")
    A("  s_waitcnt lgkmcnt(0)")
    A(f"  buffer_store_dwordx4 {vr(vO,4)}, v{vG}, {sr(sWS,4)}, 0 offen sc1")
    ST.stamp()
    A(f"  v_and_b32 v{t2}, 255, v0")
    A(f"  v_lshlrev_b32 v{vT16}, 4, v{t2}")
    A(f"  s_lshl_b32 s{a}, s{sc}, 13")
    A(f"  s_lshl_b32 s{b}, s{sch}, 12")
    A(f"  s_add_u32 s{a}, s{a}, s{b}")
    for k in range(3):
        A(f"  buffer_load_dwordx4 {vr(vL+4*k,4)}, v{vT16}, {sr(sH,4)}, s{a} offen offset:{4*k}")
    A(f"  s_cmp_eq_u32 s{sw}, 0")
    A(f"  s_cselect_b32 s{a}, 0, 0x400")
    A(f"  v_mov_b32 v{t2}, s{a}")
    A(f"  buffer_load_dword v{vFl}, v{t2}, {sr(sDBG,4)}, 0 offen sc1")
    A("  s_waitcnt vmcnt(9)")
    for i in range(2):
        A(f"  ds_write_b64 v{vXw}, {vr(vXt+2*i,2)} offset:{144*i}")
    A(f"  s_lshl_b32 s{a}, s{scb}, 18")
    A(f"  s_lshl_b32 s{b}, s{stb}, 8")
    A(f"  s_add_u32 s{a}, s{a}, s{b}")
    A(f"  s_add_u32 s{d_}, s{a}, {WS_XP}")
    A(f"  v_lshlrev_b32 v{vG}, 13, v{t1}")
    A(f"  v_lshl_add_u32 v{vG}, v{t0}, 4, v{vG}")
    A("  s_waitcnt lgkmcnt(0)")
    A("  s_barrier")
    for r in range(4):
        A(f"  ds_read_b32 v{vO+4+r}, v{vR} offset:{r*16*144}")
    A("  s_waitcnt vmcnt(8)")
    F, S1, S2 = vKf, vKf+8, vKf+10
    for i in range(4):
        A(f"  v_lshlrev_b32 v{F+2*i}, 16, v{vXr+i}")
        A(f"  v_and_b32 v{F+2*i+1}, 0xffff0000, v{vXr+i}")
    A(f"  v_pk_add_f32 {vr(S1,2)}, {vr(F,2)}, {vr(F+2,2)}")
    A(f"  v_pk_mul_f32 {vr(S2,2)}, {vr(F,2)}, {vr(F,2)}")
    A(f"  v_pk_add_f32 {vr(F,2)}, {vr(F+4,2)}, {vr(F+6,2)}")
    for i in range(1,4):
        A(f"  v_pk_fma_f32 {vr(S2,2)}, {vr(F+2*i,2)}, {vr(F+2*i,2)}, {vr(S2,2)}")
    A(f"  v_pk_add_f32 {vr(S1,2)}, {vr(S1,2)}, {vr(F,2)}")
    A(f"  v_add_f32 v{S2}, v{S2}, v{S2+1}")
    A(f"  v_add_f32 v{S1}, v{S1}, v{S1+1}")
    A("  s_waitcnt lgkmcnt(0)")
    A(f"  buffer_store_dwordx4 {vr(vO+4,4)}, v{vG}, {sr(sWS,4)}, s{d_} offen sc1")
    T, P = vSf, 116
    A("  s_waitcnt vmcnt(6)")
    c0, c1, e0, e1 = T, T+1, T+2, T+3
    A(f"  v_lshlrev_b32 v{c0}, 16, v{vC}")
    A(f"  v_and_b32 v{c1}, 0xffff0000, v{vC}")
    A(f"  s_mov_b32 s{a}, 0xbfb8aa3b")
    def red(ctrl):
        for r in (S1, S2): A(f"  v_add_f32_dpp v{r}, v{r}, v{r} {ctrl}")
    red("row_ror:8 row_mask:0xf bank_mask:0xf")
    A(f"  v_mul_f32 v{e0}, s{a}, v{c0}")
    A(f"  v_mul_f32 v{e1}, s{a}, v{c1}")
    red("row_ror:4 row_mask:0xf bank_mask:0xf")
    A(f"  v_exp_f32 v{e0}, v{e0}")
    A(f"  v_exp_f32 v{e1}, v{e1}")
    red("row_ror:2 row_mask:0xf bank_mask:0xf")
    A(f"  v_add_f32 v{e0}, 1.0, v{e0}")
    A(f"  v_add_f32 v{e1}, 1.0, v{e1}")
    red("row_ror:1 row_mask:0xf bank_mask:0xf")
    A(f"  v_rcp_f32 v{e0}, v{e0}")
    A(f"  v_rcp_f32 v{e1}, v{e1}")
    red("row_bcast:15 row_mask:0xa bank_mask:0xf")
    A(f"  v_mul_f32 v{c0}, v{c0}, v{e0}")
    A(f"  v_mul_f32 v{c1}, v{c1}, v{e1}")
    red("row_bcast:31 row_mask:0xc bank_mask:0xf")
    A(f"  v_cvt_pk_bf16_f32 v{vC}, v{c0}, v{c1}")
    A(f"  s_mov_b32 s{a}, 0x05040100")
    A(f"  s_mov_b32 s{b}, 0x07060302")
    for q in range(4):
        A(f"  v_perm_b32 v{T+2*q}, v{vWm+4+q}, v{vWm+q}, s{a}")
        A(f"  v_perm_b32 v{T+2*q+1}, v{vWm+4+q}, v{vWm+q}, s{b}")
    A(f"  s_mov_b32 s{a}, 0x3b000000")
    A(f"  v_mul_f32 v{S1}, s{a}, v{S1}")
    A(f"  v_mul_f32 v{S2}, s{a}, v{S2}")
    for n in range(8):
        A(f"  v_dot2_f32_bf16 v{P+n}, v{T+n}, v{vC}, 0")
    A(f"  v_fma_f32 v{S2}, -v{S1}, v{S1}, v{S2}")
    A(f"  s_mov_b32 s{a}, 0x3727c5ac")
    A(f"  v_max_f32 v{S2}, 0, v{S2}")
    A(f"  v_add_f32 v{S2}, s{a}, v{S2}")
    A(f"  v_rsq_f32 v{S2}, v{S2}")
    for i in range(4): A(f"  v_permlane32_swap_b32 v{P+i}, v{P+i+4}")
    A(f"  v_mul_f32 v{S2+1}, -v{S1}, v{S2}")
    for i in range(4): A(f"  v_add_f32 v{P+i}, v{P+i}, v{P+i+4}")
    A(f"  s_lshl_b32 s{a}, s{sw}, 3")
    A(f"  s_add_u32 s{a}, s{a}, {MS}")
    A(f"  v_mov_b32 v{t2}, s{a}")
    for i in range(2): A(f"  v_permlane16_swap_b32 v{P+i}, v{P+i+2}")
    A(f"  s_mov_b32 s{c_}, 0")
    A(f"  s_brev_b32 s{d_}, 1")
    for i in range(2): A(f"  v_add_f32 v{P+i}, v{P+i}, v{P+i+2}")
    A(f"  s_mov_b64 exec, s[{c_}:{d_}]")
    A(f"  ds_write_b64 v{t2}, {vr(S2,2)}")
    A(f"  s_mov_b64 exec, -1")
    for i in range(2): A(f"  v_add_f32_dpp v{P+i}, v{P+i}, v{P+i} row_ror:8 row_mask:0xf bank_mask:0xf")
    A(f"  v_and_b32 v{vOA}, 7, v{vl}")
    A(f"  v_lshlrev_b32 v{vOA}, 5, v{vOA}")
    A(f"  v_lshrrev_b32 v{t2}, 4, v{vl}")
    A(f"  v_lshl_add_u32 v{vOA}, v{t2}, 3, v{vOA}")
    A(f"  v_and_b32 v{t2}, 8, v{vl}")
    A(f"  v_lshl_or_b32 v{vOA}, v{t2}, 27, v{vOA}")
    A(f"  s_mul_i32 s{a}, s{sc}, 1536")
    A(f"  s_lshl_b32 s{b}, s{sw}, 8")
    A(f"  s_add_u32 s{a}, s{a}, s{b}")
    A(f"  s_add_u32 s{a}, s{a}, {WS_PART}")
    A(f"  s_cmp_lt_u32 s{sw}, 6")
    A(f"  s_cselect_b32 s{a}, s{a}, 0x20000000")
    A(f"  buffer_store_dwordx2 {vr(P,2)}, v{vOA}, {sr(sWS,4)}, s{a} offen sc1")
    ST.stamp()
    A("  s_waitcnt vmcnt(0) lgkmcnt(0)")
    A("  s_barrier")
    A(f"  s_cmp_lg_u32 s{sw}, 0")
    A(f"  s_cbranch_scc1 {name}_arr1")
    A(f"  v_readfirstlane_b32 s{a}, v{vFl}")
    A(f"  s_mov_b32 s{b}, {SPIN}")
    A(f"{name}_rdy:")
    A(f"  s_cmp_lg_u32 s{a}, 0")
    A(f"  s_cbranch_scc1 {name}_rdyok")
    A(f"  v_mov_b32 v{t2}, 0")
    A(f"  buffer_load_dword v{vFl}, v{t2}, {sr(sDBG,4)}, 0 offen sc1")
    A("  s_waitcnt vmcnt(0)")
    A(f"  v_readfirstlane_b32 s{a}, v{vFl}")
    A(f"  s_sub_u32 s{b}, s{b}, 1")
    A(f"  s_cmp_lg_u32 s{b}, 0")
    A(f"  s_cbranch_scc1 {name}_rdy")
    A(f"{name}_rdyok:")
    A(f"  s_lshl_b32 s{a}, s{scb}, 8")
    A(f"  s_add_u32 s{a}, s{a}, {WS_CNT+C_KV*256}")
    A(f"  v_mov_b32 v{t2}, s{a}")
    A(f"  v_mov_b32 v{t3}, 1")
    A(f"  s_mov_b64 exec, 1")
    A(f"  buffer_atomic_add v{t3}, v{t2}, {sr(sWS,4)}, 0 offen sc1")
    A(f"  s_mov_b64 exec, -1")
    A(f"  v_lshlrev_b32 v{t2}, 4, v{vl}")
    A(f"  ds_read_b128 {vr(vO,4)}, v{t2} offset:{MS}")
    A(f"  s_lshl_b32 s{a}, s2, 6")
    A(f"  s_add_u32 s{a}, s{a}, {WS_ST1}")
    A("  s_waitcnt lgkmcnt(0)")
    A(f"  s_mov_b64 exec, 0xf")
    A(f"  buffer_store_dwordx4 {vr(vO,4)}, v{t2}, {sr(sWS,4)}, s{a} offen sc1")
    A(f"  s_mov_b64 exec, -1")
    A(f"{name}_arr1:")
    ST.stamp()
    vE, vZero, vHCw = vSf, vSf+8, vSf+12
    La, Lb, Lc = vL, vL+4, vL+8
    for i in range(4): A(f"  v_alignbit_b32 v{vE+i}, v{Lb+i}, v{La+i}, 16")
    for i in range(4): A(f"  v_alignbit_b32 v{vE+4+i}, v{Lc+i}, v{Lb+i}, 16")
    A(f"  s_mul_i32 s{a}, s{sch}, {HCH}")
    A(f"  s_add_u32 s{a}, s{a}, {HC+32}")
    A(f"  v_add_u32 v{vHCw}, s{a}, v{vT16}")
    for i in range(4): A(f"  v_mov_b32 v{vZero+i}, 0")
    A(f"  ds_write_b128 v{vHCw}, {vr(La,4)}")
    A(f"  ds_write_b128 v{vHCw}, {vr(Lb,4)} offset:{2*4160}")
    A(f"  ds_write_b128 v{vHCw}, {vr(vE,4)} offset:{4160}")
    A(f"  ds_write_b128 v{vHCw}, {vr(vE+4,4)} offset:{3*4160}")
    A(f"  s_cmp_lg_u32 s{sw}, 1")
    A(f"  s_cbranch_scc1 {name}_nozt")
    A(f"  v_lshrrev_b32 v{t1}, 5, v{vl}")
    A(f"  v_mul_u32_u24 v{t1}, 4608, v{t1}")
    A(f"  v_and_b32 v{t2}, 31, v{vl}")
    A(f"  v_lshl_add_u32 v{t1}, v{t2}, 4, v{t1}")
    A(f"  ds_write_b128 v{t1}, {vr(vZero,4)} offset:4096")
    A(f"{name}_nozt:")
    A(f"  s_cmp_lg_u32 s{sqq}, 0")
    A(f"  s_cbranch_scc1 {name}_noneg")
    A(f"  s_mov_b64 exec, 1")
    A(f"  v_subrev_u32 v{t0}, 32, v{vHCw}")
    Tn = vKf
    for i in range(12): A(f"  v_mov_b32 v{Tn+i}, 0")
    for phi in range(4): A(f"  ds_write_b128 v{t0}, {vr(vZero,4)} offset:{phi*4160}")
    A(f"  ds_write_b128 v{t0}, {vr(vZero,4)} offset:16")
    A(f"  v_lshlrev_b32 v{Tn+3}, 16, v{La}")
    A(f"  v_mov_b32 v{Tn+7}, v{La}")
    A(f"  v_lshlrev_b32 v{Tn+10}, 16, v{La}")
    A(f"  v_alignbit_b32 v{Tn+11}, v{La+1}, v{La}, 16")
    A(f"  ds_write_b128 v{t0}, {vr(Tn,4)} offset:{4160+16}")
    A(f"  ds_write_b128 v{t0}, {vr(Tn+4,4)} offset:{2*4160+16}")
    A(f"  ds_write_b128 v{t0}, {vr(Tn+8,4)} offset:{3*4160+16}")
    A(f"  s_mov_b64 exec, -1")
    A(f"{name}_noneg:")
    conv2(A, locals())
    A(f"{name}_end:")
    ST.flush(2)
    A("  s_endpgm")
    return dict(name=name, grid=256, block=512, lds=LDS, nvgpr=256, accum=256)

def conv2(A, L):
    name, ST, SPIN, PREFETCH, PSLEEP = (L[k] for k in "name ST SPIN PREFETCH PSLEEP".split())
    XR1, HC, HCH, MD, EX = (L[k] for k in "XR1 HC HCH MD EX".split())
    vl, t0, t1, t2, t3 = 1, 2, 3, 4, 5
    sWS, sSH, sXq, sPF = (L[k] for k in "sWS sSH sXq sPF".split())
    stb, scb, sw, sc, sch, sqq, sD = (L[k] for k in "stb scb sw sc sch sqq sD".split())
    a, b, c_, d_ = 44, 45, 46, 47
    pWG, pWD = L['pWG'], L['pWD']
    vAcc, vZf, vHf = 16, 48, 112
    vXP, vS1, vMd, vPt = 176, 180, 188, 196
    vZ, vH, vEXw, vEXr, vYo, vKVo, vXRw, vXo, vSo, vMo, vPf, vPd = range(208, 220)
    vHD = 220
    vPoll = 224
    A(f"  v_and_b32 v{t0}, 15, v{vl}")
    A(f"  v_lshrrev_b32 v{t1}, 4, v{vl}")
    A(f"  v_lshlrev_b32 v{t2}, 5, v{t0}")
    A(f"  v_sub_u32 v{t2}, 480, v{t2}")
    A(f"  v_lshl_add_u32 v{t2}, v{t1}, 4, v{t2}")
    A(f"  s_mul_i32 s{a}, s{sch}, {XR1}")
    A(f"  s_lshl_b32 s{b}, s{sqq}, 7")
    A(f"  s_add_u32 s{a}, s{a}, s{b}")
    A(f"  v_add_u32 v{vZ}, s{a}, v{t2}")
    A(f"  v_add_u32 v{t2}, 1, v{t0}")
    A(f"  v_and_b32 v{t3}, 3, v{t2}")
    A(f"  v_sub_u32 v{t2}, v{t2}, v{t3}")
    A(f"  v_lshl_add_u32 v{t2}, v{t1}, 3, v{t2}")
    A(f"  v_lshlrev_b32 v{t2}, 1, v{t2}")
    A(f"  v_mul_u32_u24 v{t3}, 4160, v{t3}")
    A(f"  s_mul_i32 s{a}, s{sch}, {HCH}")
    A(f"  s_add_u32 s{a}, s{a}, s{b}")
    A(f"  s_add_u32 s{a}, s{a}, {HC}")
    A(f"  v_add3_u32 v{vH}, v{t2}, v{t3}, s{a}")
    A(f"  v_lshlrev_b32 v{t2}, 4, v{vl}")
    A(f"  s_lshl_b32 s{a}, s{sw}, 13")
    A(f"  s_add_u32 s{a}, s{a}, {EX}")
    A(f"  v_add_u32 v{vEXw}, s{a}, v{t2}")
    A(f"  s_lshl_b32 s{a}, s{sw}, 10")
    A(f"  s_add_u32 s{a}, s{a}, {EX}")
    A(f"  v_add_u32 v{vEXr}, s{a}, v{t2}")
    A(f"  s_lshl_b32 s{a}, s{sc}, 13")
    A(f"  s_add_u32 s{a}, s{a}, {WS_KVR}")
    A(f"  v_lshl_add_u32 v{vKVo}, v0, 4, s{a}")
    A(f"  s_mul_i32 s{a}, s{sch}, {XR1}")
    A(f"  v_add_u32 v{vXRw}, s{a}, v{L['vT16']}")
    A(f"  s_lshr_b32 s{a}, s{sc}, 3")
    A(f"  s_lshl_b32 s{a}, s{a}, 10")
    A(f"  s_bfe_u32 s{b}, s{sc}, 0x10002")
    A(f"  s_lshl_b32 s{b}, s{b}, 9")
    A(f"  s_add_u32 s{a}, s{a}, s{b}")
    A(f"  s_and_b32 s{b}, s{sc}, 3")
    A(f"  s_lshl_b32 s{b}, s{b}, 2")
    A(f"  s_add_u32 s{a}, s{a}, s{b}")
    A(f"  s_lshl_b32 s{b}, s{sw}, 18")
    A(f"  s_add_u32 s{a}, s{a}, s{b}")
    A(f"  v_lshlrev_b32 v{t2}, 16, v{t1}")
    A(f"  v_lshl_add_u32 v{t2}, v{t0}, 4, v{t2}")
    A(f"  v_add_u32 v{vYo}, s{a}, v{t2}")
    A(f"  s_lshl_b32 s{a}, s{sc}, 13")
    A(f"  s_lshl_b32 s{b}, s{sw}, 10")
    A(f"  s_add_u32 s{a}, s{a}, s{b}")
    A(f"  s_add_u32 s{a}, s{a}, {WS_XP}")
    A(f"  v_lshlrev_b32 v{t2}, 8, v{t1}")
    A(f"  v_lshl_add_u32 v{t2}, v{t0}, 4, v{t2}")
    A(f"  v_add_u32 v{vXo}, s{a}, v{t2}")
    A(f"  v_lshl_add_u32 v{t2}, v{t1}, 6, v{t0}")
    A(f"  s_lshl_b32 s{a}, s{sw}, 11")
    A(f"  s_add_u32 s{a}, s{a}, {WS_ST1}")
    A(f"  v_lshl_add_u32 v{vSo}, v{t2}, 3, s{a}")
    A(f"  s_lshl_b32 s{a}, s{scb}, 5")
    A(f"  v_add_u32 v{vMo}, s{a}, v0")
    A(f"  v_mul_u32_u24 v{vMo}, 1536, v{vMo}")
    A(f"  s_lshl_b32 s{a}, s{stb}, 3")
    A(f"  s_add_u32 s{a}, s{a}, {WS_PART}")
    A(f"  v_add_u32 v{vMo}, s{a}, v{vMo}")
    A(f"  v_lshrrev_b32 v{t2}, 5, v0")
    A(f"  v_min_u32 v{t2}, 1, v{t2}")
    A(f"  v_lshl_or_b32 v{vMo}, v{t2}, 29, v{vMo}")
    A("  s_waitcnt lgkmcnt(0)")
    A(f"  s_lshr_b32 s{a}, s{sD}, 16")
    A(f"  s_and_b32 s{b}, s{sD}, 0xffff")
    A(f"  s_cmp_eq_u32 s{sch}, 0")
    A(f"  s_cselect_b32 s{a}, s{b}, s{a}")
    A(f"  s_lshl_b32 s{b}, s{a}, 16")
    A(f"  v_lshlrev_b32 v{t2}, 3, v{t1}")
    A(f"  v_add_u32 v{t2}, v{t2}, v{t0}")
    A(f"  v_sub_u32 v{t2}, 15, v{t2}")
    A(f"  v_and_b32 v{t3}, 1, v{t2}")
    A(f"  v_cmp_eq_u32 vcc, 1, v{t3}")
    A(f"  v_mov_b32 v{vHD}, s{a}")
    A(f"  v_mov_b32 v{vHD+1}, s{b}")
    A(f"  v_cndmask_b32 v{t3}, v{vHD}, v{vHD+1}, vcc")
    A(f"  v_ashrrev_i32 v{t2}, 1, v{t2}")
    for i in range(4):
        A(f"  v_cmp_eq_u32 vcc, {i}, v{t2}")
        A("  s_nop 1")
        A(f"  v_cndmask_b32 v{vHD+i}, 0, v{t3}, vcc")
    if PREFETCH:
        A(f"  v_and_b32 v{t1}, 127, v0")
        A(f"  v_mul_u32_u24 v{t2}, 147, v{t1}")
        A(f"  v_lshrrev_b32 v{t2}, 10, v{t2}")
        A(f"  v_mul_u32_u24 v{t3}, 7, v{t2}")
        A(f"  v_sub_u32 v{t3}, v{t1}, v{t3}")
        A(f"  s_lshl_b32 s{a}, s{stb}, 4")
        A(f"  v_add_u32 v{t2}, s{a}, v{t2}")
        A(f"  v_mul_u32_u24 v{t2}, 3584, v{t2}")
        A(f"  v_lshl_add_u32 v{vPf}, v{t3}, 7, v{t2}")
        A(f"  s_lshr_b32 s{a}, s{scb}, 1")
        A(f"  s_mul_i32 s{a}, s{a}, 896")
        A(f"  s_cmp_lt_u32 s{sw}, 4")
        A(f"  s_cselect_b32 s{a}, s{a}, 0x40000000")
        A(f"  v_add_u32 v{vPf}, s{a}, v{vPf}")
        A(f"  s_bitcmp1_b32 s{sw}, 1")
        A(f"  s_cselect_b32 s{sPF}, s{pWG+2}, s{pWG}")
        A(f"  s_cselect_b32 s{sPF+1}, s{pWG+3}, s{pWG+1}")
        A(f"  s_mov_b32 s{sPF+2}, {512*1792*2}")
        A(f"  s_mov_b32 s{sPF+3}, 0x20000")
        A(f"  s_mul_i32 s{a}, s2, 7168")
        A(f"  s_cmp_eq_u32 s{sw}, 4")
        A(f"  s_cselect_b32 s{a}, s{a}, 0x40000000")
        A(f"  v_lshl_add_u32 v{vPd}, v{vl}, 7, s{a}")
        A(f"  s_mov_b32 s{sXq}, s{pWD}")
        A(f"  s_mov_b32 s{sXq+1}, s{pWD+1}")
        A(f"  s_mov_b32 s{sXq+2}, {1792*512*2}")
    A(f"  s_cmp_lg_u32 s{sw}, 0")
    A(f"  s_cbranch_scc1 {name}_s1w")
    A(f"  s_lshl_b32 s{a}, s{scb}, 8")
    A(f"  s_add_u32 s{a}, s{a}, {WS_CNT+16*256}")
    A(f"  v_mov_b32 v{t2}, s{a}")
    poll_ge(A, f"{name}_s1", sWS, t2, [vPoll+i for i in range(4)], 32, a, b, SPIN, PSLEEP)
    A(f"{name}_s1w:")
    A("  s_waitcnt lgkmcnt(0)")
    A("  s_barrier")
    ST.stamp()
    vKV = vZf
    A(f"  buffer_load_dwordx4 {vr(vKV,4)}, v{vKVo}, {sr(sWS,4)}, 0 offen sc1")
    def stat_loads():
        for r in range(4):
            A(f"  buffer_load_dwordx2 {vr(vS1+2*r,2)}, v{vSo}, {sr(sWS,4)}, 0 offen offset:{128*r} sc1")
    A(f"  s_waitcnt vmcnt(0)")
    A(f"  ds_write_b128 v{vXRw}, {vr(vKV,4)}")
    A("  s_waitcnt lgkmcnt(0)")
    A("  s_barrier")
    ST.stamp()
    def late_loads():
        A(f"  s_cmp_lg_u32 s{sw}, 0")
        A(f"  s_cbranch_scc1 {name}_nopt")
        for chk in range(6):
            A(f"  buffer_load_dwordx2 {vr(vPt+2*chk,2)}, v{vMo}, {sr(sWS,4)}, 0 offen offset:{256*chk} sc1")
        A(f"{name}_nopt:")
        A(f"  buffer_load_dwordx4 {vr(vXP,4)}, v{vXo}, {sr(sWS,4)}, 0 offen sc1")
        stat_loads()
    def prefetch():
        if not PREFETCH: return
        A(f"  s_cmp_gt_u32 s{sw}, 4")
        A(f"  s_cbranch_scc1 {name}_nopf")
        A(f"  s_cmp_eq_u32 s{sw}, 4")
        A(f"  s_cbranch_scc1 {name}_pfd")
        A(f"  buffer_load_dword v228, v{vPf}, {sr(sPF,4)}, 0 offen")
        A(f"  s_branch {name}_nopf")
        A(f"{name}_pfd:")
        A(f"  buffer_load_dword v229, v{vPd}, {sr(sXq,4)}, 0 offen")
        A(f"{name}_nopf:")
    def reads(it):
        buf = it & 1
        R = []
        for G in range(8):
            R.append(f"  ds_read_b128 {vr(vZf+32*buf+4*G,4)}, v{vZ} offset:{64*it+512*(7-G)}")
        for m in range(8):
            for hh in range(2):
                R.append(f"  ds_read_b64 {vr(vHf+32*buf+4*m+2*hh,2)}, v{vH} offset:{64*it+512*m+8*hh}")
        return R
    red = []
    for k in range(6): red.append(f"  v_permlane16_swap_b32 v{vPt+2*k}, v{vPt+2*k+1}")
    for k in range(6): red.append(f"  v_add_f32 v{vPt+2*k}, v{vPt+2*k}, v{vPt+2*k+1}")
    for ror in (8, 4, 2, 1):
        for k in range(6):
            red.append(f"  v_add_f32_dpp v{vPt+2*k}, v{vPt+2*k}, v{vPt+2*k} row_ror:{ror} row_mask:0xf bank_mask:0xf")
    for k in range(6): red.append(f"  v_cvt_pk_bf16_f32 v{vPt+2*k}, v{vPt+2*k}, v{vPt+2*k}")
    for k in range(6): red.append(f"  v_lshlrev_b32 v{vPt+2*k}, 16, v{vPt+2*k}")
    for k in (1, 4): red.append(f"  v_add_f32 v{vPt+2*k}, 1.0, v{vPt+2*k}")
    for k in (1, 4): red.append(f"  v_cvt_pk_bf16_f32 v{vPt+2*k}, v{vPt+2*k}, v{vPt+2*k}")
    for k in (1, 4): red.append(f"  v_lshlrev_b32 v{vPt+2*k}, 16, v{vPt+2*k}")
    for s_ in reads(0): A(s_)
    late_loads()
    for it in range(2):
        buf = it & 1
        A("  s_waitcnt lgkmcnt(0)")
        nxt = reads(1) if it == 0 else []
        if it == 0:
            A(f"  s_cmp_lg_u32 s{sqq}, 0")
            A(f"  s_cbranch_scc1 {name}_noD")
            for G in range(8):
                A(f"  v_mfma_f32_16x16x32_bf16 {vr(vAcc+4*G,4)}, {vr(vZf+4*G,4)}, {vr(vHD,4)}, 0")
            A(f"  s_branch {name}_Dok")
            A(f"{name}_noD:")
            for i in range(32): A(f"  v_mov_b32 v{vAcc+i}, 0")
            A("  s_nop 1")
            A(f"{name}_Dok:")
        nm = 0
        for m in range(8):
            for Gz in range(8-m):
                G = Gz+m
                A(f"  v_mfma_f32_16x16x32_bf16 {vr(vAcc+4*G,4)}, {vr(vZf+32*buf+4*Gz,4)}, {vr(vHf+32*buf+4*m,4)}, {vr(vAcc+4*G,4)}")
                nm += 1
                if it == 0:
                    if nxt: A(nxt.pop(0))
                else:
                    if nm == 4:
                        A(f"  s_waitcnt vmcnt(0)")
                        prefetch()
                    if nm >= 5:
                        for _ in range(2):
                            if red: A(red.pop(0))
    while red: A(red.pop(0))
    A(f"  s_cmp_lg_u32 s{sw}, 0")
    A(f"  s_cbranch_scc1 {name}_nomd")
    A(f"  v_lshrrev_b32 v{vPt+1}, 4, v{vl}")
    A(f"  v_lshlrev_b32 v{vPt+1}, 2, v{vPt+1}")
    A(f"  v_add_u32 v{vPt+1}, {MD}, v{vPt+1}")
    A(f"  s_mov_b64 exec, 0x10001")
    for i, k in enumerate((0, 1, 2, 4)):
        A(f"  ds_write_b32 v{vPt+1}, v{vPt+2*k} offset:{8*i}")
    A(f"  s_mov_b64 exec, -1")
    A(f"{name}_nomd:")
    A("  s_nop 7")
    ST.stamp()
    for G in range(8):
        A(f"  ds_write_b128 v{vEXw}, {vr(vAcc+4*G,4)} offset:{G*1024}")
    A(f"  s_mov_b32 s{c_}, {SPIN}")
    A(f"{name}_val:")
    V = vHf
    A(f"  v_min_u32 v{V}, v{vS1}, v{vS1+2}")
    A(f"  v_min3_u32 v{V}, v{V}, v{vS1+4}, v{vS1+6}")
    A(f"  v_cmp_eq_u32 vcc, 0, v{V}")
    A("  s_nop 1")
    A(f"  s_cmp_eq_u64 vcc, 0")
    A(f"  s_cbranch_scc1 {name}_valok")
    A("  s_sleep 1")
    stat_loads()
    A("  s_waitcnt vmcnt(0)")
    A(f"  s_sub_u32 s{c_}, s{c_}, 1")
    A(f"  s_cmp_lg_u32 s{c_}, 0")
    A(f"  s_cbranch_scc1 {name}_val")
    A(f"{name}_valok:")
    X, N = vHf+8, vHf+16
    for r in range(4):
        A(f"  v_lshlrev_b32 v{X+2*r}, 16, v{vXP+r}")
        A(f"  v_and_b32 v{X+2*r+1}, 0xffff0000, v{vXP+r}")
    for r in range(4):
        rs, nm = vS1+2*r, vS1+2*r+1
        A(f"  v_pk_fma_f32 {vr(N+2*r,2)}, {vr(X+2*r,2)}, {vr(rs,2)}, {vr(rs,2)} op_sel:[0,0,1] op_sel_hi:[1,0,1]")
    A("  s_waitcnt lgkmcnt(0)")
    A("  s_barrier")
    ST.stamp()
    A(f"  v_mov_b32 v{t2}, {MD}")
    A(f"  ds_read_b128 {vr(vMd,4)}, v{t2}")
    A(f"  ds_read_b128 {vr(vMd+4,4)}, v{t2} offset:16")
    vR = vZf
    for s_ in range(8):
        A(f"  ds_read_b128 {vr(vR+4*s_,4)}, v{vEXr} offset:{s_*8192}")
    sa, c1a, ga, c1b = vMd, vMd+2, vMd+4, vMd+6
    A("  s_waitcnt lgkmcnt(8)")
    for r in range(4): A(f"  v_pk_fma_f32 {vr(N+2*r,2)}, {vr(N+2*r,2)}, {vr(c1a,2)}, {vr(sa,2)}")
    for r in range(4): A(f"  v_pk_mul_f32 {vr(N+2*r,2)}, {vr(N+2*r,2)}, {vr(ga,2)}")
    A("  s_waitcnt lgkmcnt(4)")
    for hh in range(2):
        A(f"  v_pk_add_f32 {vr(vR+2*hh,2)}, {vr(vR+2*hh,2)}, {vr(vR+4+2*hh,2)}")
        A(f"  v_pk_add_f32 {vr(vR+8+2*hh,2)}, {vr(vR+8+2*hh,2)}, {vr(vR+12+2*hh,2)}")
    for hh in range(2):
        A(f"  v_pk_add_f32 {vr(vR+2*hh,2)}, {vr(vR+2*hh,2)}, {vr(vR+8+2*hh,2)}")
    A("  s_waitcnt lgkmcnt(0)")
    for hh in range(2):
        A(f"  v_pk_add_f32 {vr(vR+16+2*hh,2)}, {vr(vR+16+2*hh,2)}, {vr(vR+20+2*hh,2)}")
        A(f"  v_pk_add_f32 {vr(vR+24+2*hh,2)}, {vr(vR+24+2*hh,2)}, {vr(vR+28+2*hh,2)}")
    for hh in range(2):
        A(f"  v_pk_add_f32 {vr(vR+16+2*hh,2)}, {vr(vR+16+2*hh,2)}, {vr(vR+24+2*hh,2)}")
    for r in range(4):
        A(f"  v_fma_f32 v{X+2*r}, v{N+2*r}, v{vR+r}, v{X+2*r}")
        A(f"  v_fma_f32 v{X+2*r+1}, v{N+2*r+1}, v{vR+16+r}, v{X+2*r+1}")
    PX, PZ = vR+4, vR+8
    ST.stamp()
    for r in range(4): A(f"  v_cvt_pk_bf16_f32 v{PX+r}, v{X+2*r}, v{X+2*r+1}")
    A(f"  s_mov_b32 s{a}, {WS_X1}")
    A(f"  s_mov_b32 s{b}, {WS_X1+32768}")
    A(f"  s_mov_b32 s{c_}, {WS_H2}")
    A(f"  s_mov_b32 s{d_}, {WS_H2+32768}")
    for r in range(4):
        A(f"  buffer_store_dword v{PX+r}, v{vYo}, {sr(sWS,4)}, s{a+(r>>1)} offen offset:{256*(r&1)}")
    for r in range(4):
        A(f"  v_lshlrev_b32 v{X+2*r}, 16, v{PX+r}")
        A(f"  v_and_b32 v{X+2*r+1}, 0xffff0000, v{PX+r}")
    for r in range(4): A(f"  v_pk_mul_f32 {vr(X+2*r,2)}, {vr(X+2*r,2)}, {vr(c1b,2)}")
    for r in range(4): A(f"  v_cvt_pk_bf16_f32 v{PZ+r}, v{X+2*r}, v{X+2*r+1}")
    for r in range(4):
        A(f"  buffer_store_dword v{PZ+r}, v{vYo}, {sr(sWS,4)}, s{c_+(r>>1)} offen offset:{256*(r&1)}")
    A(f"  s_cmp_lg_u32 s{sw}, 0")
    A(f"  s_cbranch_scc1 {name}_nopub")
    A(f"  v_lshrrev_b32 v{vPt+1}, 4, v{vl}")
    A(f"  s_lshl_b32 s{a}, s{sc}, 1")
    A(f"  v_add_u32 v{vPt+1}, s{a}, v{vPt+1}")
    A(f"  v_lshlrev_b32 v{vPt+3}, 2, v{vPt+1}")
    A(f"  v_lshlrev_b32 v{vPt+5}, 1, v{vPt+1}")
    A(f"  s_mov_b64 exec, 0x10001")
    for k in range(6):
        A(f"  s_mov_b32 s{a}, {WS_MOD+k*2048}")
        A(f"  buffer_store_dword v{vPt+2*k}, v{vPt+3}, {sr(sWS,4)}, s{a} offen")
    for k in (3, 4):
        A(f"  v_lshrrev_b32 v{vPt+7}, 16, v{vPt+2*k}")
        A(f"  s_mov_b32 s{a}, {WS_MODH+k*1024}")
        A(f"  buffer_store_short v{vPt+7}, v{vPt+5}, {sr(sWS,4)}, s{a} offen")
        A("  s_nop 0")
    A(f"  s_mov_b64 exec, -1")
    A(f"{name}_nopub:")
```

```python
from common import *

NHELP = 32
UNIT = [131072 + 8192*p for p in range(4)] + [m*65536 + 8192*st for st in range(8) for m in range(2)]
def gen_kb(A, name="ffn_kernel", kidx=3, AHEAD=2, SPACE=2, NSLOT=20, SPIN=200000, B0=10, BR=2, QFL=24, QCK=27, EARLY=0, QPF=18, QDMA=18):
    LDS = 4*NSLOT*2048
    assert LDS >= 131072
    REG = NSLOT*2048
    kernel_header(A, name)
    ST = Stamper(A, kidx); ST.stamp()
    sW, sH, sACT, sWD, sCNT, sX = 8, 12, 16, 20, 24, 28
    sw, sm, sWo, sM0, sf0, stb, sHo = 40, 41, 42, 43, 44, 45, 46
    sT0, sT1, sT2, sT3 = 47, 48, 49, 50
    sdb, stb64, skq, stt, sDo, sLb = 51, 52, 53, 54, 55, 56
    pWG, pWU, pWD, pWS, pOUT = 4, 6, 32, 34, 36
    A("  s_cmp_ge_u32 s2, 256")
    A(f"  s_cbranch_scc1 {name}_end")
    A(f"  s_load_dwordx4 s[4:7], s[0:1], {KA['wg']}")
    A(f"  s_load_dwordx2 s[{pWD}:{pWD+1}], s[0:1], {KA['wd']}")
    A(f"  s_load_dwordx2 s[{pWS}:{pWS+1}], s[0:1], {KA['ws']}")
    A(f"  s_load_dwordx2 s[{pOUT}:{pOUT+1}], s[0:1], {KA['out']}")
    vl, vWoff, vH, vAct, vt0, vt1, vt2, vt3, vRS = 1,2,3,4,5,6,7,8,14
    vA = 10
    vAf = 16
    vAcc = 48
    vX = 112
    A(f"  v_lshrrev_b32 v{vt0}, 6, v0")
    A(f"  v_and_b32 v{vl}, 63, v0")
    A(f"  v_readfirstlane_b32 s{sw}, v{vt0}")
    A("  s_and_b32 s3, s2, 7")
    A(f"  s_lshr_b32 s{sT0}, s2, 3")
    A(f"  s_and_b32 s{sdb}, s{sT0}, 7")
    A(f"  s_lshr_b32 s{sT1}, s{sT0}, 3")
    A(f"  s_lshl_b32 s{stb64}, s3, 2")
    A(f"  s_add_u32 s{stb64}, s{stb64}, s{sT1}")
    A(f"  s_lshr_b32 s{skq}, s{sw}, 1")
    A(f"  s_and_b32 s{stt}, s{sw}, 1")
    A(f"  s_mov_b32 s{sm}, s{stt}")
    A("  s_cmp_ge_u32 s2, 224")
    A(f"  s_cbranch_scc1 {name}_helper")
    A(f"  s_mul_i32 s{sT1}, s{sT0}, 37")
    A(f"  s_lshr_b32 s{sT1}, s{sT1}, 8")
    A(f"  s_mul_i32 s{sT2}, s{sT1}, 7")
    A(f"  s_sub_u32 s{sT2}, s{sT0}, s{sT2}")
    A(f"  s_and_b32 s{sT3}, s3, 1")
    A(f"  s_lshl_b32 s{sT3}, s{sT3}, 2")
    A(f"  s_add_u32 s{stb}, s{sT3}, s{sT1}")
    A(f"  s_lshr_b32 s{sT3}, s3, 1")
    A(f"  s_mul_i32 s{sT3}, s{sT3}, 7")
    A(f"  s_add_u32 s{sT3}, s{sT3}, s{sT2}")
    A(f"  s_lshl_b32 s{sf0}, s{sT3}, 6")
    A(f"  v_lshrrev_b32 v{vt0}, 3, v{vl}")
    A(f"  v_bfe_u32 v{vt1}, v{vl}, 4, 1")
    A(f"  s_lshl_b32 s{sT0}, s{sm}, 1")
    A(f"  v_bfe_u32 v{vt2}, v{vl}, 1, 2")
    A(f"  v_or_b32 v{vt1}, s{sT0}, v{vt1}")
    A(f"  v_xor_b32 v{vt1}, v{vt1}, v{vt2}")
    A(f"  v_and_b32 v{vt2}, 1, v{vl}")
    A(f"  v_lshlrev_b32 v{vt1}, 5, v{vt1}")
    A(f"  v_lshl_add_u32 v{vt1}, v{vt2}, 4, v{vt1}")
    A(f"  s_movk_i32 s{sT0}, 3584")
    A(f"  v_mad_u32_u24 v{vWoff}, v{vt0}, s{sT0}, v{vt1}")
    sTB32 = 57
    A(f"  s_lshl_b32 s{sTB32}, s{stb}, 3")
    A(f"  s_add_u32 s{sTB32}, s{sTB32}, s{sw}")
    A(f"  s_lshl_b32 s{sT1}, s{sTB32}, 15")
    A(f"  v_lshlrev_b32 v{vt0}, 4, v{vl}")
    A(f"  v_add_u32 v{vH}, s{sT1}, v{vt0}")
    A(f"  s_mul_i32 s{sWo}, s{skq}, {16*3584}")
    A(f"  s_lshl_b32 s{sT1}, s{sf0}, 1")
    A(f"  s_add_u32 s{sWo}, s{sWo}, s{sT1}")
    A(f"  s_lshl_b32 s{sM0}, s{skq}, 11")
    A(f"  s_lshl_b32 s{sT1}, s{sm}, 16")
    A(f"  s_add_u32 s{sM0}, s{sM0}, s{sT1}")
    A(f"  s_mov_b32 s{sHo}, 0")
    A("  s_waitcnt lgkmcnt(0)")
    A(f"  s_cmp_eq_u32 s{sm}, 0")
    A(f"  s_cselect_b32 s{sW}, s4, s6")
    A(f"  s_cselect_b32 s{sW+1}, s5, s7")
    A(f"  s_mov_b32 s{sW+2}, {512*1792*2}")
    A(f"  s_mov_b32 s{sW+3}, 0x20000")
    srd(A, sH, pWS, WS_H2, SZ2M)
    loadops = []
    for st in range(8):
        for ii in range(2):
            L = [f"  s_add_u32 m0, s{sM0}, {st*64*128 + ii*1024}"]
            if st or ii:
                inc = 8*3584 if ii else (64-8)*3584
                L.append(f"  s_add_u32 s{sWo}, s{sWo}, {inc}")
            else:
                L.append("  s_nop 0")
            L.append(f"  buffer_load_dwordx4 v{vWoff}, {sr(sW,4)}, s{sWo} offen lds")
            loadops.append(L)
        for qq in range(4):
            q = 4*st+qq
            L = [f"  buffer_load_dwordx4 {ar(4*q,4)}, v{vH}, {sr(sH,4)}, s{sHo} offen offset:{qq*1024}"]
            if qq == 3 and st < 7:
                L.append(f"  s_add_u32 s{sHo}, s{sHo}, 4096")
            loadops.append(L)
    state = dict(n=0, vm=0)
    mark = {}
    def emit_load():
        if state['n'] < 48:
            for x in loadops[state['n']]: A(x)
            state['n'] += 1; state['vm'] += 1
            if state['n'] % 6 == 0: mark[state['n']//6-1] = state['vm']
    def other_vm(line):
        A(line); state['vm'] += 1
        return state['vm']
    def wait_vm(idx):
        A(f"  s_waitcnt vmcnt({state['vm']-idx})")
    for _ in range(6): emit_load()
    srd(A, sACT, pWS, WS_ACT, SZ_ACT)
    srd(A, sWD, pWD, 0, 1792*512*2)
    srd(A, sCNT, pWS, WS_CNT, 4096)
    A(f"  v_bfe_u32 v{vt1}, v{vl}, 2, 2")
    A(f"  v_lshrrev_b32 v{vt2}, 5, v{vl}")
    A(f"  v_lshl_add_u32 v{vt2}, v{vt2}, 3, v{vt1}")
    A(f"  v_bfe_u32 v{vt3}, v{vl}, 4, 1")
    A(f"  v_lshlrev_b32 v{vt2}, 7, v{vt2}")
    A(f"  v_lshl_add_u32 v{vt2}, v{vt3}, 16, v{vt2}")
    A(f"  v_lshrrev_b32 v{vt1}, 1, v{vt1}")
    A(f"  v_lshl_or_b32 v{vt1}, v{vt3}, 1, v{vt1}")
    A(f"  v_and_b32 v{vt3}, 1, v{vl}")
    A(f"  v_lshl_add_u32 v{vt2}, v{vt3}, 4, v{vt2}")
    A(f"  v_bfe_u32 v{vt3}, v{vl}, 1, 1")
    A(f"  v_lshl_add_u32 v{vt2}, v{vt3}, 3, v{vt2}")
    for tau in range(4):
        A(f"  v_xor_b32 v{vt3}, {tau}, v{vt1}")
        A(f"  v_lshl_add_u32 v{vA+tau}, v{vt3}, 5, v{vt2}")
    A(f"  s_mul_i32 s{sT0}, s{sTB32}, 112")
    A(f"  s_lshr_b32 s{sT1}, s{sf0}, 4")
    A(f"  s_add_u32 s{sT0}, s{sT0}, s{sT1}")
    A(f"  s_lshl_b32 s{sT0}, s{sT0}, 10")
    A(f"  v_add_u32 v{vAct}, s{sT0}, v{vt0}")
    for st in range(1, AHEAD):
        A("  s_barrier")
        for _ in range(6): emit_load()
    vAE, vBE, vRo = vX+1, vX+2, vX+3
    A(f"  v_and_b32 v{vt1}, 3, v{vl}")
    A(f"  v_bfe_u32 v{vt2}, v{vl}, 2, 1")
    A(f"  v_lshl_add_u32 v{vt1}, v{vt2}, 3, v{vt1}")
    A(f"  v_bfe_u32 v{vt2}, v{vl}, 3, 1")
    A(f"  v_lshl_add_u32 v{vt1}, v{vt2}, 2, v{vt1}")
    A(f"  v_add_u32 v{vt1}, s{sf0}, v{vt1}")
    A(f"  v_bfe_u32 v{vt2}, v{vl}, 4, 1")
    A(f"  v_mul_u32_u24 v{vt2}, 1792, v{vt2}")
    A(f"  v_add_u32 v{vt1}, v{vt1}, v{vt2}")
    A(f"  v_lshlrev_b32 v{vAE}, 4, v{vt1}")
    A(f"  v_lshrrev_b32 v{vt2}, 5, v{vl}")
    A(f"  v_lshl_or_b32 v{vAE}, v{vt2}, 30, v{vAE}")
    A(f"  v_and_b32 v{vt1}, 31, v{vl}")
    A(f"  s_lshl_b32 s{sT0}, s{sTB32}, 5")
    A(f"  v_add_u32 v{vt1}, s{sT0}, v{vt1}")
    A(f"  v_lshlrev_b32 v{vRo}, 3, v{vt1}")
    A(f"  v_lshlrev_b32 v{vBE}, 4, v{vt1}")
    A(f"  v_lshl_or_b32 v{vBE}, v{vt2}, 30, v{vBE}")
    phase2_setup(A, locals())
    pre = phase2_preload_ops(locals())
    def dma_ok(p, q_done):
        if p < 4: return True
        st = (p-4)//2
        return st <= 5 and q_done >= 4*(st+2)-1
    def dma(q_done=None):
        if pre:
            p = NSLOT-len(pre)
            if q_done is not None and not dma_ok(p, q_done): return
            ops = pre.pop(0)
            for x in ops[:-1]: A(x)
            other_vm(ops[-1])
    def rd(q, tau):
        buf = q & 1
        return [f"  ds_read_b64_tr_b16 {vr(vAf+buf*16+tau*4+r*2,2)}, v{vA+tau} offset:{q*2048+r*512}" for r in range(2)]
    ST.stamp()
    def wait_stage(st):
        wait_vm(mark[st])
        A("  s_barrier")
    wait_stage(0)
    ST.stamp()
    for tau in range(4):
        for x in rd(0, tau): A(x)
    nout = 8
    slot = 0
    vFl = vX+4
    aE = 0
    for q in range(32):
        nxt = q+1 < 32
        if q == QFL:
            assert state['n'] == 48
            A(f"  s_and_b32 s{sT0}, s2, 7")
            A(f"  s_lshl_b32 s{sT0}, s{sT0}, 8")
            A(f"  s_add_u32 s{sT0}, s{sT0}, {8*256}")
            A(f"  s_cmp_eq_u32 s{sw}, 0")
            A(f"  s_cselect_b32 s{sT0}, s{sT0}, 0x4000")
            A(f"  v_mov_b32 v{vt1}, s{sT0}")
            fl_idx = other_vm(f"  buffer_load_dword v{vFl}, v{vt1}, {sr(sCNT,4)}, 0 offen sc1")
        if q == QCK:
            assert (q+1) % 4 == 0
            A(f"  s_cmp_lg_u32 s{sw}, 0")
            A(f"  s_cbranch_scc1 {name}_hok")
            wait_vm(fl_idx)
            A(f"  v_readfirstlane_b32 s{sT0}, v{vFl}")
            A(f"  s_mov_b32 s{sT1}, {SPIN}")
            A(f"{name}_hchk:")
            A(f"  s_cmp_ge_u32 s{sT0}, {NHELP}")
            A(f"  s_cbranch_scc1 {name}_hok")
            A("  s_sleep 2")
            A(f"  buffer_load_dword v{vFl}, v{vt1}, {sr(sCNT,4)}, 0 offen sc1")
            A("  s_waitcnt vmcnt(0)")
            A(f"  v_readfirstlane_b32 s{sT0}, v{vFl}")
            A(f"  s_sub_u32 s{sT1}, s{sT1}, 1")
            A(f"  s_cmp_lg_u32 s{sT1}, 0")
            A(f"  s_cbranch_scc1 {name}_hchk")
            A(f"{name}_hok:")
        if nxt and (q+1) % 4 == 0:
            st = (q+1)//4
            wait_stage(st)
            if st in (2,4,6): ST.stamp()
        if q == QCK:
            srd(A, sX, pWS, WS_AEXT, 2*1792*16)
            for tau in range(4):
                other_vm(f"  buffer_load_dwordx4 {ar(aE+4*tau,4)}, v{vAE}, {sr(sX,4)}, 0 offen offset:{256*tau} sc1")
            srd(A, sH, pWS, WS_BEXT, 2048*16)
            other_vm(f"  buffer_load_dwordx4 {ar(aE+16,4)}, v{vBE}, {sr(sH,4)}, 0 offen sc1")
            srd(A, sW, pWS, WS_RS, 2048*8)
            ext_idx = other_vm(f"  buffer_load_dwordx2 {vr(vRS,2)}, v{vRo}, {sr(sW,4)}, 0 offen sc1")
        if QPF > 0 and q == QPF:
            A(f"  s_lshr_b32 s{sT0}, s2, 3")
            A(f"  s_lshl_b32 s{sT0}, s{sT0}, 16")
            A(f"  v_lshlrev_b32 v{vt2}, 7, v0")
            other_vm(f"  buffer_load_dword v{vX}, v{vt2}, {sr(sWD,4)}, s{sT0} offen")
        buf = q & 1
        for tau in range(4):
            A(f"  s_waitcnt lgkmcnt({nout-2})")
            nout -= 2
            c = "0" if q == 0 else vr(vAcc+16*tau,16)
            A(f"  v_mfma_f32_32x32x16_bf16 {vr(vAcc+16*tau,16)}, {vr(vAf+buf*16+tau*4,4)}, {ar(4*q,4)}, {c}")
            if nxt:
                for x in rd(q+1, tau): A(x)
                nout += 2
            if slot % SPACE == SPACE-1:
                if state['n'] < 48: emit_load()
                elif q >= QDMA: dma(q)
            slot += 1
    wait_vm(ext_idx)
    for tau in range(4):
        A(f"  v_mfma_f32_32x32x16_bf16 {vr(vAcc+16*tau,16)}, {ar(aE+4*tau,4)}, {ar(aE+16,4)}, {vr(vAcc+16*tau,16)}")
    A("  s_barrier")
    ST.stamp()
    k1, sd2 = vRS, vRS+1
    for tau in range(4):
        g = vAcc+16*tau
        u = g+8
        E = vAf if (tau & 1) == 0 else vAf+16
        for r in range(8):
            A(f"  v_mul_f32 v{E+r}, v{k1}, v{g+r}")
        dma()
        for r in range(8):
            A(f"  v_exp_f32 v{E+r}, v{E+r}")
        dma()
        for r in range(8):
            A(f"  v_mul_f32 v{u+r}, v{g+r}, v{u+r}")
        dma()
        for r in range(8):
            A(f"  v_fma_f32 v{E+r}, v{E+r}, v{sd2}, v{sd2}")
        for r in range(8):
            A(f"  v_rcp_f32 v{E+r}, v{E+r}")
        dma()
        for r in range(8):
            A(f"  v_mul_f32 v{u+r}, v{u+r}, v{E+r}")
        for i in range(4):
            A(f"  v_cvt_pk_bf16_f32 v{E+8+i}, v{u+2*i}, v{u+2*i+1}")
        A(f"  buffer_store_dwordx4 {vr(E+8,4)}, v{vAct}, {sr(sACT,4)}, 0 offen offset:{tau*1024} sc1")
        dma()
    while pre: dma()
    A("  s_waitcnt vmcnt(0)")
    A("  s_barrier")
    ST.stamp()
    A(f"  s_cmp_lg_u32 s{sw}, 0")
    A(f"  s_cbranch_scc1 {name}_p2")
    A(f"  s_lshl_b32 s{sT0}, s{stb}, 8")
    A(f"  v_mov_b32 v{vt0}, s{sT0}")
    A(f"  v_mov_b32 v{vt1}, 1")
    A(f"  s_mov_b64 exec, 1")
    A(f"  buffer_atomic_add v{vt1}, v{vt0}, {sr(sCNT,4)}, 0 offen sc1")
    A(f"  s_mov_b64 exec, -1")
    A(f"  s_branch {name}_p2")
    A(f"{name}_helper:")
    gen_helper(A, locals())
    phase2_setup(A, locals())
    phase2_preload(A, locals())
    A("  s_waitcnt vmcnt(0)")
    A("  s_barrier")
    A(f"{name}_p2:")
    gen_phase2(A, locals())
    A(f"{name}_end:")
    ST.flush(2)
    A("  s_endpgm")
    return dict(name=name, grid=256, block=512, lds=LDS, nvgpr=256, accum=128)

P2 = dict(vWd=124, vA0=10, vB=3, vXO=4, vEXw=5, vEXr=9, vX1=112, vGB=116)
def phase2_setup(A, L):
    vl, vt0, vt1, vt2 = L['vl'], L['vt0'], L['vt1'], L['vt2']
    sT0, sT1, skq, stt, sdb, stb64, sDo, sLb, REG = (L[k] for k in "sT0 sT1 skq stt sdb stb64 sDo sLb REG".split())
    vWd = P2['vWd']
    A(f"  v_lshrrev_b32 v{vt0}, 3, v{vl}")
    A(f"  v_lshrrev_b32 v{vt1}, 1, v{vt0}")
    A(f"  v_lshrrev_b32 v{vt2}, 2, v{vl}")
    A(f"  v_xor_b32 v{vt1}, v{vt1}, v{vt2}")
    A(f"  v_and_b32 v{vt1}, 1, v{vt1}")
    A(f"  v_lshlrev_b32 v{vt1}, 6, v{vt1}")
    A(f"  v_and_b32 v{vt2}, 3, v{vl}")
    A(f"  v_lshl_add_u32 v{vt1}, v{vt2}, 4, v{vt1}")
    A(f"  v_lshl_add_u32 v{vWd}, v{vt0}, 10, v{vt1}")
    A(f"  s_mul_i32 s{sDo}, s{skq}, {28*16*1024}")
    A(f"  s_lshl_b32 s{sT0}, s{stt}, 13")
    A(f"  s_add_u32 s{sDo}, s{sDo}, s{sT0}")
    A(f"  s_lshl_b32 s{sT0}, s{sdb}, 7")
    A(f"  s_add_u32 s{sDo}, s{sDo}, s{sT0}")
    A(f"  s_lshl_b32 s{sLb}, s{skq}, 11")
    A(f"  s_lshl_b32 s{sT0}, s{stt}, 10")
    A(f"  s_add_u32 s{sLb}, s{sLb}, s{sT0}")

def phase2_preload_ops(L):
    NSLOT, sLb, sDo, sWD = L['NSLOT'], L['sLb'], L['sDo'], L['sWD']
    ops = []
    for p in range(NSLOT):
        o = [f"  s_add_u32 m0, s{sLb}, {UNIT[p]}"]
        o.append(f"  s_add_u32 s{sDo}, s{sDo}, 16384" if p else "  s_nop 0")
        o.append(f"  buffer_load_dwordx4 v{P2['vWd']}, {sr(sWD,4)}, s{sDo} offen lds")
        ops.append(o)
    return ops
def phase2_preload(A, L):
    for o in phase2_preload_ops(L):
        for x in o: A(x)

def bf16_split(A, x, hi, lo, tmp):
    A(f"  v_cvt_pk_bf16_f32 v{hi}, v{x}, v{x}")
    A(f"  v_lshlrev_b32 v{tmp}, 16, v{hi}")
    A(f"  v_sub_f32 v{tmp}, v{x}, v{tmp}")
    A(f"  v_cvt_pk_bf16_f32 v{lo}, v{tmp}, v{tmp}")
    A(f"  v_and_b32 v{hi}, 0xffff, v{hi}")
    A(f"  v_and_b32 v{lo}, 0xffff, v{lo}")

def lane0_atomic_inc(A, name, sCNT, idx_bytes, vt0, vt1):
    A(f"  v_mov_b32 v{vt0}, {idx_bytes}")
    A(f"  v_mov_b32 v{vt1}, 1")
    A(f"  s_mov_b64 exec, 1")
    A(f"  buffer_atomic_add v{vt1}, v{vt0}, {sr(sCNT,4)}, 0 offen sc1")
    A(f"  s_mov_b64 exec, -1")

def gen_helper(A, L):
    name = L['name']
    vl, vt0, vt1, vt2, vt3 = L['vl'], L['vt0'], L['vt1'], L['vt2'], L['vt3']
    sw, sm, skq, sT0, sT1, sT2, sT3 = (L[k] for k in "sw sm skq sT0 sT1 sT2 sT3".split())
    sW, sH, sX, sWD, sCNT, sACT, pWS, pWD = (L[k] for k in "sW sH sX sWD sCNT sACT pWS pWD".split())
    sh = 57
    RED, RED2 = 131072, 133120
    vXs = 16
    vWl = 48
    vMc = 112
    A(f"  s_sub_u32 s{sh}, s2, 224")
    A("  s_waitcnt lgkmcnt(0)")
    srd(A, sH, pWS, WS_X1, SZ2M)
    srd(A, sWD, pWD, 0, 1792*512*2)
    srd(A, sCNT, pWS, WS_CNT, 4096)
    A(f"  s_cmp_eq_u32 s{sm}, 0")
    A(f"  s_cselect_b32 s{sW}, s4, s6")
    A(f"  s_cselect_b32 s{sW+1}, s5, s7")
    A(f"  s_mov_b32 s{sW+2}, {512*1792*2}")
    A(f"  s_mov_b32 s{sW+3}, 0x20000")
    A(f"  s_lshl_b32 s{sT0}, s{sh}, 1")
    A(f"  s_add_u32 s{sT0}, s{sT0}, s{sm}")
    A(f"  s_lshl_b32 s{sT0}, s{sT0}, 15")
    A(f"  s_lshl_b32 s{sT1}, s{skq}, 13")
    A(f"  s_add_u32 s{sT0}, s{sT0}, s{sT1}")
    A(f"  v_lshlrev_b32 v{vt0}, 4, v{vl}")
    for i in range(8):
        if i == 4: A(f"  s_add_u32 s{sT0}, s{sT0}, 4096")
        A(f"  buffer_load_dwordx4 {vr(vXs+4*i,4)}, v{vt0}, {sr(sH,4)}, s{sT0} offen offset:{(i&3)*1024}")
    vBo, vW0, vW1 = 9, 10, 11
    vAh = 112
    srd(A, sX, pWS, WS_MODH, 3072*2)
    A(f"  v_and_b32 v{vt1}, 31, v{vl}")
    A(f"  v_lshrrev_b32 v{vt2}, 5, v{vl}")
    A(f"  v_lshlrev_b32 v{vBo}, 4, v{vt2}")
    A(f"  v_lshlrev_b32 v{vt2}, 10, v{vt1}")
    A(f"  v_sub_u32 v{vt2}, 4096, v{vt2}")
    A(f"  v_add_u32 v{vBo}, v{vBo}, v{vt2}")
    A(f"  v_cmp_lt_u32 vcc, 1, v{vt1}")
    A(f"  v_mov_b32 v{vt2}, 0x40000000")
    A(f"  s_lshl_b32 s{sT0}, s{sw}, 7")
    A(f"  v_cndmask_b32 v{vBo}, v{vBo}, v{vt2}, vcc")
    for qq in range(4):
        A(f"  buffer_load_dwordx4 {ar(4*qq,4)}, v{vBo}, {sr(sX,4)}, s{sT0} offen offset:{32*qq}")
    A(f"  v_lshrrev_b32 v{vt0}, 3, v{vl}")
    A(f"  v_bfe_u32 v{vt1}, v{vl}, 4, 1")
    A(f"  v_bfe_u32 v{vt2}, v{vl}, 1, 2")
    A(f"  v_xor_b32 v{vt1}, v{vt1}, v{vt2}")
    A(f"  v_and_b32 v{vt2}, 1, v{vl}")
    A(f"  v_lshlrev_b32 v{vt2}, 4, v{vt2}")
    A(f"  s_movk_i32 s{sT1}, 3584")
    A(f"  v_mad_u32_u24 v{vt0}, v{vt0}, s{sT1}, v{vt2}")
    A(f"  v_lshl_add_u32 v{vW0}, v{vt1}, 5, v{vt0}")
    A(f"  v_xor_b32 v{vt1}, 2, v{vt1}")
    A(f"  v_lshl_add_u32 v{vW1}, v{vt1}, 5, v{vt0}")
    A(f"  s_and_b32 s{sT1}, s{sh}, 1")
    A(f"  s_lshl_b32 s{sT1}, s{sT1}, 2")
    A(f"  s_lshr_b32 s{sT2}, s{sh}, 3")
    A(f"  s_add_u32 s60, s{sT1}, s{sT2}")
    A(f"  s_bfe_u32 s{sT1}, s{sh}, 0x20001")
    A(f"  s_mul_i32 s{sT1}, s{sT1}, 7")
    A(f"  s_min_u32 s{sT2}, s60, 6")
    A(f"  s_add_u32 s61, s{sT1}, s{sT2}")
    A(f"  s_lshl_b32 s{sT2}, s61, 7")
    A(f"  s_mul_i32 s{sT1}, s{sw}, {64*3584}")
    A(f"  s_add_u32 s{sT2}, s{sT2}, s{sT1}")
    A(f"  s_lshl_b32 s{sT3}, s{sw}, 13")
    srd(A, sW, 4, 0, 512*1792*2)
    srd(A, sACT, 6, 0, 512*1792*2)
    for ii in range(8):
        A(f"  s_add_u32 m0, s{sT3}, {ii*1024}")
        A("  s_nop 0")
        A(f"  buffer_load_dwordx4 v{vW0}, {sr(sW,4)}, s{sT2} offen lds")
        A(f"  s_add_u32 m0, s{sT3}, {65536+ii*1024}")
        A("  s_nop 0")
        A(f"  buffer_load_dwordx4 v{vW1}, {sr(sACT,4)}, s{sT2} offen lds")
        if ii < 7: A(f"  s_add_u32 s{sT2}, s{sT2}, {8*3584}")
    A(f"  v_bfe_u32 v{vt1}, v{vl}, 2, 2")
    A(f"  v_lshrrev_b32 v{vt2}, 5, v{vl}")
    A(f"  v_lshl_add_u32 v{vt2}, v{vt2}, 3, v{vt1}")
    A(f"  v_bfe_u32 v{vt3}, v{vl}, 4, 1")
    A(f"  v_lshlrev_b32 v{vt2}, 7, v{vt2}")
    A(f"  v_lshl_add_u32 v{vt2}, v{vt3}, 16, v{vt2}")
    A(f"  v_lshrrev_b32 v{vt1}, 1, v{vt1}")
    A(f"  v_lshl_or_b32 v{vt1}, v{vt3}, 1, v{vt1}")
    A(f"  v_and_b32 v{vt3}, 1, v{vl}")
    A(f"  v_lshl_add_u32 v{vt2}, v{vt3}, 4, v{vt2}")
    A(f"  v_bfe_u32 v{vt3}, v{vl}, 1, 1")
    A(f"  v_lshl_add_u32 v{vt2}, v{vt3}, 3, v{vt2}")
    A(f"  v_add_u32 v{vt2}, s{sT3}, v{vt2}")
    for tau in range(4):
        A(f"  v_xor_b32 v{vt3}, {tau}, v{vt1}")
        A(f"  v_lshl_add_u32 v{vAh+tau}, v{vt3}, 5, v{vt2}")
    s1, s2 = 12, 13
    pa, pb, xx = 48, 50, 52
    for r in (pa, pa+1, pb, pb+1): A(f"  v_mov_b32 v{r}, 0")
    A(f"  s_waitcnt vmcnt({4+16})")
    L['ST'].stamp()
    for i in range(32):
        t = xx + 2*(i & 1)
        A(f"  v_lshlrev_b32 v{t}, 16, v{vXs+i}")
        A(f"  v_and_b32 v{t+1}, 0xffff0000, v{vXs+i}")
        A(f"  v_pk_add_f32 {vr(pa,2)}, {vr(pa,2)}, {vr(t,2)}")
        A(f"  v_pk_fma_f32 {vr(pb,2)}, {vr(t,2)}, {vr(t,2)}, {vr(pb,2)}")
    A(f"  v_add_f32 v{s1}, v{pa}, v{pa+1}")
    A(f"  v_add_f32 v{s2}, v{pb}, v{pb+1}")
    A("  s_nop 1")
    A(f"  v_permlane32_swap_b32 v{s1}, v{s2}")
    A("  s_nop 1")
    A(f"  v_add_f32 v{s1}, v{s1}, v{s2}")
    A(f"  s_lshl_b32 s{sT0}, s{sm}, 2")
    A(f"  s_add_u32 s{sT0}, s{sT0}, s{skq}")
    A(f"  s_lshl_b32 s{sT0}, s{sT0}, 8")
    A(f"  s_add_u32 s{sT0}, s{sT0}, {RED}")
    A(f"  v_lshlrev_b32 v{vt0}, 2, v{vl}")
    A(f"  v_add_u32 v{vt0}, s{sT0}, v{vt0}")
    A(f"  ds_write_b32 v{vt0}, v{s1} offset:0")
    vAf, vAcc = 16, 48
    A("  s_waitcnt vmcnt(0)")
    L['ST'].stamp()
    def hrd(qq):
        for tau in range(4):
            for r in range(2):
                A(f"  ds_read_b64_tr_b16 {vr(vAf+16*(qq&1)+tau*4+r*2,2)}, v{vAh+tau} offset:{qq*2048+r*512}")
    hrd(0)
    for qq in range(4):
        if qq < 3:
            hrd(qq+1)
            A("  s_waitcnt lgkmcnt(8)")
        else:
            A("  s_waitcnt lgkmcnt(0)")
        for tau in range(4):
            c = "0" if qq == 0 else vr(vAcc+16*tau,16)
            A(f"  v_mfma_f32_32x32x16_bf16 {vr(vAcc+16*tau,16)}, {ar(4*qq,4)}, {vr(vAf+16*(qq&1)+tau*4,4)}, {c}")
    L['ST'].stamp()
    A(f"  s_lshl_b32 s{sT0}, s{sw}, 10")
    A(f"  s_add_u32 s{sT0}, s{sT0}, {RED2}")
    A(f"  v_lshlrev_b32 v{vt0}, 3, v{vl}")
    A(f"  v_add_u32 v{vt0}, s{sT0}, v{vt0}")
    A(f"  s_mov_b32 s58, -1")
    A(f"  s_mov_b32 s59, 0")
    A("  s_nop 7")
    A(f"  s_mov_b64 exec, s[58:59]")
    for tau in range(4):
        A(f"  ds_write_b64 v{vt0}, {vr(vAcc+16*tau,2)} offset:{tau*256}")
    A(f"  s_mov_b64 exec, -1")
    A("  s_waitcnt lgkmcnt(0)")
    A("  s_barrier")
    L['ST'].stamp()
    U = 16
    A(f"  s_cmp_eq_u32 s{sw}, 0")
    A(f"  s_cbranch_scc1 {name}_hstat")
    A(f"  s_cmp_eq_u32 s{skq}, 1")
    A(f"  s_cbranch_scc0 {name}_hdone")
    A(f"  s_lshl_b32 s{sT0}, s{sm}, 9")
    A(f"  s_add_u32 s{sT0}, s{sT0}, {RED2}")
    A(f"  v_lshlrev_b32 v{vt0}, 3, v{vl}")
    A(f"  v_add_u32 v{vt0}, s{sT0}, v{vt0}")
    R = 48
    for w8 in range(8):
        A(f"  ds_read_b64 {vr(R+2*w8,2)}, v{vt0} offset:{w8*1024}")
    A("  s_waitcnt lgkmcnt(0)")
    for k in range(1,8):
        A(f"  v_add_f32 v{R}, v{R}, v{R+2*k}")
        A(f"  v_add_f32 v{R+1}, v{R+1}, v{R+2*k+1}")
    A(f"  v_mov_b32 v{U}, v{R}")
    A(f"  v_mov_b32 v{U+4}, v{R+1}")
    bf16_split(A, U, U+8, U+9, U+10)
    bf16_split(A, U+4, U+11, U+12, U+10)
    O = U+16
    A(f"  v_lshl_or_b32 v{O}, v{U+8}, 16, v{U+8}")
    A(f"  v_mov_b32 v{O+1}, v{U+9}")
    A(f"  v_lshl_or_b32 v{O+2}, v{U+11}, 16, v{U+11}")
    A(f"  v_mov_b32 v{O+3}, v{U+12}")
    srd(A, sX, pWS, WS_AEXT, 2*1792*16)
    A(f"  s_cmp_ge_u32 s60, 7")
    A(f"  s_cbranch_scc1 {name}_hdone")
    A(f"  v_and_b32 v{vt1}, 3, v{vl}")
    A(f"  v_bfe_u32 v{vt2}, v{vl}, 2, 1")
    A(f"  v_lshl_add_u32 v{vt1}, v{vt2}, 3, v{vt1}")
    A(f"  v_bfe_u32 v{vt2}, v{vl}, 3, 1")
    A(f"  v_lshl_add_u32 v{vt1}, v{vt2}, 2, v{vt1}")
    A(f"  v_lshrrev_b32 v{vt2}, 5, v{vl}")
    A(f"  v_lshl_add_u32 v{vt1}, v{vt2}, 4, v{vt1}")
    A(f"  v_bfe_u32 v{vt2}, v{vl}, 4, 1")
    A(f"  v_mul_u32_u24 v{vt2}, 1792, v{vt2}")
    A(f"  v_add_u32 v{vt1}, v{vt1}, v{vt2}")
    A(f"  s_lshl_b32 s{sT0}, s{sm}, 5")
    A(f"  s_lshl_b32 s{sT1}, s61, 6")
    A(f"  s_add_u32 s{sT0}, s{sT0}, s{sT1}")
    A(f"  s_lshl_b32 s{sT0}, s{sT0}, 4")
    A(f"  v_lshlrev_b32 v{vt0}, 4, v{vt1}")
    A(f"  buffer_store_dwordx4 {vr(O,4)}, v{vt0}, {sr(sX,4)}, s{sT0} offen sc1")
    A(f"  s_branch {name}_hdone")
    A(f"{name}_hstat:")
    A(f"  v_lshrrev_b32 v{vt0}, 5, v{vl}")
    A(f"  v_lshlrev_b32 v{vt0}, 10, v{vt0}")
    A(f"  v_and_b32 v{vt1}, 31, v{vl}")
    A(f"  v_lshl_add_u32 v{vt0}, v{vt1}, 2, v{vt0}")
    A(f"  v_add_u32 v{vt0}, {RED}, v{vt0}")
    for p in range(4):
        A(f"  ds_read_b32 v{U+p}, v{vt0} offset:{p*256}")
        A(f"  ds_read_b32 v{U+4+p}, v{vt0} offset:{p*256+128}")
    A("  s_waitcnt lgkmcnt(0)")
    for b in (U, U+4):
        A(f"  v_add_f32 v{b}, v{b}, v{b+1}")
        A(f"  v_add_f32 v{b+2}, v{b+2}, v{b+3}")
        A(f"  v_add_f32 v{b}, v{b}, v{b+2}")
    A(f"  s_mov_b32 s{sT0}, 0x3b000000")
    A(f"  s_mov_b32 s{sT1}, 0x3727c5ac")
    A(f"  v_mul_f32 v{U}, s{sT0}, v{U}")
    A(f"  v_mul_f32 v{U+4}, s{sT0}, v{U+4}")
    A(f"  v_fma_f32 v{U+4}, -v{U}, v{U}, v{U+4}")
    A(f"  v_max_f32 v{U+4}, 0, v{U+4}")
    A(f"  v_add_f32 v{U+4}, s{sT1}, v{U+4}")
    A(f"  v_sqrt_f32 v{U+5}, v{U+4}")
    A(f"  v_rsq_f32 v{U+6}, v{U+4}")
    A(f"  v_sub_f32 v{U}, 0, v{U}")
    A(f"  s_mov_b32 s{sT0}, 0xbfb8aa3b")
    A(f"  v_mul_f32 v{U+2}, s{sT0}, v{U+6}")
    A(f"  v_mov_b32 v{U+3}, v{U+4}")
    bf16_split(A, U, U+8, U+9, U+10)
    bf16_split(A, U+5, U+11, U+12, U+10)
    O = U+16
    A(f"  v_lshl_or_b32 v{O}, v{U+9}, 16, v{U+8}")
    A(f"  v_mov_b32 v{O+1}, v{U+8}")
    A(f"  v_lshl_or_b32 v{O+2}, v{U+12}, 16, v{U+11}")
    A(f"  v_mov_b32 v{O+3}, v{U+11}")
    srd(A, sX, pWS, WS_BEXT, 2048*16)
    srd(A, sH, pWS, WS_RS, 2048*8)
    A(f"  s_lshl_b32 s{sT0}, s{sh}, 10")
    A(f"  v_lshlrev_b32 v{vt0}, 4, v{vl}")
    A(f"  buffer_store_dwordx4 {vr(O,4)}, v{vt0}, {sr(sX,4)}, s{sT0} offen sc1")
    A(f"  s_lshl_b32 s{sT0}, s{sh}, 9")
    A(f"  v_lshlrev_b32 v{vt0}, 3, v{vl}")
    A(f"  buffer_store_dwordx2 {vr(U+2,2)}, v{vt0}, {sr(sH,4)}, s{sT0} offen sc1")
    A(f"{name}_hdone:")
    L['ST'].stamp()
    A("  s_waitcnt vmcnt(0)")
    A("  s_barrier")
    A(f"  s_cmp_lg_u32 s{sw}, 0")
    A(f"  s_cbranch_scc1 {name}_hsig")
    A(f"  v_lshlrev_b32 v{vt0}, 8, v{vl}")
    A(f"  v_add_u32 v{vt0}, {8*256}, v{vt0}")
    A(f"  v_mov_b32 v{vt1}, 1")
    A(f"  s_mov_b64 exec, 0xff")
    A(f"  buffer_atomic_add v{vt1}, v{vt0}, {sr(sCNT,4)}, 0 offen sc1")
    A(f"  s_mov_b64 exec, -1")
    A(f"{name}_hsig:")
    if L['QPF'] == 0:
        A(f"  s_lshr_b32 s{sT0}, s{sh}, 3")
        A(f"  s_mul_i32 s{sT0}, s{sT0}, 458752")
        A(f"  v_lshlrev_b32 v{vt0}, 7, v0")
        for i in range(7):
            A(f"  buffer_load_dword v{16+i}, v{vt0}, {sr(sWD,4)}, s{sT0} offen")
            if i < 6: A(f"  s_add_u32 s{sT0}, s{sT0}, 65536")

def gen_phase2(A, L):
    name, ST, NSLOT, SPIN, REG = L['name'], L['ST'], L['NSLOT'], L['SPIN'], L['REG']
    vl, vt0, vt1, vt2 = L['vl'], L['vt0'], L['vt1'], L['vt2']
    sw, skq, stt, sdb, stb64, sT0, sT1, sT2, sLb, sDo = (L[k] for k in "sw skq stt sdb stb64 sT0 sT1 sT2 sLb sDo".split())
    sW, sH, sX, sWD, sCNT, sACT, pWS, pOUT = (L[k] for k in "sW sH sX sWD sCNT sACT pWS pOUT".split())
    vWd, vA0, vB, vXO, vEXw, vEXr, vX1, vGB = (P2[k] for k in "vWd vA0 vB vXO vEXw vEXr vX1 vGB".split())
    vt0, vt1, vt2 = 6, 7, 8
    vAf, vAcc = 16, 48
    A(f"  v_lshrrev_b32 v{vt0}, 5, v{vl}")
    A(f"  v_lshlrev_b32 v{vt0}, 3, v{vt0}")
    A(f"  v_bfe_u32 v{vt1}, v{vl}, 2, 2")
    A(f"  v_add_u32 v{vt0}, v{vt0}, v{vt1}")
    A(f"  v_lshlrev_b32 v{vA0}, 7, v{vt0}")
    A(f"  v_lshrrev_b32 v{vt1}, 1, v{vt1}")
    A(f"  v_lshlrev_b32 v{vt1}, 6, v{vt1}")
    A(f"  v_and_b32 v{vt0}, 1, v{vl}")
    A(f"  v_lshlrev_b32 v{vt0}, 5, v{vt0}")
    A(f"  v_bfe_u32 v{vt2}, v{vl}, 1, 1")
    A(f"  v_lshl_add_u32 v{vt0}, v{vt2}, 3, v{vt0}")
    A(f"  v_bfe_u32 v{vt2}, v{vl}, 4, 1")
    A(f"  v_lshl_add_u32 v{vt0}, v{vt2}, 4, v{vt0}")
    A(f"  v_add_u32 v{vA0}, v{vA0}, v{vt0}")
    A(f"  s_lshl_b32 s{sT0}, s{skq}, 11")
    A(f"  v_add_u32 v{vA0}, s{sT0}, v{vA0}")
    A(f"  v_xor_b32 v{vt2}, 64, v{vt1}")
    A(f"  v_add_u32 v{vA0+1}, v{vA0}, v{vt2}")
    A(f"  v_add_u32 v{vA0}, v{vA0}, v{vt1}")
    for blk in (1, 2):
        for tau in range(2):
            A(f"  v_add_u32 v{vA0+2*blk+tau}, {65536*blk}, v{vA0+tau}")
    def trd(dst, p, tau, r, agpr=False):
        u = UNIT[p]
        reg = (ar if agpr else vr)(dst, 2)
        return f"  ds_read_b64_tr_b16 {reg}, v{vA0+2*(u>>16)+tau} offset:{(u & 0xffff)+r*512}"
    NREG = 28-NSLOT
    STG = [(32,False),(40,False),(80,False),(88,False),(96,False),(104,False),(112,True),(120,True)]
    for kk in range(NREG):
        base, ag = STG[kk]
        for tau in range(2):
            for r in range(2):
                A(trd(base+4*tau+2*r, kk, tau, r, ag))
        if kk % 3 == 2: A("  s_waitcnt lgkmcnt(4)")
    A("  s_waitcnt lgkmcnt(0)")
    A("  s_barrier")
    for p in range(NREG):
        A(f"  s_add_u32 m0, s{sLb}, {UNIT[p]}")
        A(f"  s_add_u32 s{sDo}, s{sDo}, 16384")
        A(f"  buffer_load_dwordx4 v{vWd}, {sr(sWD,4)}, s{sDo} offen lds")
    A(f"  s_lshl_b32 s{sT0}, s{stb64}, 1")
    A(f"  s_add_u32 s{sT2}, s{sT0}, s{stt}")
    A(f"  s_mul_i32 s{sT0}, s{sT2}, 112")
    A(f"  s_mul_i32 s{sT1}, s{skq}, 28")
    A(f"  s_add_u32 s{sT0}, s{sT0}, s{sT1}")
    A(f"  s_lshl_b32 s{sT0}, s{sT0}, 10")
    A(f"  v_lshlrev_b32 v{vt0}, 4, v{vl}")
    A(f"  v_add_u32 v{vB}, s{sT0}, v{vt0}")
    A(f"  s_lshl_b32 s{sT0}, s{stt}, 15")
    A(f"  s_lshl_b32 s{sT1}, s{skq}, 11")
    A(f"  s_add_u32 s{sT1}, s{sT1}, s{sT0}")
    A(f"  v_add_u32 v{vEXw}, s{sT1}, v{vt0}")
    A(f"  s_lshl_b32 s{sT1}, s{skq}, 13")
    A(f"  s_add_u32 s{sT1}, s{sT1}, s{sT0}")
    A(f"  v_add_u32 v{vEXr}, s{sT1}, v{vt0}")
    A(f"  s_lshr_b32 s{sT0}, s{skq}, 1")
    A(f"  s_lshl_b32 s{sT0}, s{sT0}, 5")
    A(f"  s_and_b32 s{sT1}, s{skq}, 1")
    A(f"  s_lshl_b32 s{sT1}, s{sT1}, 3")
    A(f"  s_add_u32 s{sT0}, s{sT0}, s{sT1}")
    A(f"  s_lshl_b32 s{sT1}, s{sdb}, 6")
    A(f"  s_add_u32 s{sT0}, s{sT0}, s{sT1}")
    A(f"  v_lshrrev_b32 v{vt1}, 5, v{vl}")
    A(f"  v_lshlrev_b32 v{vt1}, 4, v{vt1}")
    A(f"  v_add_u32 v{vt1}, s{sT0}, v{vt1}")
    A(f"  v_and_b32 v{vt0}, 31, v{vl}")
    A(f"  s_lshl_b32 s{sT1}, s{sT2}, 15")
    A(f"  v_lshrrev_b32 v{vt2}, 4, v{vt1}")
    A(f"  v_lshlrev_b32 v{vt2}, 10, v{vt2}")
    A(f"  v_lshl_add_u32 v{vt2}, v{vt0}, 4, v{vt2}")
    A(f"  v_bfe_u32 v{vXO}, v{vt1}, 3, 1")
    A(f"  v_lshl_add_u32 v{vt2}, v{vXO}, 9, v{vt2}")
    srd(A, sH, pWS, WS_X1, SZ2M)
    A(f"  buffer_load_dwordx4 {vr(vX1,4)}, v{vt2}, {sr(sH,4)}, s{sT1} offen")
    srd(A, sX, pWS, WS_MOD + 5*2048, 2048)
    A(f"  v_lshlrev_b32 v{vt2}, 2, v{vt1}")
    A(f"  buffer_load_dwordx4 {vr(vGB,4)}, v{vt2}, {sr(sX,4)}, 0 offen")
    A(f"  buffer_load_dwordx4 {vr(vGB+4,4)}, v{vt2}, {sr(sX,4)}, 0 offen offset:16")
    A(f"  s_lshl_b32 s{sT1}, s{sT2}, 15")
    A(f"  v_lshlrev_b32 v{vXO}, 10, v{vt0}")
    A(f"  v_lshl_add_u32 v{vXO}, v{vt1}, 1, v{vXO}")
    A(f"  v_add_u32 v{vXO}, s{sT1}, v{vXO}")
    srd(A, sACT, pWS, WS_ACT, SZ_ACT)
    srd(A, sW, pOUT, 0, SZ2M)
    A(f"  s_cmp_lg_u32 s{sw}, 0")
    A(f"  s_cbranch_scc1 {name}_s3w")
    A(f"  s_lshr_b32 s{sT0}, s{stb64}, 2")
    A(f"  s_lshl_b32 s{sT0}, s{sT0}, 8")
    A(f"  v_mov_b32 v{vt0}, s{sT0}")
    A(f"  s_mov_b32 s{sT1}, {SPIN}")
    A(f"{name}_s3:")
    A(f"  buffer_load_dword v{vt1}, v{vt0}, {sr(sCNT,4)}, 0 offen sc1")
    A("  s_waitcnt vmcnt(0)")
    A(f"  v_readfirstlane_b32 s{sT0}, v{vt1}")
    A(f"  s_cmp_ge_u32 s{sT0}, 28")
    A(f"  s_cbranch_scc1 {name}_s3w")
    A(f"  s_sub_u32 s{sT1}, s{sT1}, 1")
    A(f"  s_cmp_lg_u32 s{sT1}, 0")
    A(f"  s_cbranch_scc1 {name}_s3")
    A(f"{name}_s3w:")
    A("  s_waitcnt vmcnt(0)")
    A("  s_barrier")
    ST.stamp()
    A(f"  s_mov_b32 s{sT0}, 0")
    vm = dict(n=0)
    bidx = {}
    def bload():
        kk = len(bidx)
        if kk >= 28: return
        A(f"  buffer_load_dwordx4 {ar(4*kk,4)}, v{vB}, {sr(sACT,4)}, s{sT0} offen offset:{(kk&3)*1024} sc1")
        if (kk & 3) == 3: A(f"  s_add_u32 s{sT0}, s{sT0}, 4096")
        vm['n'] += 1
        bidx[kk] = vm['n']
    def rd(kk):
        if kk < NREG: return []
        slot = kk % NSLOT
        buf = kk & 1
        return [trd(vAf+buf*8+tau*4+r*2, slot, tau, r) for tau in range(2) for r in range(2)]
    B0 = L['B0']; BR = L['BR']
    for _ in range(B0): bload()
    for kk in range(28):
        nx = rd(kk+1) if kk+1 < 28 else []
        for x in nx: A(x)
        assert kk in bidx, kk
        A(f"  s_waitcnt vmcnt({vm['n']-bidx[kk]})")
        if kk >= NREG:
            A(f"  s_waitcnt lgkmcnt({len(nx)})")
        buf = kk & 1
        for tau in range(2):
            c = "0" if kk == 0 else vr(vAcc+16*tau,16)
            if kk < NREG:
                base, ag = STG[kk]
                aop = (ar if ag else vr)(base+4*tau, 4)
            else:
                aop = vr(vAf+buf*8+tau*4,4)
            A(f"  v_mfma_f32_32x32x16_bf16 {vr(vAcc+16*tau,16)}, {aop}, {ar(4*kk,4)}, {c}")
            if tau < BR: bload()
    ST.stamp()
    A("  s_nop 7")
    A("  s_barrier")
    A("  s_nop 3")
    for o in range(4):
        for a in range(2):
            A(f"  ds_write_b128 v{vEXw}, {vr(vAcc+16*(o>>1)+8*(o&1)+4*a,4)} offset:{o*8192+a*1024}")
    A("  s_waitcnt lgkmcnt(0)")
    A("  s_barrier")
    vT = 16
    for s in range(4):
        for a in range(2):
            A(f"  ds_read_b128 {vr(vT+8*s+4*a,4)}, v{vEXr} offset:{s*2048+a*1024}")
    vU = 80
    for i in range(4):
        A(f"  v_lshlrev_b32 v{vU+2*i}, 16, v{vX1+i}")
        A(f"  v_and_b32 v{vU+2*i+1}, 0xffff0000, v{vX1+i}")
    A("  s_waitcnt lgkmcnt(4)")
    for r in range(8):
        A(f"  v_add_f32 v{vT+r}, v{vT+r}, v{vT+8+r}")
    A("  s_waitcnt lgkmcnt(0)")
    for r in range(8):
        A(f"  v_add_f32 v{vT+16+r}, v{vT+16+r}, v{vT+24+r}")
    for r in range(8):
        A(f"  v_add_f32 v{vT+r}, v{vT+r}, v{vT+16+r}")
    for r in range(8):
        A(f"  v_fma_f32 v{vT+r}, v{vT+r}, v{vGB+r}, v{vU+r}")
    for i in range(4):
        A(f"  v_cvt_pk_bf16_f32 v{vU+i}, v{vT+2*i}, v{vT+2*i+1}")
    A(f"  buffer_store_dwordx4 {vr(vU,4)}, v{vXO}, {sr(sW,4)}, 0 offen")
```

```python
from common import *
def poll_ge(A, name, srd, vaddr, vregs, target, sA, sB, SPIN, sleep=2):
    n = len(vregs)
    for i in range(n-1):
        A(f"  buffer_load_dword v{vregs[i]}, v{vaddr}, {sr(srd,4)}, 0 offen sc1")
        A(f"  s_sleep {sleep}")
    A(f"  s_mov_b32 s{sB}, {SPIN//n}")
    A(f"{name}_lp:")
    for i in range(n):
        A(f"  buffer_load_dword v{vregs[(i+n-1)%n]}, v{vaddr}, {sr(srd,4)}, 0 offen sc1")
        A(f"  s_waitcnt vmcnt({n-1})")
        A(f"  v_readfirstlane_b32 s{sA}, v{vregs[i]}")
        A(f"  s_nop 0")
        A(f"  s_cmp_ge_u32 s{sA}, {target}")
        A(f"  s_cbranch_scc1 {name}_ok")
        A(f"  s_sleep {sleep}")
    A(f"  s_sub_u32 s{sB}, s{sB}, 1")
    A(f"  s_cmp_lg_u32 s{sB}, 0")
    A(f"  s_cbranch_scc1 {name}_lp")
    A(f"{name}_ok:")
```

```python
import sys, os
from common import *
import common
import gen as G
from ka2 import gen_ka2
from kb import gen_kb
E = G.E
def lst():
    return [lambda A: gen_ka2(A, kidx=0, PREFETCH=E("PF_GU", 1), PSLEEP=E("PSLEEP", 1), ORD=E("ORD", 1), TOUCH=E("TOUCH", 0)),
            lambda A: gen_kb(A, kidx=1, AHEAD=E("AHEAD", 2), SPACE=E("SPACE", 2), NSLOT=20, B0=E("B0", 6), BR=E("BR", 1), QFL=E("QFL", 20), QCK=E("QCK", 23), QPF=E("QPF", 27), QDMA=E("QDMA", 18), PSLEEP=E("PSLEEP3", 1), ALLST=E("ALLST", 0), STAG=E("STAG", 0), NIN=E("NIN", 16), DSP=E("DSP", 2), NPOST=E("NPOST", 4), NEPI=E("NEPI", 16), W2=E("W2", 0), PRIO=E("PRIO", 0))]
if __name__ == "__main__":
    if os.environ.get("STAMPS"): common.STAMPS = True
    dst = sys.argv[1] if len(sys.argv) > 1 else 'adaLN_cond__ssm_conv_h3__swiglu_ffn__prompt.s'
    txt = G.build(lst())
    open(dst, 'w').write(txt)
    print("wrote", dst, len(txt), "bytes")
```

```python
from common import *
from poll import poll_ge

NHELP = 32
UNIT = [131072 + 8192*p for p in range(4)] + [m*65536 + 8192*st for st in range(8) for m in range(2)]
def gen_kb(A, name="ffn_kernel", kidx=3, AHEAD=2, SPACE=2, NSLOT=20, SPIN=200000, B0=10, BR=2, QFL=24, QCK=27, EARLY=0, QPF=18, QDMA=18, PSLEEP=2, PK=1, ALLST=0, STAG=0, NIN=0, DSP=5, NPOST=8, NEPI=8):
    LDS = 4*NSLOT*2048
    assert LDS >= 131072
    REG = NSLOT*2048
    kernel_header(A, name)
    ST = Stamper(A, kidx); ST.stamp()
    sW, sH, sACT, sWD, sCNT, sX = 8, 12, 16, 20, 24, 28
    sw, sm, sWo, sM0, sf0, stb, sHo = 40, 41, 42, 43, 44, 45, 46
    sT0, sT1, sT2, sT3 = 47, 48, 49, 50
    sdb, stb64, skq, stt, sDo, sLb = 51, 52, 53, 54, 55, 56
    pWG, pWU, pWD, pWS, pOUT = 4, 6, 32, 34, 36
    A("  s_cmp_ge_u32 s2, 256")
    A(f"  s_cbranch_scc1 {name}_end")
    A(f"  s_load_dwordx4 s[4:7], s[0:1], {KA['wg']}")
    A(f"  s_load_dwordx2 s[{pWD}:{pWD+1}], s[0:1], {KA['wd']}")
    A(f"  s_load_dwordx2 s[{pWS}:{pWS+1}], s[0:1], {KA['ws']}")
    A(f"  s_load_dwordx2 s[{pOUT}:{pOUT+1}], s[0:1], {KA['out']}")
    vl, vWoff, vH, vAct, vt0, vt1, vt2, vt3, vRS = 1,2,3,4,5,6,7,8,14
    vA = 10
    vAf = 16
    vAcc = 48
    vX = 112
    A(f"  v_lshrrev_b32 v{vt0}, 6, v0")
    A(f"  v_and_b32 v{vl}, 63, v0")
    A(f"  v_readfirstlane_b32 s{sw}, v{vt0}")
    A("  s_and_b32 s3, s2, 7")
    A(f"  s_lshr_b32 s{sT0}, s2, 3")
    A(f"  s_and_b32 s{sdb}, s{sT0}, 7")
    A(f"  s_lshr_b32 s{sT1}, s{sT0}, 3")
    A(f"  s_lshl_b32 s{stb64}, s3, 2")
    A(f"  s_add_u32 s{stb64}, s{stb64}, s{sT1}")
    A(f"  s_lshr_b32 s{skq}, s{sw}, 1")
    A(f"  s_and_b32 s{stt}, s{sw}, 1")
    A(f"  s_mov_b32 s{sm}, s{stt}")
    A("  s_cmp_ge_u32 s2, 224")
    A(f"  s_cbranch_scc1 {name}_helper")
    A(f"  s_mul_i32 s{sT1}, s{sT0}, 37")
    A(f"  s_lshr_b32 s{sT1}, s{sT1}, 8")
    A(f"  s_mul_i32 s{sT2}, s{sT1}, 7")
    A(f"  s_sub_u32 s{sT2}, s{sT0}, s{sT2}")
    A(f"  s_and_b32 s{sT3}, s3, 1")
    A(f"  s_lshl_b32 s{sT3}, s{sT3}, 2")
    A(f"  s_add_u32 s{stb}, s{sT3}, s{sT1}")
    A(f"  s_lshr_b32 s{sT3}, s3, 1")
    A(f"  s_mul_i32 s{sT3}, s{sT3}, 7")
    A(f"  s_add_u32 s{sT3}, s{sT3}, s{sT2}")
    A(f"  s_lshl_b32 s{sf0}, s{sT3}, 6")
    A(f"  v_lshrrev_b32 v{vt0}, 3, v{vl}")
    A(f"  v_bfe_u32 v{vt1}, v{vl}, 4, 1")
    A(f"  s_lshl_b32 s{sT0}, s{sm}, 1")
    A(f"  v_bfe_u32 v{vt2}, v{vl}, 1, 2")
    A(f"  v_or_b32 v{vt1}, s{sT0}, v{vt1}")
    A(f"  v_xor_b32 v{vt1}, v{vt1}, v{vt2}")
    A(f"  v_and_b32 v{vt2}, 1, v{vl}")
    A(f"  v_lshlrev_b32 v{vt1}, 5, v{vt1}")
    A(f"  v_lshl_add_u32 v{vt1}, v{vt2}, 4, v{vt1}")
    A(f"  s_movk_i32 s{sT0}, 3584")
    A(f"  v_mad_u32_u24 v{vWoff}, v{vt0}, s{sT0}, v{vt1}")
    sTB32 = 57
    A(f"  s_lshl_b32 s{sTB32}, s{stb}, 3")
    A(f"  s_add_u32 s{sTB32}, s{sTB32}, s{sw}")
    A(f"  s_lshl_b32 s{sT1}, s{sTB32}, 15")
    A(f"  v_lshlrev_b32 v{vt0}, 4, v{vl}")
    A(f"  v_add_u32 v{vH}, s{sT1}, v{vt0}")
    A(f"  s_mul_i32 s{sWo}, s{skq}, {16*3584}")
    A(f"  s_lshl_b32 s{sT1}, s{sf0}, 1")
    A(f"  s_add_u32 s{sWo}, s{sWo}, s{sT1}")
    A(f"  s_lshl_b32 s{sM0}, s{skq}, 11")
    A(f"  s_lshl_b32 s{sT1}, s{sm}, 16")
    A(f"  s_add_u32 s{sM0}, s{sM0}, s{sT1}")
    A(f"  s_mov_b32 s{sHo}, 0")
    A("  s_waitcnt lgkmcnt(0)")
    A(f"  s_cmp_eq_u32 s{sm}, 0")
    A(f"  s_cselect_b32 s{sW}, s4, s6")
    A(f"  s_cselect_b32 s{sW+1}, s5, s7")
    A(f"  s_mov_b32 s{sW+2}, {512*1792*2}")
    A(f"  s_mov_b32 s{sW+3}, 0x20000")
    srd(A, sH, pWS, WS_H2, SZ2M)
    loadops = []
    for st in range(8):
        for ii in range(2):
            L = [f"  s_add_u32 m0, s{sM0}, {st*64*128 + ii*1024}"]
            if st or ii:
                inc = 8*3584 if ii else (64-8)*3584
                L.append(f"  s_add_u32 s{sWo}, s{sWo}, {inc}")
            else:
                L.append("  s_nop 0")
            L.append(f"  buffer_load_dwordx4 v{vWoff}, {sr(sW,4)}, s{sWo} offen lds")
            loadops.append(L)
        for qq in range(4):
            q = 4*st+qq
            L = [f"  buffer_load_dwordx4 {ar(4*q,4)}, v{vH}, {sr(sH,4)}, s{sHo} offen offset:{qq*1024}"]
            if qq == 3 and st < 7:
                L.append(f"  s_add_u32 s{sHo}, s{sHo}, 4096")
            loadops.append(L)
    state = dict(n=0, vm=0)
    mark = {}
    def emit_load():
        if state['n'] < 48:
            for x in loadops[state['n']]: A(x)
            state['n'] += 1; state['vm'] += 1
            if state['n'] % 6 == 0: mark[state['n']//6-1] = state['vm']
    def other_vm(line):
        A(line); state['vm'] += 1
        return state['vm']
    def wait_vm(idx):
        A(f"  s_waitcnt vmcnt({state['vm']-idx})")
    for _ in range(6): emit_load()
    srd(A, sACT, pWS, WS_ACT, SZ_ACT)
    srd(A, sWD, pWD, 0, 1792*512*2)
    srd(A, sCNT, pWS, WS_CNT, 4096)
    A(f"  v_bfe_u32 v{vt1}, v{vl}, 2, 2")
    A(f"  v_lshrrev_b32 v{vt2}, 5, v{vl}")
    A(f"  v_lshl_add_u32 v{vt2}, v{vt2}, 3, v{vt1}")
    A(f"  v_bfe_u32 v{vt3}, v{vl}, 4, 1")
    A(f"  v_lshlrev_b32 v{vt2}, 7, v{vt2}")
    A(f"  v_lshl_add_u32 v{vt2}, v{vt3}, 16, v{vt2}")
    A(f"  v_lshrrev_b32 v{vt1}, 1, v{vt1}")
    A(f"  v_lshl_or_b32 v{vt1}, v{vt3}, 1, v{vt1}")
    A(f"  v_and_b32 v{vt3}, 1, v{vl}")
    A(f"  v_lshl_add_u32 v{vt2}, v{vt3}, 4, v{vt2}")
    A(f"  v_bfe_u32 v{vt3}, v{vl}, 1, 1")
    A(f"  v_lshl_add_u32 v{vt2}, v{vt3}, 3, v{vt2}")
    for tau in range(4):
        A(f"  v_xor_b32 v{vt3}, {tau}, v{vt1}")
        A(f"  v_lshl_add_u32 v{vA+tau}, v{vt3}, 5, v{vt2}")
    A(f"  s_mul_i32 s{sT0}, s{sTB32}, 112")
    A(f"  s_lshr_b32 s{sT1}, s{sf0}, 4")
    A(f"  s_add_u32 s{sT0}, s{sT0}, s{sT1}")
    A(f"  s_lshl_b32 s{sT0}, s{sT0}, 10")
    A(f"  v_add_u32 v{vAct}, s{sT0}, v{vt0}")
    for st in range(1, AHEAD):
        A("  s_barrier")
        for _ in range(6): emit_load()
    vAE, vBE, vRo = vX+1, vX+2, vX+3
    A(f"  v_and_b32 v{vt1}, 3, v{vl}")
    A(f"  v_bfe_u32 v{vt2}, v{vl}, 2, 1")
    A(f"  v_lshl_add_u32 v{vt1}, v{vt2}, 3, v{vt1}")
    A(f"  v_bfe_u32 v{vt2}, v{vl}, 3, 1")
    A(f"  v_lshl_add_u32 v{vt1}, v{vt2}, 2, v{vt1}")
    A(f"  v_add_u32 v{vt1}, s{sf0}, v{vt1}")
    A(f"  v_bfe_u32 v{vt2}, v{vl}, 4, 1")
    A(f"  v_mul_u32_u24 v{vt2}, 1792, v{vt2}")
    A(f"  v_add_u32 v{vt1}, v{vt1}, v{vt2}")
    A(f"  v_lshlrev_b32 v{vAE}, 4, v{vt1}")
    A(f"  v_lshrrev_b32 v{vt2}, 5, v{vl}")
    A(f"  v_lshl_or_b32 v{vAE}, v{vt2}, 30, v{vAE}")
    A(f"  v_and_b32 v{vt1}, 31, v{vl}")
    A(f"  s_lshl_b32 s{sT0}, s{sTB32}, 5")
    A(f"  v_add_u32 v{vt1}, s{sT0}, v{vt1}")
    A(f"  v_lshlrev_b32 v{vRo}, 3, v{vt1}")
    A(f"  v_lshlrev_b32 v{vBE}, 4, v{vt1}")
    A(f"  v_lshl_or_b32 v{vBE}, v{vt2}, 30, v{vBE}")
    phase2_setup(A, locals())
    pre = phase2_preload_ops(locals())
    def dma_ok(p, q_done):
        if p < 4: return True
        st = (p-4)//2
        return st <= 5 and q_done >= 4*(st+2)-1
    def dma(q_done=None):
        if pre:
            p = NSLOT-len(pre)
            if q_done is not None and not dma_ok(p, q_done): return
            ops = pre.pop(0)
            for x in ops[:-1]: A(x)
            other_vm(ops[-1])
    def rd(q, tau):
        buf = q & 1
        return [f"  ds_read_b64_tr_b16 {vr(vAf+buf*16+tau*4+r*2,2)}, v{vA+tau} offset:{q*2048+r*512}" for r in range(2)]
    ST.stamp()
    def wait_stage(st):
        wait_vm(mark[st])
        A("  s_barrier")
    wait_stage(0)
    ST.stamp()
    for tau in range(4):
        for x in rd(0, tau): A(x)
    vFl = vX+4
    aE = 0
    import copy
    def emit_loop(grp):
        nonlocal_ = {}
        nout = 8
        slot = 0
        ext_idx = fl_idx = None
        for q in range(32):
            nxt = q+1 < 32
            if q == QFL:
                assert state['n'] == 48
                A(f"  s_and_b32 s{sT0}, s2, 7")
                A(f"  s_lshl_b32 s{sT0}, s{sT0}, 8")
                A(f"  s_add_u32 s{sT0}, s{sT0}, {8*256}")
                A(f"  s_cmp_eq_u32 s{sw}, 0")
                A(f"  s_cselect_b32 s{sT0}, s{sT0}, 0x4000")
                A(f"  v_mov_b32 v{vt1}, s{sT0}")
                fl_idx = other_vm(f"  buffer_load_dword v{vFl}, v{vt1}, {sr(sCNT,4)}, 0 offen sc1")
            if q == QCK:
                assert (q+1) % 4 == 0
                A(f"  s_cmp_lg_u32 s{sw}, 0")
                A(f"  s_cbranch_scc1 {name}_hok{grp}")
                wait_vm(fl_idx)
                A(f"  v_readfirstlane_b32 s{sT0}, v{vFl}")
                A(f"  s_mov_b32 s{sT1}, {SPIN}")
                A(f"{name}_hchk{grp}:")
                A(f"  s_cmp_ge_u32 s{sT0}, {NHELP}")
                A(f"  s_cbranch_scc1 {name}_hok{grp}")
                A("  s_sleep 2")
                A(f"  buffer_load_dword v{vFl}, v{vt1}, {sr(sCNT,4)}, 0 offen sc1")
                A("  s_waitcnt vmcnt(0)")
                A(f"  v_readfirstlane_b32 s{sT0}, v{vFl}")
                A(f"  s_sub_u32 s{sT1}, s{sT1}, 1")
                A(f"  s_cmp_lg_u32 s{sT1}, 0")
                A(f"  s_cbranch_scc1 {name}_hchk{grp}")
                A(f"{name}_hok{grp}:")
            if nxt and (q+1) % 4 == 0:
                st = (q+1)//4
                wait_stage(st)
                if (st in (2,4,6)) or (ALLST and st in (1,3,5,7)): ST.stamp()
            if q == QCK:
                srd(A, sX, pWS, WS_AEXT, 2*1792*16)
                for tau in range(4):
                    other_vm(f"  buffer_load_dwordx4 {ar(aE+4*tau,4)}, v{vAE}, {sr(sX,4)}, 0 offen offset:{256*tau} sc1")
                srd(A, sH, pWS, WS_BEXT, 2048*16)
                other_vm(f"  buffer_load_dwordx4 {ar(aE+16,4)}, v{vBE}, {sr(sH,4)}, 0 offen sc1")
                srd(A, sW, pWS, WS_RS, 2048*8)
                ext_idx = other_vm(f"  buffer_load_dwordx2 {vr(vRS,2)}, v{vRo}, {sr(sW,4)}, 0 offen sc1")
            if QPF > 0 and q == QPF:
                A(f"  s_lshr_b32 s{sT0}, s2, 3")
                A(f"  s_lshl_b32 s{sT0}, s{sT0}, 16")
                A(f"  v_lshlrev_b32 v{vt2}, 7, v0")
                other_vm(f"  buffer_load_dword v{vX}, v{vt2}, {sr(sWD,4)}, s{sT0} offen")
            buf = q & 1
            for tau in range(4):
                A(f"  s_waitcnt lgkmcnt({nout-2})")
                nout -= 2
                c = "0" if q == 0 else vr(vAcc+16*tau,16)
                A(f"  v_mfma_f32_32x32x16_bf16 {vr(vAcc+16*tau,16)}, {vr(vAf+buf*16+tau*4,4)}, {ar(4*q,4)}, {c}")
                if nxt:
                    for x in rd(q+1, tau): A(x)
                    nout += 2
                if (slot + grp) % SPACE == SPACE-1 and state['n'] < 48: emit_load()
                elif state['n'] == 48 and q >= QDMA and NSLOT-len(pre) < NIN and (slot % DSP) == DSP-1: dma(q)
                slot += 1
        return ext_idx
    if STAG:
        snap = (copy.deepcopy(state), copy.deepcopy(mark), list(pre), ST.n)
        A(f"  s_cmp_ge_u32 s{sw}, 4")
        A(f"  s_cbranch_scc1 {name}_loopB")
        e0 = emit_loop(0)
        endA = (copy.deepcopy(state), list(pre), ST.n)
        A(f"  s_branch {name}_loopEnd")
        A(f"{name}_loopB:")
        state.clear(); state.update(snap[0]); mark.clear(); mark.update(snap[1]); pre[:] = snap[2]; ST.n = snap[3]
        ext_idx = emit_loop(1)
        assert (state, pre, ST.n, ext_idx) == (endA[0], endA[1], endA[2], e0), (state, endA[0], len(pre), len(endA[1]), ext_idx, e0)
        A(f"{name}_loopEnd:")
    else:
        ext_idx = emit_loop(0)
    wait_vm(ext_idx)
    for tau in range(4):
        A(f"  v_mfma_f32_32x32x16_bf16 {vr(vAcc+16*tau,16)}, {ar(aE+4*tau,4)}, {ar(aE+16,4)}, {vr(vAcc+16*tau,16)}")
    A("  s_barrier")
    ST.stamp()
    k1, sd2 = vRS, vRS+1
    for tau in range(4):
        g = vAcc+16*tau
        u = g+8
        E = vAf if (tau & 1) == 0 else vAf+16
        for r in range(0, 8, 2):
            A(f"  v_pk_mul_f32 {vr(E+r,2)}, {vr(g+r,2)}, {vr(k1,2)} op_sel_hi:[1,0]")
        if NSLOT-len(pre) < NEPI: dma()
        for r in range(8):
            A(f"  v_exp_f32 v{E+r}, v{E+r}")
        for r in range(0, 8, 2):
            A(f"  v_pk_mul_f32 {vr(u+r,2)}, {vr(g+r,2)}, {vr(u+r,2)}")
        for r in range(0, 8, 2):
            A(f"  v_pk_fma_f32 {vr(E+r,2)}, {vr(E+r,2)}, {vr(k1,2)}, {vr(k1,2)} op_sel:[0,1,1] op_sel_hi:[1,1,1]")
        if NSLOT-len(pre) < NEPI: dma()
        for r in range(8):
            A(f"  v_rcp_f32 v{E+r}, v{E+r}")
        if NSLOT-len(pre) < NEPI and NEPI > 8: dma()
        else: A("  s_nop 0")
        for r in range(0, 8, 2):
            A(f"  v_pk_mul_f32 {vr(u+r,2)}, {vr(u+r,2)}, {vr(E+r,2)}")
        for i in range(4):
            A(f"  v_cvt_pk_bf16_f32 v{E+8+i}, v{u+2*i}, v{u+2*i+1}")
        A(f"  buffer_store_dwordx4 {vr(E+8,4)}, v{vAct}, {sr(sACT,4)}, 0 offen offset:{tau*1024} sc1")
    npost = 0
    while pre and npost < NPOST:
        dma(); npost += 1
    A(f"  s_waitcnt vmcnt({npost})")
    A("  s_barrier")
    ST.stamp()
    A(f"  s_cmp_lg_u32 s{sw}, 0")
    A(f"  s_cbranch_scc1 {name}_arrd")
    A(f"  s_lshl_b32 s{sT0}, s{stb}, 8")
    A(f"  v_mov_b32 v{vt0}, s{sT0}")
    A(f"  v_mov_b32 v{vt1}, 1")
    A(f"  s_mov_b64 exec, 1")
    A(f"  buffer_atomic_add v{vt1}, v{vt0}, {sr(sCNT,4)}, 0 offen sc1")
    A(f"  s_mov_b64 exec, -1")
    A(f"{name}_arrd:")
    while pre: dma()
    if max(NIN, NEPI) < 28-NSLOT:
        A("  s_waitcnt vmcnt(0)")
        A("  s_barrier")
    A(f"  s_branch {name}_p2")
    A(f"{name}_helper:")
    gen_helper(A, locals())
    phase2_setup(A, locals())
    phase2_preload(A, locals())
    A("  s_waitcnt vmcnt(0)")
    A("  s_barrier")
    A(f"{name}_p2:")
    gen_phase2(A, locals())
    A(f"{name}_end:")
    ST.flush(2)
    A("  s_endpgm")
    return dict(name=name, grid=256, block=512, lds=LDS, nvgpr=256, accum=128)

P2 = dict(vWd=124, vA0=10, vB=3, vXO=4, vEXw=5, vEXr=9, vX1=112, vGB=116)
def phase2_setup(A, L):
    vl, vt0, vt1, vt2 = L['vl'], L['vt0'], L['vt1'], L['vt2']
    sT0, sT1, skq, stt, sdb, stb64, sDo, sLb, REG = (L[k] for k in "sT0 sT1 skq stt sdb stb64 sDo sLb REG".split())
    vWd = P2['vWd']
    A(f"  v_lshrrev_b32 v{vt0}, 3, v{vl}")
    A(f"  v_lshrrev_b32 v{vt1}, 1, v{vt0}")
    A(f"  v_lshrrev_b32 v{vt2}, 2, v{vl}")
    A(f"  v_xor_b32 v{vt1}, v{vt1}, v{vt2}")
    A(f"  v_and_b32 v{vt1}, 1, v{vt1}")
    A(f"  v_lshlrev_b32 v{vt1}, 6, v{vt1}")
    A(f"  v_and_b32 v{vt2}, 3, v{vl}")
    A(f"  v_lshl_add_u32 v{vt1}, v{vt2}, 4, v{vt1}")
    A(f"  v_lshl_add_u32 v{vWd}, v{vt0}, 10, v{vt1}")
    A(f"  s_mul_i32 s{sDo}, s{skq}, {28*16*1024}")
    A(f"  s_lshl_b32 s{sT0}, s{stt}, 13")
    A(f"  s_add_u32 s{sDo}, s{sDo}, s{sT0}")
    A(f"  s_lshl_b32 s{sT0}, s{sdb}, 7")
    A(f"  s_add_u32 s{sDo}, s{sDo}, s{sT0}")
    A(f"  s_lshl_b32 s{sLb}, s{skq}, 11")
    A(f"  s_lshl_b32 s{sT0}, s{stt}, 10")
    A(f"  s_add_u32 s{sLb}, s{sLb}, s{sT0}")

def phase2_preload_ops(L):
    NSLOT, sLb, sDo, sWD = L['NSLOT'], L['sLb'], L['sDo'], L['sWD']
    ops = []
    for p in range(NSLOT):
        o = [f"  s_add_u32 m0, s{sLb}, {UNIT[p]}"]
        o.append(f"  s_add_u32 s{sDo}, s{sDo}, 16384" if p else "  s_nop 0")
        o.append(f"  buffer_load_dwordx4 v{P2['vWd']}, {sr(sWD,4)}, s{sDo} offen lds")
        ops.append(o)
    return ops
def phase2_preload(A, L):
    for o in phase2_preload_ops(L):
        for x in o: A(x)

def bf16_split(A, x, hi, lo, tmp):
    A(f"  v_cvt_pk_bf16_f32 v{hi}, v{x}, v{x}")
    A(f"  v_lshlrev_b32 v{tmp}, 16, v{hi}")
    A(f"  v_sub_f32 v{tmp}, v{x}, v{tmp}")
    A(f"  v_cvt_pk_bf16_f32 v{lo}, v{tmp}, v{tmp}")
    A(f"  v_and_b32 v{hi}, 0xffff, v{hi}")
    A(f"  v_and_b32 v{lo}, 0xffff, v{lo}")

def lane0_atomic_inc(A, name, sCNT, idx_bytes, vt0, vt1):
    A(f"  v_mov_b32 v{vt0}, {idx_bytes}")
    A(f"  v_mov_b32 v{vt1}, 1")
    A(f"  s_mov_b64 exec, 1")
    A(f"  buffer_atomic_add v{vt1}, v{vt0}, {sr(sCNT,4)}, 0 offen sc1")
    A(f"  s_mov_b64 exec, -1")

def gen_helper(A, L):
    name = L['name']
    vl, vt0, vt1, vt2, vt3 = L['vl'], L['vt0'], L['vt1'], L['vt2'], L['vt3']
    sw, sm, skq, sT0, sT1, sT2, sT3 = (L[k] for k in "sw sm skq sT0 sT1 sT2 sT3".split())
    sW, sH, sX, sWD, sCNT, sACT, pWS, pWD = (L[k] for k in "sW sH sX sWD sCNT sACT pWS pWD".split())
    sh = 57
    RED, RED2 = 131072, 133120
    vXs = 16
    vWl = 48
    vMc = 112
    A(f"  s_sub_u32 s{sh}, s2, 224")
    A("  s_waitcnt lgkmcnt(0)")
    srd(A, sH, pWS, WS_X1, SZ2M)
    srd(A, sWD, pWD, 0, 1792*512*2)
    srd(A, sCNT, pWS, WS_CNT, 4096)
    A(f"  s_cmp_eq_u32 s{sm}, 0")
    A(f"  s_cselect_b32 s{sW}, s4, s6")
    A(f"  s_cselect_b32 s{sW+1}, s5, s7")
    A(f"  s_mov_b32 s{sW+2}, {512*1792*2}")
    A(f"  s_mov_b32 s{sW+3}, 0x20000")
    A(f"  s_lshl_b32 s{sT0}, s{sh}, 1")
    A(f"  s_add_u32 s{sT0}, s{sT0}, s{sm}")
    A(f"  s_lshl_b32 s{sT0}, s{sT0}, 15")
    A(f"  s_lshl_b32 s{sT1}, s{skq}, 13")
    A(f"  s_add_u32 s{sT0}, s{sT0}, s{sT1}")
    A(f"  v_lshlrev_b32 v{vt0}, 4, v{vl}")
    for i in range(8):
        if i == 4: A(f"  s_add_u32 s{sT0}, s{sT0}, 4096")
        A(f"  buffer_load_dwordx4 {vr(vXs+4*i,4)}, v{vt0}, {sr(sH,4)}, s{sT0} offen offset:{(i&3)*1024}")
    vBo, vW0, vW1 = 9, 10, 11
    vAh = 112
    srd(A, sX, pWS, WS_MODH, 3072*2)
    A(f"  v_and_b32 v{vt1}, 31, v{vl}")
    A(f"  v_lshrrev_b32 v{vt2}, 5, v{vl}")
    A(f"  v_lshlrev_b32 v{vBo}, 4, v{vt2}")
    A(f"  v_lshlrev_b32 v{vt2}, 10, v{vt1}")
    A(f"  v_sub_u32 v{vt2}, 4096, v{vt2}")
    A(f"  v_add_u32 v{vBo}, v{vBo}, v{vt2}")
    A(f"  v_cmp_lt_u32 vcc, 1, v{vt1}")
    A(f"  v_mov_b32 v{vt2}, 0x40000000")
    A(f"  s_lshl_b32 s{sT0}, s{sw}, 7")
    A(f"  v_cndmask_b32 v{vBo}, v{vBo}, v{vt2}, vcc")
    for qq in range(4):
        A(f"  buffer_load_dwordx4 {ar(4*qq,4)}, v{vBo}, {sr(sX,4)}, s{sT0} offen offset:{32*qq}")
    A(f"  v_lshrrev_b32 v{vt0}, 3, v{vl}")
    A(f"  v_bfe_u32 v{vt1}, v{vl}, 4, 1")
    A(f"  v_bfe_u32 v{vt2}, v{vl}, 1, 2")
    A(f"  v_xor_b32 v{vt1}, v{vt1}, v{vt2}")
    A(f"  v_and_b32 v{vt2}, 1, v{vl}")
    A(f"  v_lshlrev_b32 v{vt2}, 4, v{vt2}")
    A(f"  s_movk_i32 s{sT1}, 3584")
    A(f"  v_mad_u32_u24 v{vt0}, v{vt0}, s{sT1}, v{vt2}")
    A(f"  v_lshl_add_u32 v{vW0}, v{vt1}, 5, v{vt0}")
    A(f"  v_xor_b32 v{vt1}, 2, v{vt1}")
    A(f"  v_lshl_add_u32 v{vW1}, v{vt1}, 5, v{vt0}")
    A(f"  s_and_b32 s{sT1}, s{sh}, 1")
    A(f"  s_lshl_b32 s{sT1}, s{sT1}, 2")
    A(f"  s_lshr_b32 s{sT2}, s{sh}, 3")
    A(f"  s_add_u32 s60, s{sT1}, s{sT2}")
    A(f"  s_bfe_u32 s{sT1}, s{sh}, 0x20001")
    A(f"  s_mul_i32 s{sT1}, s{sT1}, 7")
    A(f"  s_min_u32 s{sT2}, s60, 6")
    A(f"  s_add_u32 s61, s{sT1}, s{sT2}")
    A(f"  s_lshl_b32 s{sT2}, s61, 7")
    A(f"  s_mul_i32 s{sT1}, s{sw}, {64*3584}")
    A(f"  s_add_u32 s{sT2}, s{sT2}, s{sT1}")
    A(f"  s_lshl_b32 s{sT3}, s{sw}, 13")
    srd(A, sW, 4, 0, 512*1792*2)
    srd(A, sACT, 6, 0, 512*1792*2)
    for ii in range(8):
        A(f"  s_add_u32 m0, s{sT3}, {ii*1024}")
        A("  s_nop 0")
        A(f"  buffer_load_dwordx4 v{vW0}, {sr(sW,4)}, s{sT2} offen lds")
        A(f"  s_add_u32 m0, s{sT3}, {65536+ii*1024}")
        A("  s_nop 0")
        A(f"  buffer_load_dwordx4 v{vW1}, {sr(sACT,4)}, s{sT2} offen lds")
        if ii < 7: A(f"  s_add_u32 s{sT2}, s{sT2}, {8*3584}")
    A(f"  v_bfe_u32 v{vt1}, v{vl}, 2, 2")
    A(f"  v_lshrrev_b32 v{vt2}, 5, v{vl}")
    A(f"  v_lshl_add_u32 v{vt2}, v{vt2}, 3, v{vt1}")
    A(f"  v_bfe_u32 v{vt3}, v{vl}, 4, 1")
    A(f"  v_lshlrev_b32 v{vt2}, 7, v{vt2}")
    A(f"  v_lshl_add_u32 v{vt2}, v{vt3}, 16, v{vt2}")
    A(f"  v_lshrrev_b32 v{vt1}, 1, v{vt1}")
    A(f"  v_lshl_or_b32 v{vt1}, v{vt3}, 1, v{vt1}")
    A(f"  v_and_b32 v{vt3}, 1, v{vl}")
    A(f"  v_lshl_add_u32 v{vt2}, v{vt3}, 4, v{vt2}")
    A(f"  v_bfe_u32 v{vt3}, v{vl}, 1, 1")
    A(f"  v_lshl_add_u32 v{vt2}, v{vt3}, 3, v{vt2}")
    A(f"  v_add_u32 v{vt2}, s{sT3}, v{vt2}")
    for tau in range(4):
        A(f"  v_xor_b32 v{vt3}, {tau}, v{vt1}")
        A(f"  v_lshl_add_u32 v{vAh+tau}, v{vt3}, 5, v{vt2}")
    s1, s2 = 12, 13
    pa, pb, xx = 48, 50, 52
    for r in (pa, pa+1, pb, pb+1): A(f"  v_mov_b32 v{r}, 0")
    A(f"  s_waitcnt vmcnt({4+16})")
    if not L['ALLST']: L['ST'].stamp()
    for i in range(32):
        t = xx + 2*(i & 1)
        A(f"  v_lshlrev_b32 v{t}, 16, v{vXs+i}")
        A(f"  v_and_b32 v{t+1}, 0xffff0000, v{vXs+i}")
        A(f"  v_pk_add_f32 {vr(pa,2)}, {vr(pa,2)}, {vr(t,2)}")
        A(f"  v_pk_fma_f32 {vr(pb,2)}, {vr(t,2)}, {vr(t,2)}, {vr(pb,2)}")
    A(f"  v_add_f32 v{s1}, v{pa}, v{pa+1}")
    A(f"  v_add_f32 v{s2}, v{pb}, v{pb+1}")
    A("  s_nop 1")
    A(f"  v_permlane32_swap_b32 v{s1}, v{s2}")
    A("  s_nop 1")
    A(f"  v_add_f32 v{s1}, v{s1}, v{s2}")
    A(f"  s_lshl_b32 s{sT0}, s{sm}, 2")
    A(f"  s_add_u32 s{sT0}, s{sT0}, s{skq}")
    A(f"  s_lshl_b32 s{sT0}, s{sT0}, 8")
    A(f"  s_add_u32 s{sT0}, s{sT0}, {RED}")
    A(f"  v_lshlrev_b32 v{vt0}, 2, v{vl}")
    A(f"  v_add_u32 v{vt0}, s{sT0}, v{vt0}")
    A(f"  ds_write_b32 v{vt0}, v{s1} offset:0")
    vAf, vAcc = 16, 48
    A("  s_waitcnt vmcnt(0)")
    if not L['ALLST']: L['ST'].stamp()
    def hrd(qq):
        for tau in range(4):
            for r in range(2):
                A(f"  ds_read_b64_tr_b16 {vr(vAf+16*(qq&1)+tau*4+r*2,2)}, v{vAh+tau} offset:{qq*2048+r*512}")
    hrd(0)
    for qq in range(4):
        if qq < 3:
            hrd(qq+1)
            A("  s_waitcnt lgkmcnt(8)")
        else:
            A("  s_waitcnt lgkmcnt(0)")
        for tau in range(4):
            c = "0" if qq == 0 else vr(vAcc+16*tau,16)
            A(f"  v_mfma_f32_32x32x16_bf16 {vr(vAcc+16*tau,16)}, {ar(4*qq,4)}, {vr(vAf+16*(qq&1)+tau*4,4)}, {c}")
    if not L['ALLST']: L['ST'].stamp()
    A(f"  s_lshl_b32 s{sT0}, s{sw}, 10")
    A(f"  s_add_u32 s{sT0}, s{sT0}, {RED2}")
    A(f"  v_lshlrev_b32 v{vt0}, 3, v{vl}")
    A(f"  v_add_u32 v{vt0}, s{sT0}, v{vt0}")
    A(f"  s_mov_b32 s58, -1")
    A(f"  s_mov_b32 s59, 0")
    A("  s_nop 7")
    A(f"  s_mov_b64 exec, s[58:59]")
    for tau in range(4):
        A(f"  ds_write_b64 v{vt0}, {vr(vAcc+16*tau,2)} offset:{tau*256}")
    A(f"  s_mov_b64 exec, -1")
    A("  s_waitcnt lgkmcnt(0)")
    A("  s_barrier")
    if not L['ALLST']: L['ST'].stamp()
    U = 16
    A(f"  s_cmp_eq_u32 s{sw}, 0")
    A(f"  s_cbranch_scc1 {name}_hstat")
    A(f"  s_cmp_eq_u32 s{skq}, 1")
    A(f"  s_cbranch_scc0 {name}_hdone")
    A(f"  s_lshl_b32 s{sT0}, s{sm}, 9")
    A(f"  s_add_u32 s{sT0}, s{sT0}, {RED2}")
    A(f"  v_lshlrev_b32 v{vt0}, 3, v{vl}")
    A(f"  v_add_u32 v{vt0}, s{sT0}, v{vt0}")
    R = 48
    for w8 in range(8):
        A(f"  ds_read_b64 {vr(R+2*w8,2)}, v{vt0} offset:{w8*1024}")
    A("  s_waitcnt lgkmcnt(0)")
    for k in range(1,8):
        A(f"  v_add_f32 v{R}, v{R}, v{R+2*k}")
        A(f"  v_add_f32 v{R+1}, v{R+1}, v{R+2*k+1}")
    A(f"  v_mov_b32 v{U}, v{R}")
    A(f"  v_mov_b32 v{U+4}, v{R+1}")
    bf16_split(A, U, U+8, U+9, U+10)
    bf16_split(A, U+4, U+11, U+12, U+10)
    O = U+16
    A(f"  v_lshl_or_b32 v{O}, v{U+8}, 16, v{U+8}")
    A(f"  v_mov_b32 v{O+1}, v{U+9}")
    A(f"  v_lshl_or_b32 v{O+2}, v{U+11}, 16, v{U+11}")
    A(f"  v_mov_b32 v{O+3}, v{U+12}")
    srd(A, sX, pWS, WS_AEXT, 2*1792*16)
    A(f"  s_cmp_ge_u32 s60, 7")
    A(f"  s_cbranch_scc1 {name}_hdone")
    A(f"  v_and_b32 v{vt1}, 3, v{vl}")
    A(f"  v_bfe_u32 v{vt2}, v{vl}, 2, 1")
    A(f"  v_lshl_add_u32 v{vt1}, v{vt2}, 3, v{vt1}")
    A(f"  v_bfe_u32 v{vt2}, v{vl}, 3, 1")
    A(f"  v_lshl_add_u32 v{vt1}, v{vt2}, 2, v{vt1}")
    A(f"  v_lshrrev_b32 v{vt2}, 5, v{vl}")
    A(f"  v_lshl_add_u32 v{vt1}, v{vt2}, 4, v{vt1}")
    A(f"  v_bfe_u32 v{vt2}, v{vl}, 4, 1")
    A(f"  v_mul_u32_u24 v{vt2}, 1792, v{vt2}")
    A(f"  v_add_u32 v{vt1}, v{vt1}, v{vt2}")
    A(f"  s_lshl_b32 s{sT0}, s{sm}, 5")
    A(f"  s_lshl_b32 s{sT1}, s61, 6")
    A(f"  s_add_u32 s{sT0}, s{sT0}, s{sT1}")
    A(f"  s_lshl_b32 s{sT0}, s{sT0}, 4")
    A(f"  v_lshlrev_b32 v{vt0}, 4, v{vt1}")
    A(f"  buffer_store_dwordx4 {vr(O,4)}, v{vt0}, {sr(sX,4)}, s{sT0} offen sc1")
    A(f"  s_branch {name}_hdone")
    A(f"{name}_hstat:")
    A(f"  v_lshrrev_b32 v{vt0}, 5, v{vl}")
    A(f"  v_lshlrev_b32 v{vt0}, 10, v{vt0}")
    A(f"  v_and_b32 v{vt1}, 31, v{vl}")
    A(f"  v_lshl_add_u32 v{vt0}, v{vt1}, 2, v{vt0}")
    A(f"  v_add_u32 v{vt0}, {RED}, v{vt0}")
    for p in range(4):
        A(f"  ds_read_b32 v{U+p}, v{vt0} offset:{p*256}")
        A(f"  ds_read_b32 v{U+4+p}, v{vt0} offset:{p*256+128}")
    A("  s_waitcnt lgkmcnt(0)")
    for b in (U, U+4):
        A(f"  v_add_f32 v{b}, v{b}, v{b+1}")
        A(f"  v_add_f32 v{b+2}, v{b+2}, v{b+3}")
        A(f"  v_add_f32 v{b}, v{b}, v{b+2}")
    A(f"  s_mov_b32 s{sT0}, 0x3b000000")
    A(f"  s_mov_b32 s{sT1}, 0x3727c5ac")
    A(f"  v_mul_f32 v{U}, s{sT0}, v{U}")
    A(f"  v_mul_f32 v{U+4}, s{sT0}, v{U+4}")
    A(f"  v_fma_f32 v{U+4}, -v{U}, v{U}, v{U+4}")
    A(f"  v_max_f32 v{U+4}, 0, v{U+4}")
    A(f"  v_add_f32 v{U+4}, s{sT1}, v{U+4}")
    A(f"  v_sqrt_f32 v{U+5}, v{U+4}")
    A(f"  v_rsq_f32 v{U+6}, v{U+4}")
    A(f"  v_sub_f32 v{U}, 0, v{U}")
    A(f"  s_mov_b32 s{sT0}, 0xbfb8aa3b")
    A(f"  v_mul_f32 v{U+2}, s{sT0}, v{U+6}")
    A(f"  v_mov_b32 v{U+3}, v{U+4}")
    bf16_split(A, U, U+8, U+9, U+10)
    bf16_split(A, U+5, U+11, U+12, U+10)
    O = U+16
    A(f"  v_lshl_or_b32 v{O}, v{U+9}, 16, v{U+8}")
    A(f"  v_mov_b32 v{O+1}, v{U+8}")
    A(f"  v_lshl_or_b32 v{O+2}, v{U+12}, 16, v{U+11}")
    A(f"  v_mov_b32 v{O+3}, v{U+11}")
    srd(A, sX, pWS, WS_BEXT, 2048*16)
    srd(A, sH, pWS, WS_RS, 2048*8)
    A(f"  s_lshl_b32 s{sT0}, s{sh}, 10")
    A(f"  v_lshlrev_b32 v{vt0}, 4, v{vl}")
    A(f"  buffer_store_dwordx4 {vr(O,4)}, v{vt0}, {sr(sX,4)}, s{sT0} offen sc1")
    A(f"  s_lshl_b32 s{sT0}, s{sh}, 9")
    A(f"  v_lshlrev_b32 v{vt0}, 3, v{vl}")
    A(f"  buffer_store_dwordx2 {vr(U+2,2)}, v{vt0}, {sr(sH,4)}, s{sT0} offen sc1")
    A(f"{name}_hdone:")
    if not L['ALLST']: L['ST'].stamp()
    A("  s_waitcnt vmcnt(0)")
    A("  s_barrier")
    A(f"  s_cmp_lg_u32 s{sw}, 0")
    A(f"  s_cbranch_scc1 {name}_hsig")
    A(f"  v_lshlrev_b32 v{vt0}, 8, v{vl}")
    A(f"  v_add_u32 v{vt0}, {8*256}, v{vt0}")
    A(f"  v_mov_b32 v{vt1}, 1")
    A(f"  s_mov_b64 exec, 0xff")
    A(f"  buffer_atomic_add v{vt1}, v{vt0}, {sr(sCNT,4)}, 0 offen sc1")
    A(f"  s_mov_b64 exec, -1")
    A(f"{name}_hsig:")
    if L['QPF'] == 0:
        A(f"  s_lshr_b32 s{sT0}, s{sh}, 3")
        A(f"  s_mul_i32 s{sT0}, s{sT0}, 458752")
        A(f"  v_lshlrev_b32 v{vt0}, 7, v0")
        for i in range(7):
            A(f"  buffer_load_dword v{16+i}, v{vt0}, {sr(sWD,4)}, s{sT0} offen")
            if i < 6: A(f"  s_add_u32 s{sT0}, s{sT0}, 65536")

def gen_phase2(A, L):
    name, ST, NSLOT, SPIN, REG = L['name'], L['ST'], L['NSLOT'], L['SPIN'], L['REG']
    vl, vt0, vt1, vt2 = L['vl'], L['vt0'], L['vt1'], L['vt2']
    sw, skq, stt, sdb, stb64, sT0, sT1, sT2, sLb, sDo = (L[k] for k in "sw skq stt sdb stb64 sT0 sT1 sT2 sLb sDo".split())
    sW, sH, sX, sWD, sCNT, sACT, pWS, pOUT = (L[k] for k in "sW sH sX sWD sCNT sACT pWS pOUT".split())
    vWd, vA0, vB, vXO, vEXw, vEXr, vX1, vGB = (P2[k] for k in "vWd vA0 vB vXO vEXw vEXr vX1 vGB".split())
    vt0, vt1, vt2 = 6, 7, 8
    vAf, vAcc = 16, 48
    A(f"  v_lshrrev_b32 v{vt0}, 5, v{vl}")
    A(f"  v_lshlrev_b32 v{vt0}, 3, v{vt0}")
    A(f"  v_bfe_u32 v{vt1}, v{vl}, 2, 2")
    A(f"  v_add_u32 v{vt0}, v{vt0}, v{vt1}")
    A(f"  v_lshlrev_b32 v{vA0}, 7, v{vt0}")
    A(f"  v_lshrrev_b32 v{vt1}, 1, v{vt1}")
    A(f"  v_lshlrev_b32 v{vt1}, 6, v{vt1}")
    A(f"  v_and_b32 v{vt0}, 1, v{vl}")
    A(f"  v_lshlrev_b32 v{vt0}, 5, v{vt0}")
    A(f"  v_bfe_u32 v{vt2}, v{vl}, 1, 1")
    A(f"  v_lshl_add_u32 v{vt0}, v{vt2}, 3, v{vt0}")
    A(f"  v_bfe_u32 v{vt2}, v{vl}, 4, 1")
    A(f"  v_lshl_add_u32 v{vt0}, v{vt2}, 4, v{vt0}")
    A(f"  v_add_u32 v{vA0}, v{vA0}, v{vt0}")
    A(f"  s_lshl_b32 s{sT0}, s{skq}, 11")
    A(f"  v_add_u32 v{vA0}, s{sT0}, v{vA0}")
    A(f"  v_xor_b32 v{vt2}, 64, v{vt1}")
    A(f"  v_add_u32 v{vA0+1}, v{vA0}, v{vt2}")
    A(f"  v_add_u32 v{vA0}, v{vA0}, v{vt1}")
    for blk in (1, 2):
        for tau in range(2):
            A(f"  v_add_u32 v{vA0+2*blk+tau}, {65536*blk}, v{vA0+tau}")
    def trd(dst, p, tau, r, agpr=False):
        u = UNIT[p]
        reg = (ar if agpr else vr)(dst, 2)
        return f"  ds_read_b64_tr_b16 {reg}, v{vA0+2*(u>>16)+tau} offset:{(u & 0xffff)+r*512}"
    NREG = 28-NSLOT
    STG = [(32,False),(40,False),(80,False),(88,False),(96,False),(104,False),(112,True),(120,True)]
    for kk in range(NREG):
        base, ag = STG[kk]
        for tau in range(2):
            for r in range(2):
                A(trd(base+4*tau+2*r, kk, tau, r, ag))
        if kk % 3 == 2: A("  s_waitcnt lgkmcnt(4)")
    A("  s_waitcnt lgkmcnt(0)")
    A("  s_barrier")
    for p in range(NREG):
        A(f"  s_add_u32 m0, s{sLb}, {UNIT[p]}")
        A(f"  s_add_u32 s{sDo}, s{sDo}, 16384")
        A(f"  buffer_load_dwordx4 v{vWd}, {sr(sWD,4)}, s{sDo} offen lds")
    A(f"  s_lshl_b32 s{sT0}, s{stb64}, 1")
    A(f"  s_add_u32 s{sT2}, s{sT0}, s{stt}")
    A(f"  s_mul_i32 s{sT0}, s{sT2}, 112")
    A(f"  s_mul_i32 s{sT1}, s{skq}, 28")
    A(f"  s_add_u32 s{sT0}, s{sT0}, s{sT1}")
    A(f"  s_lshl_b32 s{sT0}, s{sT0}, 10")
    A(f"  v_lshlrev_b32 v{vt0}, 4, v{vl}")
    A(f"  v_add_u32 v{vB}, s{sT0}, v{vt0}")
    A(f"  s_lshl_b32 s{sT0}, s{stt}, 16")
    A(f"  s_add_u32 s{sT0}, s{sT0}, 16384")
    A(f"  s_lshl_b32 s{sT1}, s{skq}, 11")
    A(f"  s_add_u32 s{sT1}, s{sT1}, s{sT0}")
    A(f"  v_add_u32 v{vEXw}, s{sT1}, v{vt0}")
    A(f"  s_lshl_b32 s{sT1}, s{skq}, 13")
    A(f"  s_add_u32 s{sT1}, s{sT1}, s{sT0}")
    A(f"  v_add_u32 v{vEXr}, s{sT1}, v{vt0}")
    A(f"  s_lshr_b32 s{sT0}, s{skq}, 1")
    A(f"  s_lshl_b32 s{sT0}, s{sT0}, 5")
    A(f"  s_and_b32 s{sT1}, s{skq}, 1")
    A(f"  s_lshl_b32 s{sT1}, s{sT1}, 3")
    A(f"  s_add_u32 s{sT0}, s{sT0}, s{sT1}")
    A(f"  s_lshl_b32 s{sT1}, s{sdb}, 6")
    A(f"  s_add_u32 s{sT0}, s{sT0}, s{sT1}")
    A(f"  v_lshrrev_b32 v{vt1}, 5, v{vl}")
    A(f"  v_lshlrev_b32 v{vt1}, 4, v{vt1}")
    A(f"  v_add_u32 v{vt1}, s{sT0}, v{vt1}")
    A(f"  v_and_b32 v{vt0}, 31, v{vl}")
    A(f"  s_lshl_b32 s{sT1}, s{sT2}, 15")
    A(f"  v_lshrrev_b32 v{vt2}, 4, v{vt1}")
    A(f"  v_lshlrev_b32 v{vt2}, 10, v{vt2}")
    A(f"  v_lshl_add_u32 v{vt2}, v{vt0}, 4, v{vt2}")
    A(f"  v_bfe_u32 v{vXO}, v{vt1}, 3, 1")
    A(f"  v_lshl_add_u32 v{vt2}, v{vXO}, 9, v{vt2}")
    srd(A, sH, pWS, WS_X1, SZ2M)
    A(f"  buffer_load_dwordx4 {vr(vX1,4)}, v{vt2}, {sr(sH,4)}, s{sT1} offen")
    srd(A, sX, pWS, WS_MOD + 5*2048, 2048)
    A(f"  v_lshlrev_b32 v{vt2}, 2, v{vt1}")
    A(f"  buffer_load_dwordx4 {vr(vGB,4)}, v{vt2}, {sr(sX,4)}, 0 offen")
    A(f"  buffer_load_dwordx4 {vr(vGB+4,4)}, v{vt2}, {sr(sX,4)}, 0 offen offset:16")
    A(f"  s_lshl_b32 s{sT1}, s{sT2}, 15")
    A(f"  v_lshlrev_b32 v{vXO}, 10, v{vt0}")
    A(f"  v_lshl_add_u32 v{vXO}, v{vt1}, 1, v{vXO}")
    A(f"  v_add_u32 v{vXO}, s{sT1}, v{vXO}")
    srd(A, sACT, pWS, WS_ACT, SZ_ACT)
    srd(A, sW, pOUT, 0, SZ2M)
    A("  s_waitcnt vmcnt(0)")
    A(f"  s_cmp_lg_u32 s{sw}, 0")
    A(f"  s_cbranch_scc1 {name}_s3w")
    A(f"  s_lshr_b32 s{sT0}, s{stb64}, 2")
    A(f"  s_lshl_b32 s{sT0}, s{sT0}, 8")
    A(f"  v_mov_b32 v{vt0}, s{sT0}")
    poll_ge(A, f"{name}_s3", sCNT, vt0, [125, 126, 127, 7], 28, sT0, sT1, SPIN, L['PSLEEP'])
    A(f"{name}_s3w:")
    A("  s_barrier")
    ST.stamp()
    A(f"  s_mov_b32 s{sT0}, 0")
    vm = dict(n=0)
    bidx = {}
    def bload():
        kk = len(bidx)
        if kk >= 28: return
        A(f"  buffer_load_dwordx4 {ar(4*kk,4)}, v{vB}, {sr(sACT,4)}, s{sT0} offen offset:{(kk&3)*1024} sc1")
        if (kk & 3) == 3: A(f"  s_add_u32 s{sT0}, s{sT0}, 4096")
        vm['n'] += 1
        bidx[kk] = vm['n']
    def rd(kk):
        if kk < NREG: return []
        slot = kk % NSLOT
        buf = kk & 1
        return [trd(vAf+buf*8+tau*4+r*2, slot, tau, r) for tau in range(2) for r in range(2)]
    B0 = L['B0']; BR = L['BR']
    for _ in range(B0): bload()
    for kk in range(28):
        if kk == 22: A("  s_barrier")
        nx = rd(kk+1) if kk+1 < 28 else []
        for x in nx: A(x)
        assert kk in bidx, kk
        A(f"  s_waitcnt vmcnt({vm['n']-bidx[kk]})")
        if kk >= NREG:
            A(f"  s_waitcnt lgkmcnt({len(nx)})")
        buf = kk & 1
        for tau in range(2):
            c = "0" if kk == 0 else vr(vAcc+16*tau,16)
            if kk < NREG:
                base, ag = STG[kk]
                aop = (ar if ag else vr)(base+4*tau, 4)
            else:
                aop = vr(vAf+buf*8+tau*4,4)
            A(f"  v_mfma_f32_32x32x16_bf16 {vr(vAcc+16*tau,16)}, {aop}, {ar(4*kk,4)}, {c}")
            if tau < BR: bload()
    ST.stamp()
    vU = 80
    for i in range(4):
        A(f"  v_lshlrev_b32 v{vU+2*i}, 16, v{vX1+i}")
        A(f"  v_and_b32 v{vU+2*i+1}, 0xffff0000, v{vX1+i}")
    A("  s_nop 4")
    for o in range(4):
        for a in range(2):
            A(f"  ds_write_b128 v{vEXw}, {vr(vAcc+16*(o>>1)+8*(o&1)+4*a,4)} offset:{o*8192+a*1024}")
    A("  s_waitcnt lgkmcnt(0)")
    A("  s_barrier")
    vT = 16
    for s in range(4):
        for a in range(2):
            A(f"  ds_read_b128 {vr(vT+8*s+4*a,4)}, v{vEXr} offset:{s*2048+a*1024}")
    A("  s_waitcnt lgkmcnt(4)")
    for r in range(0, 8, 2):
        A(f"  v_pk_add_f32 {vr(vT+r,2)}, {vr(vT+r,2)}, {vr(vT+8+r,2)}")
    A("  s_waitcnt lgkmcnt(0)")
    for r in range(0, 8, 2):
        A(f"  v_pk_add_f32 {vr(vT+16+r,2)}, {vr(vT+16+r,2)}, {vr(vT+24+r,2)}")
    for r in range(0, 8, 2):
        A(f"  v_pk_add_f32 {vr(vT+r,2)}, {vr(vT+r,2)}, {vr(vT+16+r,2)}")
    for r in range(0, 8, 2):
        A(f"  v_pk_fma_f32 {vr(vT+r,2)}, {vr(vT+r,2)}, {vr(vGB+r,2)}, {vr(vU+r,2)}")
    for i in range(4):
        A(f"  v_cvt_pk_bf16_f32 v{vU+i}, v{vT+2*i}, v{vT+2*i+1}")
    A(f"  buffer_store_dwordx4 {vr(vU,4)}, v{vXO}, {sr(sW,4)}, 0 offen")
```

```python
from common import *
def poll_ge(A, name, srd, vaddr, vregs, target, sA, sB, SPIN, sleep=2):
    import os
    depth = int(os.environ.get("PDEPTH", "1"))
    vregs = vregs[:depth]
    n = len(vregs)
    if n == 1:
        A(f"  s_mov_b32 s{sB}, {SPIN}")
        A(f"{name}_lp:")
        A(f"  buffer_load_dword v{vregs[0]}, v{vaddr}, {sr(srd,4)}, 0 offen sc1")
        A(f"  s_waitcnt vmcnt(0)")
        A(f"  v_readfirstlane_b32 s{sA}, v{vregs[0]}")
        A(f"  s_nop 0")
        A(f"  s_cmp_ge_u32 s{sA}, {target}")
        A(f"  s_cbranch_scc1 {name}_ok")
        if sleep: A(f"  s_sleep {sleep}")
        A(f"  s_sub_u32 s{sB}, s{sB}, 1")
        A(f"  s_cmp_lg_u32 s{sB}, 0")
        A(f"  s_cbranch_scc1 {name}_lp")
        A(f"{name}_ok:")
        return
    for i in range(n-1):
        A(f"  buffer_load_dword v{vregs[i]}, v{vaddr}, {sr(srd,4)}, 0 offen sc1")
        A(f"  s_sleep {sleep}")
    A(f"  s_mov_b32 s{sB}, {SPIN//n}")
    A(f"{name}_lp:")
    for i in range(n):
        A(f"  buffer_load_dword v{vregs[(i+n-1)%n]}, v{vaddr}, {sr(srd,4)}, 0 offen sc1")
        A(f"  s_waitcnt vmcnt({n-1})")
        A(f"  v_readfirstlane_b32 s{sA}, v{vregs[i]}")
        A(f"  s_nop 0")
        A(f"  s_cmp_ge_u32 s{sA}, {target}")
        A(f"  s_cbranch_scc1 {name}_ok")
        A(f"  s_sleep {sleep}")
    A(f"  s_sub_u32 s{sB}, s{sB}, 1")
    A(f"  s_cmp_lg_u32 s{sB}, 0")
    A(f"  s_cbranch_scc1 {name}_lp")
    A(f"{name}_ok:")
```

```python
from common import *
from poll import poll_ge

NHELP = 32
UNIT = [131072 + 8192*p for p in range(4)] + [m*65536 + 8192*st for st in range(8) for m in range(2)]
def gen_kb(A, name="ffn_kernel", kidx=3, AHEAD=2, SPACE=2, NSLOT=20, SPIN=200000, B0=10, BR=2, QFL=24, QCK=27, EARLY=0, QPF=18, QDMA=18, PSLEEP=2, PK=1, ALLST=0, STAG=0, NIN=0, DSP=5, NPOST=8, NEPI=8, W2=0, PRIO=0):
    LDS = 4*NSLOT*2048
    assert LDS >= 131072
    REG = NSLOT*2048
    kernel_header(A, name)
    ST = Stamper(A, kidx); ST.stamp()
    sW, sH, sACT, sWD, sCNT, sX = 8, 12, 16, 20, 24, 28
    sw, sm, sWo, sM0, sf0, stb, sHo = 40, 41, 42, 43, 44, 45, 46
    sT0, sT1, sT2, sT3 = 47, 48, 49, 50
    sdb, stb64, skq, stt, sDo, sLb = 51, 52, 53, 54, 55, 56
    pWG, pWU, pWD, pWS, pOUT = 4, 6, 32, 34, 36
    A("  s_cmp_ge_u32 s2, 256")
    A(f"  s_cbranch_scc1 {name}_end")
    A(f"  s_load_dwordx4 s[4:7], s[0:1], {KA['wg']}")
    A(f"  s_load_dwordx2 s[{pWD}:{pWD+1}], s[0:1], {KA['wd']}")
    A(f"  s_load_dwordx2 s[{pWS}:{pWS+1}], s[0:1], {KA['ws']}")
    A(f"  s_load_dwordx2 s[{pOUT}:{pOUT+1}], s[0:1], {KA['out']}")
    vl, vWoff, vH, vAct, vt0, vt1, vt2, vt3, vRS = 1,2,3,4,5,6,7,8,14
    vA = 10
    vAf = 16
    vAcc = 48
    vX = 112
    A(f"  v_lshrrev_b32 v{vt0}, 6, v0")
    A(f"  v_and_b32 v{vl}, 63, v0")
    A(f"  v_readfirstlane_b32 s{sw}, v{vt0}")
    A("  s_and_b32 s3, s2, 7")
    A(f"  s_lshr_b32 s{sT0}, s2, 3")
    A(f"  s_and_b32 s{sdb}, s{sT0}, 7")
    A(f"  s_lshr_b32 s{sT1}, s{sT0}, 3")
    A(f"  s_lshl_b32 s{stb64}, s3, 2")
    A(f"  s_add_u32 s{stb64}, s{stb64}, s{sT1}")
    A(f"  s_lshr_b32 s{skq}, s{sw}, 1")
    A(f"  s_and_b32 s{stt}, s{sw}, 1")
    A(f"  s_mov_b32 s{sm}, s{stt}")
    A("  s_cmp_ge_u32 s2, 224")
    A(f"  s_cbranch_scc1 {name}_helper")
    A(f"  s_mul_i32 s{sT1}, s{sT0}, 37")
    A(f"  s_lshr_b32 s{sT1}, s{sT1}, 8")
    A(f"  s_mul_i32 s{sT2}, s{sT1}, 7")
    A(f"  s_sub_u32 s{sT2}, s{sT0}, s{sT2}")
    A(f"  s_and_b32 s{sT3}, s3, 1")
    A(f"  s_lshl_b32 s{sT3}, s{sT3}, 2")
    A(f"  s_add_u32 s{stb}, s{sT3}, s{sT1}")
    A(f"  s_lshr_b32 s{sT3}, s3, 1")
    A(f"  s_mul_i32 s{sT3}, s{sT3}, 7")
    A(f"  s_add_u32 s{sT3}, s{sT3}, s{sT2}")
    A(f"  s_lshl_b32 s{sf0}, s{sT3}, 6")
    A(f"  v_lshrrev_b32 v{vt0}, 3, v{vl}")
    A(f"  v_bfe_u32 v{vt1}, v{vl}, 4, 1")
    A(f"  s_lshl_b32 s{sT0}, s{sm}, 1")
    A(f"  v_bfe_u32 v{vt2}, v{vl}, 1, 2")
    A(f"  v_or_b32 v{vt1}, s{sT0}, v{vt1}")
    A(f"  v_xor_b32 v{vt1}, v{vt1}, v{vt2}")
    A(f"  v_and_b32 v{vt2}, 1, v{vl}")
    A(f"  v_lshlrev_b32 v{vt1}, 5, v{vt1}")
    A(f"  v_lshl_add_u32 v{vt1}, v{vt2}, 4, v{vt1}")
    A(f"  s_movk_i32 s{sT0}, 3584")
    A(f"  v_mad_u32_u24 v{vWoff}, v{vt0}, s{sT0}, v{vt1}")
    sTB32 = 57
    A(f"  s_lshl_b32 s{sTB32}, s{stb}, 3")
    A(f"  s_add_u32 s{sTB32}, s{sTB32}, s{sw}")
    A(f"  s_lshl_b32 s{sT1}, s{sTB32}, 15")
    A(f"  v_lshlrev_b32 v{vt0}, 4, v{vl}")
    A(f"  v_add_u32 v{vH}, s{sT1}, v{vt0}")
    A(f"  s_mul_i32 s{sWo}, s{skq}, {16*3584}")
    A(f"  s_lshl_b32 s{sT1}, s{sf0}, 1")
    A(f"  s_add_u32 s{sWo}, s{sWo}, s{sT1}")
    A(f"  s_lshl_b32 s{sM0}, s{skq}, 11")
    A(f"  s_lshl_b32 s{sT1}, s{sm}, 16")
    A(f"  s_add_u32 s{sM0}, s{sM0}, s{sT1}")
    A(f"  s_mov_b32 s{sHo}, 0")
    A("  s_waitcnt lgkmcnt(0)")
    A(f"  s_cmp_eq_u32 s{sm}, 0")
    A(f"  s_cselect_b32 s{sW}, s4, s6")
    A(f"  s_cselect_b32 s{sW+1}, s5, s7")
    A(f"  s_mov_b32 s{sW+2}, {512*1792*2}")
    A(f"  s_mov_b32 s{sW+3}, 0x20000")
    srd(A, sH, pWS, WS_H2, SZ2M)
    loadops = []
    for st in range(8):
        for ii in range(2):
            L = [f"  s_add_u32 m0, s{sM0}, {st*64*128 + ii*1024}"]
            if st or ii:
                inc = 8*3584 if ii else (64-8)*3584
                L.append(f"  s_add_u32 s{sWo}, s{sWo}, {inc}")
            else:
                L.append("  s_nop 0")
            L.append(f"  buffer_load_dwordx4 v{vWoff}, {sr(sW,4)}, s{sWo} offen lds")
            loadops.append(L)
        for qq in range(4):
            q = 4*st+qq
            L = [f"  buffer_load_dwordx4 {ar(4*q,4)}, v{vH}, {sr(sH,4)}, s{sHo} offen offset:{qq*1024}"]
            if qq == 3 and st < 7:
                L.append(f"  s_add_u32 s{sHo}, s{sHo}, 4096")
            loadops.append(L)
    state = dict(n=0, vm=0)
    mark = {}
    def emit_load():
        if state['n'] < 48:
            for x in loadops[state['n']]: A(x)
            state['n'] += 1; state['vm'] += 1
            if state['n'] % 6 == 0: mark[state['n']//6-1] = state['vm']
    def other_vm(line):
        A(line); state['vm'] += 1
        return state['vm']
    def wait_vm(idx):
        A(f"  s_waitcnt vmcnt({state['vm']-idx})")
    for _ in range(6): emit_load()
    srd(A, sACT, pWS, WS_ACT, SZ_ACT)
    srd(A, sWD, pWD, 0, 1792*512*2)
    srd(A, sCNT, pWS, WS_CNT, 4096)
    A(f"  v_bfe_u32 v{vt1}, v{vl}, 2, 2")
    A(f"  v_lshrrev_b32 v{vt2}, 5, v{vl}")
    A(f"  v_lshl_add_u32 v{vt2}, v{vt2}, 3, v{vt1}")
    A(f"  v_bfe_u32 v{vt3}, v{vl}, 4, 1")
    A(f"  v_lshlrev_b32 v{vt2}, 7, v{vt2}")
    A(f"  v_lshl_add_u32 v{vt2}, v{vt3}, 16, v{vt2}")
    A(f"  v_lshrrev_b32 v{vt1}, 1, v{vt1}")
    A(f"  v_lshl_or_b32 v{vt1}, v{vt3}, 1, v{vt1}")
    A(f"  v_and_b32 v{vt3}, 1, v{vl}")
    A(f"  v_lshl_add_u32 v{vt2}, v{vt3}, 4, v{vt2}")
    A(f"  v_bfe_u32 v{vt3}, v{vl}, 1, 1")
    A(f"  v_lshl_add_u32 v{vt2}, v{vt3}, 3, v{vt2}")
    for tau in range(4):
        A(f"  v_xor_b32 v{vt3}, {tau}, v{vt1}")
        A(f"  v_lshl_add_u32 v{vA+tau}, v{vt3}, 5, v{vt2}")
    A(f"  s_mul_i32 s{sT0}, s{sTB32}, 112")
    A(f"  s_lshr_b32 s{sT1}, s{sf0}, 4")
    A(f"  s_add_u32 s{sT0}, s{sT0}, s{sT1}")
    A(f"  s_lshl_b32 s{sT0}, s{sT0}, 10")
    A(f"  v_add_u32 v{vAct}, s{sT0}, v{vt0}")
    for st in range(1, AHEAD):
        A("  s_barrier")
        for _ in range(6): emit_load()
    vAE, vBE, vRo = vX+1, vX+2, vX+3
    A(f"  v_and_b32 v{vt1}, 3, v{vl}")
    A(f"  v_bfe_u32 v{vt2}, v{vl}, 2, 1")
    A(f"  v_lshl_add_u32 v{vt1}, v{vt2}, 3, v{vt1}")
    A(f"  v_bfe_u32 v{vt2}, v{vl}, 3, 1")
    A(f"  v_lshl_add_u32 v{vt1}, v{vt2}, 2, v{vt1}")
    A(f"  v_add_u32 v{vt1}, s{sf0}, v{vt1}")
    A(f"  v_bfe_u32 v{vt2}, v{vl}, 4, 1")
    A(f"  v_mul_u32_u24 v{vt2}, 1792, v{vt2}")
    A(f"  v_add_u32 v{vt1}, v{vt1}, v{vt2}")
    A(f"  v_lshlrev_b32 v{vAE}, 4, v{vt1}")
    A(f"  v_lshrrev_b32 v{vt2}, 5, v{vl}")
    A(f"  v_lshl_or_b32 v{vAE}, v{vt2}, 30, v{vAE}")
    A(f"  v_and_b32 v{vt1}, 31, v{vl}")
    A(f"  s_lshl_b32 s{sT0}, s{sTB32}, 5")
    A(f"  v_add_u32 v{vt1}, s{sT0}, v{vt1}")
    A(f"  v_lshlrev_b32 v{vRo}, 3, v{vt1}")
    A(f"  v_lshlrev_b32 v{vBE}, 4, v{vt1}")
    A(f"  v_lshl_or_b32 v{vBE}, v{vt2}, 30, v{vBE}")
    phase2_setup(A, locals())
    pre = phase2_preload_ops(locals())
    def dma_ok(p, q_done):
        if p < 4: return True
        st = (p-4)//2
        return st <= 5 and q_done >= 4*(st+2)-1
    def dma(q_done=None):
        if pre:
            p = NSLOT-len(pre)
            if q_done is not None and not dma_ok(p, q_done): return
            ops = pre.pop(0)
            for x in ops[:-1]: A(x)
            other_vm(ops[-1])
    def rd(q, tau):
        buf = q & 1
        return [f"  ds_read_b64_tr_b16 {vr(vAf+buf*16+tau*4+r*2,2)}, v{vA+tau} offset:{q*2048+r*512}" for r in range(2)]
    ST.stamp()
    def wait_stage(st):
        wait_vm(mark[st])
        A("  s_barrier")
    if PRIO:
        A(f"  s_cmp_lt_u32 s{sw}, 4")
        A(f"  s_cbranch_scc1 {name}_noprio")
        A("  s_setprio 1")
        A(f"{name}_noprio:")
    wait_stage(0)
    ST.stamp()
    for tau in range(4):
        for x in rd(0, tau): A(x)
    vFl = vX+4
    aE = 0
    import copy
    def emit_loop(grp):
        nonlocal_ = {}
        nout = 8
        slot = 0
        ext_idx = fl_idx = None
        for q in range(32):
            nxt = q+1 < 32
            if q == QFL:
                assert state['n'] == 48
                A(f"  s_and_b32 s{sT0}, s2, 7")
                A(f"  s_lshl_b32 s{sT0}, s{sT0}, 8")
                A(f"  s_add_u32 s{sT0}, s{sT0}, {8*256}")
                A(f"  s_cmp_eq_u32 s{sw}, 0")
                A(f"  s_cselect_b32 s{sT0}, s{sT0}, 0x4000")
                A(f"  v_mov_b32 v{vt1}, s{sT0}")
                fl_idx = other_vm(f"  buffer_load_dword v{vFl}, v{vt1}, {sr(sCNT,4)}, 0 offen sc1")
            if q == QCK:
                assert (q+1) % 4 == 0
                A(f"  s_cmp_lg_u32 s{sw}, 0")
                A(f"  s_cbranch_scc1 {name}_hok{grp}")
                wait_vm(fl_idx)
                A(f"  v_readfirstlane_b32 s{sT0}, v{vFl}")
                A(f"  s_mov_b32 s{sT1}, {SPIN}")
                A(f"{name}_hchk{grp}:")
                A(f"  s_cmp_ge_u32 s{sT0}, {NHELP}")
                A(f"  s_cbranch_scc1 {name}_hok{grp}")
                A("  s_sleep 2")
                A(f"  buffer_load_dword v{vFl}, v{vt1}, {sr(sCNT,4)}, 0 offen sc1")
                A("  s_waitcnt vmcnt(0)")
                A(f"  v_readfirstlane_b32 s{sT0}, v{vFl}")
                A(f"  s_sub_u32 s{sT1}, s{sT1}, 1")
                A(f"  s_cmp_lg_u32 s{sT1}, 0")
                A(f"  s_cbranch_scc1 {name}_hchk{grp}")
                A(f"{name}_hok{grp}:")
            if nxt and (q+1) % 4 == 0:
                st = (q+1)//4
                wait_stage(st)
                if (st in (2,4,6)) or (ALLST and st in (1,3,5,7)): ST.stamp()
            if q == QCK:
                srd(A, sX, pWS, WS_AEXT, 2*1792*16)
                for tau in range(4):
                    other_vm(f"  buffer_load_dwordx4 {ar(aE+4*tau,4)}, v{vAE}, {sr(sX,4)}, 0 offen offset:{256*tau} sc1")
                srd(A, sH, pWS, WS_BEXT, 2048*16)
                other_vm(f"  buffer_load_dwordx4 {ar(aE+16,4)}, v{vBE}, {sr(sH,4)}, 0 offen sc1")
                srd(A, sW, pWS, WS_RS, 2048*8)
                ext_idx = other_vm(f"  buffer_load_dwordx2 {vr(vRS,2)}, v{vRo}, {sr(sW,4)}, 0 offen sc1")
            if QPF > 0 and q == QPF:
                A(f"  s_lshr_b32 s{sT0}, s2, 3")
                A(f"  s_lshl_b32 s{sT0}, s{sT0}, 16")
                A(f"  v_lshlrev_b32 v{vt2}, 7, v0")
                other_vm(f"  buffer_load_dword v{vX}, v{vt2}, {sr(sWD,4)}, s{sT0} offen")
            buf = q & 1
            for tau in range(4):
                if W2:
                    if tau % 2 == 0:
                        A(f"  s_waitcnt lgkmcnt({nout-4})")
                    nout -= 2
                else:
                    A(f"  s_waitcnt lgkmcnt({nout-2})")
                    nout -= 2
                c = "0" if q == 0 else vr(vAcc+16*tau,16)
                A(f"  v_mfma_f32_32x32x16_bf16 {vr(vAcc+16*tau,16)}, {vr(vAf+buf*16+tau*4,4)}, {ar(4*q,4)}, {c}")
                if nxt:
                    for x in rd(q+1, tau): A(x)
                    nout += 2
                if (slot + grp) % SPACE == SPACE-1 and state['n'] < 48: emit_load()
                elif state['n'] == 48 and q >= QDMA and NSLOT-len(pre) < NIN and (slot % DSP) == DSP-1: dma(q)
                slot += 1
        return ext_idx
    if STAG:
        snap = (copy.deepcopy(state), copy.deepcopy(mark), list(pre), ST.n)
        A(f"  s_cmp_ge_u32 s{sw}, 4")
        A(f"  s_cbranch_scc1 {name}_loopB")
        e0 = emit_loop(0)
        endA = (copy.deepcopy(state), list(pre), ST.n)
        A(f"  s_branch {name}_loopEnd")
        A(f"{name}_loopB:")
        state.clear(); state.update(snap[0]); mark.clear(); mark.update(snap[1]); pre[:] = snap[2]; ST.n = snap[3]
        ext_idx = emit_loop(1)
        assert (state, pre, ST.n, ext_idx) == (endA[0], endA[1], endA[2], e0), (state, endA[0], len(pre), len(endA[1]), ext_idx, e0)
        A(f"{name}_loopEnd:")
    else:
        ext_idx = emit_loop(0)
    wait_vm(ext_idx)
    for tau in range(4):
        A(f"  v_mfma_f32_32x32x16_bf16 {vr(vAcc+16*tau,16)}, {ar(aE+4*tau,4)}, {ar(aE+16,4)}, {vr(vAcc+16*tau,16)}")
    A("  s_barrier")
    ST.stamp()
    k1, sd2 = vRS, vRS+1
    for tau in range(4):
        g = vAcc+16*tau
        u = g+8
        E = vAf if (tau & 1) == 0 else vAf+16
        for r in range(0, 8, 2):
            A(f"  v_pk_mul_f32 {vr(E+r,2)}, {vr(g+r,2)}, {vr(k1,2)} op_sel_hi:[1,0]")
        if NSLOT-len(pre) < NEPI: dma()
        for r in range(8):
            A(f"  v_exp_f32 v{E+r}, v{E+r}")
        for r in range(0, 8, 2):
            A(f"  v_pk_mul_f32 {vr(u+r,2)}, {vr(g+r,2)}, {vr(u+r,2)}")
        for r in range(0, 8, 2):
            A(f"  v_pk_fma_f32 {vr(E+r,2)}, {vr(E+r,2)}, {vr(k1,2)}, {vr(k1,2)} op_sel:[0,1,1] op_sel_hi:[1,1,1]")
        if NSLOT-len(pre) < NEPI: dma()
        for r in range(8):
            A(f"  v_rcp_f32 v{E+r}, v{E+r}")
        if NSLOT-len(pre) < NEPI and NEPI > 8: dma()
        else: A("  s_nop 0")
        for r in range(0, 8, 2):
            A(f"  v_pk_mul_f32 {vr(u+r,2)}, {vr(u+r,2)}, {vr(E+r,2)}")
        for i in range(4):
            A(f"  v_cvt_pk_bf16_f32 v{E+8+i}, v{u+2*i}, v{u+2*i+1}")
        A(f"  buffer_store_dwordx4 {vr(E+8,4)}, v{vAct}, {sr(sACT,4)}, 0 offen offset:{tau*1024} sc1")
    npost = 0
    while pre and npost < NPOST:
        dma(); npost += 1
    A(f"  s_waitcnt vmcnt({npost})")
    A("  s_barrier")
    ST.stamp()
    A(f"  s_cmp_lg_u32 s{sw}, 0")
    A(f"  s_cbranch_scc1 {name}_arrd")
    A(f"  s_lshl_b32 s{sT0}, s{stb}, 8")
    A(f"  v_mov_b32 v{vt0}, s{sT0}")
    A(f"  v_mov_b32 v{vt1}, 1")
    A(f"  s_mov_b64 exec, 1")
    A(f"  buffer_atomic_add v{vt1}, v{vt0}, {sr(sCNT,4)}, 0 offen sc1")
    A(f"  s_mov_b64 exec, -1")
    A(f"{name}_arrd:")
    while pre: dma()
    if max(NIN, NEPI) < 28-NSLOT:
        A("  s_waitcnt vmcnt(0)")
        A("  s_barrier")
    A(f"  s_branch {name}_p2")
    A(f"{name}_helper:")
    gen_helper(A, locals())
    phase2_setup(A, locals())
    phase2_preload(A, locals())
    A("  s_waitcnt vmcnt(0)")
    A("  s_barrier")
    A(f"{name}_p2:")
    gen_phase2(A, locals())
    A(f"{name}_end:")
    ST.flush(2)
    A("  s_endpgm")
    return dict(name=name, grid=256, block=512, lds=LDS, nvgpr=256, accum=128)

P2 = dict(vWd=124, vA0=10, vB=3, vXO=4, vEXw=5, vEXr=9, vX1=112, vGB=116)
def phase2_setup(A, L):
    vl, vt0, vt1, vt2 = L['vl'], L['vt0'], L['vt1'], L['vt2']
    sT0, sT1, skq, stt, sdb, stb64, sDo, sLb, REG = (L[k] for k in "sT0 sT1 skq stt sdb stb64 sDo sLb REG".split())
    vWd = P2['vWd']
    A(f"  v_lshrrev_b32 v{vt0}, 3, v{vl}")
    A(f"  v_lshrrev_b32 v{vt1}, 1, v{vt0}")
    A(f"  v_lshrrev_b32 v{vt2}, 2, v{vl}")
    A(f"  v_xor_b32 v{vt1}, v{vt1}, v{vt2}")
    A(f"  v_and_b32 v{vt1}, 1, v{vt1}")
    A(f"  v_lshlrev_b32 v{vt1}, 6, v{vt1}")
    A(f"  v_and_b32 v{vt2}, 3, v{vl}")
    A(f"  v_lshl_add_u32 v{vt1}, v{vt2}, 4, v{vt1}")
    A(f"  v_lshl_add_u32 v{vWd}, v{vt0}, 10, v{vt1}")
    A(f"  s_mul_i32 s{sDo}, s{skq}, {28*16*1024}")
    A(f"  s_lshl_b32 s{sT0}, s{stt}, 13")
    A(f"  s_add_u32 s{sDo}, s{sDo}, s{sT0}")
    A(f"  s_lshl_b32 s{sT0}, s{sdb}, 7")
    A(f"  s_add_u32 s{sDo}, s{sDo}, s{sT0}")
    A(f"  s_lshl_b32 s{sLb}, s{skq}, 11")
    A(f"  s_lshl_b32 s{sT0}, s{stt}, 10")
    A(f"  s_add_u32 s{sLb}, s{sLb}, s{sT0}")

def phase2_preload_ops(L):
    NSLOT, sLb, sDo, sWD = L['NSLOT'], L['sLb'], L['sDo'], L['sWD']
    ops = []
    for p in range(NSLOT):
        o = [f"  s_add_u32 m0, s{sLb}, {UNIT[p]}"]
        o.append(f"  s_add_u32 s{sDo}, s{sDo}, 16384" if p else "  s_nop 0")
        o.append(f"  buffer_load_dwordx4 v{P2['vWd']}, {sr(sWD,4)}, s{sDo} offen lds")
        ops.append(o)
    return ops
def phase2_preload(A, L):
    for o in phase2_preload_ops(L):
        for x in o: A(x)

def bf16_split(A, x, hi, lo, tmp):
    A(f"  v_cvt_pk_bf16_f32 v{hi}, v{x}, v{x}")
    A(f"  v_lshlrev_b32 v{tmp}, 16, v{hi}")
    A(f"  v_sub_f32 v{tmp}, v{x}, v{tmp}")
    A(f"  v_cvt_pk_bf16_f32 v{lo}, v{tmp}, v{tmp}")
    A(f"  v_and_b32 v{hi}, 0xffff, v{hi}")
    A(f"  v_and_b32 v{lo}, 0xffff, v{lo}")

def lane0_atomic_inc(A, name, sCNT, idx_bytes, vt0, vt1):
    A(f"  v_mov_b32 v{vt0}, {idx_bytes}")
    A(f"  v_mov_b32 v{vt1}, 1")
    A(f"  s_mov_b64 exec, 1")
    A(f"  buffer_atomic_add v{vt1}, v{vt0}, {sr(sCNT,4)}, 0 offen sc1")
    A(f"  s_mov_b64 exec, -1")

def gen_helper(A, L):
    name = L['name']
    vl, vt0, vt1, vt2, vt3 = L['vl'], L['vt0'], L['vt1'], L['vt2'], L['vt3']
    sw, sm, skq, sT0, sT1, sT2, sT3 = (L[k] for k in "sw sm skq sT0 sT1 sT2 sT3".split())
    sW, sH, sX, sWD, sCNT, sACT, pWS, pWD = (L[k] for k in "sW sH sX sWD sCNT sACT pWS pWD".split())
    sh = 57
    RED, RED2 = 131072, 133120
    vXs = 16
    vWl = 48
    vMc = 112
    A(f"  s_sub_u32 s{sh}, s2, 224")
    A("  s_waitcnt lgkmcnt(0)")
    srd(A, sH, pWS, WS_X1, SZ2M)
    srd(A, sWD, pWD, 0, 1792*512*2)
    srd(A, sCNT, pWS, WS_CNT, 4096)
    A(f"  s_cmp_eq_u32 s{sm}, 0")
    A(f"  s_cselect_b32 s{sW}, s4, s6")
    A(f"  s_cselect_b32 s{sW+1}, s5, s7")
    A(f"  s_mov_b32 s{sW+2}, {512*1792*2}")
    A(f"  s_mov_b32 s{sW+3}, 0x20000")
    A(f"  s_lshl_b32 s{sT0}, s{sh}, 1")
    A(f"  s_add_u32 s{sT0}, s{sT0}, s{sm}")
    A(f"  s_lshl_b32 s{sT0}, s{sT0}, 15")
    A(f"  s_lshl_b32 s{sT1}, s{skq}, 13")
    A(f"  s_add_u32 s{sT0}, s{sT0}, s{sT1}")
    A(f"  v_lshlrev_b32 v{vt0}, 4, v{vl}")
    for i in range(8):
        if i == 4: A(f"  s_add_u32 s{sT0}, s{sT0}, 4096")
        A(f"  buffer_load_dwordx4 {vr(vXs+4*i,4)}, v{vt0}, {sr(sH,4)}, s{sT0} offen offset:{(i&3)*1024}")
    vBo, vW0, vW1 = 9, 10, 11
    vAh = 112
    srd(A, sX, pWS, WS_MODH, 3072*2)
    A(f"  v_and_b32 v{vt1}, 31, v{vl}")
    A(f"  v_lshrrev_b32 v{vt2}, 5, v{vl}")
    A(f"  v_lshlrev_b32 v{vBo}, 4, v{vt2}")
    A(f"  v_lshlrev_b32 v{vt2}, 10, v{vt1}")
    A(f"  v_sub_u32 v{vt2}, 4096, v{vt2}")
    A(f"  v_add_u32 v{vBo}, v{vBo}, v{vt2}")
    A(f"  v_cmp_lt_u32 vcc, 1, v{vt1}")
    A(f"  v_mov_b32 v{vt2}, 0x40000000")
    A(f"  s_lshl_b32 s{sT0}, s{sw}, 7")
    A(f"  v_cndmask_b32 v{vBo}, v{vBo}, v{vt2}, vcc")
    for qq in range(4):
        A(f"  buffer_load_dwordx4 {ar(4*qq,4)}, v{vBo}, {sr(sX,4)}, s{sT0} offen offset:{32*qq}")
    A(f"  v_lshrrev_b32 v{vt0}, 3, v{vl}")
    A(f"  v_bfe_u32 v{vt1}, v{vl}, 4, 1")
    A(f"  v_bfe_u32 v{vt2}, v{vl}, 1, 2")
    A(f"  v_xor_b32 v{vt1}, v{vt1}, v{vt2}")
    A(f"  v_and_b32 v{vt2}, 1, v{vl}")
    A(f"  v_lshlrev_b32 v{vt2}, 4, v{vt2}")
    A(f"  s_movk_i32 s{sT1}, 3584")
    A(f"  v_mad_u32_u24 v{vt0}, v{vt0}, s{sT1}, v{vt2}")
    A(f"  v_lshl_add_u32 v{vW0}, v{vt1}, 5, v{vt0}")
    A(f"  v_xor_b32 v{vt1}, 2, v{vt1}")
    A(f"  v_lshl_add_u32 v{vW1}, v{vt1}, 5, v{vt0}")
    A(f"  s_and_b32 s{sT1}, s{sh}, 1")
    A(f"  s_lshl_b32 s{sT1}, s{sT1}, 2")
    A(f"  s_lshr_b32 s{sT2}, s{sh}, 3")
    A(f"  s_add_u32 s60, s{sT1}, s{sT2}")
    A(f"  s_bfe_u32 s{sT1}, s{sh}, 0x20001")
    A(f"  s_mul_i32 s{sT1}, s{sT1}, 7")
    A(f"  s_min_u32 s{sT2}, s60, 6")
    A(f"  s_add_u32 s61, s{sT1}, s{sT2}")
    A(f"  s_lshl_b32 s{sT2}, s61, 7")
    A(f"  s_mul_i32 s{sT1}, s{sw}, {64*3584}")
    A(f"  s_add_u32 s{sT2}, s{sT2}, s{sT1}")
    A(f"  s_lshl_b32 s{sT3}, s{sw}, 13")
    srd(A, sW, 4, 0, 512*1792*2)
    srd(A, sACT, 6, 0, 512*1792*2)
    for ii in range(8):
        A(f"  s_add_u32 m0, s{sT3}, {ii*1024}")
        A("  s_nop 0")
        A(f"  buffer_load_dwordx4 v{vW0}, {sr(sW,4)}, s{sT2} offen lds")
        A(f"  s_add_u32 m0, s{sT3}, {65536+ii*1024}")
        A("  s_nop 0")
        A(f"  buffer_load_dwordx4 v{vW1}, {sr(sACT,4)}, s{sT2} offen lds")
        if ii < 7: A(f"  s_add_u32 s{sT2}, s{sT2}, {8*3584}")
    A(f"  v_bfe_u32 v{vt1}, v{vl}, 2, 2")
    A(f"  v_lshrrev_b32 v{vt2}, 5, v{vl}")
    A(f"  v_lshl_add_u32 v{vt2}, v{vt2}, 3, v{vt1}")
    A(f"  v_bfe_u32 v{vt3}, v{vl}, 4, 1")
    A(f"  v_lshlrev_b32 v{vt2}, 7, v{vt2}")
    A(f"  v_lshl_add_u32 v{vt2}, v{vt3}, 16, v{vt2}")
    A(f"  v_lshrrev_b32 v{vt1}, 1, v{vt1}")
    A(f"  v_lshl_or_b32 v{vt1}, v{vt3}, 1, v{vt1}")
    A(f"  v_and_b32 v{vt3}, 1, v{vl}")
    A(f"  v_lshl_add_u32 v{vt2}, v{vt3}, 4, v{vt2}")
    A(f"  v_bfe_u32 v{vt3}, v{vl}, 1, 1")
    A(f"  v_lshl_add_u32 v{vt2}, v{vt3}, 3, v{vt2}")
    A(f"  v_add_u32 v{vt2}, s{sT3}, v{vt2}")
    for tau in range(4):
        A(f"  v_xor_b32 v{vt3}, {tau}, v{vt1}")
        A(f"  v_lshl_add_u32 v{vAh+tau}, v{vt3}, 5, v{vt2}")
    s1, s2 = 12, 13
    pa, pb, xx = 48, 50, 52
    for r in (pa, pa+1, pb, pb+1): A(f"  v_mov_b32 v{r}, 0")
    A(f"  s_waitcnt vmcnt({4+16})")
    if not L['ALLST']: L['ST'].stamp()
    for i in range(32):
        t = xx + 2*(i & 1)
        A(f"  v_lshlrev_b32 v{t}, 16, v{vXs+i}")
        A(f"  v_and_b32 v{t+1}, 0xffff0000, v{vXs+i}")
        A(f"  v_pk_add_f32 {vr(pa,2)}, {vr(pa,2)}, {vr(t,2)}")
        A(f"  v_pk_fma_f32 {vr(pb,2)}, {vr(t,2)}, {vr(t,2)}, {vr(pb,2)}")
    A(f"  v_add_f32 v{s1}, v{pa}, v{pa+1}")
    A(f"  v_add_f32 v{s2}, v{pb}, v{pb+1}")
    A("  s_nop 1")
    A(f"  v_permlane32_swap_b32 v{s1}, v{s2}")
    A("  s_nop 1")
    A(f"  v_add_f32 v{s1}, v{s1}, v{s2}")
    A(f"  s_lshl_b32 s{sT0}, s{sm}, 2")
    A(f"  s_add_u32 s{sT0}, s{sT0}, s{skq}")
    A(f"  s_lshl_b32 s{sT0}, s{sT0}, 8")
    A(f"  s_add_u32 s{sT0}, s{sT0}, {RED}")
    A(f"  v_lshlrev_b32 v{vt0}, 2, v{vl}")
    A(f"  v_add_u32 v{vt0}, s{sT0}, v{vt0}")
    A(f"  ds_write_b32 v{vt0}, v{s1} offset:0")
    vAf, vAcc = 16, 48
    A("  s_waitcnt vmcnt(0)")
    if not L['ALLST']: L['ST'].stamp()
    def hrd(qq):
        for tau in range(4):
            for r in range(2):
                A(f"  ds_read_b64_tr_b16 {vr(vAf+16*(qq&1)+tau*4+r*2,2)}, v{vAh+tau} offset:{qq*2048+r*512}")
    hrd(0)
    for qq in range(4):
        if qq < 3:
            hrd(qq+1)
            A("  s_waitcnt lgkmcnt(8)")
        else:
            A("  s_waitcnt lgkmcnt(0)")
        for tau in range(4):
            c = "0" if qq == 0 else vr(vAcc+16*tau,16)
            A(f"  v_mfma_f32_32x32x16_bf16 {vr(vAcc+16*tau,16)}, {ar(4*qq,4)}, {vr(vAf+16*(qq&1)+tau*4,4)}, {c}")
    if not L['ALLST']: L['ST'].stamp()
    A(f"  s_lshl_b32 s{sT0}, s{sw}, 10")
    A(f"  s_add_u32 s{sT0}, s{sT0}, {RED2}")
    A(f"  v_lshlrev_b32 v{vt0}, 3, v{vl}")
    A(f"  v_add_u32 v{vt0}, s{sT0}, v{vt0}")
    A(f"  s_mov_b32 s58, -1")
    A(f"  s_mov_b32 s59, 0")
    A("  s_nop 7")
    A(f"  s_mov_b64 exec, s[58:59]")
    for tau in range(4):
        A(f"  ds_write_b64 v{vt0}, {vr(vAcc+16*tau,2)} offset:{tau*256}")
    A(f"  s_mov_b64 exec, -1")
    A("  s_waitcnt lgkmcnt(0)")
    A("  s_barrier")
    if not L['ALLST']: L['ST'].stamp()
    U = 16
    A(f"  s_cmp_eq_u32 s{sw}, 0")
    A(f"  s_cbranch_scc1 {name}_hstat")
    A(f"  s_cmp_eq_u32 s{skq}, 1")
    A(f"  s_cbranch_scc0 {name}_hdone")
    A(f"  s_lshl_b32 s{sT0}, s{sm}, 9")
    A(f"  s_add_u32 s{sT0}, s{sT0}, {RED2}")
    A(f"  v_lshlrev_b32 v{vt0}, 3, v{vl}")
    A(f"  v_add_u32 v{vt0}, s{sT0}, v{vt0}")
    R = 48
    for w8 in range(8):
        A(f"  ds_read_b64 {vr(R+2*w8,2)}, v{vt0} offset:{w8*1024}")
    A("  s_waitcnt lgkmcnt(0)")
    for k in range(1,8):
        A(f"  v_add_f32 v{R}, v{R}, v{R+2*k}")
        A(f"  v_add_f32 v{R+1}, v{R+1}, v{R+2*k+1}")
    A(f"  v_mov_b32 v{U}, v{R}")
    A(f"  v_mov_b32 v{U+4}, v{R+1}")
    bf16_split(A, U, U+8, U+9, U+10)
    bf16_split(A, U+4, U+11, U+12, U+10)
    O = U+16
    A(f"  v_lshl_or_b32 v{O}, v{U+8}, 16, v{U+8}")
    A(f"  v_mov_b32 v{O+1}, v{U+9}")
    A(f"  v_lshl_or_b32 v{O+2}, v{U+11}, 16, v{U+11}")
    A(f"  v_mov_b32 v{O+3}, v{U+12}")
    srd(A, sX, pWS, WS_AEXT, 2*1792*16)
    A(f"  s_cmp_ge_u32 s60, 7")
    A(f"  s_cbranch_scc1 {name}_hdone")
    A(f"  v_and_b32 v{vt1}, 3, v{vl}")
    A(f"  v_bfe_u32 v{vt2}, v{vl}, 2, 1")
    A(f"  v_lshl_add_u32 v{vt1}, v{vt2}, 3, v{vt1}")
    A(f"  v_bfe_u32 v{vt2}, v{vl}, 3, 1")
    A(f"  v_lshl_add_u32 v{vt1}, v{vt2}, 2, v{vt1}")
    A(f"  v_lshrrev_b32 v{vt2}, 5, v{vl}")
    A(f"  v_lshl_add_u32 v{vt1}, v{vt2}, 4, v{vt1}")
    A(f"  v_bfe_u32 v{vt2}, v{vl}, 4, 1")
    A(f"  v_mul_u32_u24 v{vt2}, 1792, v{vt2}")
    A(f"  v_add_u32 v{vt1}, v{vt1}, v{vt2}")
    A(f"  s_lshl_b32 s{sT0}, s{sm}, 5")
    A(f"  s_lshl_b32 s{sT1}, s61, 6")
    A(f"  s_add_u32 s{sT0}, s{sT0}, s{sT1}")
    A(f"  s_lshl_b32 s{sT0}, s{sT0}, 4")
    A(f"  v_lshlrev_b32 v{vt0}, 4, v{vt1}")
    A(f"  buffer_store_dwordx4 {vr(O,4)}, v{vt0}, {sr(sX,4)}, s{sT0} offen sc1")
    A(f"  s_branch {name}_hdone")
    A(f"{name}_hstat:")
    A(f"  v_lshrrev_b32 v{vt0}, 5, v{vl}")
    A(f"  v_lshlrev_b32 v{vt0}, 10, v{vt0}")
    A(f"  v_and_b32 v{vt1}, 31, v{vl}")
    A(f"  v_lshl_add_u32 v{vt0}, v{vt1}, 2, v{vt0}")
    A(f"  v_add_u32 v{vt0}, {RED}, v{vt0}")
    for p in range(4):
        A(f"  ds_read_b32 v{U+p}, v{vt0} offset:{p*256}")
        A(f"  ds_read_b32 v{U+4+p}, v{vt0} offset:{p*256+128}")
    A("  s_waitcnt lgkmcnt(0)")
    for b in (U, U+4):
        A(f"  v_add_f32 v{b}, v{b}, v{b+1}")
        A(f"  v_add_f32 v{b+2}, v{b+2}, v{b+3}")
        A(f"  v_add_f32 v{b}, v{b}, v{b+2}")
    A(f"  s_mov_b32 s{sT0}, 0x3b000000")
    A(f"  s_mov_b32 s{sT1}, 0x3727c5ac")
    A(f"  v_mul_f32 v{U}, s{sT0}, v{U}")
    A(f"  v_mul_f32 v{U+4}, s{sT0}, v{U+4}")
    A(f"  v_fma_f32 v{U+4}, -v{U}, v{U}, v{U+4}")
    A(f"  v_max_f32 v{U+4}, 0, v{U+4}")
    A(f"  v_add_f32 v{U+4}, s{sT1}, v{U+4}")
    A(f"  v_sqrt_f32 v{U+5}, v{U+4}")
    A(f"  v_rsq_f32 v{U+6}, v{U+4}")
    A(f"  v_sub_f32 v{U}, 0, v{U}")
    A(f"  s_mov_b32 s{sT0}, 0xbfb8aa3b")
    A(f"  v_mul_f32 v{U+2}, s{sT0}, v{U+6}")
    A(f"  v_mov_b32 v{U+3}, v{U+4}")
    bf16_split(A, U, U+8, U+9, U+10)
    bf16_split(A, U+5, U+11, U+12, U+10)
    O = U+16
    A(f"  v_lshl_or_b32 v{O}, v{U+9}, 16, v{U+8}")
    A(f"  v_mov_b32 v{O+1}, v{U+8}")
    A(f"  v_lshl_or_b32 v{O+2}, v{U+12}, 16, v{U+11}")
    A(f"  v_mov_b32 v{O+3}, v{U+11}")
    srd(A, sX, pWS, WS_BEXT, 2048*16)
    srd(A, sH, pWS, WS_RS, 2048*8)
    A(f"  s_lshl_b32 s{sT0}, s{sh}, 10")
    A(f"  v_lshlrev_b32 v{vt0}, 4, v{vl}")
    A(f"  buffer_store_dwordx4 {vr(O,4)}, v{vt0}, {sr(sX,4)}, s{sT0} offen sc1")
    A(f"  s_lshl_b32 s{sT0}, s{sh}, 9")
    A(f"  v_lshlrev_b32 v{vt0}, 3, v{vl}")
    A(f"  buffer_store_dwordx2 {vr(U+2,2)}, v{vt0}, {sr(sH,4)}, s{sT0} offen sc1")
    A(f"{name}_hdone:")
    if not L['ALLST']: L['ST'].stamp()
    A("  s_waitcnt vmcnt(0)")
    A("  s_barrier")
    A(f"  s_cmp_lg_u32 s{sw}, 0")
    A(f"  s_cbranch_scc1 {name}_hsig")
    A(f"  v_lshlrev_b32 v{vt0}, 8, v{vl}")
    A(f"  v_add_u32 v{vt0}, {8*256}, v{vt0}")
    A(f"  v_mov_b32 v{vt1}, 1")
    A(f"  s_mov_b64 exec, 0xff")
    A(f"  buffer_atomic_add v{vt1}, v{vt0}, {sr(sCNT,4)}, 0 offen sc1")
    A(f"  s_mov_b64 exec, -1")
    A(f"{name}_hsig:")
    if L['QPF'] == 0:
        A(f"  s_lshr_b32 s{sT0}, s{sh}, 3")
        A(f"  s_mul_i32 s{sT0}, s{sT0}, 458752")
        A(f"  v_lshlrev_b32 v{vt0}, 7, v0")
        for i in range(7):
            A(f"  buffer_load_dword v{16+i}, v{vt0}, {sr(sWD,4)}, s{sT0} offen")
            if i < 6: A(f"  s_add_u32 s{sT0}, s{sT0}, 65536")

def gen_phase2(A, L):
    name, ST, NSLOT, SPIN, REG = L['name'], L['ST'], L['NSLOT'], L['SPIN'], L['REG']
    vl, vt0, vt1, vt2 = L['vl'], L['vt0'], L['vt1'], L['vt2']
    sw, skq, stt, sdb, stb64, sT0, sT1, sT2, sLb, sDo = (L[k] for k in "sw skq stt sdb stb64 sT0 sT1 sT2 sLb sDo".split())
    sW, sH, sX, sWD, sCNT, sACT, pWS, pOUT = (L[k] for k in "sW sH sX sWD sCNT sACT pWS pOUT".split())
    vWd, vA0, vB, vXO, vEXw, vEXr, vX1, vGB = (P2[k] for k in "vWd vA0 vB vXO vEXw vEXr vX1 vGB".split())
    vt0, vt1, vt2 = 6, 7, 8
    vAf, vAcc = 16, 48
    A(f"  v_lshrrev_b32 v{vt0}, 5, v{vl}")
    A(f"  v_lshlrev_b32 v{vt0}, 3, v{vt0}")
    A(f"  v_bfe_u32 v{vt1}, v{vl}, 2, 2")
    A(f"  v_add_u32 v{vt0}, v{vt0}, v{vt1}")
    A(f"  v_lshlrev_b32 v{vA0}, 7, v{vt0}")
    A(f"  v_lshrrev_b32 v{vt1}, 1, v{vt1}")
    A(f"  v_lshlrev_b32 v{vt1}, 6, v{vt1}")
    A(f"  v_and_b32 v{vt0}, 1, v{vl}")
    A(f"  v_lshlrev_b32 v{vt0}, 5, v{vt0}")
    A(f"  v_bfe_u32 v{vt2}, v{vl}, 1, 1")
    A(f"  v_lshl_add_u32 v{vt0}, v{vt2}, 3, v{vt0}")
    A(f"  v_bfe_u32 v{vt2}, v{vl}, 4, 1")
    A(f"  v_lshl_add_u32 v{vt0}, v{vt2}, 4, v{vt0}")
    A(f"  v_add_u32 v{vA0}, v{vA0}, v{vt0}")
    A(f"  s_lshl_b32 s{sT0}, s{skq}, 11")
    A(f"  v_add_u32 v{vA0}, s{sT0}, v{vA0}")
    A(f"  v_xor_b32 v{vt2}, 64, v{vt1}")
    A(f"  v_add_u32 v{vA0+1}, v{vA0}, v{vt2}")
    A(f"  v_add_u32 v{vA0}, v{vA0}, v{vt1}")
    for blk in (1, 2):
        for tau in range(2):
            A(f"  v_add_u32 v{vA0+2*blk+tau}, {65536*blk}, v{vA0+tau}")
    def trd(dst, p, tau, r, agpr=False):
        u = UNIT[p]
        reg = (ar if agpr else vr)(dst, 2)
        return f"  ds_read_b64_tr_b16 {reg}, v{vA0+2*(u>>16)+tau} offset:{(u & 0xffff)+r*512}"
    NREG = 28-NSLOT
    STG = [(32,False),(40,False),(80,False),(88,False),(96,False),(104,False),(112,True),(120,True)]
    for kk in range(NREG):
        base, ag = STG[kk]
        for tau in range(2):
            for r in range(2):
                A(trd(base+4*tau+2*r, kk, tau, r, ag))
        if kk % 3 == 2: A("  s_waitcnt lgkmcnt(4)")
    A("  s_waitcnt lgkmcnt(0)")
    A("  s_barrier")
    for p in range(NREG):
        A(f"  s_add_u32 m0, s{sLb}, {UNIT[p]}")
        A(f"  s_add_u32 s{sDo}, s{sDo}, 16384")
        A(f"  buffer_load_dwordx4 v{vWd}, {sr(sWD,4)}, s{sDo} offen lds")
    A(f"  s_lshl_b32 s{sT0}, s{stb64}, 1")
    A(f"  s_add_u32 s{sT2}, s{sT0}, s{stt}")
    A(f"  s_mul_i32 s{sT0}, s{sT2}, 112")
    A(f"  s_mul_i32 s{sT1}, s{skq}, 28")
    A(f"  s_add_u32 s{sT0}, s{sT0}, s{sT1}")
    A(f"  s_lshl_b32 s{sT0}, s{sT0}, 10")
    A(f"  v_lshlrev_b32 v{vt0}, 4, v{vl}")
    A(f"  v_add_u32 v{vB}, s{sT0}, v{vt0}")
    A(f"  s_lshl_b32 s{sT0}, s{stt}, 16")
    A(f"  s_add_u32 s{sT0}, s{sT0}, 16384")
    A(f"  s_lshl_b32 s{sT1}, s{skq}, 11")
    A(f"  s_add_u32 s{sT1}, s{sT1}, s{sT0}")
    A(f"  v_add_u32 v{vEXw}, s{sT1}, v{vt0}")
    A(f"  s_lshl_b32 s{sT1}, s{skq}, 13")
    A(f"  s_add_u32 s{sT1}, s{sT1}, s{sT0}")
    A(f"  v_add_u32 v{vEXr}, s{sT1}, v{vt0}")
    A(f"  s_lshr_b32 s{sT0}, s{skq}, 1")
    A(f"  s_lshl_b32 s{sT0}, s{sT0}, 5")
    A(f"  s_and_b32 s{sT1}, s{skq}, 1")
    A(f"  s_lshl_b32 s{sT1}, s{sT1}, 3")
    A(f"  s_add_u32 s{sT0}, s{sT0}, s{sT1}")
    A(f"  s_lshl_b32 s{sT1}, s{sdb}, 6")
    A(f"  s_add_u32 s{sT0}, s{sT0}, s{sT1}")
    A(f"  v_lshrrev_b32 v{vt1}, 5, v{vl}")
    A(f"  v_lshlrev_b32 v{vt1}, 4, v{vt1}")
    A(f"  v_add_u32 v{vt1}, s{sT0}, v{vt1}")
    A(f"  v_and_b32 v{vt0}, 31, v{vl}")
    A(f"  s_lshl_b32 s{sT1}, s{sT2}, 15")
    A(f"  v_lshrrev_b32 v{vt2}, 4, v{vt1}")
    A(f"  v_lshlrev_b32 v{vt2}, 10, v{vt2}")
    A(f"  v_lshl_add_u32 v{vt2}, v{vt0}, 4, v{vt2}")
    A(f"  v_bfe_u32 v{vXO}, v{vt1}, 3, 1")
    A(f"  v_lshl_add_u32 v{vt2}, v{vXO}, 9, v{vt2}")
    srd(A, sH, pWS, WS_X1, SZ2M)
    A(f"  buffer_load_dwordx4 {vr(vX1,4)}, v{vt2}, {sr(sH,4)}, s{sT1} offen")
    srd(A, sX, pWS, WS_MOD + 5*2048, 2048)
    A(f"  v_lshlrev_b32 v{vt2}, 2, v{vt1}")
    A(f"  buffer_load_dwordx4 {vr(vGB,4)}, v{vt2}, {sr(sX,4)}, 0 offen")
    A(f"  buffer_load_dwordx4 {vr(vGB+4,4)}, v{vt2}, {sr(sX,4)}, 0 offen offset:16")
    A(f"  s_lshl_b32 s{sT1}, s{sT2}, 15")
    A(f"  v_lshlrev_b32 v{vXO}, 10, v{vt0}")
    A(f"  v_lshl_add_u32 v{vXO}, v{vt1}, 1, v{vXO}")
    A(f"  v_add_u32 v{vXO}, s{sT1}, v{vXO}")
    srd(A, sACT, pWS, WS_ACT, SZ_ACT)
    srd(A, sW, pOUT, 0, SZ2M)
    A("  s_waitcnt vmcnt(0)")
    A(f"  s_cmp_lg_u32 s{sw}, 0")
    A(f"  s_cbranch_scc1 {name}_s3w")
    A(f"  s_lshr_b32 s{sT0}, s{stb64}, 2")
    A(f"  s_lshl_b32 s{sT0}, s{sT0}, 8")
    A(f"  v_mov_b32 v{vt0}, s{sT0}")
    poll_ge(A, f"{name}_s3", sCNT, vt0, [125, 126, 127, 7], 28, sT0, sT1, SPIN, L['PSLEEP'])
    A(f"{name}_s3w:")
    A("  s_barrier")
    ST.stamp()
    A(f"  s_mov_b32 s{sT0}, 0")
    vm = dict(n=0)
    bidx = {}
    def bload():
        kk = len(bidx)
        if kk >= 28: return
        A(f"  buffer_load_dwordx4 {ar(4*kk,4)}, v{vB}, {sr(sACT,4)}, s{sT0} offen offset:{(kk&3)*1024} sc1")
        if (kk & 3) == 3: A(f"  s_add_u32 s{sT0}, s{sT0}, 4096")
        vm['n'] += 1
        bidx[kk] = vm['n']
    def rd(kk):
        if kk < NREG: return []
        slot = kk % NSLOT
        buf = kk & 1
        return [trd(vAf+buf*8+tau*4+r*2, slot, tau, r) for tau in range(2) for r in range(2)]
    B0 = L['B0']; BR = L['BR']
    for _ in range(B0): bload()
    for kk in range(28):
        if kk == 22: A("  s_barrier")
        nx = rd(kk+1) if kk+1 < 28 else []
        for x in nx: A(x)
        assert kk in bidx, kk
        A(f"  s_waitcnt vmcnt({vm['n']-bidx[kk]})")
        if kk >= NREG:
            A(f"  s_waitcnt lgkmcnt({len(nx)})")
        buf = kk & 1
        for tau in range(2):
            c = "0" if kk == 0 else vr(vAcc+16*tau,16)
            if kk < NREG:
                base, ag = STG[kk]
                aop = (ar if ag else vr)(base+4*tau, 4)
            else:
                aop = vr(vAf+buf*8+tau*4,4)
            A(f"  v_mfma_f32_32x32x16_bf16 {vr(vAcc+16*tau,16)}, {aop}, {ar(4*kk,4)}, {c}")
            if tau < BR: bload()
    ST.stamp()
    vU = 80
    for i in range(4):
        A(f"  v_lshlrev_b32 v{vU+2*i}, 16, v{vX1+i}")
        A(f"  v_and_b32 v{vU+2*i+1}, 0xffff0000, v{vX1+i}")
    A("  s_nop 4")
    for o in range(4):
        for a in range(2):
            A(f"  ds_write_b128 v{vEXw}, {vr(vAcc+16*(o>>1)+8*(o&1)+4*a,4)} offset:{o*8192+a*1024}")
    A("  s_waitcnt lgkmcnt(0)")
    A("  s_barrier")
    vT = 16
    for s in range(4):
        for a in range(2):
            A(f"  ds_read_b128 {vr(vT+8*s+4*a,4)}, v{vEXr} offset:{s*2048+a*1024}")
    A("  s_waitcnt lgkmcnt(4)")
    for r in range(0, 8, 2):
        A(f"  v_pk_add_f32 {vr(vT+r,2)}, {vr(vT+r,2)}, {vr(vT+8+r,2)}")
    A("  s_waitcnt lgkmcnt(0)")
    for r in range(0, 8, 2):
        A(f"  v_pk_add_f32 {vr(vT+16+r,2)}, {vr(vT+16+r,2)}, {vr(vT+24+r,2)}")
    for r in range(0, 8, 2):
        A(f"  v_pk_add_f32 {vr(vT+r,2)}, {vr(vT+r,2)}, {vr(vT+16+r,2)}")
    for r in range(0, 8, 2):
        A(f"  v_pk_fma_f32 {vr(vT+r,2)}, {vr(vT+r,2)}, {vr(vGB+r,2)}, {vr(vU+r,2)}")
    for i in range(4):
        A(f"  v_cvt_pk_bf16_f32 v{vU+i}, v{vT+2*i}, v{vT+2*i+1}")
    A(f"  buffer_store_dwordx4 {vr(vU,4)}, v{vXO}, {sr(sW,4)}, 0 offen")
```

```python
from common import *
from k3 import wave_reduce
from poll import poll_ge

C_KV = 16
WS_ALL = 0x1300000

def gen_ka2(A, name="conv_kernel", kidx=0, SPIN=200000, PREFETCH=True, PSLEEP=2, ORD=1, TOUCH=0):
    XR1, HC, HCH, MD, EX = 4608, 9216, 4*4160, 42496, 43008
    TT, XT, MS = EX, EX+8192, EX+8192+9216
    LDS = EX + 65536
    kernel_header(A, name)
    ST = Stamper(A, kidx); ST.stamp()
    sK, sV, sSH, sXq, sH, sWS, sWM, sDBG, sPF = 8, 12, 16, 20, 24, 28, 32, 36, 40
    stb, scb, sw, sc, sch, sqq, sD = 4, 5, 6, 7, 3, 100, 101
    a, b, c_, d_ = 44, 45, 46, 47
    pD, pC, pWG, pWD = 48, 50, 52, 56
    A("  s_cmp_ge_u32 s2, 256")
    A(f"  s_cbranch_scc1 {name}_end")
    for dst, key in ((sK,'k'),(sV,'v'),(sSH,'shift'),(sXq,'q'),(sH,'ssm'),(sWS,'ws'),(sWM,'wmod'),(sDBG,'dbg'),(pD,'D'),(pC,'c')):
        A(f"  s_load_dwordx2 s[{dst}:{dst+1}], s[0:1], {KA[key]}")
    for dst, size in ((sK,SZ2M),(sV,SZ2M),(sSH,4096),(sXq,SZ2M),(sH,SZ2M),(sWS,WS_ALL),(sWM,512*3072*2),(sDBG,256)):
        A(f"  s_mov_b32 s{dst+2}, {hex(size)}")
        A(f"  s_mov_b32 s{dst+3}, 0x20000")
    vl, t0, t1, t2, t3 = 1, 2, 3, 4, 5
    vb, vW, vR, vG, vSo, vXro, vT16, vFl = 6, 7, 8, 9, 10, 11, 12, 13
    vKo = 14
    vK, vV, vS, vXt, vXr = 18, 28, 32, 40, 44
    vC, vWm, vOA = 48, 52, 49
    vL = 60
    vKf, vSf, vO = 72, 92, 108
    A(f"  s_lshr_b32 s{stb}, s2, 3")
    A(f"  s_and_b32 s{scb}, s2, 7")
    A(f"  v_lshrrev_b32 v{t2}, 6, v0")
    A(f"  v_and_b32 v{vl}, 63, v0")
    A(f"  v_readfirstlane_b32 s{sw}, v{t2}")
    A(f"  v_and_b32 v{t0}, 15, v0")
    A(f"  v_lshrrev_b32 v{t1}, 4, v0")
    A(f"  v_lshlrev_b32 v{vT16}, 4, v0")
    A(f"  s_lshl_b32 s{a}, s{stb}, 16")
    A(f"  s_lshl_b32 s{b}, s{scb}, 7")
    A(f"  s_add_u32 s{a}, s{a}, s{b}")
    A(f"  v_lshlrev_b32 v{vb}, 11, v{t1}")
    A(f"  v_lshl_add_u32 v{vb}, v{t0}, 3, v{vb}")
    A(f"  v_add_u32 v{vb}, s{a}, v{vb}")
    for i in range(3):
        A(f"  v_add_u32 v{vKo+i}, {hex((-(3-i)*1024) & 0xffffffff)}, v{vb}")
    A(f"  s_lshl_b32 s{b}, s{scb}, 9")
    A(f"  v_lshl_add_u32 v{vSo}, v{t0}, 5, s{b}")
    A(f"  s_lshl_b32 s{c_}, s2, 3")
    A(f"  s_add_u32 s{c_}, s{c_}, s{sw}")
    A(f"  s_lshl_b32 s{c_}, s{c_}, 10")
    A(f"  v_lshlrev_b32 v{vXro}, 4, v{vl}")
    A(f"  s_lshl_b32 s{sc}, s{scb}, 5")
    A(f"  s_add_u32 s{sc}, s{sc}, s{stb}")
    A(f"  s_lshr_b32 s{sch}, s{sw}, 2")
    A(f"  s_and_b32 s{sqq}, s{sw}, 3")
    A(f"  v_lshrrev_b32 v{t2}, 3, v{vl}")
    A(f"  s_lshl_b32 s{a}, s{stb}, 5")
    A(f"  v_lshl_add_u32 v{t3}, v{t2}, 2, s{a}")
    A(f"  v_mul_u32_u24 v{vOA}, 12288, v{t2}")
    A(f"  v_and_b32 v{t2}, 7, v{vl}")
    A(f"  v_lshl_add_u32 v{vOA}, v{t2}, 4, v{vOA}")
    A(f"  s_mul_i32 s{a}, s{stb}, {16*6144}")
    A(f"  s_lshl_b32 s{b}, s{scb}, 7")
    A(f"  s_add_u32 s{a}, s{a}, s{b}")
    A(f"  s_lshl_b32 s{b}, s{sw}, 10")
    A(f"  s_add_u32 s{a}, s{a}, s{b}")
    A(f"  s_cmp_lt_u32 s{sw}, 6")
    A(f"  s_cselect_b32 s{a}, s{a}, 0x40000000")
    A(f"  s_add_u32 s{b}, s{a}, 6144")
    A("  s_waitcnt lgkmcnt(0)")
    A("  s_cmp_lg_u32 s2, 0")
    A(f"  s_cbranch_scc1 {name}_nozs")
    for i in range(4): A(f"  v_mov_b32 v{vO+i}, 0")
    A(f"  s_mov_b32 s{d_}, {WS_CNT}")
    A(f"  buffer_store_dwordx4 {vr(vO,4)}, v{vT16}, {sr(sWS,4)}, s{d_} offen sc1")
    for i in range(2):
        A(f"  s_mov_b32 s{d_}, {WS_ST1+8192*i}")
        A(f"  buffer_store_dwordx4 {vr(vO,4)}, v{vT16}, {sr(sWS,4)}, s{d_} offen sc1")
    A(f"{name}_nozs:")
    for i in range(3):
        A(f"  buffer_load_dwordx2 {vr(vK+2*i,2)}, v{vKo+i}, {sr(sK,4)}, 0 offen")
    for i in range(2):
        A(f"  buffer_load_dwordx2 {vr(vK+6+2*i,2)}, v{vb}, {sr(sK,4)}, 0 offen offset:{1024*i}")
    for i in range(2):
        A(f"  buffer_load_dwordx2 {vr(vV+2*i,2)}, v{vb}, {sr(sV,4)}, 0 offen offset:{1024*i}")
    for i in range(2):
        A(f"  buffer_load_dwordx4 {vr(vS+4*i,4)}, v{vSo}, {sr(sSH,4)}, 0 offen offset:{16*i}")
    if ORD: A("  s_barrier")
    for i in range(2):
        A(f"  buffer_load_dwordx2 {vr(vXt+2*i,2)}, v{vb}, {sr(sXq,4)}, 0 offen offset:{1024*i}")
    A(f"  buffer_load_dwordx4 {vr(vXr,4)}, v{vXro}, {sr(sXq,4)}, s{c_} offen")
    A(f"  s_mov_b32 s{sSH}, s{pC}")
    A(f"  s_mov_b32 s{sSH+1}, s{pC+1}")
    A(f"  s_movk_i32 s{sSH+2}, 1024")
    A(f"  buffer_load_dword v{vC}, v{t3}, {sr(sSH,4)}, 0 offen")
    A(f"  buffer_load_dwordx4 {vr(vWm,4)}, v{vOA}, {sr(sWM,4)}, s{a} offen")
    A(f"  buffer_load_dwordx4 {vr(vWm+4,4)}, v{vOA}, {sr(sWM,4)}, s{b} offen")
    NP1 = 15
    if TOUCH:
        A(f"  s_cmp_lg_u32 s{sw}, 7")
        A(f"  s_cbranch_scc1 {name}_notouch")
        A(f"  v_min_u32 v{t2}, 19, v{vl}")
        A(f"  v_lshlrev_b32 v{t2}, 20, v{t2}")
        A(f"  buffer_load_dword v230, v{t2}, {sr(sWS,4)}, 0 offen")
        A(f"{name}_notouch:")
    A("  s_cmp_lg_u32 s2, 0")
    A(f"  s_cbranch_scc1 {name}_nozero")
    A(f"  s_waitcnt vmcnt({NP1})")
    A("  s_barrier")
    A(f"  s_cmp_lg_u32 s{sw}, 0")
    A(f"  s_cbranch_scc1 {name}_nozero")
    A(f"  v_mov_b32 v{t2}, 0")
    A(f"  v_mov_b32 v{t3}, 1")
    A(f"  s_mov_b64 exec, 1")
    A(f"  buffer_store_dword v{t3}, v{t2}, {sr(sDBG,4)}, 0 offen sc1")
    A(f"  s_mov_b64 exec, -1")
    A(f"{name}_nozero:")
    A(f"  s_lshl_b32 s{a}, s{sc}, 2")
    A(f"  s_load_dword s{sD}, s[{pD}:{pD+1}], s{a}")
    if PREFETCH:
        A(f"  s_load_dwordx4 s[{pWG}:{pWG+3}], s[0:1], {KA['wg']}")
        A(f"  s_load_dwordx2 s[{pWD}:{pWD+1}], s[0:1], {KA['wd']}")
    A(f"  v_sub_u32 v{t2}, 31, v{t1}")
    A(f"  v_lshrrev_b32 v{vW}, 2, v{t2}")
    A(f"  v_and_b32 v{t3}, 7, v{t0}")
    A(f"  v_xor_b32 v{vW}, v{vW}, v{t3}")
    A(f"  v_lshlrev_b32 v{vW}, 4, v{vW}")
    A(f"  v_and_b32 v{t2}, 3, v{t2}")
    A(f"  v_lshl_add_u32 v{vW}, v{t2}, 2, v{vW}")
    A(f"  v_lshl_add_u32 v{vW}, v{t0}, 9, v{vW}")
    A(f"  v_add_u32 v{vW}, {TT}, v{vW}")
    A(f"  v_lshrrev_b32 v{t2}, 3, v0")
    A(f"  v_and_b32 v{t3}, 7, v0")
    A(f"  v_bfe_u32 v{vR}, v0, 5, 3")
    A(f"  v_xor_b32 v{vR}, v{vR}, v{t3}")
    A(f"  v_lshlrev_b32 v{vR}, 4, v{vR}")
    A(f"  v_lshl_add_u32 v{vR}, v{t2}, 7, v{vR}")
    A(f"  v_add_u32 v{vR}, {TT}, v{vR}")
    A(f"  s_lshl_b32 s{a}, s{scb}, 18")
    A(f"  s_lshl_b32 s{b}, s{stb}, 7")
    A(f"  s_sub_u32 s{a}, s{a}, s{b}")
    A(f"  s_add_u32 s{a}, s{a}, {3968+WS_KVR}")
    A(f"  v_lshlrev_b32 v{vG}, 12, v{t2}")
    A(f"  v_lshl_add_u32 v{vG}, v{t3}, 4, v{vG}")
    A(f"  v_add_u32 v{vG}, s{a}, v{vG}")
    vXw = vSo
    A(f"  v_mul_u32_u24 v{vXw}, 288, v{t1}")
    A(f"  v_lshl_add_u32 v{vXw}, v{t0}, 3, v{vXw}")
    A(f"  v_add_u32 v{vXw}, {XT}, v{vXw}")
    A(f"  s_waitcnt vmcnt(6)")
    ST.stamp()
    for ch in range(4):
        for dd in range(2):
            src = vS + 2*ch + dd
            p, e = ch >> 1, ch & 1
            A(f"  v_lshlrev_b32 v{vSf+((2*dd)*2+p)*2+e}, 16, v{src}")
            A(f"  v_and_b32 v{vSf+((2*dd+1)*2+p)*2+e}, 0xffff0000, v{src}")
    for r in range(5):
        for p in range(2):
            A(f"  v_lshlrev_b32 v{vKf+(r*2+p)*2}, 16, v{vK+2*r+p}")
            A(f"  v_and_b32 v{vKf+(r*2+p)*2+1}, 0xffff0000, v{vK+2*r+p}")
    O = vO
    for j in range(4):
        for tk in range(2):
            for p in range(2):
                kk = vKf+((3+tk-j)*2+p)*2; ww = vSf+(j*2+p)*2; o = O+(tk*2+p)*2
                if j == 0: A(f"  v_pk_mul_f32 {vr(o,2)}, {vr(kk,2)}, {vr(ww,2)}")
                else: A(f"  v_pk_fma_f32 {vr(o,2)}, {vr(kk,2)}, {vr(ww,2)}, {vr(o,2)}")
    for tk in range(2):
        for p in range(2):
            A(f"  v_lshlrev_b32 v{vKf+(tk*2+p)*2}, 16, v{vV+2*tk+p}")
            A(f"  v_and_b32 v{vKf+(tk*2+p)*2+1}, 0xffff0000, v{vV+2*tk+p}")
    for tk in range(2):
        for p in range(2):
            o = O+(tk*2+p)*2
            A(f"  v_pk_mul_f32 {vr(o,2)}, {vr(o,2)}, {vr(vKf+(tk*2+p)*2,2)}")
    for ch in range(4):
        p, e = ch >> 1, ch & 1
        A(f"  v_cvt_pk_bf16_f32 v{vKf+8+ch}, v{O+(2+p)*2+e}, v{O+p*2+e}")
    for ch in range(4):
        A(f"  ds_write_b32 v{vW}, v{vKf+8+ch} offset:{128*ch}")
    A("  s_waitcnt lgkmcnt(0)")
    A("  s_barrier")
    A(f"  ds_read_b128 {vr(vO,4)}, v{vR}")
    A(f"  v_and_b32 v{t0}, 15, v0")
    A(f"  v_lshrrev_b32 v{t1}, 4, v0")
    A(f"  v_mul_u32_u24 v{t2}, 144, v{t0}")
    A(f"  v_lshl_add_u32 v{t2}, v{t1}, 2, v{t2}")
    A(f"  v_add_u32 v{vR}, {XT}, v{t2}")
    A("  s_waitcnt lgkmcnt(0)")
    A(f"  buffer_store_dwordx4 {vr(vO,4)}, v{vG}, {sr(sWS,4)}, 0 offen sc1")
    ST.stamp()
    A(f"  v_and_b32 v{t2}, 255, v0")
    A(f"  v_lshlrev_b32 v{vT16}, 4, v{t2}")
    A(f"  s_lshl_b32 s{a}, s{sc}, 13")
    A(f"  s_lshl_b32 s{b}, s{sch}, 12")
    A(f"  s_add_u32 s{a}, s{a}, s{b}")
    for k in range(3):
        A(f"  buffer_load_dwordx4 {vr(vL+4*k,4)}, v{vT16}, {sr(sH,4)}, s{a} offen offset:{4*k}")
    A(f"  s_cmp_eq_u32 s{sw}, 0")
    A(f"  s_cselect_b32 s{a}, 0, 0x400")
    A(f"  v_mov_b32 v{t2}, s{a}")
    A(f"  buffer_load_dword v{vFl}, v{t2}, {sr(sDBG,4)}, 0 offen sc1")
    A("  s_waitcnt vmcnt(9)")
    for i in range(2):
        A(f"  ds_write_b64 v{vXw}, {vr(vXt+2*i,2)} offset:{144*i}")
    A(f"  s_lshl_b32 s{a}, s{scb}, 18")
    A(f"  s_lshl_b32 s{b}, s{stb}, 8")
    A(f"  s_add_u32 s{a}, s{a}, s{b}")
    A(f"  s_add_u32 s{d_}, s{a}, {WS_XP}")
    A(f"  v_lshlrev_b32 v{vG}, 13, v{t1}")
    A(f"  v_lshl_add_u32 v{vG}, v{t0}, 4, v{vG}")
    A("  s_waitcnt lgkmcnt(0)")
    A("  s_barrier")
    for r in range(4):
        A(f"  ds_read_b32 v{vO+4+r}, v{vR} offset:{r*16*144}")
    A("  s_waitcnt vmcnt(8)")
    F, S1, S2 = vKf, vKf+8, vKf+10
    for i in range(4):
        A(f"  v_lshlrev_b32 v{F+2*i}, 16, v{vXr+i}")
        A(f"  v_and_b32 v{F+2*i+1}, 0xffff0000, v{vXr+i}")
    A(f"  v_pk_add_f32 {vr(S1,2)}, {vr(F,2)}, {vr(F+2,2)}")
    A(f"  v_pk_mul_f32 {vr(S2,2)}, {vr(F,2)}, {vr(F,2)}")
    A(f"  v_pk_add_f32 {vr(F,2)}, {vr(F+4,2)}, {vr(F+6,2)}")
    for i in range(1,4):
        A(f"  v_pk_fma_f32 {vr(S2,2)}, {vr(F+2*i,2)}, {vr(F+2*i,2)}, {vr(S2,2)}")
    A(f"  v_pk_add_f32 {vr(S1,2)}, {vr(S1,2)}, {vr(F,2)}")
    A(f"  v_add_f32 v{S2}, v{S2}, v{S2+1}")
    A(f"  v_add_f32 v{S1}, v{S1}, v{S1+1}")
    A("  s_waitcnt lgkmcnt(0)")
    A(f"  buffer_store_dwordx4 {vr(vO+4,4)}, v{vG}, {sr(sWS,4)}, s{d_} offen sc1")
    T, P = vSf, 116
    A("  s_waitcnt vmcnt(6)")
    c0, c1, e0, e1 = T, T+1, T+2, T+3
    A(f"  v_lshlrev_b32 v{c0}, 16, v{vC}")
    A(f"  v_and_b32 v{c1}, 0xffff0000, v{vC}")
    A(f"  s_mov_b32 s{a}, 0xbfb8aa3b")
    def red(ctrl):
        for r in (S1, S2): A(f"  v_add_f32_dpp v{r}, v{r}, v{r} {ctrl}")
    red("row_ror:8 row_mask:0xf bank_mask:0xf")
    A(f"  v_mul_f32 v{e0}, s{a}, v{c0}")
    A(f"  v_mul_f32 v{e1}, s{a}, v{c1}")
    red("row_ror:4 row_mask:0xf bank_mask:0xf")
    A(f"  v_exp_f32 v{e0}, v{e0}")
    A(f"  v_exp_f32 v{e1}, v{e1}")
    red("row_ror:2 row_mask:0xf bank_mask:0xf")
    A(f"  v_add_f32 v{e0}, 1.0, v{e0}")
    A(f"  v_add_f32 v{e1}, 1.0, v{e1}")
    red("row_ror:1 row_mask:0xf bank_mask:0xf")
    A(f"  v_rcp_f32 v{e0}, v{e0}")
    A(f"  v_rcp_f32 v{e1}, v{e1}")
    red("row_bcast:15 row_mask:0xa bank_mask:0xf")
    A(f"  v_mul_f32 v{c0}, v{c0}, v{e0}")
    A(f"  v_mul_f32 v{c1}, v{c1}, v{e1}")
    red("row_bcast:31 row_mask:0xc bank_mask:0xf")
    A(f"  v_cvt_pk_bf16_f32 v{vC}, v{c0}, v{c1}")
    A(f"  s_mov_b32 s{a}, 0x05040100")
    A(f"  s_mov_b32 s{b}, 0x07060302")
    for q in range(4):
        A(f"  v_perm_b32 v{T+2*q}, v{vWm+4+q}, v{vWm+q}, s{a}")
        A(f"  v_perm_b32 v{T+2*q+1}, v{vWm+4+q}, v{vWm+q}, s{b}")
    A(f"  s_mov_b32 s{a}, 0x3b000000")
    A(f"  v_mul_f32 v{S1}, s{a}, v{S1}")
    A(f"  v_mul_f32 v{S2}, s{a}, v{S2}")
    for n in range(8):
        A(f"  v_dot2_f32_bf16 v{P+n}, v{T+n}, v{vC}, 0")
    A(f"  v_fma_f32 v{S2}, -v{S1}, v{S1}, v{S2}")
    A(f"  s_mov_b32 s{a}, 0x3727c5ac")
    A(f"  v_max_f32 v{S2}, 0, v{S2}")
    A(f"  v_add_f32 v{S2}, s{a}, v{S2}")
    A(f"  v_rsq_f32 v{S2}, v{S2}")
    for i in range(4): A(f"  v_permlane32_swap_b32 v{P+i}, v{P+i+4}")
    A(f"  v_mul_f32 v{S2+1}, -v{S1}, v{S2}")
    for i in range(4): A(f"  v_add_f32 v{P+i}, v{P+i}, v{P+i+4}")
    A(f"  s_lshl_b32 s{a}, s{sw}, 3")
    A(f"  s_add_u32 s{a}, s{a}, {MS}")
    A(f"  v_mov_b32 v{t2}, s{a}")
    for i in range(2): A(f"  v_permlane16_swap_b32 v{P+i}, v{P+i+2}")
    A(f"  s_mov_b32 s{c_}, 0")
    A(f"  s_brev_b32 s{d_}, 1")
    for i in range(2): A(f"  v_add_f32 v{P+i}, v{P+i}, v{P+i+2}")
    A(f"  s_mov_b64 exec, s[{c_}:{d_}]")
    A(f"  ds_write_b64 v{t2}, {vr(S2,2)}")
    A(f"  s_mov_b64 exec, -1")
    for i in range(2): A(f"  v_add_f32_dpp v{P+i}, v{P+i}, v{P+i} row_ror:8 row_mask:0xf bank_mask:0xf")
    A(f"  v_and_b32 v{vOA}, 7, v{vl}")
    A(f"  v_lshlrev_b32 v{vOA}, 5, v{vOA}")
    A(f"  v_lshrrev_b32 v{t2}, 4, v{vl}")
    A(f"  v_lshl_add_u32 v{vOA}, v{t2}, 3, v{vOA}")
    A(f"  v_and_b32 v{t2}, 8, v{vl}")
    A(f"  v_lshl_or_b32 v{vOA}, v{t2}, 27, v{vOA}")
    A(f"  s_mul_i32 s{a}, s{sc}, 1536")
    A(f"  s_lshl_b32 s{b}, s{sw}, 8")
    A(f"  s_add_u32 s{a}, s{a}, s{b}")
    A(f"  s_add_u32 s{a}, s{a}, {WS_PART}")
    A(f"  s_cmp_lt_u32 s{sw}, 6")
    A(f"  s_cselect_b32 s{a}, s{a}, 0x20000000")
    A(f"  buffer_store_dwordx2 {vr(P,2)}, v{vOA}, {sr(sWS,4)}, s{a} offen sc1")
    ST.stamp()
    A("  s_waitcnt vmcnt(0) lgkmcnt(0)")
    A("  s_barrier")
    A(f"  s_cmp_lg_u32 s{sw}, 0")
    A(f"  s_cbranch_scc1 {name}_arr1")
    A(f"  v_readfirstlane_b32 s{a}, v{vFl}")
    A(f"  s_mov_b32 s{b}, {SPIN}")
    A(f"{name}_rdy:")
    A(f"  s_cmp_lg_u32 s{a}, 0")
    A(f"  s_cbranch_scc1 {name}_rdyok")
    A(f"  v_mov_b32 v{t2}, 0")
    A(f"  buffer_load_dword v{vFl}, v{t2}, {sr(sDBG,4)}, 0 offen sc1")
    A("  s_waitcnt vmcnt(0)")
    A(f"  v_readfirstlane_b32 s{a}, v{vFl}")
    A(f"  s_sub_u32 s{b}, s{b}, 1")
    A(f"  s_cmp_lg_u32 s{b}, 0")
    A(f"  s_cbranch_scc1 {name}_rdy")
    A(f"{name}_rdyok:")
    A(f"  s_lshl_b32 s{a}, s{scb}, 8")
    A(f"  s_add_u32 s{a}, s{a}, {WS_CNT+C_KV*256}")
    A(f"  v_mov_b32 v{t2}, s{a}")
    A(f"  v_mov_b32 v{t3}, 1")
    A(f"  s_mov_b64 exec, 1")
    A(f"  buffer_atomic_add v{t3}, v{t2}, {sr(sWS,4)}, 0 offen sc1")
    A(f"  s_mov_b64 exec, -1")
    A(f"  v_lshlrev_b32 v{t2}, 4, v{vl}")
    A(f"  ds_read_b128 {vr(vO,4)}, v{t2} offset:{MS}")
    A(f"  s_lshl_b32 s{a}, s2, 6")
    A(f"  s_add_u32 s{a}, s{a}, {WS_ST1}")
    A("  s_waitcnt lgkmcnt(0)")
    A(f"  s_mov_b64 exec, 0xf")
    A(f"  buffer_store_dwordx4 {vr(vO,4)}, v{t2}, {sr(sWS,4)}, s{a} offen sc1")
    A(f"  s_mov_b64 exec, -1")
    A(f"{name}_arr1:")
    ST.stamp()
    vE, vZero, vHCw = vSf, vSf+8, vSf+12
    La, Lb, Lc = vL, vL+4, vL+8
    for i in range(4): A(f"  v_alignbit_b32 v{vE+i}, v{Lb+i}, v{La+i}, 16")
    for i in range(4): A(f"  v_alignbit_b32 v{vE+4+i}, v{Lc+i}, v{Lb+i}, 16")
    A(f"  s_mul_i32 s{a}, s{sch}, {HCH}")
    A(f"  s_add_u32 s{a}, s{a}, {HC+32}")
    A(f"  v_add_u32 v{vHCw}, s{a}, v{vT16}")
    for i in range(4): A(f"  v_mov_b32 v{vZero+i}, 0")
    A(f"  ds_write_b128 v{vHCw}, {vr(La,4)}")
    A(f"  ds_write_b128 v{vHCw}, {vr(Lb,4)} offset:{2*4160}")
    A(f"  ds_write_b128 v{vHCw}, {vr(vE,4)} offset:{4160}")
    A(f"  ds_write_b128 v{vHCw}, {vr(vE+4,4)} offset:{3*4160}")
    A(f"  s_cmp_lg_u32 s{sw}, 1")
    A(f"  s_cbranch_scc1 {name}_nozt")
    A(f"  v_lshrrev_b32 v{t1}, 5, v{vl}")
    A(f"  v_mul_u32_u24 v{t1}, 4608, v{t1}")
    A(f"  v_and_b32 v{t2}, 31, v{vl}")
    A(f"  v_lshl_add_u32 v{t1}, v{t2}, 4, v{t1}")
    A(f"  ds_write_b128 v{t1}, {vr(vZero,4)} offset:4096")
    A(f"{name}_nozt:")
    A(f"  s_cmp_lg_u32 s{sqq}, 0")
    A(f"  s_cbranch_scc1 {name}_noneg")
    A(f"  s_mov_b64 exec, 1")
    A(f"  v_subrev_u32 v{t0}, 32, v{vHCw}")
    Tn = vKf
    for i in range(12): A(f"  v_mov_b32 v{Tn+i}, 0")
    for phi in range(4): A(f"  ds_write_b128 v{t0}, {vr(vZero,4)} offset:{phi*4160}")
    A(f"  ds_write_b128 v{t0}, {vr(vZero,4)} offset:16")
    A(f"  v_lshlrev_b32 v{Tn+3}, 16, v{La}")
    A(f"  v_mov_b32 v{Tn+7}, v{La}")
    A(f"  v_lshlrev_b32 v{Tn+10}, 16, v{La}")
    A(f"  v_alignbit_b32 v{Tn+11}, v{La+1}, v{La}, 16")
    A(f"  ds_write_b128 v{t0}, {vr(Tn,4)} offset:{4160+16}")
    A(f"  ds_write_b128 v{t0}, {vr(Tn+4,4)} offset:{2*4160+16}")
    A(f"  ds_write_b128 v{t0}, {vr(Tn+8,4)} offset:{3*4160+16}")
    A(f"  s_mov_b64 exec, -1")
    A(f"{name}_noneg:")
    conv2(A, locals())
    A(f"{name}_end:")
    ST.flush(2)
    A("  s_endpgm")
    return dict(name=name, grid=256, block=512, lds=LDS, nvgpr=256, accum=256)

def conv2(A, L):
    name, ST, SPIN, PREFETCH, PSLEEP = (L[k] for k in "name ST SPIN PREFETCH PSLEEP".split())
    XR1, HC, HCH, MD, EX = (L[k] for k in "XR1 HC HCH MD EX".split())
    vl, t0, t1, t2, t3 = 1, 2, 3, 4, 5
    sWS, sSH, sXq, sPF = (L[k] for k in "sWS sSH sXq sPF".split())
    stb, scb, sw, sc, sch, sqq, sD = (L[k] for k in "stb scb sw sc sch sqq sD".split())
    a, b, c_, d_ = 44, 45, 46, 47
    pWG, pWD = L['pWG'], L['pWD']
    vAcc, vZf, vHf = 16, 48, 112
    vXP, vS1, vMd, vPt = 176, 180, 188, 196
    vZ, vH, vEXw, vEXr, vYo, vKVo, vXRw, vXo, vSo, vMo, vPf, vPd = range(208, 220)
    vHD = 220
    vPoll = 224
    A(f"  v_and_b32 v{t0}, 15, v{vl}")
    A(f"  v_lshrrev_b32 v{t1}, 4, v{vl}")
    A(f"  v_lshlrev_b32 v{t2}, 5, v{t0}")
    A(f"  v_sub_u32 v{t2}, 480, v{t2}")
    A(f"  v_lshl_add_u32 v{t2}, v{t1}, 4, v{t2}")
    A(f"  s_mul_i32 s{a}, s{sch}, {XR1}")
    A(f"  s_lshl_b32 s{b}, s{sqq}, 7")
    A(f"  s_add_u32 s{a}, s{a}, s{b}")
    A(f"  v_add_u32 v{vZ}, s{a}, v{t2}")
    A(f"  v_add_u32 v{t2}, 1, v{t0}")
    A(f"  v_and_b32 v{t3}, 3, v{t2}")
    A(f"  v_sub_u32 v{t2}, v{t2}, v{t3}")
    A(f"  v_lshl_add_u32 v{t2}, v{t1}, 3, v{t2}")
    A(f"  v_lshlrev_b32 v{t2}, 1, v{t2}")
    A(f"  v_mul_u32_u24 v{t3}, 4160, v{t3}")
    A(f"  s_mul_i32 s{a}, s{sch}, {HCH}")
    A(f"  s_add_u32 s{a}, s{a}, s{b}")
    A(f"  s_add_u32 s{a}, s{a}, {HC}")
    A(f"  v_add3_u32 v{vH}, v{t2}, v{t3}, s{a}")
    A(f"  v_lshlrev_b32 v{t2}, 4, v{vl}")
    A(f"  s_lshl_b32 s{a}, s{sw}, 13")
    A(f"  s_add_u32 s{a}, s{a}, {EX}")
    A(f"  v_add_u32 v{vEXw}, s{a}, v{t2}")
    A(f"  s_lshl_b32 s{a}, s{sw}, 10")
    A(f"  s_add_u32 s{a}, s{a}, {EX}")
    A(f"  v_add_u32 v{vEXr}, s{a}, v{t2}")
    A(f"  s_lshl_b32 s{a}, s{sc}, 13")
    A(f"  s_add_u32 s{a}, s{a}, {WS_KVR}")
    A(f"  v_lshl_add_u32 v{vKVo}, v0, 4, s{a}")
    A(f"  s_mul_i32 s{a}, s{sch}, {XR1}")
    A(f"  v_add_u32 v{vXRw}, s{a}, v{L['vT16']}")
    A(f"  s_lshr_b32 s{a}, s{sc}, 3")
    A(f"  s_lshl_b32 s{a}, s{a}, 10")
    A(f"  s_bfe_u32 s{b}, s{sc}, 0x10002")
    A(f"  s_lshl_b32 s{b}, s{b}, 9")
    A(f"  s_add_u32 s{a}, s{a}, s{b}")
    A(f"  s_and_b32 s{b}, s{sc}, 3")
    A(f"  s_lshl_b32 s{b}, s{b}, 2")
    A(f"  s_add_u32 s{a}, s{a}, s{b}")
    A(f"  s_lshl_b32 s{b}, s{sw}, 18")
    A(f"  s_add_u32 s{a}, s{a}, s{b}")
    A(f"  v_lshlrev_b32 v{t2}, 16, v{t1}")
    A(f"  v_lshl_add_u32 v{t2}, v{t0}, 4, v{t2}")
    A(f"  v_add_u32 v{vYo}, s{a}, v{t2}")
    A(f"  s_lshl_b32 s{a}, s{sc}, 13")
    A(f"  s_lshl_b32 s{b}, s{sw}, 10")
    A(f"  s_add_u32 s{a}, s{a}, s{b}")
    A(f"  s_add_u32 s{a}, s{a}, {WS_XP}")
    A(f"  v_lshlrev_b32 v{t2}, 8, v{t1}")
    A(f"  v_lshl_add_u32 v{t2}, v{t0}, 4, v{t2}")
    A(f"  v_add_u32 v{vXo}, s{a}, v{t2}")
    A(f"  v_lshl_add_u32 v{t2}, v{t1}, 6, v{t0}")
    A(f"  s_lshl_b32 s{a}, s{sw}, 11")
    A(f"  s_add_u32 s{a}, s{a}, {WS_ST1}")
    A(f"  v_lshl_add_u32 v{vSo}, v{t2}, 3, s{a}")
    A(f"  s_lshl_b32 s{a}, s{scb}, 5")
    A(f"  v_add_u32 v{vMo}, s{a}, v0")
    A(f"  v_mul_u32_u24 v{vMo}, 1536, v{vMo}")
    A(f"  s_lshl_b32 s{a}, s{stb}, 3")
    A(f"  s_add_u32 s{a}, s{a}, {WS_PART}")
    A(f"  v_add_u32 v{vMo}, s{a}, v{vMo}")
    A(f"  v_lshrrev_b32 v{t2}, 5, v0")
    A(f"  v_min_u32 v{t2}, 1, v{t2}")
    A(f"  v_lshl_or_b32 v{vMo}, v{t2}, 29, v{vMo}")
    A("  s_waitcnt lgkmcnt(0)")
    A(f"  s_lshr_b32 s{a}, s{sD}, 16")
    A(f"  s_and_b32 s{b}, s{sD}, 0xffff")
    A(f"  s_cmp_eq_u32 s{sch}, 0")
    A(f"  s_cselect_b32 s{a}, s{b}, s{a}")
    A(f"  s_lshl_b32 s{b}, s{a}, 16")
    A(f"  v_lshlrev_b32 v{t2}, 3, v{t1}")
    A(f"  v_add_u32 v{t2}, v{t2}, v{t0}")
    A(f"  v_sub_u32 v{t2}, 15, v{t2}")
    A(f"  v_and_b32 v{t3}, 1, v{t2}")
    A(f"  v_cmp_eq_u32 vcc, 1, v{t3}")
    A(f"  v_mov_b32 v{vHD}, s{a}")
    A(f"  v_mov_b32 v{vHD+1}, s{b}")
    A(f"  v_cndmask_b32 v{t3}, v{vHD}, v{vHD+1}, vcc")
    A(f"  v_ashrrev_i32 v{t2}, 1, v{t2}")
    for i in range(4):
        A(f"  v_cmp_eq_u32 vcc, {i}, v{t2}")
        A("  s_nop 1")
        A(f"  v_cndmask_b32 v{vHD+i}, 0, v{t3}, vcc")
    if PREFETCH:
        A(f"  v_and_b32 v{t1}, 127, v0")
        A(f"  v_mul_u32_u24 v{t2}, 147, v{t1}")
        A(f"  v_lshrrev_b32 v{t2}, 10, v{t2}")
        A(f"  v_mul_u32_u24 v{t3}, 7, v{t2}")
        A(f"  v_sub_u32 v{t3}, v{t1}, v{t3}")
        A(f"  s_lshl_b32 s{a}, s{stb}, 4")
        A(f"  v_add_u32 v{t2}, s{a}, v{t2}")
        A(f"  v_mul_u32_u24 v{t2}, 3584, v{t2}")
        A(f"  v_lshl_add_u32 v{vPf}, v{t3}, 7, v{t2}")
        A(f"  s_lshr_b32 s{a}, s{scb}, 1")
        A(f"  s_mul_i32 s{a}, s{a}, 896")
        A(f"  s_cmp_lt_u32 s{sw}, 4")
        A(f"  s_cselect_b32 s{a}, s{a}, 0x40000000")
        A(f"  v_add_u32 v{vPf}, s{a}, v{vPf}")
        A(f"  s_bitcmp1_b32 s{sw}, 1")
        A(f"  s_cselect_b32 s{sPF}, s{pWG+2}, s{pWG}")
        A(f"  s_cselect_b32 s{sPF+1}, s{pWG+3}, s{pWG+1}")
        A(f"  s_mov_b32 s{sPF+2}, {512*1792*2}")
        A(f"  s_mov_b32 s{sPF+3}, 0x20000")
        A(f"  s_mul_i32 s{a}, s2, 7168")
        A(f"  s_cmp_eq_u32 s{sw}, 4")
        A(f"  s_cselect_b32 s{a}, s{a}, 0x40000000")
        A(f"  v_lshl_add_u32 v{vPd}, v{vl}, 7, s{a}")
        A(f"  s_mov_b32 s{sXq}, s{pWD}")
        A(f"  s_mov_b32 s{sXq+1}, s{pWD+1}")
        A(f"  s_mov_b32 s{sXq+2}, {1792*512*2}")
    A(f"  s_cmp_lg_u32 s{sw}, 0")
    A(f"  s_cbranch_scc1 {name}_s1w")
    A(f"  s_lshl_b32 s{a}, s{scb}, 8")
    A(f"  s_add_u32 s{a}, s{a}, {WS_CNT+16*256}")
    A(f"  v_mov_b32 v{t2}, s{a}")
    poll_ge(A, f"{name}_s1", sWS, t2, [vPoll+i for i in range(4)], 32, a, b, SPIN, PSLEEP)
    A(f"{name}_s1w:")
    A("  s_waitcnt lgkmcnt(0)")
    A("  s_barrier")
    ST.stamp()
    vKV = vZf
    A(f"  buffer_load_dwordx4 {vr(vKV,4)}, v{vKVo}, {sr(sWS,4)}, 0 offen sc1")
    def stat_loads():
        for r in range(4):
            A(f"  buffer_load_dwordx2 {vr(vS1+2*r,2)}, v{vSo}, {sr(sWS,4)}, 0 offen offset:{128*r} sc1")
    A(f"  s_waitcnt vmcnt(0)")
    A(f"  ds_write_b128 v{vXRw}, {vr(vKV,4)}")
    A("  s_waitcnt lgkmcnt(0)")
    A("  s_barrier")
    ST.stamp()
    def late_loads():
        A(f"  s_cmp_lg_u32 s{sw}, 0")
        A(f"  s_cbranch_scc1 {name}_nopt")
        for chk in range(6):
            A(f"  buffer_load_dwordx2 {vr(vPt+2*chk,2)}, v{vMo}, {sr(sWS,4)}, 0 offen offset:{256*chk} sc1")
        A(f"{name}_nopt:")
        A(f"  buffer_load_dwordx4 {vr(vXP,4)}, v{vXo}, {sr(sWS,4)}, 0 offen sc1")
        stat_loads()
    def prefetch():
        if not PREFETCH: return
        A(f"  s_cmp_gt_u32 s{sw}, 4")
        A(f"  s_cbranch_scc1 {name}_nopf")
        A(f"  s_cmp_eq_u32 s{sw}, 4")
        A(f"  s_cbranch_scc1 {name}_pfd")
        A(f"  buffer_load_dword v228, v{vPf}, {sr(sPF,4)}, 0 offen")
        A(f"  s_branch {name}_nopf")
        A(f"{name}_pfd:")
        A(f"  buffer_load_dword v229, v{vPd}, {sr(sXq,4)}, 0 offen")
        A(f"{name}_nopf:")
    def reads(it):
        buf = it & 1
        R = []
        for G in range(8):
            R.append(f"  ds_read_b128 {vr(vZf+32*buf+4*G,4)}, v{vZ} offset:{64*it+512*(7-G)}")
        for m in range(8):
            for hh in range(2):
                R.append(f"  ds_read_b64 {vr(vHf+32*buf+4*m+2*hh,2)}, v{vH} offset:{64*it+512*m+8*hh}")
        return R
    red = []
    for k in range(6): red.append(f"  v_permlane16_swap_b32 v{vPt+2*k}, v{vPt+2*k+1}")
    for k in range(6): red.append(f"  v_add_f32 v{vPt+2*k}, v{vPt+2*k}, v{vPt+2*k+1}")
    for ror in (8, 4, 2, 1):
        for k in range(6):
            red.append(f"  v_add_f32_dpp v{vPt+2*k}, v{vPt+2*k}, v{vPt+2*k} row_ror:{ror} row_mask:0xf bank_mask:0xf")
    for k in range(6): red.append(f"  v_cvt_pk_bf16_f32 v{vPt+2*k}, v{vPt+2*k}, v{vPt+2*k}")
    for k in range(6): red.append(f"  v_lshlrev_b32 v{vPt+2*k}, 16, v{vPt+2*k}")
    for k in (1, 4): red.append(f"  v_add_f32 v{vPt+2*k}, 1.0, v{vPt+2*k}")
    for k in (1, 4): red.append(f"  v_cvt_pk_bf16_f32 v{vPt+2*k}, v{vPt+2*k}, v{vPt+2*k}")
    for k in (1, 4): red.append(f"  v_lshlrev_b32 v{vPt+2*k}, 16, v{vPt+2*k}")
    for s_ in reads(0): A(s_)
    late_loads()
    for it in range(2):
        buf = it & 1
        A("  s_waitcnt lgkmcnt(0)")
        nxt = reads(1) if it == 0 else []
        if it == 0:
            A(f"  s_cmp_lg_u32 s{sqq}, 0")
            A(f"  s_cbranch_scc1 {name}_noD")
            for G in range(8):
                A(f"  v_mfma_f32_16x16x32_bf16 {vr(vAcc+4*G,4)}, {vr(vZf+4*G,4)}, {vr(vHD,4)}, 0")
            A(f"  s_branch {name}_Dok")
            A(f"{name}_noD:")
            for i in range(32): A(f"  v_mov_b32 v{vAcc+i}, 0")
            A("  s_nop 1")
            A(f"{name}_Dok:")
        nm = 0
        for m in range(8):
            for Gz in range(8-m):
                G = Gz+m
                A(f"  v_mfma_f32_16x16x32_bf16 {vr(vAcc+4*G,4)}, {vr(vZf+32*buf+4*Gz,4)}, {vr(vHf+32*buf+4*m,4)}, {vr(vAcc+4*G,4)}")
                nm += 1
                if it == 0:
                    if nxt: A(nxt.pop(0))
                else:
                    if nm == 4:
                        A(f"  s_waitcnt vmcnt(0)")
                        prefetch()
                    if nm >= 5:
                        for _ in range(2):
                            if red: A(red.pop(0))
    while red: A(red.pop(0))
    A(f"  s_cmp_lg_u32 s{sw}, 0")
    A(f"  s_cbranch_scc1 {name}_nomd")
    A(f"  v_lshrrev_b32 v{vPt+1}, 4, v{vl}")
    A(f"  v_lshlrev_b32 v{vPt+1}, 2, v{vPt+1}")
    A(f"  v_add_u32 v{vPt+1}, {MD}, v{vPt+1}")
    A(f"  s_mov_b64 exec, 0x10001")
    for i, k in enumerate((0, 1, 2, 4)):
        A(f"  ds_write_b32 v{vPt+1}, v{vPt+2*k} offset:{8*i}")
    A(f"  s_mov_b64 exec, -1")
    A(f"{name}_nomd:")
    A("  s_nop 7")
    ST.stamp()
    for G in range(8):
        A(f"  ds_write_b128 v{vEXw}, {vr(vAcc+4*G,4)} offset:{G*1024}")
    A(f"  s_mov_b32 s{c_}, {SPIN}")
    A(f"{name}_val:")
    V = vHf
    A(f"  v_min_u32 v{V}, v{vS1}, v{vS1+2}")
    A(f"  v_min3_u32 v{V}, v{V}, v{vS1+4}, v{vS1+6}")
    A(f"  v_cmp_eq_u32 vcc, 0, v{V}")
    A("  s_nop 1")
    A(f"  s_cmp_eq_u64 vcc, 0")
    A(f"  s_cbranch_scc1 {name}_valok")
    A("  s_sleep 1")
    stat_loads()
    A("  s_waitcnt vmcnt(0)")
    A(f"  s_sub_u32 s{c_}, s{c_}, 1")
    A(f"  s_cmp_lg_u32 s{c_}, 0")
    A(f"  s_cbranch_scc1 {name}_val")
    A(f"{name}_valok:")
    X, N = vHf+8, vHf+16
    for r in range(4):
        A(f"  v_lshlrev_b32 v{X+2*r}, 16, v{vXP+r}")
        A(f"  v_and_b32 v{X+2*r+1}, 0xffff0000, v{vXP+r}")
    for r in range(4):
        rs, nm = vS1+2*r, vS1+2*r+1
        A(f"  v_pk_fma_f32 {vr(N+2*r,2)}, {vr(X+2*r,2)}, {vr(rs,2)}, {vr(rs,2)} op_sel:[0,0,1] op_sel_hi:[1,0,1]")
    A("  s_waitcnt lgkmcnt(0)")
    A("  s_barrier")
    ST.stamp()
    A(f"  v_mov_b32 v{t2}, {MD}")
    A(f"  ds_read_b128 {vr(vMd,4)}, v{t2}")
    A(f"  ds_read_b128 {vr(vMd+4,4)}, v{t2} offset:16")
    vR = vZf
    for s_ in range(8):
        A(f"  ds_read_b128 {vr(vR+4*s_,4)}, v{vEXr} offset:{s_*8192}")
    sa, c1a, ga, c1b = vMd, vMd+2, vMd+4, vMd+6
    A("  s_waitcnt lgkmcnt(8)")
    for r in range(4): A(f"  v_pk_fma_f32 {vr(N+2*r,2)}, {vr(N+2*r,2)}, {vr(c1a,2)}, {vr(sa,2)}")
    for r in range(4): A(f"  v_pk_mul_f32 {vr(N+2*r,2)}, {vr(N+2*r,2)}, {vr(ga,2)}")
    A("  s_waitcnt lgkmcnt(4)")
    for hh in range(2):
        A(f"  v_pk_add_f32 {vr(vR+2*hh,2)}, {vr(vR+2*hh,2)}, {vr(vR+4+2*hh,2)}")
        A(f"  v_pk_add_f32 {vr(vR+8+2*hh,2)}, {vr(vR+8+2*hh,2)}, {vr(vR+12+2*hh,2)}")
    for hh in range(2):
        A(f"  v_pk_add_f32 {vr(vR+2*hh,2)}, {vr(vR+2*hh,2)}, {vr(vR+8+2*hh,2)}")
    A("  s_waitcnt lgkmcnt(0)")
    for hh in range(2):
        A(f"  v_pk_add_f32 {vr(vR+16+2*hh,2)}, {vr(vR+16+2*hh,2)}, {vr(vR+20+2*hh,2)}")
        A(f"  v_pk_add_f32 {vr(vR+24+2*hh,2)}, {vr(vR+24+2*hh,2)}, {vr(vR+28+2*hh,2)}")
    for hh in range(2):
        A(f"  v_pk_add_f32 {vr(vR+16+2*hh,2)}, {vr(vR+16+2*hh,2)}, {vr(vR+24+2*hh,2)}")
    for r in range(4):
        A(f"  v_fma_f32 v{X+2*r}, v{N+2*r}, v{vR+r}, v{X+2*r}")
        A(f"  v_fma_f32 v{X+2*r+1}, v{N+2*r+1}, v{vR+16+r}, v{X+2*r+1}")
    PX, PZ = vR+4, vR+8
    ST.stamp()
    for r in range(4): A(f"  v_cvt_pk_bf16_f32 v{PX+r}, v{X+2*r}, v{X+2*r+1}")
    A(f"  s_mov_b32 s{a}, {WS_X1}")
    A(f"  s_mov_b32 s{b}, {WS_X1+32768}")
    A(f"  s_mov_b32 s{c_}, {WS_H2}")
    A(f"  s_mov_b32 s{d_}, {WS_H2+32768}")
    for r in range(4):
        A(f"  buffer_store_dword v{PX+r}, v{vYo}, {sr(sWS,4)}, s{a+(r>>1)} offen offset:{256*(r&1)}")
    for r in range(4):
        A(f"  v_lshlrev_b32 v{X+2*r}, 16, v{PX+r}")
        A(f"  v_and_b32 v{X+2*r+1}, 0xffff0000, v{PX+r}")
    for r in range(4): A(f"  v_pk_mul_f32 {vr(X+2*r,2)}, {vr(X+2*r,2)}, {vr(c1b,2)}")
    for r in range(4): A(f"  v_cvt_pk_bf16_f32 v{PZ+r}, v{X+2*r}, v{X+2*r+1}")
    for r in range(4):
        A(f"  buffer_store_dword v{PZ+r}, v{vYo}, {sr(sWS,4)}, s{c_+(r>>1)} offen offset:{256*(r&1)}")
    A(f"  s_cmp_lg_u32 s{sw}, 0")
    A(f"  s_cbranch_scc1 {name}_nopub")
    A(f"  v_lshrrev_b32 v{vPt+1}, 4, v{vl}")
    A(f"  s_lshl_b32 s{a}, s{sc}, 1")
    A(f"  v_add_u32 v{vPt+1}, s{a}, v{vPt+1}")
    A(f"  v_lshlrev_b32 v{vPt+3}, 2, v{vPt+1}")
    A(f"  v_lshlrev_b32 v{vPt+5}, 1, v{vPt+1}")
    A(f"  s_mov_b64 exec, 0x10001")
    for k in range(6):
        A(f"  s_mov_b32 s{a}, {WS_MOD+k*2048}")
        A(f"  buffer_store_dword v{vPt+2*k}, v{vPt+3}, {sr(sWS,4)}, s{a} offen")
    for k in (3, 4):
        A(f"  v_lshrrev_b32 v{vPt+7}, 16, v{vPt+2*k}")
        A(f"  s_mov_b32 s{a}, {WS_MODH+k*1024}")
        A(f"  buffer_store_short v{vPt+7}, v{vPt+5}, {sr(sWS,4)}, s{a} offen")
        A("  s_nop 0")
    A(f"  s_mov_b64 exec, -1")
    A(f"{name}_nopub:")
```

```python
from common import *
from k3 import wave_reduce
from poll import poll_ge
C_KV, C_XS = 16, 24

WS_ALL = 0x1300000

def gen_ka3(A, name="conv_kernel", kidx=0, SPIN=200000, PREFETCH=True, PSLEEP=2, ORD=1):
    XR1, HC, HCH, MD, EX = 4608, 9216, 4*4160, 42496, 43008
    TT, XT, MS = EX, EX+8192, EX+8192+9216
    LDS = EX + 65536
    kernel_header(A, name)
    ST = Stamper(A, kidx); ST.stamp()
    sK, sV, sSH, sXq, sH, sWS, sWM, sDBG, sPF = 8, 12, 16, 20, 24, 28, 32, 36, 40
    stb, scb, sw, sc, sch, sqq, sD = 4, 5, 6, 7, 3, 100, 101
    a, b, c_, d_ = 44, 45, 46, 47
    pD, pC, pWG, pWD = 48, 50, 52, 56
    A("  s_cmp_ge_u32 s2, 256")
    A(f"  s_cbranch_scc1 {name}_end")
    for dst, key in ((sK,'k'),(sV,'v'),(sSH,'shift'),(sXq,'q'),(sH,'ssm'),(sWS,'ws'),(sWM,'wmod'),(sDBG,'dbg'),(pD,'D'),(pC,'c')):
        A(f"  s_load_dwordx2 s[{dst}:{dst+1}], s[0:1], {KA[key]}")
    for dst, size in ((sK,SZ2M),(sV,SZ2M),(sSH,4096),(sXq,SZ2M),(sH,SZ2M),(sWS,WS_ALL),(sWM,512*3072*2),(sDBG,256)):
        A(f"  s_mov_b32 s{dst+2}, {hex(size)}")
        A(f"  s_mov_b32 s{dst+3}, 0x20000")
    vl, t0, t1, t2, t3 = 1, 2, 3, 4, 5
    vb, vW, vR, vG, vSo, vXro, vT16, vFl = 6, 7, 8, 9, 10, 11, 12, 13
    vKo = 14
    vK, vV, vS, vXt, vXr = 18, 28, 32, 40, 44
    vC, vWm, vOA = 48, 52, 49
    vL = 60
    vCo = 17
    sRow, sWa, sWb = 58, 59, 60
    vKf, vSf, vO = 72, 92, 108
    A(f"  s_lshr_b32 s{stb}, s2, 3")
    A(f"  s_and_b32 s{scb}, s2, 7")
    A(f"  v_lshrrev_b32 v{t2}, 6, v0")
    A(f"  v_and_b32 v{vl}, 63, v0")
    A(f"  v_readfirstlane_b32 s{sw}, v{t2}")
    A(f"  v_and_b32 v{t0}, 15, v0")
    A(f"  v_lshrrev_b32 v{t1}, 4, v0")
    A(f"  v_lshlrev_b32 v{vT16}, 4, v0")
    A(f"  s_lshl_b32 s{a}, s{stb}, 16")
    A(f"  s_lshl_b32 s{b}, s{scb}, 7")
    A(f"  s_add_u32 s{a}, s{a}, s{b}")
    A(f"  v_lshlrev_b32 v{vb}, 11, v{t1}")
    A(f"  v_lshl_add_u32 v{vb}, v{t0}, 3, v{vb}")
    A(f"  v_add_u32 v{vb}, s{a}, v{vb}")
    for i in range(3):
        A(f"  v_add_u32 v{vKo+i}, {hex((-(3-i)*1024) & 0xffffffff)}, v{vb}")
    A(f"  s_lshl_b32 s{b}, s{scb}, 9")
    A(f"  v_lshl_add_u32 v{vSo}, v{t0}, 5, s{b}")
    A(f"  s_lshl_b32 s{c_}, s2, 3")
    A(f"  s_add_u32 s{c_}, s{c_}, s{sw}")
    A(f"  s_lshl_b32 s{c_}, s{c_}, 10")
    A(f"  v_lshlrev_b32 v{vXro}, 4, v{vl}")
    A(f"  s_lshl_b32 s{sc}, s{scb}, 5")
    A(f"  s_add_u32 s{sc}, s{sc}, s{stb}")
    A(f"  s_lshr_b32 s{sch}, s{sw}, 2")
    A(f"  s_and_b32 s{sqq}, s{sw}, 3")
    A(f"  v_lshrrev_b32 v{t2}, 3, v{vl}")
    A(f"  s_lshl_b32 s{a}, s{stb}, 5")
    A(f"  v_lshl_add_u32 v{t3}, v{t2}, 2, s{a}")
    A(f"  v_mul_u32_u24 v{vOA}, 12288, v{t2}")
    A(f"  v_and_b32 v{t2}, 7, v{vl}")
    A(f"  v_lshl_add_u32 v{vOA}, v{t2}, 4, v{vOA}")
    A(f"  s_mul_i32 s{a}, s{stb}, {16*6144}")
    A(f"  s_lshl_b32 s{b}, s{scb}, 7")
    A(f"  s_add_u32 s{a}, s{a}, s{b}")
    A(f"  s_lshl_b32 s{b}, s{sw}, 10")
    A(f"  s_add_u32 s{a}, s{a}, s{b}")
    A(f"  s_cmp_lt_u32 s{sw}, 6")
    A(f"  s_cselect_b32 s{a}, s{a}, 0x40000000")
    A(f"  s_add_u32 s{b}, s{a}, 6144")
    A("  s_waitcnt lgkmcnt(0)")
    A("  s_cmp_lg_u32 s2, 0")
    A(f"  s_cbranch_scc1 {name}_nozs")
    for i in range(4): A(f"  v_mov_b32 v{vO+i}, 0")
    A(f"  s_mov_b32 s{d_}, {WS_CNT}")
    A(f"  buffer_store_dwordx4 {vr(vO,4)}, v{vT16}, {sr(sWS,4)}, s{d_} offen sc1")
    for i in range(2):
        A(f"  s_mov_b32 s{d_}, {WS_ST1+8192*i}")
        A(f"  buffer_store_dwordx4 {vr(vO,4)}, v{vT16}, {sr(sWS,4)}, s{d_} offen sc1")
    A(f"{name}_nozs:")
    for i in range(3):
        A(f"  buffer_load_dwordx2 {vr(vK+2*i,2)}, v{vKo+i}, {sr(sK,4)}, 0 offen")
    for i in range(2):
        A(f"  buffer_load_dwordx2 {vr(vK+6+2*i,2)}, v{vb}, {sr(sK,4)}, 0 offen offset:{1024*i}")
    for i in range(2):
        A(f"  buffer_load_dwordx2 {vr(vV+2*i,2)}, v{vb}, {sr(sV,4)}, 0 offen offset:{1024*i}")
    for i in range(2):
        A(f"  buffer_load_dwordx4 {vr(vS+4*i,4)}, v{vSo}, {sr(sSH,4)}, 0 offen offset:{16*i}")
    if ORD: A("  s_barrier")
    for i in range(2):
        A(f"  buffer_load_dwordx2 {vr(vXt+2*i,2)}, v{vb}, {sr(sXq,4)}, 0 offen offset:{1024*i}")
    A(f"  buffer_load_dwordx4 {vr(vXr,4)}, v{vXro}, {sr(sXq,4)}, s{c_} offen")
    A(f"  s_mov_b32 s{sSH}, s{pC}")
    A(f"  s_mov_b32 s{sSH+1}, s{pC+1}")
    A(f"  s_movk_i32 s{sSH+2}, 1024")
    A(f"  buffer_load_dword v{vC}, v{t3}, {sr(sSH,4)}, 0 offen")
    A(f"  buffer_load_dwordx4 {vr(vWm,4)}, v{vOA}, {sr(sWM,4)}, s{a} offen")
    A(f"  buffer_load_dwordx4 {vr(vWm+4,4)}, v{vOA}, {sr(sWM,4)}, s{b} offen")
    NP1 = 15
    A("  s_cmp_lg_u32 s2, 0")
    A(f"  s_cbranch_scc1 {name}_nozero")
    A(f"  s_waitcnt vmcnt({NP1})")
    A("  s_barrier")
    A(f"  s_cmp_lg_u32 s{sw}, 0")
    A(f"  s_cbranch_scc1 {name}_nozero")
    A(f"  v_mov_b32 v{t2}, 0")
    A(f"  v_mov_b32 v{t3}, 1")
    A(f"  s_mov_b64 exec, 1")
    A(f"  buffer_store_dword v{t3}, v{t2}, {sr(sDBG,4)}, 0 offen sc1")
    A(f"  s_mov_b64 exec, -1")
    A(f"{name}_nozero:")
    A(f"  s_lshl_b32 s{a}, s{sc}, 2")
    A(f"  s_load_dword s{sD}, s[{pD}:{pD+1}], s{a}")
    if PREFETCH:
        A(f"  s_load_dwordx4 s[{pWG}:{pWG+3}], s[0:1], {KA['wg']}")
        A(f"  s_load_dwordx2 s[{pWD}:{pWD+1}], s[0:1], {KA['wd']}")
    A(f"  v_sub_u32 v{t2}, 31, v{t1}")
    A(f"  v_lshrrev_b32 v{vW}, 2, v{t2}")
    A(f"  v_and_b32 v{t3}, 7, v{t0}")
    A(f"  v_xor_b32 v{vW}, v{vW}, v{t3}")
    A(f"  v_lshlrev_b32 v{vW}, 4, v{vW}")
    A(f"  v_and_b32 v{t2}, 3, v{t2}")
    A(f"  v_lshl_add_u32 v{vW}, v{t2}, 2, v{vW}")
    A(f"  v_lshl_add_u32 v{vW}, v{t0}, 9, v{vW}")
    A(f"  v_add_u32 v{vW}, {TT}, v{vW}")
    A(f"  v_lshrrev_b32 v{t2}, 3, v0")
    A(f"  v_and_b32 v{t3}, 7, v0")
    A(f"  v_bfe_u32 v{vR}, v0, 5, 3")
    A(f"  v_xor_b32 v{vR}, v{vR}, v{t3}")
    A(f"  v_lshlrev_b32 v{vR}, 4, v{vR}")
    A(f"  v_lshl_add_u32 v{vR}, v{t2}, 7, v{vR}")
    A(f"  v_add_u32 v{vR}, {TT}, v{vR}")
    A(f"  s_lshl_b32 s{a}, s{scb}, 18")
    A(f"  s_lshl_b32 s{b}, s{stb}, 7")
    A(f"  s_sub_u32 s{a}, s{a}, s{b}")
    A(f"  s_add_u32 s{a}, s{a}, {3968+WS_KVR}")
    A(f"  v_lshlrev_b32 v{vG}, 12, v{t2}")
    A(f"  v_lshl_add_u32 v{vG}, v{t3}, 4, v{vG}")
    A(f"  v_add_u32 v{vG}, s{a}, v{vG}")
    vXw = vSo
    A(f"  v_mul_u32_u24 v{vXw}, 288, v{t1}")
    A(f"  v_lshl_add_u32 v{vXw}, v{t0}, 3, v{vXw}")
    A(f"  v_add_u32 v{vXw}, {XT}, v{vXw}")
    A(f"  s_waitcnt vmcnt(6)")
    ST.stamp()
    for ch in range(4):
        for dd in range(2):
            src = vS + 2*ch + dd
            p, e = ch >> 1, ch & 1
            A(f"  v_lshlrev_b32 v{vSf+((2*dd)*2+p)*2+e}, 16, v{src}")
            A(f"  v_and_b32 v{vSf+((2*dd+1)*2+p)*2+e}, 0xffff0000, v{src}")
    for r in range(5):
        for p in range(2):
            A(f"  v_lshlrev_b32 v{vKf+(r*2+p)*2}, 16, v{vK+2*r+p}")
            A(f"  v_and_b32 v{vKf+(r*2+p)*2+1}, 0xffff0000, v{vK+2*r+p}")
    O = vO
    for j in range(4):
        for tk in range(2):
            for p in range(2):
                kk = vKf+((3+tk-j)*2+p)*2; ww = vSf+(j*2+p)*2; o = O+(tk*2+p)*2
                if j == 0: A(f"  v_pk_mul_f32 {vr(o,2)}, {vr(kk,2)}, {vr(ww,2)}")
                else: A(f"  v_pk_fma_f32 {vr(o,2)}, {vr(kk,2)}, {vr(ww,2)}, {vr(o,2)}")
    for tk in range(2):
        for p in range(2):
            A(f"  v_lshlrev_b32 v{vKf+(tk*2+p)*2}, 16, v{vV+2*tk+p}")
            A(f"  v_and_b32 v{vKf+(tk*2+p)*2+1}, 0xffff0000, v{vV+2*tk+p}")
    for tk in range(2):
        for p in range(2):
            o = O+(tk*2+p)*2
            A(f"  v_pk_mul_f32 {vr(o,2)}, {vr(o,2)}, {vr(vKf+(tk*2+p)*2,2)}")
    for ch in range(4):
        p, e = ch >> 1, ch & 1
        A(f"  v_cvt_pk_bf16_f32 v{vKf+8+ch}, v{O+(2+p)*2+e}, v{O+p*2+e}")
    for ch in range(4):
        A(f"  ds_write_b32 v{vW}, v{vKf+8+ch} offset:{128*ch}")
    A("  s_waitcnt lgkmcnt(0)")
    A("  s_barrier")
    A(f"  ds_read_b128 {vr(vO,4)}, v{vR}")
    A(f"  v_and_b32 v{t0}, 15, v0")
    A(f"  v_lshrrev_b32 v{t1}, 4, v0")
    A(f"  v_mul_u32_u24 v{t2}, 144, v{t0}")
    A(f"  v_lshl_add_u32 v{t2}, v{t1}, 2, v{t2}")
    A(f"  v_add_u32 v{vR}, {XT}, v{t2}")
    A("  s_waitcnt lgkmcnt(0)")
    A(f"  buffer_store_dwordx4 {vr(vO,4)}, v{vG}, {sr(sWS,4)}, 0 offen sc1")
    ST.stamp()
    A(f"  s_cmp_eq_u32 s{sw}, 0")
    A(f"  s_cselect_b32 s{a}, 0, 0x400")
    A(f"  v_mov_b32 v{t2}, s{a}")
    A(f"  buffer_load_dword v{vFl}, v{t2}, {sr(sDBG,4)}, 0 offen sc1")
    A(f"  v_and_b32 v{t2}, 255, v0")
    A(f"  v_lshlrev_b32 v{vT16}, 4, v{t2}")
    A(f"  s_lshl_b32 s{a}, s{sc}, 13")
    A(f"  s_lshl_b32 s{b}, s{sch}, 12")
    A(f"  s_add_u32 s{a}, s{a}, s{b}")
    for k in range(3):
        A(f"  buffer_load_dwordx4 {vr(vL+4*k,4)}, v{vT16}, {sr(sH,4)}, s{a} offen offset:{4*k}")
    A("  s_waitcnt vmcnt(3)")
    A("  s_barrier")
    A(f"  s_cmp_lg_u32 s{sw}, 0")
    A(f"  s_cbranch_scc1 {name}_arr1")
    A(f"  v_readfirstlane_b32 s{a}, v{vFl}")
    A(f"  s_mov_b32 s{b}, {SPIN}")
    A(f"{name}_rdy:")
    A(f"  s_cmp_lg_u32 s{a}, 0")
    A(f"  s_cbranch_scc1 {name}_rdyok")
    A(f"  v_mov_b32 v{t2}, 0")
    A(f"  buffer_load_dword v{vFl}, v{t2}, {sr(sDBG,4)}, 0 offen sc1")
    A("  s_waitcnt vmcnt(0)")
    A(f"  v_readfirstlane_b32 s{a}, v{vFl}")
    A(f"  s_sub_u32 s{b}, s{b}, 1")
    A(f"  s_cmp_lg_u32 s{b}, 0")
    A(f"  s_cbranch_scc1 {name}_rdy")
    A(f"{name}_rdyok:")
    A(f"  s_lshl_b32 s{a}, s{scb}, 8")
    A(f"  s_add_u32 s{a}, s{a}, {WS_CNT+C_KV*256}")
    A(f"  v_mov_b32 v{t2}, s{a}")
    A(f"  v_mov_b32 v{t3}, 1")
    A(f"  s_mov_b64 exec, 1")
    A(f"  buffer_atomic_add v{t3}, v{t2}, {sr(sWS,4)}, 0 offen sc1")
    A(f"  s_mov_b64 exec, -1")
    A(f"{name}_arr1:")
    ST.stamp()
    for i in range(2):
        A(f"  ds_write_b64 v{vXw}, {vr(vXt+2*i,2)} offset:{144*i}")
    A(f"  s_lshl_b32 s{a}, s{scb}, 18")
    A(f"  s_lshl_b32 s{b}, s{stb}, 8")
    A(f"  s_add_u32 s{a}, s{a}, s{b}")
    A(f"  s_add_u32 s{d_}, s{a}, {WS_XP}")
    A(f"  v_lshlrev_b32 v{vG}, 13, v{t1}")
    A(f"  v_lshl_add_u32 v{vG}, v{t0}, 4, v{vG}")
    A("  s_waitcnt lgkmcnt(0)")
    A("  s_barrier")
    for r in range(4):
        A(f"  ds_read_b32 v{vO+4+r}, v{vR} offset:{r*16*144}")
    F, S1, S2 = vKf, vKf+8, vKf+10
    for i in range(4):
        A(f"  v_lshlrev_b32 v{F+2*i}, 16, v{vXr+i}")
        A(f"  v_and_b32 v{F+2*i+1}, 0xffff0000, v{vXr+i}")
    A(f"  v_pk_add_f32 {vr(S1,2)}, {vr(F,2)}, {vr(F+2,2)}")
    A(f"  v_pk_mul_f32 {vr(S2,2)}, {vr(F,2)}, {vr(F,2)}")
    A(f"  v_pk_add_f32 {vr(F,2)}, {vr(F+4,2)}, {vr(F+6,2)}")
    for i in range(1,4):
        A(f"  v_pk_fma_f32 {vr(S2,2)}, {vr(F+2*i,2)}, {vr(F+2*i,2)}, {vr(S2,2)}")
    A(f"  v_pk_add_f32 {vr(S1,2)}, {vr(S1,2)}, {vr(F,2)}")
    A(f"  v_add_f32 v{S2}, v{S2}, v{S2+1}")
    A(f"  v_add_f32 v{S1}, v{S1}, v{S1+1}")
    A("  s_waitcnt lgkmcnt(0)")
    A(f"  buffer_store_dwordx4 {vr(vO+4,4)}, v{vG}, {sr(sWS,4)}, s{d_} offen sc1")
    T, P = vSf, 116
    c0, c1, e0, e1 = T, T+1, T+2, T+3
    A(f"  v_lshlrev_b32 v{c0}, 16, v{vC}")
    A(f"  v_and_b32 v{c1}, 0xffff0000, v{vC}")
    A(f"  s_mov_b32 s{a}, 0xbfb8aa3b")
    def red(ctrl):
        for r in (S1, S2): A(f"  v_add_f32_dpp v{r}, v{r}, v{r} {ctrl}")
    red("row_ror:8 row_mask:0xf bank_mask:0xf")
    A(f"  v_mul_f32 v{e0}, s{a}, v{c0}")
    A(f"  v_mul_f32 v{e1}, s{a}, v{c1}")
    red("row_ror:4 row_mask:0xf bank_mask:0xf")
    A(f"  v_exp_f32 v{e0}, v{e0}")
    A(f"  v_exp_f32 v{e1}, v{e1}")
    red("row_ror:2 row_mask:0xf bank_mask:0xf")
    A(f"  v_add_f32 v{e0}, 1.0, v{e0}")
    A(f"  v_add_f32 v{e1}, 1.0, v{e1}")
    red("row_ror:1 row_mask:0xf bank_mask:0xf")
    A(f"  v_rcp_f32 v{e0}, v{e0}")
    A(f"  v_rcp_f32 v{e1}, v{e1}")
    red("row_bcast:15 row_mask:0xa bank_mask:0xf")
    A(f"  v_mul_f32 v{c0}, v{c0}, v{e0}")
    A(f"  v_mul_f32 v{c1}, v{c1}, v{e1}")
    red("row_bcast:31 row_mask:0xc bank_mask:0xf")
    A(f"  v_cvt_pk_bf16_f32 v{vC}, v{c0}, v{c1}")
    A(f"  s_mov_b32 s{a}, 0x05040100")
    A(f"  s_mov_b32 s{b}, 0x07060302")
    for q in range(4):
        A(f"  v_perm_b32 v{T+2*q}, v{vWm+4+q}, v{vWm+q}, s{a}")
        A(f"  v_perm_b32 v{T+2*q+1}, v{vWm+4+q}, v{vWm+q}, s{b}")
    A(f"  s_mov_b32 s{a}, 0x3b000000")
    A(f"  v_mul_f32 v{S1}, s{a}, v{S1}")
    A(f"  v_mul_f32 v{S2}, s{a}, v{S2}")
    for n in range(8):
        A(f"  v_dot2_f32_bf16 v{P+n}, v{T+n}, v{vC}, 0")
    A(f"  v_fma_f32 v{S2}, -v{S1}, v{S1}, v{S2}")
    A(f"  s_mov_b32 s{a}, 0x3727c5ac")
    A(f"  v_max_f32 v{S2}, 0, v{S2}")
    A(f"  v_add_f32 v{S2}, s{a}, v{S2}")
    A(f"  v_rsq_f32 v{S2}, v{S2}")
    for i in range(4): A(f"  v_permlane32_swap_b32 v{P+i}, v{P+i+4}")
    A(f"  v_mul_f32 v{S2+1}, -v{S1}, v{S2}")
    for i in range(4): A(f"  v_add_f32 v{P+i}, v{P+i}, v{P+i+4}")
    A(f"  s_lshl_b32 s{a}, s{sw}, 3")
    A(f"  s_add_u32 s{a}, s{a}, {MS}")
    A(f"  v_mov_b32 v{t2}, s{a}")
    for i in range(2): A(f"  v_permlane16_swap_b32 v{P+i}, v{P+i+2}")
    A(f"  s_mov_b32 s{c_}, 0")
    A(f"  s_brev_b32 s{d_}, 1")
    for i in range(2): A(f"  v_add_f32 v{P+i}, v{P+i}, v{P+i+2}")
    A(f"  s_mov_b64 exec, s[{c_}:{d_}]")
    A(f"  ds_write_b64 v{t2}, {vr(S2,2)}")
    A(f"  s_mov_b64 exec, -1")
    for i in range(2): A(f"  v_add_f32_dpp v{P+i}, v{P+i}, v{P+i} row_ror:8 row_mask:0xf bank_mask:0xf")
    A(f"  v_and_b32 v{vOA}, 7, v{vl}")
    A(f"  v_lshlrev_b32 v{vOA}, 5, v{vOA}")
    A(f"  v_lshrrev_b32 v{t2}, 4, v{vl}")
    A(f"  v_lshl_add_u32 v{vOA}, v{t2}, 3, v{vOA}")
    A(f"  v_and_b32 v{t2}, 8, v{vl}")
    A(f"  v_lshl_or_b32 v{vOA}, v{t2}, 27, v{vOA}")
    A(f"  s_mul_i32 s{a}, s{sc}, 1536")
    A(f"  s_lshl_b32 s{b}, s{sw}, 8")
    A(f"  s_add_u32 s{a}, s{a}, s{b}")
    A(f"  s_add_u32 s{a}, s{a}, {WS_PART}")
    A(f"  s_cmp_lt_u32 s{sw}, 6")
    A(f"  s_cselect_b32 s{a}, s{a}, 0x20000000")
    A(f"  buffer_store_dwordx2 {vr(P,2)}, v{vOA}, {sr(sWS,4)}, s{a} offen sc1")
    ST.stamp()
    A("  s_waitcnt vmcnt(2)")
    vE, vZero, vHCw = vSf, vSf+8, vSf+12
    La, Lb, Lc = vL, vL+4, vL+8
    for i in range(4): A(f"  v_alignbit_b32 v{vE+i}, v{Lb+i}, v{La+i}, 16")
    for i in range(4): A(f"  v_alignbit_b32 v{vE+4+i}, v{Lc+i}, v{Lb+i}, 16")
    A(f"  s_mul_i32 s{a}, s{sch}, {HCH}")
    A(f"  s_add_u32 s{a}, s{a}, {HC+32}")
    A(f"  v_add_u32 v{vHCw}, s{a}, v{vT16}")
    for i in range(4): A(f"  v_mov_b32 v{vZero+i}, 0")
    A(f"  ds_write_b128 v{vHCw}, {vr(La,4)}")
    A(f"  ds_write_b128 v{vHCw}, {vr(Lb,4)} offset:{2*4160}")
    A(f"  ds_write_b128 v{vHCw}, {vr(vE,4)} offset:{4160}")
    A(f"  ds_write_b128 v{vHCw}, {vr(vE+4,4)} offset:{3*4160}")
    A(f"  s_cmp_lg_u32 s{sw}, 1")
    A(f"  s_cbranch_scc1 {name}_nozt")
    A(f"  v_lshrrev_b32 v{t1}, 5, v{vl}")
    A(f"  v_mul_u32_u24 v{t1}, 4608, v{t1}")
    A(f"  v_and_b32 v{t2}, 31, v{vl}")
    A(f"  v_lshl_add_u32 v{t1}, v{t2}, 4, v{t1}")
    A(f"  ds_write_b128 v{t1}, {vr(vZero,4)} offset:4096")
    A(f"{name}_nozt:")
    A(f"  s_cmp_lg_u32 s{sqq}, 0")
    A(f"  s_cbranch_scc1 {name}_noneg")
    A(f"  s_mov_b64 exec, 1")
    A(f"  v_subrev_u32 v{t0}, 32, v{vHCw}")
    Tn = vKf
    for i in range(12): A(f"  v_mov_b32 v{Tn+i}, 0")
    for phi in range(4): A(f"  ds_write_b128 v{t0}, {vr(vZero,4)} offset:{phi*4160}")
    A(f"  ds_write_b128 v{t0}, {vr(vZero,4)} offset:16")
    A(f"  v_lshlrev_b32 v{Tn+3}, 16, v{La}")
    A(f"  v_mov_b32 v{Tn+7}, v{La}")
    A(f"  v_lshlrev_b32 v{Tn+10}, 16, v{La}")
    A(f"  v_alignbit_b32 v{Tn+11}, v{La+1}, v{La}, 16")
    A(f"  ds_write_b128 v{t0}, {vr(Tn,4)} offset:{4160+16}")
    A(f"  ds_write_b128 v{t0}, {vr(Tn+4,4)} offset:{2*4160+16}")
    A(f"  ds_write_b128 v{t0}, {vr(Tn+8,4)} offset:{3*4160+16}")
    A(f"  s_mov_b64 exec, -1")
    A(f"{name}_noneg:")
    conv2(A, locals())
    A(f"{name}_end:")
    ST.flush(2)
    A("  s_endpgm")
    return dict(name=name, grid=256, block=512, lds=LDS, nvgpr=256, accum=256)

def conv2(A, L):
    name, ST, SPIN, PREFETCH, PSLEEP = (L[k] for k in "name ST SPIN PREFETCH PSLEEP".split())
    XR1, HC, HCH, MD, EX = (L[k] for k in "XR1 HC HCH MD EX".split())
    vl, t0, t1, t2, t3 = 1, 2, 3, 4, 5
    sWS, sSH, sXq, sPF = (L[k] for k in "sWS sSH sXq sPF".split())
    stb, scb, sw, sc, sch, sqq, sD = (L[k] for k in "stb scb sw sc sch sqq sD".split())
    a, b, c_, d_ = 44, 45, 46, 47
    pWG, pWD = L['pWG'], L['pWD']
    vAcc, vZf, vHf = 16, 48, 112
    vXP, vS1, vMd, vPt = 176, 180, 188, 196
    vZ, vH, vEXw, vEXr, vYo, vKVo, vXRw, vXo, vSo, vMo, vPf, vPd = range(208, 220)
    vHD = 220
    vPoll = 224
    A(f"  v_and_b32 v{t0}, 15, v{vl}")
    A(f"  v_lshrrev_b32 v{t1}, 4, v{vl}")
    A(f"  v_lshlrev_b32 v{t2}, 5, v{t0}")
    A(f"  v_sub_u32 v{t2}, 480, v{t2}")
    A(f"  v_lshl_add_u32 v{t2}, v{t1}, 4, v{t2}")
    A(f"  s_mul_i32 s{a}, s{sch}, {XR1}")
    A(f"  s_lshl_b32 s{b}, s{sqq}, 7")
    A(f"  s_add_u32 s{a}, s{a}, s{b}")
    A(f"  v_add_u32 v{vZ}, s{a}, v{t2}")
    A(f"  v_add_u32 v{t2}, 1, v{t0}")
    A(f"  v_and_b32 v{t3}, 3, v{t2}")
    A(f"  v_sub_u32 v{t2}, v{t2}, v{t3}")
    A(f"  v_lshl_add_u32 v{t2}, v{t1}, 3, v{t2}")
    A(f"  v_lshlrev_b32 v{t2}, 1, v{t2}")
    A(f"  v_mul_u32_u24 v{t3}, 4160, v{t3}")
    A(f"  s_mul_i32 s{a}, s{sch}, {HCH}")
    A(f"  s_add_u32 s{a}, s{a}, s{b}")
    A(f"  s_add_u32 s{a}, s{a}, {HC}")
    A(f"  v_add3_u32 v{vH}, v{t2}, v{t3}, s{a}")
    A(f"  v_lshlrev_b32 v{t2}, 4, v{vl}")
    A(f"  s_lshl_b32 s{a}, s{sw}, 13")
    A(f"  s_add_u32 s{a}, s{a}, {EX}")
    A(f"  v_add_u32 v{vEXw}, s{a}, v{t2}")
    A(f"  s_lshl_b32 s{a}, s{sw}, 10")
    A(f"  s_add_u32 s{a}, s{a}, {EX}")
    A(f"  v_add_u32 v{vEXr}, s{a}, v{t2}")
    A(f"  s_lshl_b32 s{a}, s{sc}, 13")
    A(f"  s_add_u32 s{a}, s{a}, {WS_KVR}")
    A(f"  v_lshl_add_u32 v{vKVo}, v0, 4, s{a}")
    A(f"  s_mul_i32 s{a}, s{sch}, {XR1}")
    A(f"  v_add_u32 v{vXRw}, s{a}, v{L['vT16']}")
    A(f"  s_lshr_b32 s{a}, s{sc}, 3")
    A(f"  s_lshl_b32 s{a}, s{a}, 10")
    A(f"  s_bfe_u32 s{b}, s{sc}, 0x10002")
    A(f"  s_lshl_b32 s{b}, s{b}, 9")
    A(f"  s_add_u32 s{a}, s{a}, s{b}")
    A(f"  s_and_b32 s{b}, s{sc}, 3")
    A(f"  s_lshl_b32 s{b}, s{b}, 2")
    A(f"  s_add_u32 s{a}, s{a}, s{b}")
    A(f"  s_lshl_b32 s{b}, s{sw}, 18")
    A(f"  s_add_u32 s{a}, s{a}, s{b}")
    A(f"  v_lshlrev_b32 v{t2}, 16, v{t1}")
    A(f"  v_lshl_add_u32 v{t2}, v{t0}, 4, v{t2}")
    A(f"  v_add_u32 v{vYo}, s{a}, v{t2}")
    A(f"  s_lshl_b32 s{a}, s{sc}, 13")
    A(f"  s_lshl_b32 s{b}, s{sw}, 10")
    A(f"  s_add_u32 s{a}, s{a}, s{b}")
    A(f"  s_add_u32 s{a}, s{a}, {WS_XP}")
    A(f"  v_lshlrev_b32 v{t2}, 8, v{t1}")
    A(f"  v_lshl_add_u32 v{t2}, v{t0}, 4, v{t2}")
    A(f"  v_add_u32 v{vXo}, s{a}, v{t2}")
    A(f"  v_lshl_add_u32 v{t2}, v{t1}, 6, v{t0}")
    A(f"  s_lshl_b32 s{a}, s{sw}, 11")
    A(f"  s_add_u32 s{a}, s{a}, {WS_ST1}")
    A(f"  v_lshl_add_u32 v{vSo}, v{t2}, 3, s{a}")
    A(f"  s_lshl_b32 s{a}, s{scb}, 5")
    A(f"  v_add_u32 v{vMo}, s{a}, v0")
    A(f"  v_mul_u32_u24 v{vMo}, 1536, v{vMo}")
    A(f"  s_lshl_b32 s{a}, s{stb}, 3")
    A(f"  s_add_u32 s{a}, s{a}, {WS_PART}")
    A(f"  v_add_u32 v{vMo}, s{a}, v{vMo}")
    A(f"  v_lshrrev_b32 v{t2}, 5, v0")
    A(f"  v_min_u32 v{t2}, 1, v{t2}")
    A(f"  v_lshl_or_b32 v{vMo}, v{t2}, 29, v{vMo}")
    A("  s_waitcnt lgkmcnt(0)")
    A(f"  s_lshr_b32 s{a}, s{sD}, 16")
    A(f"  s_and_b32 s{b}, s{sD}, 0xffff")
    A(f"  s_cmp_eq_u32 s{sch}, 0")
    A(f"  s_cselect_b32 s{a}, s{b}, s{a}")
    A(f"  s_lshl_b32 s{b}, s{a}, 16")
    A(f"  v_lshlrev_b32 v{t2}, 3, v{t1}")
    A(f"  v_add_u32 v{t2}, v{t2}, v{t0}")
    A(f"  v_sub_u32 v{t2}, 15, v{t2}")
    A(f"  v_and_b32 v{t3}, 1, v{t2}")
    A(f"  v_cmp_eq_u32 vcc, 1, v{t3}")
    A(f"  v_mov_b32 v{vHD}, s{a}")
    A(f"  v_mov_b32 v{vHD+1}, s{b}")
    A(f"  v_cndmask_b32 v{t3}, v{vHD}, v{vHD+1}, vcc")
    A(f"  v_ashrrev_i32 v{t2}, 1, v{t2}")
    for i in range(4):
        A(f"  v_cmp_eq_u32 vcc, {i}, v{t2}")
        A("  s_nop 1")
        A(f"  v_cndmask_b32 v{vHD+i}, 0, v{t3}, vcc")
    if PREFETCH:
        A(f"  v_and_b32 v{t1}, 127, v0")
        A(f"  v_mul_u32_u24 v{t2}, 147, v{t1}")
        A(f"  v_lshrrev_b32 v{t2}, 10, v{t2}")
        A(f"  v_mul_u32_u24 v{t3}, 7, v{t2}")
        A(f"  v_sub_u32 v{t3}, v{t1}, v{t3}")
        A(f"  s_lshl_b32 s{a}, s{stb}, 4")
        A(f"  v_add_u32 v{t2}, s{a}, v{t2}")
        A(f"  v_mul_u32_u24 v{t2}, 3584, v{t2}")
        A(f"  v_lshl_add_u32 v{vPf}, v{t3}, 7, v{t2}")
        A(f"  s_lshr_b32 s{a}, s{scb}, 1")
        A(f"  s_mul_i32 s{a}, s{a}, 896")
        A(f"  s_cmp_lt_u32 s{sw}, 4")
        A(f"  s_cselect_b32 s{a}, s{a}, 0x40000000")
        A(f"  v_add_u32 v{vPf}, s{a}, v{vPf}")
        A(f"  s_bitcmp1_b32 s{sw}, 1")
        A(f"  s_cselect_b32 s{sPF}, s{pWG+2}, s{pWG}")
        A(f"  s_cselect_b32 s{sPF+1}, s{pWG+3}, s{pWG+1}")
        A(f"  s_mov_b32 s{sPF+2}, {512*1792*2}")
        A(f"  s_mov_b32 s{sPF+3}, 0x20000")
        A(f"  s_mul_i32 s{a}, s2, 7168")
        A(f"  s_cmp_eq_u32 s{sw}, 4")
        A(f"  s_cselect_b32 s{a}, s{a}, 0x40000000")
        A(f"  v_lshl_add_u32 v{vPd}, v{vl}, 7, s{a}")
        A(f"  s_mov_b32 s{sXq}, s{pWD}")
        A(f"  s_mov_b32 s{sXq+1}, s{pWD+1}")
        A(f"  s_mov_b32 s{sXq+2}, {1792*512*2}")
    A(f"  s_cmp_lg_u32 s{sw}, 0")
    A(f"  s_cbranch_scc1 {name}_s1w")
    A(f"  s_lshl_b32 s{a}, s{scb}, 8")
    A(f"  s_add_u32 s{a}, s{a}, {WS_CNT+16*256}")
    A(f"  v_mov_b32 v{t2}, s{a}")
    poll_ge(A, f"{name}_s1", sWS, t2, [vPoll+i for i in range(4)], 32, a, b, SPIN, PSLEEP)
    A(f"{name}_s1w:")
    A("  s_waitcnt lgkmcnt(0)")
    A("  s_barrier")
    ST.stamp()
    vKV = vZf
    A(f"  buffer_load_dwordx4 {vr(vKV,4)}, v{vKVo}, {sr(sWS,4)}, 0 offen sc1")
    A(f"  s_cmp_lg_u32 s{sw}, 0")
    A(f"  s_cbranch_scc1 {name}_nost")
    A(f"  v_lshlrev_b32 v{t2}, 4, v{vl}")
    A(f"  ds_read_b128 {vr(vKV+4,4)}, v{t2} offset:{L['MS']}")
    A(f"  s_lshl_b32 s{a}, s2, 6")
    A(f"  s_add_u32 s{a}, s{a}, {WS_ST1}")
    A("  s_waitcnt lgkmcnt(0)")
    A(f"  s_mov_b64 exec, 0xf")
    A(f"  buffer_store_dwordx4 {vr(vKV+4,4)}, v{t2}, {sr(sWS,4)}, s{a} offen sc1")
    A(f"  s_mov_b64 exec, -1")
    A(f"  s_waitcnt vmcnt(1)")
    A(f"  s_branch {name}_kvok")
    A(f"{name}_nost:")
    A(f"  s_waitcnt vmcnt(0)")
    A(f"{name}_kvok:")
    def stat_loads():
        for r in range(4):
            A(f"  buffer_load_dwordx2 {vr(vS1+2*r,2)}, v{vSo}, {sr(sWS,4)}, 0 offen offset:{128*r} sc1")
    A(f"  ds_write_b128 v{vXRw}, {vr(vKV,4)}")
    A("  s_waitcnt lgkmcnt(0)")
    A("  s_barrier")
    ST.stamp()
    A(f"  s_lshl_b32 s{a}, s{scb}, 8")
    A(f"  s_add_u32 s{a}, s{a}, {WS_CNT+C_XS*256}")
    A(f"  v_mov_b32 v{vPoll+1}, s{a}")
    A(f"  s_cmp_lg_u32 s{sw}, 1")
    A(f"  s_cbranch_scc1 {name}_arr2")
    A(f"  v_mov_b32 v{t3}, 1")
    A(f"  s_mov_b64 exec, 1")
    A(f"  buffer_atomic_add v{t3}, v{vPoll+1}, {sr(sWS,4)}, 0 offen sc1")
    A(f"  s_mov_b64 exec, -1")
    A(f"{name}_arr2:")
    def late_loads():
        A(f"  s_cmp_lg_u32 s{sw}, 0")
        A(f"  s_cbranch_scc1 {name}_nopt")
        for chk in range(6):
            A(f"  buffer_load_dwordx2 {vr(vPt+2*chk,2)}, v{vMo}, {sr(sWS,4)}, 0 offen offset:{256*chk} sc1")
        A(f"{name}_nopt:")
        A(f"  buffer_load_dwordx4 {vr(vXP,4)}, v{vXo}, {sr(sWS,4)}, 0 offen sc1")
        stat_loads()
    def prefetch():
        if not PREFETCH: return
        A(f"  s_cmp_gt_u32 s{sw}, 4")
        A(f"  s_cbranch_scc1 {name}_nopf")
        A(f"  s_cmp_eq_u32 s{sw}, 4")
        A(f"  s_cbranch_scc1 {name}_pfd")
        A(f"  buffer_load_dword v228, v{vPf}, {sr(sPF,4)}, 0 offen")
        A(f"  s_branch {name}_nopf")
        A(f"{name}_pfd:")
        A(f"  buffer_load_dword v229, v{vPd}, {sr(sXq,4)}, 0 offen")
        A(f"{name}_nopf:")
    def reads(it):
        buf = it & 1
        R = []
        for G in range(8):
            R.append(f"  ds_read_b128 {vr(vZf+32*buf+4*G,4)}, v{vZ} offset:{64*it+512*(7-G)}")
        for m in range(8):
            for hh in range(2):
                R.append(f"  ds_read_b64 {vr(vHf+32*buf+4*m+2*hh,2)}, v{vH} offset:{64*it+512*m+8*hh}")
        return R
    red = []
    for k in range(6): red.append(f"  v_permlane16_swap_b32 v{vPt+2*k}, v{vPt+2*k+1}")
    for k in range(6): red.append(f"  v_add_f32 v{vPt+2*k}, v{vPt+2*k}, v{vPt+2*k+1}")
    for ror in (8, 4, 2, 1):
        for k in range(6):
            red.append(f"  v_add_f32_dpp v{vPt+2*k}, v{vPt+2*k}, v{vPt+2*k} row_ror:{ror} row_mask:0xf bank_mask:0xf")
    for k in range(6): red.append(f"  v_cvt_pk_bf16_f32 v{vPt+2*k}, v{vPt+2*k}, v{vPt+2*k}")
    for k in range(6): red.append(f"  v_lshlrev_b32 v{vPt+2*k}, 16, v{vPt+2*k}")
    for k in (1, 4): red.append(f"  v_add_f32 v{vPt+2*k}, 1.0, v{vPt+2*k}")
    for k in (1, 4): red.append(f"  v_cvt_pk_bf16_f32 v{vPt+2*k}, v{vPt+2*k}, v{vPt+2*k}")
    for k in (1, 4): red.append(f"  v_lshlrev_b32 v{vPt+2*k}, 16, v{vPt+2*k}")
    for s_ in reads(0): A(s_)
    for it in range(2):
        buf = it & 1
        if it == 1:
            A(f"  buffer_load_dword v{vPoll}, v{vPoll+1}, {sr(sWS,4)}, 0 offen sc1")
        A("  s_waitcnt lgkmcnt(0)")
        nxt = reads(1) if it == 0 else []
        if it == 0:
            A(f"  s_cmp_lg_u32 s{sqq}, 0")
            A(f"  s_cbranch_scc1 {name}_noD")
            for G in range(8):
                A(f"  v_mfma_f32_16x16x32_bf16 {vr(vAcc+4*G,4)}, {vr(vZf+4*G,4)}, {vr(vHD,4)}, 0")
            A(f"  s_branch {name}_Dok")
            A(f"{name}_noD:")
            for i in range(32): A(f"  v_mov_b32 v{vAcc+i}, 0")
            A("  s_nop 1")
            A(f"{name}_Dok:")
        for m in range(8):
            for Gz in range(8-m):
                G = Gz+m
                A(f"  v_mfma_f32_16x16x32_bf16 {vr(vAcc+4*G,4)}, {vr(vZf+32*buf+4*Gz,4)}, {vr(vHf+32*buf+4*m,4)}, {vr(vAcc+4*G,4)}")
                if it == 0 and nxt: A(nxt.pop(0))
    A("  s_waitcnt vmcnt(0)")
    A(f"  v_readfirstlane_b32 s{a}, v{vPoll}")
    A(f"  s_mov_b32 s{b}, {SPIN}")
    A(f"{name}_s2:")
    A(f"  s_cmp_ge_u32 s{a}, 32")
    A(f"  s_cbranch_scc1 {name}_s2ok")
    A(f"  s_sleep 2")
    A(f"  buffer_load_dword v{vPoll}, v{vPoll+1}, {sr(sWS,4)}, 0 offen sc1")
    A("  s_waitcnt vmcnt(0)")
    A(f"  v_readfirstlane_b32 s{a}, v{vPoll}")
    A(f"  s_sub_u32 s{b}, s{b}, 1")
    A(f"  s_cmp_lg_u32 s{b}, 0")
    A(f"  s_cbranch_scc1 {name}_s2")
    A(f"{name}_s2ok:")
    late_loads()
    ST.stamp()
    for G in range(8):
        A(f"  ds_write_b128 v{vEXw}, {vr(vAcc+4*G,4)} offset:{G*1024}")
    prefetch()
    A("  s_waitcnt lgkmcnt(0)")
    A("  s_barrier")
    vR = vZf
    for s_ in range(8):
        A(f"  ds_read_b128 {vr(vR+4*s_,4)}, v{vEXr} offset:{s_*8192}")
    A("  s_waitcnt lgkmcnt(4)")
    for hh in range(2):
        A(f"  v_pk_add_f32 {vr(vR+2*hh,2)}, {vr(vR+2*hh,2)}, {vr(vR+4+2*hh,2)}")
        A(f"  v_pk_add_f32 {vr(vR+8+2*hh,2)}, {vr(vR+8+2*hh,2)}, {vr(vR+12+2*hh,2)}")
    for hh in range(2):
        A(f"  v_pk_add_f32 {vr(vR+2*hh,2)}, {vr(vR+2*hh,2)}, {vr(vR+8+2*hh,2)}")
    A("  s_waitcnt lgkmcnt(0)")
    for hh in range(2):
        A(f"  v_pk_add_f32 {vr(vR+16+2*hh,2)}, {vr(vR+16+2*hh,2)}, {vr(vR+20+2*hh,2)}")
        A(f"  v_pk_add_f32 {vr(vR+24+2*hh,2)}, {vr(vR+24+2*hh,2)}, {vr(vR+28+2*hh,2)}")
    for hh in range(2):
        A(f"  v_pk_add_f32 {vr(vR+16+2*hh,2)}, {vr(vR+16+2*hh,2)}, {vr(vR+24+2*hh,2)}")
    if PREFETCH:
        A(f"  s_cmp_gt_u32 s{sw}, 4")
        A(f"  s_cbranch_scc1 {name}_w0")
        A("  s_waitcnt vmcnt(1)")
        A(f"  s_branch {name}_w1")
        A(f"{name}_w0:")
    A("  s_waitcnt vmcnt(0)")
    if PREFETCH: A(f"{name}_w1:")
    A(f"  s_cmp_lg_u32 s{sw}, 0")
    A(f"  s_cbranch_scc1 {name}_nomd")
    while red: A(red.pop(0))
    A(f"  v_lshrrev_b32 v{vPt+1}, 4, v{vl}")
    A(f"  v_lshlrev_b32 v{vPt+1}, 2, v{vPt+1}")
    A(f"  v_add_u32 v{vPt+1}, {MD}, v{vPt+1}")
    A(f"  s_mov_b64 exec, 0x10001")
    for i, k in enumerate((0, 1, 2, 4)):
        A(f"  ds_write_b32 v{vPt+1}, v{vPt+2*k} offset:{8*i}")
    A(f"  s_mov_b64 exec, -1")
    A(f"{name}_nomd:")
    A(f"  s_mov_b32 s{c_}, {SPIN}")
    A(f"{name}_val:")
    V = vHf
    A(f"  v_min_u32 v{V}, v{vS1}, v{vS1+2}")
    A(f"  v_min3_u32 v{V}, v{V}, v{vS1+4}, v{vS1+6}")
    A(f"  v_cmp_eq_u32 vcc, 0, v{V}")
    A("  s_nop 1")
    A(f"  s_cmp_eq_u64 vcc, 0")
    A(f"  s_cbranch_scc1 {name}_valok")
    A("  s_sleep 1")
    stat_loads()
    A("  s_waitcnt vmcnt(0)")
    A(f"  s_sub_u32 s{c_}, s{c_}, 1")
    A(f"  s_cmp_lg_u32 s{c_}, 0")
    A(f"  s_cbranch_scc1 {name}_val")
    A(f"{name}_valok:")
    X, N = vHf+8, vHf+16
    for r in range(4):
        A(f"  v_lshlrev_b32 v{X+2*r}, 16, v{vXP+r}")
        A(f"  v_and_b32 v{X+2*r+1}, 0xffff0000, v{vXP+r}")
    for r in range(4):
        rs, nm = vS1+2*r, vS1+2*r+1
        A(f"  v_pk_fma_f32 {vr(N+2*r,2)}, {vr(X+2*r,2)}, {vr(rs,2)}, {vr(rs,2)} op_sel:[0,0,1] op_sel_hi:[1,0,1]")
    A("  s_waitcnt lgkmcnt(0)")
    A("  s_barrier")
    ST.stamp()
    A(f"  v_mov_b32 v{t2}, {MD}")
    A(f"  ds_read_b128 {vr(vMd,4)}, v{t2}")
    A(f"  ds_read_b128 {vr(vMd+4,4)}, v{t2} offset:16")
    sa, c1a, ga, c1b = vMd, vMd+2, vMd+4, vMd+6
    A("  s_waitcnt lgkmcnt(0)")
    for r in range(4): A(f"  v_pk_fma_f32 {vr(N+2*r,2)}, {vr(N+2*r,2)}, {vr(c1a,2)}, {vr(sa,2)}")
    for r in range(4): A(f"  v_pk_mul_f32 {vr(N+2*r,2)}, {vr(N+2*r,2)}, {vr(ga,2)}")
    for r in range(4):
        A(f"  v_fma_f32 v{X+2*r}, v{N+2*r}, v{vR+r}, v{X+2*r}")
        A(f"  v_fma_f32 v{X+2*r+1}, v{N+2*r+1}, v{vR+16+r}, v{X+2*r+1}")
    PX, PZ = vR+4, vR+8
    ST.stamp()
    for r in range(4): A(f"  v_cvt_pk_bf16_f32 v{PX+r}, v{X+2*r}, v{X+2*r+1}")
    A(f"  s_mov_b32 s{a}, {WS_X1}")
    A(f"  s_mov_b32 s{b}, {WS_X1+32768}")
    A(f"  s_mov_b32 s{c_}, {WS_H2}")
    A(f"  s_mov_b32 s{d_}, {WS_H2+32768}")
    for r in range(4):
        A(f"  buffer_store_dword v{PX+r}, v{vYo}, {sr(sWS,4)}, s{a+(r>>1)} offen offset:{256*(r&1)}")
    for r in range(4):
        A(f"  v_lshlrev_b32 v{X+2*r}, 16, v{PX+r}")
        A(f"  v_and_b32 v{X+2*r+1}, 0xffff0000, v{PX+r}")
    for r in range(4): A(f"  v_pk_mul_f32 {vr(X+2*r,2)}, {vr(X+2*r,2)}, {vr(c1b,2)}")
    for r in range(4): A(f"  v_cvt_pk_bf16_f32 v{PZ+r}, v{X+2*r}, v{X+2*r+1}")
    for r in range(4):
        A(f"  buffer_store_dword v{PZ+r}, v{vYo}, {sr(sWS,4)}, s{c_+(r>>1)} offen offset:{256*(r&1)}")
    A(f"  s_cmp_lg_u32 s{sw}, 0")
    A(f"  s_cbranch_scc1 {name}_nopub")
    A(f"  v_lshrrev_b32 v{vPt+1}, 4, v{vl}")
    A(f"  s_lshl_b32 s{a}, s{sc}, 1")
    A(f"  v_add_u32 v{vPt+1}, s{a}, v{vPt+1}")
    A(f"  v_lshlrev_b32 v{vPt+3}, 2, v{vPt+1}")
    A(f"  v_lshlrev_b32 v{vPt+5}, 1, v{vPt+1}")
    A(f"  s_mov_b64 exec, 0x10001")
    for k in range(6):
        A(f"  s_mov_b32 s{a}, {WS_MOD+k*2048}")
        A(f"  buffer_store_dword v{vPt+2*k}, v{vPt+3}, {sr(sWS,4)}, s{a} offen")
    for k in (3, 4):
        A(f"  v_lshrrev_b32 v{vPt+7}, 16, v{vPt+2*k}")
        A(f"  s_mov_b32 s{a}, {WS_MODH+k*1024}")
        A(f"  buffer_store_short v{vPt+7}, v{vPt+5}, {sr(sWS,4)}, s{a} offen")
        A("  s_nop 0")
    A(f"  s_mov_b64 exec, -1")
    A(f"{name}_nopub:")
```

```python
from common import *
from poll import poll_ge

NHELP = 32
UNIT = [131072 + 8192*p for p in range(4)] + [m*65536 + 8192*st for st in range(8) for m in range(2)]
def gen_kb(A, name="ffn_kernel", kidx=3, AHEAD=2, SPACE=2, NSLOT=20, SPIN=200000, B0=10, BR=2, QFL=24, QCK=27, EARLY=0, QPF=18, QDMA=18, PSLEEP=2, PK=1, ALLST=0, STAG=0, NIN=0, DSP=5, NPOST=8, NEPI=8, W2=0, PRIO=0, NOBAR=0):
    LDS = 4*NSLOT*2048
    assert LDS >= 131072
    REG = NSLOT*2048
    kernel_header(A, name)
    ST = Stamper(A, kidx); ST.stamp()
    sW, sH, sACT, sWD, sCNT, sX = 8, 12, 16, 20, 24, 28
    sw, sm, sWo, sM0, sf0, stb, sHo = 40, 41, 42, 43, 44, 45, 46
    sT0, sT1, sT2, sT3 = 47, 48, 49, 50
    sdb, stb64, skq, stt, sDo, sLb = 51, 52, 53, 54, 55, 56
    pWG, pWU, pWD, pWS, pOUT = 4, 6, 32, 34, 36
    A("  s_cmp_ge_u32 s2, 256")
    A(f"  s_cbranch_scc1 {name}_end")
    A(f"  s_load_dwordx4 s[4:7], s[0:1], {KA['wg']}")
    A(f"  s_load_dwordx2 s[{pWD}:{pWD+1}], s[0:1], {KA['wd']}")
    A(f"  s_load_dwordx2 s[{pWS}:{pWS+1}], s[0:1], {KA['ws']}")
    A(f"  s_load_dwordx2 s[{pOUT}:{pOUT+1}], s[0:1], {KA['out']}")
    vl, vWoff, vH, vAct, vt0, vt1, vt2, vt3, vRS = 1,2,3,4,5,6,7,8,14
    vA = 10
    vAf = 16
    vAcc = 48
    vX = 112
    A(f"  v_lshrrev_b32 v{vt0}, 6, v0")
    A(f"  v_and_b32 v{vl}, 63, v0")
    A(f"  v_readfirstlane_b32 s{sw}, v{vt0}")
    A("  s_and_b32 s3, s2, 7")
    A(f"  s_lshr_b32 s{sT0}, s2, 3")
    A(f"  s_and_b32 s{sdb}, s{sT0}, 7")
    A(f"  s_lshr_b32 s{sT1}, s{sT0}, 3")
    A(f"  s_lshl_b32 s{stb64}, s3, 2")
    A(f"  s_add_u32 s{stb64}, s{stb64}, s{sT1}")
    A(f"  s_lshr_b32 s{skq}, s{sw}, 1")
    A(f"  s_and_b32 s{stt}, s{sw}, 1")
    A(f"  s_mov_b32 s{sm}, s{stt}")
    A("  s_cmp_ge_u32 s2, 224")
    A(f"  s_cbranch_scc1 {name}_helper")
    A(f"  s_mul_i32 s{sT1}, s{sT0}, 37")
    A(f"  s_lshr_b32 s{sT1}, s{sT1}, 8")
    A(f"  s_mul_i32 s{sT2}, s{sT1}, 7")
    A(f"  s_sub_u32 s{sT2}, s{sT0}, s{sT2}")
    A(f"  s_and_b32 s{sT3}, s3, 1")
    A(f"  s_lshl_b32 s{sT3}, s{sT3}, 2")
    A(f"  s_add_u32 s{stb}, s{sT3}, s{sT1}")
    A(f"  s_lshr_b32 s{sT3}, s3, 1")
    A(f"  s_mul_i32 s{sT3}, s{sT3}, 7")
    A(f"  s_add_u32 s{sT3}, s{sT3}, s{sT2}")
    A(f"  s_lshl_b32 s{sf0}, s{sT3}, 6")
    A(f"  v_lshrrev_b32 v{vt0}, 3, v{vl}")
    A(f"  v_bfe_u32 v{vt1}, v{vl}, 4, 1")
    A(f"  s_lshl_b32 s{sT0}, s{sm}, 1")
    A(f"  v_bfe_u32 v{vt2}, v{vl}, 1, 2")
    A(f"  v_or_b32 v{vt1}, s{sT0}, v{vt1}")
    A(f"  v_xor_b32 v{vt1}, v{vt1}, v{vt2}")
    A(f"  v_and_b32 v{vt2}, 1, v{vl}")
    A(f"  v_lshlrev_b32 v{vt1}, 5, v{vt1}")
    A(f"  v_lshl_add_u32 v{vt1}, v{vt2}, 4, v{vt1}")
    A(f"  s_movk_i32 s{sT0}, 3584")
    A(f"  v_mad_u32_u24 v{vWoff}, v{vt0}, s{sT0}, v{vt1}")
    sTB32 = 57
    A(f"  s_lshl_b32 s{sTB32}, s{stb}, 3")
    A(f"  s_add_u32 s{sTB32}, s{sTB32}, s{sw}")
    A(f"  s_lshl_b32 s{sT1}, s{sTB32}, 15")
    A(f"  v_lshlrev_b32 v{vt0}, 4, v{vl}")
    A(f"  v_add_u32 v{vH}, s{sT1}, v{vt0}")
    A(f"  s_mul_i32 s{sWo}, s{skq}, {16*3584}")
    A(f"  s_lshl_b32 s{sT1}, s{sf0}, 1")
    A(f"  s_add_u32 s{sWo}, s{sWo}, s{sT1}")
    A(f"  s_lshl_b32 s{sM0}, s{skq}, 11")
    A(f"  s_lshl_b32 s{sT1}, s{sm}, 16")
    A(f"  s_add_u32 s{sM0}, s{sM0}, s{sT1}")
    A(f"  s_mov_b32 s{sHo}, 0")
    A("  s_waitcnt lgkmcnt(0)")
    A(f"  s_cmp_eq_u32 s{sm}, 0")
    A(f"  s_cselect_b32 s{sW}, s4, s6")
    A(f"  s_cselect_b32 s{sW+1}, s5, s7")
    A(f"  s_mov_b32 s{sW+2}, {512*1792*2}")
    A(f"  s_mov_b32 s{sW+3}, 0x20000")
    srd(A, sH, pWS, WS_H2, SZ2M)
    loadops = []
    for st in range(8):
        for ii in range(2):
            L = [f"  s_add_u32 m0, s{sM0}, {st*64*128 + ii*1024}"]
            if st or ii:
                inc = 8*3584 if ii else (64-8)*3584
                L.append(f"  s_add_u32 s{sWo}, s{sWo}, {inc}")
            else:
                L.append("  s_nop 0")
            L.append(f"  buffer_load_dwordx4 v{vWoff}, {sr(sW,4)}, s{sWo} offen lds")
            loadops.append(L)
        for qq in range(4):
            q = 4*st+qq
            L = [f"  buffer_load_dwordx4 {ar(4*q,4)}, v{vH}, {sr(sH,4)}, s{sHo} offen offset:{qq*1024}"]
            if qq == 3 and st < 7:
                L.append(f"  s_add_u32 s{sHo}, s{sHo}, 4096")
            loadops.append(L)
    state = dict(n=0, vm=0)
    mark = {}
    def emit_load():
        if state['n'] < 48:
            for x in loadops[state['n']]: A(x)
            state['n'] += 1; state['vm'] += 1
            if state['n'] % 6 == 0: mark[state['n']//6-1] = state['vm']
    def other_vm(line):
        A(line); state['vm'] += 1
        return state['vm']
    def wait_vm(idx):
        A(f"  s_waitcnt vmcnt({state['vm']-idx})")
    for _ in range(6): emit_load()
    srd(A, sACT, pWS, WS_ACT, SZ_ACT)
    srd(A, sWD, pWD, 0, 1792*512*2)
    srd(A, sCNT, pWS, WS_CNT, 4096)
    A(f"  v_bfe_u32 v{vt1}, v{vl}, 2, 2")
    A(f"  v_lshrrev_b32 v{vt2}, 5, v{vl}")
    A(f"  v_lshl_add_u32 v{vt2}, v{vt2}, 3, v{vt1}")
    A(f"  v_bfe_u32 v{vt3}, v{vl}, 4, 1")
    A(f"  v_lshlrev_b32 v{vt2}, 7, v{vt2}")
    A(f"  v_lshl_add_u32 v{vt2}, v{vt3}, 16, v{vt2}")
    A(f"  v_lshrrev_b32 v{vt1}, 1, v{vt1}")
    A(f"  v_lshl_or_b32 v{vt1}, v{vt3}, 1, v{vt1}")
    A(f"  v_and_b32 v{vt3}, 1, v{vl}")
    A(f"  v_lshl_add_u32 v{vt2}, v{vt3}, 4, v{vt2}")
    A(f"  v_bfe_u32 v{vt3}, v{vl}, 1, 1")
    A(f"  v_lshl_add_u32 v{vt2}, v{vt3}, 3, v{vt2}")
    for tau in range(4):
        A(f"  v_xor_b32 v{vt3}, {tau}, v{vt1}")
        A(f"  v_lshl_add_u32 v{vA+tau}, v{vt3}, 5, v{vt2}")
    A(f"  s_mul_i32 s{sT0}, s{sTB32}, 112")
    A(f"  s_lshr_b32 s{sT1}, s{sf0}, 4")
    A(f"  s_add_u32 s{sT0}, s{sT0}, s{sT1}")
    A(f"  s_lshl_b32 s{sT0}, s{sT0}, 10")
    A(f"  v_add_u32 v{vAct}, s{sT0}, v{vt0}")
    for st in range(1, AHEAD):
        A("  s_barrier")
        for _ in range(6): emit_load()
    vAE, vBE, vRo = vX+1, vX+2, vX+3
    A(f"  v_and_b32 v{vt1}, 3, v{vl}")
    A(f"  v_bfe_u32 v{vt2}, v{vl}, 2, 1")
    A(f"  v_lshl_add_u32 v{vt1}, v{vt2}, 3, v{vt1}")
    A(f"  v_bfe_u32 v{vt2}, v{vl}, 3, 1")
    A(f"  v_lshl_add_u32 v{vt1}, v{vt2}, 2, v{vt1}")
    A(f"  v_add_u32 v{vt1}, s{sf0}, v{vt1}")
    A(f"  v_bfe_u32 v{vt2}, v{vl}, 4, 1")
    A(f"  v_mul_u32_u24 v{vt2}, 1792, v{vt2}")
    A(f"  v_add_u32 v{vt1}, v{vt1}, v{vt2}")
    A(f"  v_lshlrev_b32 v{vAE}, 4, v{vt1}")
    A(f"  v_lshrrev_b32 v{vt2}, 5, v{vl}")
    A(f"  v_lshl_or_b32 v{vAE}, v{vt2}, 30, v{vAE}")
    A(f"  v_and_b32 v{vt1}, 31, v{vl}")
    A(f"  s_lshl_b32 s{sT0}, s{sTB32}, 5")
    A(f"  v_add_u32 v{vt1}, s{sT0}, v{vt1}")
    A(f"  v_lshlrev_b32 v{vRo}, 3, v{vt1}")
    A(f"  v_lshlrev_b32 v{vBE}, 4, v{vt1}")
    A(f"  v_lshl_or_b32 v{vBE}, v{vt2}, 30, v{vBE}")
    phase2_setup(A, locals())
    pre = phase2_preload_ops(locals())
    def dma_ok(p, q_done):
        if p < 4: return True
        st = (p-4)//2
        return st <= 5 and q_done >= 4*(st+2)-1
    def dma(q_done=None):
        if pre:
            p = NSLOT-len(pre)
            if q_done is not None and not dma_ok(p, q_done): return
            ops = pre.pop(0)
            for x in ops[:-1]: A(x)
            other_vm(ops[-1])
    def rd(q, tau):
        buf = q & 1
        return [f"  ds_read_b64_tr_b16 {vr(vAf+buf*16+tau*4+r*2,2)}, v{vA+tau} offset:{q*2048+r*512}" for r in range(2)]
    ST.stamp()
    def wait_stage(st):
        wait_vm(mark[st])
        A("  s_barrier")
    if PRIO:
        A(f"  s_cmp_lt_u32 s{sw}, 4")
        A(f"  s_cbranch_scc1 {name}_noprio")
        A("  s_setprio 1")
        A(f"{name}_noprio:")
    wait_stage(0)
    ST.stamp()
    for tau in range(4):
        for x in rd(0, tau): A(x)
    vFl = vX+4
    aE = 0
    import copy
    def emit_loop(grp):
        nonlocal_ = {}
        nout = 8
        slot = 0
        ext_idx = fl_idx = None
        for q in range(32):
            nxt = q+1 < 32
            if q == QFL:
                assert state['n'] == 48
                A(f"  s_and_b32 s{sT0}, s2, 7")
                A(f"  s_lshl_b32 s{sT0}, s{sT0}, 8")
                A(f"  s_add_u32 s{sT0}, s{sT0}, {8*256}")
                A(f"  s_cmp_eq_u32 s{sw}, 0")
                A(f"  s_cselect_b32 s{sT0}, s{sT0}, 0x4000")
                A(f"  v_mov_b32 v{vt1}, s{sT0}")
                fl_idx = other_vm(f"  buffer_load_dword v{vFl}, v{vt1}, {sr(sCNT,4)}, 0 offen sc1")
            if q == QCK:
                assert (q+1) % 4 == 0
                A(f"  s_cmp_lg_u32 s{sw}, 0")
                A(f"  s_cbranch_scc1 {name}_hok{grp}")
                wait_vm(fl_idx)
                A(f"  v_readfirstlane_b32 s{sT0}, v{vFl}")
                A(f"  s_mov_b32 s{sT1}, {SPIN}")
                A(f"{name}_hchk{grp}:")
                A(f"  s_cmp_ge_u32 s{sT0}, {NHELP}")
                A(f"  s_cbranch_scc1 {name}_hok{grp}")
                A("  s_sleep 2")
                A(f"  buffer_load_dword v{vFl}, v{vt1}, {sr(sCNT,4)}, 0 offen sc1")
                A("  s_waitcnt vmcnt(0)")
                A(f"  v_readfirstlane_b32 s{sT0}, v{vFl}")
                A(f"  s_sub_u32 s{sT1}, s{sT1}, 1")
                A(f"  s_cmp_lg_u32 s{sT1}, 0")
                A(f"  s_cbranch_scc1 {name}_hchk{grp}")
                A(f"{name}_hok{grp}:")
                ST.value(sT1, SPIN)
            if nxt and (q+1) % 4 == 0:
                st = (q+1)//4
                wait_stage(st)
                if (st in (2,4,6)) or (ALLST and st in (1,3,5,7)): ST.stamp()
            if q == QCK:
                srd(A, sX, pWS, WS_AEXT, 2*1792*16)
                for tau in range(4):
                    other_vm(f"  buffer_load_dwordx4 {ar(aE+4*tau,4)}, v{vAE}, {sr(sX,4)}, 0 offen offset:{256*tau} sc1")
                srd(A, sH, pWS, WS_BEXT, 2048*16)
                other_vm(f"  buffer_load_dwordx4 {ar(aE+16,4)}, v{vBE}, {sr(sH,4)}, 0 offen sc1")
                srd(A, sW, pWS, WS_RS, 2048*8)
                ext_idx = other_vm(f"  buffer_load_dwordx2 {vr(vRS,2)}, v{vRo}, {sr(sW,4)}, 0 offen sc1")
            if QPF > 0 and q == QPF:
                A(f"  s_lshr_b32 s{sT0}, s2, 3")
                A(f"  s_lshl_b32 s{sT0}, s{sT0}, 16")
                A(f"  v_lshlrev_b32 v{vt2}, 7, v0")
                other_vm(f"  buffer_load_dword v{vX}, v{vt2}, {sr(sWD,4)}, s{sT0} offen")
            buf = q & 1
            for tau in range(4):
                if W2:
                    if tau % 2 == 0:
                        A(f"  s_waitcnt lgkmcnt({nout-4})")
                    nout -= 2
                else:
                    A(f"  s_waitcnt lgkmcnt({nout-2})")
                    nout -= 2
                c = "0" if q == 0 else vr(vAcc+16*tau,16)
                A(f"  v_mfma_f32_32x32x16_bf16 {vr(vAcc+16*tau,16)}, {vr(vAf+buf*16+tau*4,4)}, {ar(4*q,4)}, {c}")
                if nxt:
                    for x in rd(q+1, tau): A(x)
                    nout += 2
                if (slot + grp) % SPACE == SPACE-1 and state['n'] < 48: emit_load()
                elif state['n'] == 48 and q >= QDMA and NSLOT-len(pre) < NIN and (slot % DSP) == DSP-1: dma(q)
                slot += 1
        return ext_idx
    if STAG:
        snap = (copy.deepcopy(state), copy.deepcopy(mark), list(pre), ST.n)
        A(f"  s_cmp_ge_u32 s{sw}, 4")
        A(f"  s_cbranch_scc1 {name}_loopB")
        e0 = emit_loop(0)
        endA = (copy.deepcopy(state), list(pre), ST.n)
        A(f"  s_branch {name}_loopEnd")
        A(f"{name}_loopB:")
        state.clear(); state.update(snap[0]); mark.clear(); mark.update(snap[1]); pre[:] = snap[2]; ST.n = snap[3]
        ext_idx = emit_loop(1)
        assert (state, pre, ST.n, ext_idx) == (endA[0], endA[1], endA[2], e0), (state, endA[0], len(pre), len(endA[1]), ext_idx, e0)
        A(f"{name}_loopEnd:")
    else:
        ext_idx = emit_loop(0)
    wait_vm(ext_idx)
    for tau in range(4):
        A(f"  v_mfma_f32_32x32x16_bf16 {vr(vAcc+16*tau,16)}, {ar(aE+4*tau,4)}, {ar(aE+16,4)}, {vr(vAcc+16*tau,16)}")
    if NOBAR:
        assert NPOST == 0 and NEPI <= NSLOT-len(pre), (NPOST, NEPI, len(pre))
        A("  s_nop 8")
    else:
        A("  s_barrier")
        A("  s_nop 7")
    ST.stamp()
    k1, sd2 = vRS, vRS+1
    for tau in range(4):
        g = vAcc+16*tau
        u = g+8
        E = vAf if (tau & 1) == 0 else vAf+16
        for r in range(0, 8, 2):
            A(f"  v_pk_mul_f32 {vr(E+r,2)}, {vr(g+r,2)}, {vr(k1,2)} op_sel_hi:[1,0]")
        if NSLOT-len(pre) < NEPI: dma()
        for r in range(8):
            A(f"  v_exp_f32 v{E+r}, v{E+r}")
        for r in range(0, 8, 2):
            A(f"  v_pk_mul_f32 {vr(u+r,2)}, {vr(g+r,2)}, {vr(u+r,2)}")
        for r in range(0, 8, 2):
            A(f"  v_pk_fma_f32 {vr(E+r,2)}, {vr(E+r,2)}, {vr(k1,2)}, {vr(k1,2)} op_sel:[0,1,1] op_sel_hi:[1,1,1]")
        if NSLOT-len(pre) < NEPI: dma()
        for r in range(8):
            A(f"  v_rcp_f32 v{E+r}, v{E+r}")
        if NSLOT-len(pre) < NEPI and NEPI > 8: dma()
        else: A("  s_nop 0")
        for r in range(0, 8, 2):
            A(f"  v_pk_mul_f32 {vr(u+r,2)}, {vr(u+r,2)}, {vr(E+r,2)}")
        for i in range(4):
            A(f"  v_cvt_pk_bf16_f32 v{E+8+i}, v{u+2*i}, v{u+2*i+1}")
        A(f"  buffer_store_dwordx4 {vr(E+8,4)}, v{vAct}, {sr(sACT,4)}, 0 offen offset:{tau*1024} sc1")
    npost = 0
    while pre and npost < NPOST:
        dma(); npost += 1
    A(f"  s_waitcnt vmcnt({npost})")
    A("  s_barrier")
    ST.stamp()
    A(f"  s_cmp_lg_u32 s{sw}, 0")
    A(f"  s_cbranch_scc1 {name}_arrd")
    A(f"  s_lshl_b32 s{sT0}, s{stb}, 8")
    A(f"  v_mov_b32 v{vt0}, s{sT0}")
    A(f"  v_mov_b32 v{vt1}, 1")
    A(f"  s_mov_b64 exec, 1")
    A(f"  buffer_atomic_add v{vt1}, v{vt0}, {sr(sCNT,4)}, 0 offen sc1")
    A(f"  s_mov_b64 exec, -1")
    A(f"{name}_arrd:")
    while pre: dma()
    if max(NIN, NEPI) < 28-NSLOT:
        A("  s_waitcnt vmcnt(0)")
        A("  s_barrier")
    A(f"  s_branch {name}_p2")
    A(f"{name}_helper:")
    gen_helper(A, locals())
    phase2_setup(A, locals())
    phase2_preload(A, locals())
    A("  s_waitcnt vmcnt(0)")
    A("  s_barrier")
    A(f"{name}_p2:")
    gen_phase2(A, locals())
    A(f"{name}_end:")
    ST.flush(2)
    A("  s_endpgm")
    return dict(name=name, grid=256, block=512, lds=LDS, nvgpr=256, accum=128)

P2 = dict(vWd=124, vA0=10, vB=3, vXO=4, vEXw=5, vEXr=9, vX1=112, vGB=116)
def phase2_setup(A, L):
    vl, vt0, vt1, vt2 = L['vl'], L['vt0'], L['vt1'], L['vt2']
    sT0, sT1, skq, stt, sdb, stb64, sDo, sLb, REG = (L[k] for k in "sT0 sT1 skq stt sdb stb64 sDo sLb REG".split())
    vWd = P2['vWd']
    A(f"  v_lshrrev_b32 v{vt0}, 3, v{vl}")
    A(f"  v_lshrrev_b32 v{vt1}, 1, v{vt0}")
    A(f"  v_lshrrev_b32 v{vt2}, 2, v{vl}")
    A(f"  v_xor_b32 v{vt1}, v{vt1}, v{vt2}")
    A(f"  v_and_b32 v{vt1}, 1, v{vt1}")
    A(f"  v_lshlrev_b32 v{vt1}, 6, v{vt1}")
    A(f"  v_and_b32 v{vt2}, 3, v{vl}")
    A(f"  v_lshl_add_u32 v{vt1}, v{vt2}, 4, v{vt1}")
    A(f"  v_lshl_add_u32 v{vWd}, v{vt0}, 10, v{vt1}")
    A(f"  s_mul_i32 s{sDo}, s{skq}, {28*16*1024}")
    A(f"  s_lshl_b32 s{sT0}, s{stt}, 13")
    A(f"  s_add_u32 s{sDo}, s{sDo}, s{sT0}")
    A(f"  s_lshl_b32 s{sT0}, s{sdb}, 7")
    A(f"  s_add_u32 s{sDo}, s{sDo}, s{sT0}")
    A(f"  s_lshl_b32 s{sLb}, s{skq}, 11")
    A(f"  s_lshl_b32 s{sT0}, s{stt}, 10")
    A(f"  s_add_u32 s{sLb}, s{sLb}, s{sT0}")

def phase2_preload_ops(L):
    NSLOT, sLb, sDo, sWD = L['NSLOT'], L['sLb'], L['sDo'], L['sWD']
    ops = []
    for p in range(NSLOT):
        o = [f"  s_add_u32 m0, s{sLb}, {UNIT[p]}"]
        o.append(f"  s_add_u32 s{sDo}, s{sDo}, 16384" if p else "  s_nop 0")
        o.append(f"  buffer_load_dwordx4 v{P2['vWd']}, {sr(sWD,4)}, s{sDo} offen lds")
        ops.append(o)
    return ops
def phase2_preload(A, L):
    for o in phase2_preload_ops(L):
        for x in o: A(x)

def bf16_split(A, x, hi, lo, tmp):
    A(f"  v_cvt_pk_bf16_f32 v{hi}, v{x}, v{x}")
    A(f"  v_lshlrev_b32 v{tmp}, 16, v{hi}")
    A(f"  v_sub_f32 v{tmp}, v{x}, v{tmp}")
    A(f"  v_cvt_pk_bf16_f32 v{lo}, v{tmp}, v{tmp}")
    A(f"  v_and_b32 v{hi}, 0xffff, v{hi}")
    A(f"  v_and_b32 v{lo}, 0xffff, v{lo}")

def lane0_atomic_inc(A, name, sCNT, idx_bytes, vt0, vt1):
    A(f"  v_mov_b32 v{vt0}, {idx_bytes}")
    A(f"  v_mov_b32 v{vt1}, 1")
    A(f"  s_mov_b64 exec, 1")
    A(f"  buffer_atomic_add v{vt1}, v{vt0}, {sr(sCNT,4)}, 0 offen sc1")
    A(f"  s_mov_b64 exec, -1")

def gen_helper(A, L):
    name = L['name']
    vl, vt0, vt1, vt2, vt3 = L['vl'], L['vt0'], L['vt1'], L['vt2'], L['vt3']
    sw, sm, skq, sT0, sT1, sT2, sT3 = (L[k] for k in "sw sm skq sT0 sT1 sT2 sT3".split())
    sW, sH, sX, sWD, sCNT, sACT, pWS, pWD = (L[k] for k in "sW sH sX sWD sCNT sACT pWS pWD".split())
    sh = 57
    RED, RED2 = 131072, 133120
    vXs = 16
    vWl = 48
    vMc = 112
    A(f"  s_sub_u32 s{sh}, s2, 224")
    A("  s_waitcnt lgkmcnt(0)")
    srd(A, sH, pWS, WS_X1, SZ2M)
    srd(A, sWD, pWD, 0, 1792*512*2)
    srd(A, sCNT, pWS, WS_CNT, 4096)
    A(f"  s_cmp_eq_u32 s{sm}, 0")
    A(f"  s_cselect_b32 s{sW}, s4, s6")
    A(f"  s_cselect_b32 s{sW+1}, s5, s7")
    A(f"  s_mov_b32 s{sW+2}, {512*1792*2}")
    A(f"  s_mov_b32 s{sW+3}, 0x20000")
    A(f"  s_lshl_b32 s{sT0}, s{sh}, 1")
    A(f"  s_add_u32 s{sT0}, s{sT0}, s{sm}")
    A(f"  s_lshl_b32 s{sT0}, s{sT0}, 15")
    A(f"  s_lshl_b32 s{sT1}, s{skq}, 13")
    A(f"  s_add_u32 s{sT0}, s{sT0}, s{sT1}")
    A(f"  v_lshlrev_b32 v{vt0}, 4, v{vl}")
    for i in range(8):
        if i == 4: A(f"  s_add_u32 s{sT0}, s{sT0}, 4096")
        A(f"  buffer_load_dwordx4 {vr(vXs+4*i,4)}, v{vt0}, {sr(sH,4)}, s{sT0} offen offset:{(i&3)*1024}")
    vBo, vW0, vW1 = 9, 10, 11
    vAh = 112
    srd(A, sX, pWS, WS_MODH, 3072*2)
    A(f"  v_and_b32 v{vt1}, 31, v{vl}")
    A(f"  v_lshrrev_b32 v{vt2}, 5, v{vl}")
    A(f"  v_lshlrev_b32 v{vBo}, 4, v{vt2}")
    A(f"  v_lshlrev_b32 v{vt2}, 10, v{vt1}")
    A(f"  v_sub_u32 v{vt2}, 4096, v{vt2}")
    A(f"  v_add_u32 v{vBo}, v{vBo}, v{vt2}")
    A(f"  v_cmp_lt_u32 vcc, 1, v{vt1}")
    A(f"  v_mov_b32 v{vt2}, 0x40000000")
    A(f"  s_lshl_b32 s{sT0}, s{sw}, 7")
    A(f"  v_cndmask_b32 v{vBo}, v{vBo}, v{vt2}, vcc")
    for qq in range(4):
        A(f"  buffer_load_dwordx4 {ar(4*qq,4)}, v{vBo}, {sr(sX,4)}, s{sT0} offen offset:{32*qq}")
    A(f"  v_lshrrev_b32 v{vt0}, 3, v{vl}")
    A(f"  v_bfe_u32 v{vt1}, v{vl}, 4, 1")
    A(f"  v_bfe_u32 v{vt2}, v{vl}, 1, 2")
    A(f"  v_xor_b32 v{vt1}, v{vt1}, v{vt2}")
    A(f"  v_and_b32 v{vt2}, 1, v{vl}")
    A(f"  v_lshlrev_b32 v{vt2}, 4, v{vt2}")
    A(f"  s_movk_i32 s{sT1}, 3584")
    A(f"  v_mad_u32_u24 v{vt0}, v{vt0}, s{sT1}, v{vt2}")
    A(f"  v_lshl_add_u32 v{vW0}, v{vt1}, 5, v{vt0}")
    A(f"  v_xor_b32 v{vt1}, 2, v{vt1}")
    A(f"  v_lshl_add_u32 v{vW1}, v{vt1}, 5, v{vt0}")
    A(f"  s_and_b32 s{sT1}, s{sh}, 1")
    A(f"  s_lshl_b32 s{sT1}, s{sT1}, 2")
    A(f"  s_lshr_b32 s{sT2}, s{sh}, 3")
    A(f"  s_add_u32 s60, s{sT1}, s{sT2}")
    A(f"  s_bfe_u32 s{sT1}, s{sh}, 0x20001")
    A(f"  s_mul_i32 s{sT1}, s{sT1}, 7")
    A(f"  s_min_u32 s{sT2}, s60, 6")
    A(f"  s_add_u32 s61, s{sT1}, s{sT2}")
    A(f"  s_lshl_b32 s{sT2}, s61, 7")
    A(f"  s_mul_i32 s{sT1}, s{sw}, {64*3584}")
    A(f"  s_add_u32 s{sT2}, s{sT2}, s{sT1}")
    A(f"  s_lshl_b32 s{sT3}, s{sw}, 13")
    srd(A, sW, 4, 0, 512*1792*2)
    srd(A, sACT, 6, 0, 512*1792*2)
    for ii in range(8):
        A(f"  s_add_u32 m0, s{sT3}, {ii*1024}")
        A("  s_nop 0")
        A(f"  buffer_load_dwordx4 v{vW0}, {sr(sW,4)}, s{sT2} offen lds")
        A(f"  s_add_u32 m0, s{sT3}, {65536+ii*1024}")
        A("  s_nop 0")
        A(f"  buffer_load_dwordx4 v{vW1}, {sr(sACT,4)}, s{sT2} offen lds")
        if ii < 7: A(f"  s_add_u32 s{sT2}, s{sT2}, {8*3584}")
    A(f"  v_bfe_u32 v{vt1}, v{vl}, 2, 2")
    A(f"  v_lshrrev_b32 v{vt2}, 5, v{vl}")
    A(f"  v_lshl_add_u32 v{vt2}, v{vt2}, 3, v{vt1}")
    A(f"  v_bfe_u32 v{vt3}, v{vl}, 4, 1")
    A(f"  v_lshlrev_b32 v{vt2}, 7, v{vt2}")
    A(f"  v_lshl_add_u32 v{vt2}, v{vt3}, 16, v{vt2}")
    A(f"  v_lshrrev_b32 v{vt1}, 1, v{vt1}")
    A(f"  v_lshl_or_b32 v{vt1}, v{vt3}, 1, v{vt1}")
    A(f"  v_and_b32 v{vt3}, 1, v{vl}")
    A(f"  v_lshl_add_u32 v{vt2}, v{vt3}, 4, v{vt2}")
    A(f"  v_bfe_u32 v{vt3}, v{vl}, 1, 1")
    A(f"  v_lshl_add_u32 v{vt2}, v{vt3}, 3, v{vt2}")
    A(f"  v_add_u32 v{vt2}, s{sT3}, v{vt2}")
    for tau in range(4):
        A(f"  v_xor_b32 v{vt3}, {tau}, v{vt1}")
        A(f"  v_lshl_add_u32 v{vAh+tau}, v{vt3}, 5, v{vt2}")
    s1, s2 = 12, 13
    pa, pb, xx = 48, 50, 52
    for r in (pa, pa+1, pb, pb+1): A(f"  v_mov_b32 v{r}, 0")
    A(f"  s_waitcnt vmcnt({4+16})")
    if not L['ALLST']: L['ST'].stamp()
    for i in range(32):
        t = xx + 2*(i & 1)
        A(f"  v_lshlrev_b32 v{t}, 16, v{vXs+i}")
        A(f"  v_and_b32 v{t+1}, 0xffff0000, v{vXs+i}")
        A(f"  v_pk_add_f32 {vr(pa,2)}, {vr(pa,2)}, {vr(t,2)}")
        A(f"  v_pk_fma_f32 {vr(pb,2)}, {vr(t,2)}, {vr(t,2)}, {vr(pb,2)}")
    A(f"  v_add_f32 v{s1}, v{pa}, v{pa+1}")
    A(f"  v_add_f32 v{s2}, v{pb}, v{pb+1}")
    A("  s_nop 1")
    A(f"  v_permlane32_swap_b32 v{s1}, v{s2}")
    A("  s_nop 1")
    A(f"  v_add_f32 v{s1}, v{s1}, v{s2}")
    A(f"  s_lshl_b32 s{sT0}, s{sm}, 2")
    A(f"  s_add_u32 s{sT0}, s{sT0}, s{skq}")
    A(f"  s_lshl_b32 s{sT0}, s{sT0}, 8")
    A(f"  s_add_u32 s{sT0}, s{sT0}, {RED}")
    A(f"  v_lshlrev_b32 v{vt0}, 2, v{vl}")
    A(f"  v_add_u32 v{vt0}, s{sT0}, v{vt0}")
    A(f"  ds_write_b32 v{vt0}, v{s1} offset:0")
    vAf, vAcc = 16, 48
    A("  s_waitcnt vmcnt(0)")
    if not L['ALLST']: L['ST'].stamp()
    def hrd(qq):
        for tau in range(4):
            for r in range(2):
                A(f"  ds_read_b64_tr_b16 {vr(vAf+16*(qq&1)+tau*4+r*2,2)}, v{vAh+tau} offset:{qq*2048+r*512}")
    hrd(0)
    for qq in range(4):
        if qq < 3:
            hrd(qq+1)
            A("  s_waitcnt lgkmcnt(8)")
        else:
            A("  s_waitcnt lgkmcnt(0)")
        for tau in range(4):
            c = "0" if qq == 0 else vr(vAcc+16*tau,16)
            A(f"  v_mfma_f32_32x32x16_bf16 {vr(vAcc+16*tau,16)}, {ar(4*qq,4)}, {vr(vAf+16*(qq&1)+tau*4,4)}, {c}")
    if not L['ALLST']: L['ST'].stamp()
    A(f"  s_lshl_b32 s{sT0}, s{sw}, 10")
    A(f"  s_add_u32 s{sT0}, s{sT0}, {RED2}")
    A(f"  v_lshlrev_b32 v{vt0}, 3, v{vl}")
    A(f"  v_add_u32 v{vt0}, s{sT0}, v{vt0}")
    A(f"  s_mov_b32 s58, -1")
    A(f"  s_mov_b32 s59, 0")
    A("  s_nop 7")
    A(f"  s_mov_b64 exec, s[58:59]")
    for tau in range(4):
        A(f"  ds_write_b64 v{vt0}, {vr(vAcc+16*tau,2)} offset:{tau*256}")
    A(f"  s_mov_b64 exec, -1")
    A("  s_waitcnt lgkmcnt(0)")
    A("  s_barrier")
    if not L['ALLST']: L['ST'].stamp()
    U = 16
    A(f"  s_cmp_eq_u32 s{sw}, 0")
    A(f"  s_cbranch_scc1 {name}_hstat")
    A(f"  s_cmp_eq_u32 s{skq}, 1")
    A(f"  s_cbranch_scc0 {name}_hdone")
    A(f"  s_lshl_b32 s{sT0}, s{sm}, 9")
    A(f"  s_add_u32 s{sT0}, s{sT0}, {RED2}")
    A(f"  v_lshlrev_b32 v{vt0}, 3, v{vl}")
    A(f"  v_add_u32 v{vt0}, s{sT0}, v{vt0}")
    R = 48
    for w8 in range(8):
        A(f"  ds_read_b64 {vr(R+2*w8,2)}, v{vt0} offset:{w8*1024}")
    A("  s_waitcnt lgkmcnt(0)")
    for k in range(1,8):
        A(f"  v_add_f32 v{R}, v{R}, v{R+2*k}")
        A(f"  v_add_f32 v{R+1}, v{R+1}, v{R+2*k+1}")
    A(f"  v_mov_b32 v{U}, v{R}")
    A(f"  v_mov_b32 v{U+4}, v{R+1}")
    bf16_split(A, U, U+8, U+9, U+10)
    bf16_split(A, U+4, U+11, U+12, U+10)
    O = U+16
    A(f"  v_lshl_or_b32 v{O}, v{U+8}, 16, v{U+8}")
    A(f"  v_mov_b32 v{O+1}, v{U+9}")
    A(f"  v_lshl_or_b32 v{O+2}, v{U+11}, 16, v{U+11}")
    A(f"  v_mov_b32 v{O+3}, v{U+12}")
    srd(A, sX, pWS, WS_AEXT, 2*1792*16)
    A(f"  s_cmp_ge_u32 s60, 7")
    A(f"  s_cbranch_scc1 {name}_hdone")
    A(f"  v_and_b32 v{vt1}, 3, v{vl}")
    A(f"  v_bfe_u32 v{vt2}, v{vl}, 2, 1")
    A(f"  v_lshl_add_u32 v{vt1}, v{vt2}, 3, v{vt1}")
    A(f"  v_bfe_u32 v{vt2}, v{vl}, 3, 1")
    A(f"  v_lshl_add_u32 v{vt1}, v{vt2}, 2, v{vt1}")
    A(f"  v_lshrrev_b32 v{vt2}, 5, v{vl}")
    A(f"  v_lshl_add_u32 v{vt1}, v{vt2}, 4, v{vt1}")
    A(f"  v_bfe_u32 v{vt2}, v{vl}, 4, 1")
    A(f"  v_mul_u32_u24 v{vt2}, 1792, v{vt2}")
    A(f"  v_add_u32 v{vt1}, v{vt1}, v{vt2}")
    A(f"  s_lshl_b32 s{sT0}, s{sm}, 5")
    A(f"  s_lshl_b32 s{sT1}, s61, 6")
    A(f"  s_add_u32 s{sT0}, s{sT0}, s{sT1}")
    A(f"  s_lshl_b32 s{sT0}, s{sT0}, 4")
    A(f"  v_lshlrev_b32 v{vt0}, 4, v{vt1}")
    A(f"  buffer_store_dwordx4 {vr(O,4)}, v{vt0}, {sr(sX,4)}, s{sT0} offen sc1")
    A(f"  s_branch {name}_hdone")
    A(f"{name}_hstat:")
    A(f"  v_lshrrev_b32 v{vt0}, 5, v{vl}")
    A(f"  v_lshlrev_b32 v{vt0}, 10, v{vt0}")
    A(f"  v_and_b32 v{vt1}, 31, v{vl}")
    A(f"  v_lshl_add_u32 v{vt0}, v{vt1}, 2, v{vt0}")
    A(f"  v_add_u32 v{vt0}, {RED}, v{vt0}")
    for p in range(4):
        A(f"  ds_read_b32 v{U+p}, v{vt0} offset:{p*256}")
        A(f"  ds_read_b32 v{U+4+p}, v{vt0} offset:{p*256+128}")
    A("  s_waitcnt lgkmcnt(0)")
    for b in (U, U+4):
        A(f"  v_add_f32 v{b}, v{b}, v{b+1}")
        A(f"  v_add_f32 v{b+2}, v{b+2}, v{b+3}")
        A(f"  v_add_f32 v{b}, v{b}, v{b+2}")
    A(f"  s_mov_b32 s{sT0}, 0x3b000000")
    A(f"  s_mov_b32 s{sT1}, 0x3727c5ac")
    A(f"  v_mul_f32 v{U}, s{sT0}, v{U}")
    A(f"  v_mul_f32 v{U+4}, s{sT0}, v{U+4}")
    A(f"  v_fma_f32 v{U+4}, -v{U}, v{U}, v{U+4}")
    A(f"  v_max_f32 v{U+4}, 0, v{U+4}")
    A(f"  v_add_f32 v{U+4}, s{sT1}, v{U+4}")
    A(f"  v_sqrt_f32 v{U+5}, v{U+4}")
    A(f"  v_rsq_f32 v{U+6}, v{U+4}")
    A(f"  v_sub_f32 v{U}, 0, v{U}")
    A(f"  s_mov_b32 s{sT0}, 0xbfb8aa3b")
    A(f"  v_mul_f32 v{U+2}, s{sT0}, v{U+6}")
    A(f"  v_mov_b32 v{U+3}, v{U+4}")
    bf16_split(A, U, U+8, U+9, U+10)
    bf16_split(A, U+5, U+11, U+12, U+10)
    O = U+16
    A(f"  v_lshl_or_b32 v{O}, v{U+9}, 16, v{U+8}")
    A(f"  v_mov_b32 v{O+1}, v{U+8}")
    A(f"  v_lshl_or_b32 v{O+2}, v{U+12}, 16, v{U+11}")
    A(f"  v_mov_b32 v{O+3}, v{U+11}")
    srd(A, sX, pWS, WS_BEXT, 2048*16)
    srd(A, sH, pWS, WS_RS, 2048*8)
    A(f"  s_lshl_b32 s{sT0}, s{sh}, 10")
    A(f"  v_lshlrev_b32 v{vt0}, 4, v{vl}")
    A(f"  buffer_store_dwordx4 {vr(O,4)}, v{vt0}, {sr(sX,4)}, s{sT0} offen sc1")
    A(f"  s_lshl_b32 s{sT0}, s{sh}, 9")
    A(f"  v_lshlrev_b32 v{vt0}, 3, v{vl}")
    A(f"  buffer_store_dwordx2 {vr(U+2,2)}, v{vt0}, {sr(sH,4)}, s{sT0} offen sc1")
    A(f"{name}_hdone:")
    if not L['ALLST']: L['ST'].stamp()
    A("  s_waitcnt vmcnt(0)")
    A("  s_barrier")
    A(f"  s_cmp_lg_u32 s{sw}, 0")
    A(f"  s_cbranch_scc1 {name}_hsig")
    A(f"  v_lshlrev_b32 v{vt0}, 8, v{vl}")
    A(f"  v_add_u32 v{vt0}, {8*256}, v{vt0}")
    A(f"  v_mov_b32 v{vt1}, 1")
    A(f"  s_mov_b64 exec, 0xff")
    A(f"  buffer_atomic_add v{vt1}, v{vt0}, {sr(sCNT,4)}, 0 offen sc1")
    A(f"  s_mov_b64 exec, -1")
    A(f"{name}_hsig:")
    if L['QPF'] == 0:
        A(f"  s_lshr_b32 s{sT0}, s{sh}, 3")
        A(f"  s_mul_i32 s{sT0}, s{sT0}, 458752")
        A(f"  v_lshlrev_b32 v{vt0}, 7, v0")
        for i in range(7):
            A(f"  buffer_load_dword v{16+i}, v{vt0}, {sr(sWD,4)}, s{sT0} offen")
            if i < 6: A(f"  s_add_u32 s{sT0}, s{sT0}, 65536")

def gen_phase2(A, L):
    name, ST, NSLOT, SPIN, REG = L['name'], L['ST'], L['NSLOT'], L['SPIN'], L['REG']
    vl, vt0, vt1, vt2 = L['vl'], L['vt0'], L['vt1'], L['vt2']
    sw, skq, stt, sdb, stb64, sT0, sT1, sT2, sLb, sDo = (L[k] for k in "sw skq stt sdb stb64 sT0 sT1 sT2 sLb sDo".split())
    sW, sH, sX, sWD, sCNT, sACT, pWS, pOUT = (L[k] for k in "sW sH sX sWD sCNT sACT pWS pOUT".split())
    vWd, vA0, vB, vXO, vEXw, vEXr, vX1, vGB = (P2[k] for k in "vWd vA0 vB vXO vEXw vEXr vX1 vGB".split())
    vt0, vt1, vt2 = 6, 7, 8
    vAf, vAcc = 16, 48
    A(f"  v_lshrrev_b32 v{vt0}, 5, v{vl}")
    A(f"  v_lshlrev_b32 v{vt0}, 3, v{vt0}")
    A(f"  v_bfe_u32 v{vt1}, v{vl}, 2, 2")
    A(f"  v_add_u32 v{vt0}, v{vt0}, v{vt1}")
    A(f"  v_lshlrev_b32 v{vA0}, 7, v{vt0}")
    A(f"  v_lshrrev_b32 v{vt1}, 1, v{vt1}")
    A(f"  v_lshlrev_b32 v{vt1}, 6, v{vt1}")
    A(f"  v_and_b32 v{vt0}, 1, v{vl}")
    A(f"  v_lshlrev_b32 v{vt0}, 5, v{vt0}")
    A(f"  v_bfe_u32 v{vt2}, v{vl}, 1, 1")
    A(f"  v_lshl_add_u32 v{vt0}, v{vt2}, 3, v{vt0}")
    A(f"  v_bfe_u32 v{vt2}, v{vl}, 4, 1")
    A(f"  v_lshl_add_u32 v{vt0}, v{vt2}, 4, v{vt0}")
    A(f"  v_add_u32 v{vA0}, v{vA0}, v{vt0}")
    A(f"  s_lshl_b32 s{sT0}, s{skq}, 11")
    A(f"  v_add_u32 v{vA0}, s{sT0}, v{vA0}")
    A(f"  v_xor_b32 v{vt2}, 64, v{vt1}")
    A(f"  v_add_u32 v{vA0+1}, v{vA0}, v{vt2}")
    A(f"  v_add_u32 v{vA0}, v{vA0}, v{vt1}")
    for blk in (1, 2):
        for tau in range(2):
            A(f"  v_add_u32 v{vA0+2*blk+tau}, {65536*blk}, v{vA0+tau}")
    def trd(dst, p, tau, r, agpr=False):
        u = UNIT[p]
        reg = (ar if agpr else vr)(dst, 2)
        return f"  ds_read_b64_tr_b16 {reg}, v{vA0+2*(u>>16)+tau} offset:{(u & 0xffff)+r*512}"
    NREG = 28-NSLOT
    STG = [(32,False),(40,False),(80,False),(88,False),(96,False),(104,False),(112,True),(120,True)]
    for kk in range(NREG):
        base, ag = STG[kk]
        for tau in range(2):
            for r in range(2):
                A(trd(base+4*tau+2*r, kk, tau, r, ag))
        if kk % 3 == 2: A("  s_waitcnt lgkmcnt(4)")
    A("  s_waitcnt lgkmcnt(0)")
    A("  s_barrier")
    for p in range(NREG):
        A(f"  s_add_u32 m0, s{sLb}, {UNIT[p]}")
        A(f"  s_add_u32 s{sDo}, s{sDo}, 16384")
        A(f"  buffer_load_dwordx4 v{vWd}, {sr(sWD,4)}, s{sDo} offen lds")
    A(f"  s_lshl_b32 s{sT0}, s{stb64}, 1")
    A(f"  s_add_u32 s{sT2}, s{sT0}, s{stt}")
    A(f"  s_mul_i32 s{sT0}, s{sT2}, 112")
    A(f"  s_mul_i32 s{sT1}, s{skq}, 28")
    A(f"  s_add_u32 s{sT0}, s{sT0}, s{sT1}")
    A(f"  s_lshl_b32 s{sT0}, s{sT0}, 10")
    A(f"  v_lshlrev_b32 v{vt0}, 4, v{vl}")
    A(f"  v_add_u32 v{vB}, s{sT0}, v{vt0}")
    A(f"  s_lshl_b32 s{sT0}, s{stt}, 16")
    A(f"  s_add_u32 s{sT0}, s{sT0}, 16384")
    A(f"  s_lshl_b32 s{sT1}, s{skq}, 11")
    A(f"  s_add_u32 s{sT1}, s{sT1}, s{sT0}")
    A(f"  v_add_u32 v{vEXw}, s{sT1}, v{vt0}")
    A(f"  s_lshl_b32 s{sT1}, s{skq}, 13")
    A(f"  s_add_u32 s{sT1}, s{sT1}, s{sT0}")
    A(f"  v_add_u32 v{vEXr}, s{sT1}, v{vt0}")
    A(f"  s_lshr_b32 s{sT0}, s{skq}, 1")
    A(f"  s_lshl_b32 s{sT0}, s{sT0}, 5")
    A(f"  s_and_b32 s{sT1}, s{skq}, 1")
    A(f"  s_lshl_b32 s{sT1}, s{sT1}, 3")
    A(f"  s_add_u32 s{sT0}, s{sT0}, s{sT1}")
    A(f"  s_lshl_b32 s{sT1}, s{sdb}, 6")
    A(f"  s_add_u32 s{sT0}, s{sT0}, s{sT1}")
    A(f"  v_lshrrev_b32 v{vt1}, 5, v{vl}")
    A(f"  v_lshlrev_b32 v{vt1}, 4, v{vt1}")
    A(f"  v_add_u32 v{vt1}, s{sT0}, v{vt1}")
    A(f"  v_and_b32 v{vt0}, 31, v{vl}")
    A(f"  s_lshl_b32 s{sT1}, s{sT2}, 15")
    A(f"  v_lshrrev_b32 v{vt2}, 4, v{vt1}")
    A(f"  v_lshlrev_b32 v{vt2}, 10, v{vt2}")
    A(f"  v_lshl_add_u32 v{vt2}, v{vt0}, 4, v{vt2}")
    A(f"  v_bfe_u32 v{vXO}, v{vt1}, 3, 1")
    A(f"  v_lshl_add_u32 v{vt2}, v{vXO}, 9, v{vt2}")
    srd(A, sH, pWS, WS_X1, SZ2M)
    A(f"  buffer_load_dwordx4 {vr(vX1,4)}, v{vt2}, {sr(sH,4)}, s{sT1} offen")
    srd(A, sX, pWS, WS_MOD + 5*2048, 2048)
    A(f"  v_lshlrev_b32 v{vt2}, 2, v{vt1}")
    A(f"  buffer_load_dwordx4 {vr(vGB,4)}, v{vt2}, {sr(sX,4)}, 0 offen")
    A(f"  buffer_load_dwordx4 {vr(vGB+4,4)}, v{vt2}, {sr(sX,4)}, 0 offen offset:16")
    A(f"  s_lshl_b32 s{sT1}, s{sT2}, 15")
    A(f"  v_lshlrev_b32 v{vXO}, 10, v{vt0}")
    A(f"  v_lshl_add_u32 v{vXO}, v{vt1}, 1, v{vXO}")
    A(f"  v_add_u32 v{vXO}, s{sT1}, v{vXO}")
    srd(A, sACT, pWS, WS_ACT, SZ_ACT)
    srd(A, sW, pOUT, 0, SZ2M)
    A("  s_waitcnt vmcnt(0)")
    A(f"  s_cmp_lg_u32 s{sw}, 0")
    A(f"  s_cbranch_scc1 {name}_s3w")
    A(f"  s_lshr_b32 s{sT0}, s{stb64}, 2")
    A(f"  s_lshl_b32 s{sT0}, s{sT0}, 8")
    A(f"  v_mov_b32 v{vt0}, s{sT0}")
    poll_ge(A, f"{name}_s3", sCNT, vt0, [125, 126, 127, 7], 28, sT0, sT1, SPIN, L['PSLEEP'])
    A(f"{name}_s3w:")
    ST.value(sT1, SPIN)
    A("  s_barrier")
    ST.stamp()
    A(f"  s_mov_b32 s{sT0}, 0")
    vm = dict(n=0)
    bidx = {}
    def bload():
        kk = len(bidx)
        if kk >= 28: return
        A(f"  buffer_load_dwordx4 {ar(4*kk,4)}, v{vB}, {sr(sACT,4)}, s{sT0} offen offset:{(kk&3)*1024} sc1")
        if (kk & 3) == 3: A(f"  s_add_u32 s{sT0}, s{sT0}, 4096")
        vm['n'] += 1
        bidx[kk] = vm['n']
    def rd(kk):
        if kk < NREG: return []
        slot = kk % NSLOT
        buf = kk & 1
        return [trd(vAf+buf*8+tau*4+r*2, slot, tau, r) for tau in range(2) for r in range(2)]
    B0 = L['B0']; BR = L['BR']
    for _ in range(B0): bload()
    for kk in range(28):
        if kk == 22: A("  s_barrier")
        nx = rd(kk+1) if kk+1 < 28 else []
        for x in nx: A(x)
        assert kk in bidx, kk
        A(f"  s_waitcnt vmcnt({vm['n']-bidx[kk]})")
        if kk >= NREG:
            A(f"  s_waitcnt lgkmcnt({len(nx)})")
        buf = kk & 1
        for tau in range(2):
            c = "0" if kk == 0 else vr(vAcc+16*tau,16)
            if kk < NREG:
                base, ag = STG[kk]
                aop = (ar if ag else vr)(base+4*tau, 4)
            else:
                aop = vr(vAf+buf*8+tau*4,4)
            A(f"  v_mfma_f32_32x32x16_bf16 {vr(vAcc+16*tau,16)}, {aop}, {ar(4*kk,4)}, {c}")
            if tau < BR: bload()
    ST.stamp()
    vU = 80
    for i in range(4):
        A(f"  v_lshlrev_b32 v{vU+2*i}, 16, v{vX1+i}")
        A(f"  v_and_b32 v{vU+2*i+1}, 0xffff0000, v{vX1+i}")
    A("  s_nop 4")
    for o in range(4):
        for a in range(2):
            A(f"  ds_write_b128 v{vEXw}, {vr(vAcc+16*(o>>1)+8*(o&1)+4*a,4)} offset:{o*8192+a*1024}")
    A("  s_waitcnt lgkmcnt(0)")
    A("  s_barrier")
    vT = 16
    for s in range(4):
        for a in range(2):
            A(f"  ds_read_b128 {vr(vT+8*s+4*a,4)}, v{vEXr} offset:{s*2048+a*1024}")
    A("  s_waitcnt lgkmcnt(4)")
    for r in range(0, 8, 2):
        A(f"  v_pk_add_f32 {vr(vT+r,2)}, {vr(vT+r,2)}, {vr(vT+8+r,2)}")
    A("  s_waitcnt lgkmcnt(0)")
    for r in range(0, 8, 2):
        A(f"  v_pk_add_f32 {vr(vT+16+r,2)}, {vr(vT+16+r,2)}, {vr(vT+24+r,2)}")
    for r in range(0, 8, 2):
        A(f"  v_pk_add_f32 {vr(vT+r,2)}, {vr(vT+r,2)}, {vr(vT+16+r,2)}")
    for r in range(0, 8, 2):
        A(f"  v_pk_fma_f32 {vr(vT+r,2)}, {vr(vT+r,2)}, {vr(vGB+r,2)}, {vr(vU+r,2)}")
    for i in range(4):
        A(f"  v_cvt_pk_bf16_f32 v{vU+i}, v{vT+2*i}, v{vT+2*i+1}")
    A(f"  buffer_store_dwordx4 {vr(vU,4)}, v{vXO}, {sr(sW,4)}, 0 offen")
```

```python
import sys, os
from common import *
import common
import gen as G
from ka2 import gen_ka2
from ka3 import gen_ka3
from kb import gen_kb
E = G.E
def lst():
    ka = (lambda A: gen_ka3(A, kidx=0, PREFETCH=E("PF_GU", 1), PSLEEP=E("PSLEEP", 1), ORD=E("ORD", 1))) if E("KA3", 0) else (lambda A: gen_ka2(A, kidx=0, PREFETCH=E("PF_GU", 1), PSLEEP=E("PSLEEP", 1), ORD=E("ORD", 1), TOUCH=E("TOUCH", 0)))
    return [ka,
            lambda A: gen_kb(A, kidx=1, AHEAD=E("AHEAD", 2), SPACE=E("SPACE", 2), NSLOT=20, B0=E("B0", 6), BR=E("BR", 1), QFL=E("QFL", 20), QCK=E("QCK", 23), QPF=E("QPF", 27), QDMA=E("QDMA", 18), PSLEEP=E("PSLEEP3", 1), ALLST=E("ALLST", 0), STAG=E("STAG", 0), NIN=E("NIN", 16), DSP=E("DSP", 2), NPOST=E("NPOST", 0), NEPI=E("NEPI", 16), W2=E("W2", 0), PRIO=E("PRIO", 0), NOBAR=E("NOBAR", 1))]
if __name__ == "__main__":
    if os.environ.get("STAMPS"): common.STAMPS = True
    dst = sys.argv[1] if len(sys.argv) > 1 else 'adaLN_cond__ssm_conv_h3__swiglu_ffn__prompt.s'
    txt = G.build(lst())
    open(dst, 'w').write(txt)
    print("wrote", dst, len(txt), "bytes")
```

```python
KA = dict(q=0,k=8,v=16,shift=24,ssm=32,D=40,bx=48,wg=56,wu=64,wd=72,c=80,wmod=88,out=96,dbg=104,ws=112)

WS_KVR = 0x000000
WS_YL  = 0x200000
WS_X1  = 0x400000
WS_H2  = 0x600000
WS_ACT = 0x800000
WS_MOD = 0x1000000
WS_MODH = 0x1008000
WS_AEXT = 0x1010000
WS_BEXT = 0x1020000
WS_RS  = 0x1030000
WS_CNT = 0x1040000
WS_PART = 0x1080000
WS_XP  = 0x1100000
WS_ST1 = 0x1050000
SZ2M = 0x200000
SZ_ACT = 64*112*1024

import os as _o
def _os_env(k, d): return _o.environ.get(k, d)
class Asm:
    def __init__(self):
        self.l = []
    def __call__(self, s=""):
        for line in s.split("\n"):
            self.l.append(line)
    def text(self):
        return "\n".join(self.l) + "\n"

def vr(a, n=1):
    return f"v{a}" if n == 1 else f"v[{a}:{a+n-1}]"
def ar(a, n=1):
    return f"a{a}" if n == 1 else f"a[{a}:{a+n-1}]"
def sr(a, n=1):
    return f"s{a}" if n == 1 else f"s[{a}:{a+n-1}]"

def srd(A, d, p, off, size):
    if off:
        A(f"  s_add_u32 s{d}, s{p}, {hex(off)}")
        A(f"  s_addc_u32 s{d+1}, s{p+1}, 0")
    else:
        A(f"  s_mov_b32 s{d}, s{p}")
        A(f"  s_mov_b32 s{d+1}, s{p+1}")
    A(f"  s_mov_b32 s{d+2}, {hex(size)}")
    A(f"  s_mov_b32 s{d+3}, 0x20000")

def kernel_header(A, name):
    A(f".text")
    A(f".globl {name}")
    A(f".p2align 8")
    A(f".type {name},@function")
    A(f"{name}:")

def kernel_desc(A, name, nvgpr, accum, nsgpr=102):
    A('.section .rodata,"a"')
    A(".p2align 6")
    A(f".amdhsa_kernel {name}")
    A(f"  .amdhsa_next_free_vgpr {nvgpr}")
    A(f"  .amdhsa_next_free_sgpr {nsgpr}")
    A(f"  .amdhsa_accum_offset {accum}")
    A("  .amdhsa_group_segment_fixed_size 0")
    A("  .amdhsa_kernarg_size 120")
    A("  .amdhsa_user_sgpr_count 2")
    A("  .amdhsa_user_sgpr_kernarg_segment_ptr 1")
    A("  .amdhsa_system_sgpr_workgroup_id_x 1")
    A("  .amdhsa_float_denorm_mode_32 3")
    A(".end_amdhsa_kernel")

STAMPS = False
WS_TS = 0x2000000
class Stamper:
    def __init__(self, A, kidx, base=64):
        self.A, self.kidx, self.base, self.n = A, kidx, base, 0
    def stamp(self):
        if not STAMPS or _os_env("SPINST", ""): return
        import os
        op = "s_memtime" if os.environ.get("STAMPCYC") else "s_memrealtime"
        self.A(f"  {op} s[{self.base+2*self.n}:{self.base+2*self.n+1}]")
        self.n += 1
    def value(self, sreg, base):
        if not STAMPS or not _os_env("SPINST", ""): return
        self.A(f"  s_sub_u32 s{self.base+2*self.n}, {base}, s{sreg}")
        self.A(f"  s_mov_b32 s{self.base+2*self.n+1}, 0")
        self.n += 1
    def flush(self, vtmp, ws_pair_reload=True, row="s2", limit=256):
        if not STAMPS: return
        A = self.A
        self.stamp()
        if self.n == 0: return
        lab = f"stampskip_{self.kidx}"
        A(f"  s_load_dwordx2 s[96:97], s[0:1], {KA['ws']}")
        A(f"  v_readfirstlane_b32 s98, v0")
        A("  s_waitcnt lgkmcnt(0)")
        wv = int(_os_env("STAMPWAVE", "0"))
        A(f"  s_cmp_lg_u32 s98, {64*wv}")
        A(f"  s_cbranch_scc1 {lab}")
        A(f"  s_mov_b64 exec, -1")
        A(f"  s_add_u32 s96, s96, {WS_TS + self.kidx*256*128}")
        A(f"  s_addc_u32 s97, s97, 0")
        A(f"  s_cmp_ge_u32 {row}, {limit}")
        A(f"  s_cbranch_scc1 {lab}")
        A(f"  s_lshl_b32 s98, {row}, 7")
        A(f"  s_add_u32 s96, s96, s98")
        A(f"  s_addc_u32 s97, s97, 0")
        A(f"  v_mov_b32 v{vtmp}, 0")
        for i in range(2*self.n):
            A(f"  v_writelane_b32 v{vtmp}, s{self.base+i}, {i}")
        A(f"  v_mbcnt_lo_u32_b32 v{vtmp+1}, -1, 0")
        A(f"  v_mbcnt_hi_u32_b32 v{vtmp+1}, -1, v{vtmp+1}")
        A(f"  v_cmp_gt_u32 vcc, 32, v{vtmp+1}")
        A(f"  v_lshlrev_b32 v{vtmp+1}, 2, v{vtmp+1}")
        A(f"  s_and_saveexec_b64 s[100:101], vcc")
        A(f"  global_store_dword v{vtmp+1}, v{vtmp}, s[96:97]")
        A(f"{lab}:")

import os as _os
def STM():
    m = _os.environ.get("STM", "")
    return (" " + m.replace("_", " ")) if m else ""
```

```python
from common import *
from k3 import wave_reduce
from poll import poll_ge

C_KV = 16
WS_ALL = 0x1300000

def gen_ka2(A, name="conv_kernel", kidx=0, SPIN=200000, PREFETCH=True, PSLEEP=2, ORD=1, TOUCH=0):
    XR1, HC, HCH, MD, EX = 4608, 9216, 4*4160, 42496, 43008
    TT, XT, MS = EX, EX+8192, EX+8192+9216
    LDS = EX + 65536
    kernel_header(A, name)
    ST = Stamper(A, kidx); ST.stamp()
    sK, sV, sSH, sXq, sH, sWS, sWM, sDBG, sPF = 8, 12, 16, 20, 24, 28, 32, 36, 40
    stb, scb, sw, sc, sch, sqq, sD = 4, 5, 6, 7, 3, 100, 101
    a, b, c_, d_ = 44, 45, 46, 47
    pD, pC, pWG, pWD = 48, 50, 52, 56
    A("  s_cmp_ge_u32 s2, 256")
    A(f"  s_cbranch_scc1 {name}_end")
    for dst, key in ((sK,'k'),(sV,'v'),(sSH,'shift'),(sXq,'q'),(sH,'ssm'),(sWS,'ws'),(sWM,'wmod'),(sDBG,'dbg'),(pD,'D'),(pC,'c')):
        A(f"  s_load_dwordx2 s[{dst}:{dst+1}], s[0:1], {KA[key]}")
    for dst, size in ((sK,SZ2M),(sV,SZ2M),(sSH,4096),(sXq,SZ2M),(sH,SZ2M),(sWS,WS_ALL),(sWM,512*3072*2),(sDBG,256)):
        A(f"  s_mov_b32 s{dst+2}, {hex(size)}")
        A(f"  s_mov_b32 s{dst+3}, 0x20000")
    vl, t0, t1, t2, t3 = 1, 2, 3, 4, 5
    vb, vW, vR, vG, vSo, vXro, vT16, vFl = 6, 7, 8, 9, 10, 11, 12, 13
    vKo = 14
    vK, vV, vS, vXt, vXr = 18, 28, 32, 40, 44
    vC, vWm, vOA = 48, 52, 49
    vL = 60
    vKf, vSf, vO = 72, 92, 108
    A(f"  s_lshr_b32 s{stb}, s2, 3")
    A(f"  s_and_b32 s{scb}, s2, 7")
    A(f"  v_lshrrev_b32 v{t2}, 6, v0")
    A(f"  v_and_b32 v{vl}, 63, v0")
    A(f"  v_readfirstlane_b32 s{sw}, v{t2}")
    A(f"  v_and_b32 v{t0}, 15, v0")
    A(f"  v_lshrrev_b32 v{t1}, 4, v0")
    A(f"  v_lshlrev_b32 v{vT16}, 4, v0")
    A(f"  s_lshl_b32 s{a}, s{stb}, 16")
    A(f"  s_lshl_b32 s{b}, s{scb}, 7")
    A(f"  s_add_u32 s{a}, s{a}, s{b}")
    A(f"  v_lshlrev_b32 v{vb}, 11, v{t1}")
    A(f"  v_lshl_add_u32 v{vb}, v{t0}, 3, v{vb}")
    A(f"  v_add_u32 v{vb}, s{a}, v{vb}")
    for i in range(3):
        A(f"  v_add_u32 v{vKo+i}, {hex((-(3-i)*1024) & 0xffffffff)}, v{vb}")
    A(f"  s_lshl_b32 s{b}, s{scb}, 9")
    A(f"  v_lshl_add_u32 v{vSo}, v{t0}, 5, s{b}")
    A(f"  s_lshl_b32 s{c_}, s2, 3")
    A(f"  s_add_u32 s{c_}, s{c_}, s{sw}")
    A(f"  s_lshl_b32 s{c_}, s{c_}, 10")
    A(f"  v_lshlrev_b32 v{vXro}, 4, v{vl}")
    A(f"  s_lshl_b32 s{sc}, s{scb}, 5")
    A(f"  s_add_u32 s{sc}, s{sc}, s{stb}")
    A(f"  s_lshr_b32 s{sch}, s{sw}, 2")
    A(f"  s_and_b32 s{sqq}, s{sw}, 3")
    A(f"  v_lshrrev_b32 v{t2}, 3, v{vl}")
    A(f"  s_lshl_b32 s{a}, s{stb}, 5")
    A(f"  v_lshl_add_u32 v{t3}, v{t2}, 2, s{a}")
    A(f"  v_mul_u32_u24 v{vOA}, 12288, v{t2}")
    A(f"  v_and_b32 v{t2}, 7, v{vl}")
    A(f"  v_lshl_add_u32 v{vOA}, v{t2}, 4, v{vOA}")
    A(f"  s_mul_i32 s{a}, s{stb}, {16*6144}")
    A(f"  s_lshl_b32 s{b}, s{scb}, 7")
    A(f"  s_add_u32 s{a}, s{a}, s{b}")
    A(f"  s_lshl_b32 s{b}, s{sw}, 10")
    A(f"  s_add_u32 s{a}, s{a}, s{b}")
    A(f"  s_cmp_lt_u32 s{sw}, 6")
    A(f"  s_cselect_b32 s{a}, s{a}, 0x40000000")
    A(f"  s_add_u32 s{b}, s{a}, 6144")
    A("  s_waitcnt lgkmcnt(0)")
    A("  s_cmp_lg_u32 s2, 0")
    A(f"  s_cbranch_scc1 {name}_nozs")
    for i in range(4): A(f"  v_mov_b32 v{vO+i}, 0")
    A(f"  s_mov_b32 s{d_}, {WS_CNT}")
    A(f"  buffer_store_dwordx4 {vr(vO,4)}, v{vT16}, {sr(sWS,4)}, s{d_} offen sc1")
    for i in range(2):
        A(f"  s_mov_b32 s{d_}, {WS_ST1+8192*i}")
        A(f"  buffer_store_dwordx4 {vr(vO,4)}, v{vT16}, {sr(sWS,4)}, s{d_} offen sc1")
    A(f"{name}_nozs:")
    for i in range(3):
        A(f"  buffer_load_dwordx2 {vr(vK+2*i,2)}, v{vKo+i}, {sr(sK,4)}, 0 offen")
    for i in range(2):
        A(f"  buffer_load_dwordx2 {vr(vK+6+2*i,2)}, v{vb}, {sr(sK,4)}, 0 offen offset:{1024*i}")
    for i in range(2):
        A(f"  buffer_load_dwordx2 {vr(vV+2*i,2)}, v{vb}, {sr(sV,4)}, 0 offen offset:{1024*i}")
    for i in range(2):
        A(f"  buffer_load_dwordx4 {vr(vS+4*i,4)}, v{vSo}, {sr(sSH,4)}, 0 offen offset:{16*i}")
    if ORD: A("  s_barrier")
    for i in range(2):
        A(f"  buffer_load_dwordx2 {vr(vXt+2*i,2)}, v{vb}, {sr(sXq,4)}, 0 offen offset:{1024*i}")
    A(f"  buffer_load_dwordx4 {vr(vXr,4)}, v{vXro}, {sr(sXq,4)}, s{c_} offen")
    A(f"  s_mov_b32 s{sSH}, s{pC}")
    A(f"  s_mov_b32 s{sSH+1}, s{pC+1}")
    A(f"  s_movk_i32 s{sSH+2}, 1024")
    A(f"  buffer_load_dword v{vC}, v{t3}, {sr(sSH,4)}, 0 offen")
    A(f"  buffer_load_dwordx4 {vr(vWm,4)}, v{vOA}, {sr(sWM,4)}, s{a} offen")
    A(f"  buffer_load_dwordx4 {vr(vWm+4,4)}, v{vOA}, {sr(sWM,4)}, s{b} offen")
    NP1 = 15
    if TOUCH:
        A(f"  s_cmp_lg_u32 s{sw}, 7")
        A(f"  s_cbranch_scc1 {name}_notouch")
        A(f"  v_min_u32 v{t2}, 19, v{vl}")
        A(f"  v_lshlrev_b32 v{t2}, 20, v{t2}")
        A(f"  buffer_load_dword v230, v{t2}, {sr(sWS,4)}, 0 offen")
        A(f"{name}_notouch:")
    A("  s_cmp_lg_u32 s2, 0")
    A(f"  s_cbranch_scc1 {name}_nozero")
    A(f"  s_waitcnt vmcnt({NP1})")
    A("  s_barrier")
    A(f"  s_cmp_lg_u32 s{sw}, 0")
    A(f"  s_cbranch_scc1 {name}_nozero")
    A(f"  v_mov_b32 v{t2}, 0")
    A(f"  v_mov_b32 v{t3}, 1")
    A(f"  s_mov_b64 exec, 1")
    A(f"  buffer_store_dword v{t3}, v{t2}, {sr(sDBG,4)}, 0 offen sc1")
    A(f"  s_mov_b64 exec, -1")
    A(f"{name}_nozero:")
    A(f"  s_lshl_b32 s{a}, s{sc}, 2")
    A(f"  s_load_dword s{sD}, s[{pD}:{pD+1}], s{a}")
    if PREFETCH:
        A(f"  s_load_dwordx4 s[{pWG}:{pWG+3}], s[0:1], {KA['wg']}")
        A(f"  s_load_dwordx2 s[{pWD}:{pWD+1}], s[0:1], {KA['wd']}")
    A(f"  v_sub_u32 v{t2}, 31, v{t1}")
    A(f"  v_lshrrev_b32 v{vW}, 2, v{t2}")
    A(f"  v_and_b32 v{t3}, 7, v{t0}")
    A(f"  v_xor_b32 v{vW}, v{vW}, v{t3}")
    A(f"  v_lshlrev_b32 v{vW}, 4, v{vW}")
    A(f"  v_and_b32 v{t2}, 3, v{t2}")
    A(f"  v_lshl_add_u32 v{vW}, v{t2}, 2, v{vW}")
    A(f"  v_lshl_add_u32 v{vW}, v{t0}, 9, v{vW}")
    A(f"  v_add_u32 v{vW}, {TT}, v{vW}")
    A(f"  v_lshrrev_b32 v{t2}, 3, v0")
    A(f"  v_and_b32 v{t3}, 7, v0")
    A(f"  v_bfe_u32 v{vR}, v0, 5, 3")
    A(f"  v_xor_b32 v{vR}, v{vR}, v{t3}")
    A(f"  v_lshlrev_b32 v{vR}, 4, v{vR}")
    A(f"  v_lshl_add_u32 v{vR}, v{t2}, 7, v{vR}")
    A(f"  v_add_u32 v{vR}, {TT}, v{vR}")
    A(f"  s_lshl_b32 s{a}, s{scb}, 18")
    A(f"  s_lshl_b32 s{b}, s{stb}, 7")
    A(f"  s_sub_u32 s{a}, s{a}, s{b}")
    A(f"  s_add_u32 s{a}, s{a}, {3968+WS_KVR}")
    A(f"  v_lshlrev_b32 v{vG}, 12, v{t2}")
    A(f"  v_lshl_add_u32 v{vG}, v{t3}, 4, v{vG}")
    A(f"  v_add_u32 v{vG}, s{a}, v{vG}")
    vXw = vSo
    A(f"  v_mul_u32_u24 v{vXw}, 288, v{t1}")
    A(f"  v_lshl_add_u32 v{vXw}, v{t0}, 3, v{vXw}")
    A(f"  v_add_u32 v{vXw}, {XT}, v{vXw}")
    A(f"  s_waitcnt vmcnt(6)")
    ST.stamp()
    for ch in range(4):
        for dd in range(2):
            src = vS + 2*ch + dd
            p, e = ch >> 1, ch & 1
            A(f"  v_lshlrev_b32 v{vSf+((2*dd)*2+p)*2+e}, 16, v{src}")
            A(f"  v_and_b32 v{vSf+((2*dd+1)*2+p)*2+e}, 0xffff0000, v{src}")
    for r in range(5):
        for p in range(2):
            A(f"  v_lshlrev_b32 v{vKf+(r*2+p)*2}, 16, v{vK+2*r+p}")
            A(f"  v_and_b32 v{vKf+(r*2+p)*2+1}, 0xffff0000, v{vK+2*r+p}")
    O = vO
    for j in range(4):
        for tk in range(2):
            for p in range(2):
                kk = vKf+((3+tk-j)*2+p)*2; ww = vSf+(j*2+p)*2; o = O+(tk*2+p)*2
                if j == 0: A(f"  v_pk_mul_f32 {vr(o,2)}, {vr(kk,2)}, {vr(ww,2)}")
                else: A(f"  v_pk_fma_f32 {vr(o,2)}, {vr(kk,2)}, {vr(ww,2)}, {vr(o,2)}")
    for tk in range(2):
        for p in range(2):
            A(f"  v_lshlrev_b32 v{vKf+(tk*2+p)*2}, 16, v{vV+2*tk+p}")
            A(f"  v_and_b32 v{vKf+(tk*2+p)*2+1}, 0xffff0000, v{vV+2*tk+p}")
    for tk in range(2):
        for p in range(2):
            o = O+(tk*2+p)*2
            A(f"  v_pk_mul_f32 {vr(o,2)}, {vr(o,2)}, {vr(vKf+(tk*2+p)*2,2)}")
    for ch in range(4):
        p, e = ch >> 1, ch & 1
        A(f"  v_cvt_pk_bf16_f32 v{vKf+8+ch}, v{O+(2+p)*2+e}, v{O+p*2+e}")
    for ch in range(4):
        A(f"  ds_write_b32 v{vW}, v{vKf+8+ch} offset:{128*ch}")
    A("  s_waitcnt lgkmcnt(0)")
    A("  s_barrier")
    A(f"  ds_read_b128 {vr(vO,4)}, v{vR}")
    A(f"  v_and_b32 v{t0}, 15, v0")
    A(f"  v_lshrrev_b32 v{t1}, 4, v0")
    A(f"  v_mul_u32_u24 v{t2}, 144, v{t0}")
    A(f"  v_lshl_add_u32 v{t2}, v{t1}, 2, v{t2}")
    A(f"  v_add_u32 v{vR}, {XT}, v{t2}")
    A("  s_waitcnt lgkmcnt(0)")
    A(f"  buffer_store_dwordx4 {vr(vO,4)}, v{vG}, {sr(sWS,4)}, 0 offen sc1")
    ST.stamp()
    A(f"  v_and_b32 v{t2}, 255, v0")
    A(f"  v_lshlrev_b32 v{vT16}, 4, v{t2}")
    A(f"  s_lshl_b32 s{a}, s{sc}, 13")
    A(f"  s_lshl_b32 s{b}, s{sch}, 12")
    A(f"  s_add_u32 s{a}, s{a}, s{b}")
    for k in range(3):
        A(f"  buffer_load_dwordx4 {vr(vL+4*k,4)}, v{vT16}, {sr(sH,4)}, s{a} offen offset:{4*k}")
    A("  s_waitcnt vmcnt(8)")
    for i in range(2):
        A(f"  ds_write_b64 v{vXw}, {vr(vXt+2*i,2)} offset:{144*i}")
    A(f"  s_lshl_b32 s{a}, s{scb}, 18")
    A(f"  s_lshl_b32 s{b}, s{stb}, 8")
    A(f"  s_add_u32 s{a}, s{a}, s{b}")
    A(f"  s_add_u32 s{d_}, s{a}, {WS_XP}")
    A(f"  v_lshlrev_b32 v{vG}, 13, v{t1}")
    A(f"  v_lshl_add_u32 v{vG}, v{t0}, 4, v{vG}")
    A("  s_waitcnt lgkmcnt(0)")
    A("  s_barrier")
    for r in range(4):
        A(f"  ds_read_b32 v{vO+4+r}, v{vR} offset:{r*16*144}")
    A("  s_waitcnt vmcnt(7)")
    F, S1, S2 = vKf, vKf+8, vKf+10
    for i in range(4):
        A(f"  v_lshlrev_b32 v{F+2*i}, 16, v{vXr+i}")
        A(f"  v_and_b32 v{F+2*i+1}, 0xffff0000, v{vXr+i}")
    A(f"  v_pk_add_f32 {vr(S1,2)}, {vr(F,2)}, {vr(F+2,2)}")
    A(f"  v_pk_mul_f32 {vr(S2,2)}, {vr(F,2)}, {vr(F,2)}")
    A(f"  v_pk_add_f32 {vr(F,2)}, {vr(F+4,2)}, {vr(F+6,2)}")
    for i in range(1,4):
        A(f"  v_pk_fma_f32 {vr(S2,2)}, {vr(F+2*i,2)}, {vr(F+2*i,2)}, {vr(S2,2)}")
    A(f"  v_pk_add_f32 {vr(S1,2)}, {vr(S1,2)}, {vr(F,2)}")
    A(f"  v_add_f32 v{S2}, v{S2}, v{S2+1}")
    A(f"  v_add_f32 v{S1}, v{S1}, v{S1+1}")
    A("  s_waitcnt lgkmcnt(0)")
    A(f"  buffer_store_dwordx4 {vr(vO+4,4)}, v{vG}, {sr(sWS,4)}, s{d_} offen sc1")
    T, P = vSf, 116
    A("  s_waitcnt vmcnt(5)")
    c0, c1, e0, e1 = T, T+1, T+2, T+3
    A(f"  v_lshlrev_b32 v{c0}, 16, v{vC}")
    A(f"  v_and_b32 v{c1}, 0xffff0000, v{vC}")
    A(f"  s_mov_b32 s{a}, 0xbfb8aa3b")
    def red(ctrl):
        for r in (S1, S2): A(f"  v_add_f32_dpp v{r}, v{r}, v{r} {ctrl}")
    red("row_ror:8 row_mask:0xf bank_mask:0xf")
    A(f"  v_mul_f32 v{e0}, s{a}, v{c0}")
    A(f"  v_mul_f32 v{e1}, s{a}, v{c1}")
    red("row_ror:4 row_mask:0xf bank_mask:0xf")
    A(f"  v_exp_f32 v{e0}, v{e0}")
    A(f"  v_exp_f32 v{e1}, v{e1}")
    red("row_ror:2 row_mask:0xf bank_mask:0xf")
    A(f"  v_add_f32 v{e0}, 1.0, v{e0}")
    A(f"  v_add_f32 v{e1}, 1.0, v{e1}")
    red("row_ror:1 row_mask:0xf bank_mask:0xf")
    A(f"  v_rcp_f32 v{e0}, v{e0}")
    A(f"  v_rcp_f32 v{e1}, v{e1}")
    red("row_bcast:15 row_mask:0xa bank_mask:0xf")
    A(f"  v_mul_f32 v{c0}, v{c0}, v{e0}")
    A(f"  v_mul_f32 v{c1}, v{c1}, v{e1}")
    red("row_bcast:31 row_mask:0xc bank_mask:0xf")
    A(f"  v_cvt_pk_bf16_f32 v{vC}, v{c0}, v{c1}")
    A(f"  s_mov_b32 s{a}, 0x05040100")
    A(f"  s_mov_b32 s{b}, 0x07060302")
    for q in range(4):
        A(f"  v_perm_b32 v{T+2*q}, v{vWm+4+q}, v{vWm+q}, s{a}")
        A(f"  v_perm_b32 v{T+2*q+1}, v{vWm+4+q}, v{vWm+q}, s{b}")
    A(f"  s_mov_b32 s{a}, 0x3b000000")
    A(f"  v_mul_f32 v{S1}, s{a}, v{S1}")
    A(f"  v_mul_f32 v{S2}, s{a}, v{S2}")
    for n in range(8):
        A(f"  v_dot2_f32_bf16 v{P+n}, v{T+n}, v{vC}, 0")
    A(f"  v_fma_f32 v{S2}, -v{S1}, v{S1}, v{S2}")
    A(f"  s_mov_b32 s{a}, 0x3727c5ac")
    A(f"  v_max_f32 v{S2}, 0, v{S2}")
    A(f"  v_add_f32 v{S2}, s{a}, v{S2}")
    A(f"  v_rsq_f32 v{S2}, v{S2}")
    for i in range(4): A(f"  v_permlane32_swap_b32 v{P+i}, v{P+i+4}")
    A(f"  v_mul_f32 v{S2+1}, -v{S1}, v{S2}")
    for i in range(4): A(f"  v_add_f32 v{P+i}, v{P+i}, v{P+i+4}")
    A(f"  s_lshl_b32 s{a}, s{sw}, 3")
    A(f"  s_add_u32 s{a}, s{a}, {MS}")
    A(f"  v_mov_b32 v{t2}, s{a}")
    for i in range(2): A(f"  v_permlane16_swap_b32 v{P+i}, v{P+i+2}")
    A(f"  s_mov_b32 s{c_}, 0")
    A(f"  s_brev_b32 s{d_}, 1")
    for i in range(2): A(f"  v_add_f32 v{P+i}, v{P+i}, v{P+i+2}")
    A(f"  s_mov_b64 exec, s[{c_}:{d_}]")
    A(f"  ds_write_b64 v{t2}, {vr(S2,2)}")
    A(f"  s_mov_b64 exec, -1")
    for i in range(2): A(f"  v_add_f32_dpp v{P+i}, v{P+i}, v{P+i} row_ror:8 row_mask:0xf bank_mask:0xf")
    A(f"  v_and_b32 v{vOA}, 7, v{vl}")
    A(f"  v_lshlrev_b32 v{vOA}, 5, v{vOA}")
    A(f"  v_lshrrev_b32 v{t2}, 4, v{vl}")
    A(f"  v_lshl_add_u32 v{vOA}, v{t2}, 3, v{vOA}")
    A(f"  v_and_b32 v{t2}, 8, v{vl}")
    A(f"  v_lshl_or_b32 v{vOA}, v{t2}, 27, v{vOA}")
    A(f"  s_mul_i32 s{a}, s{sc}, 1536")
    A(f"  s_lshl_b32 s{b}, s{sw}, 8")
    A(f"  s_add_u32 s{a}, s{a}, s{b}")
    A(f"  s_add_u32 s{a}, s{a}, {WS_PART}")
    A(f"  s_cmp_lt_u32 s{sw}, 6")
    A(f"  s_cselect_b32 s{a}, s{a}, 0x20000000")
    A(f"  buffer_store_dwordx2 {vr(P,2)}, v{vOA}, {sr(sWS,4)}, s{a} offen sc1")
    ST.stamp()
    A(f"  s_cmp_eq_u32 s{sw}, 0")
    A(f"  s_cselect_b32 s{a}, 0, 0x400")
    A(f"  v_mov_b32 v{t2}, s{a}")
    A(f"  buffer_load_dword v{vFl}, v{t2}, {sr(sDBG,4)}, 0 offen sc1")
    A("  s_waitcnt vmcnt(0) lgkmcnt(0)")
    A("  s_barrier")
    A(f"  s_cmp_lg_u32 s{sw}, 0")
    A(f"  s_cbranch_scc1 {name}_arr1")
    A(f"  v_readfirstlane_b32 s{a}, v{vFl}")
    A(f"  s_mov_b32 s{b}, {SPIN}")
    A(f"{name}_rdy:")
    A(f"  s_cmp_lg_u32 s{a}, 0")
    A(f"  s_cbranch_scc1 {name}_rdyok")
    A(f"  v_mov_b32 v{t2}, 0")
    A(f"  buffer_load_dword v{vFl}, v{t2}, {sr(sDBG,4)}, 0 offen sc1")
    A("  s_waitcnt vmcnt(0)")
    A(f"  v_readfirstlane_b32 s{a}, v{vFl}")
    A(f"  s_sub_u32 s{b}, s{b}, 1")
    A(f"  s_cmp_lg_u32 s{b}, 0")
    A(f"  s_cbranch_scc1 {name}_rdy")
    A(f"{name}_rdyok:")
    ST.value(b, SPIN)
    A(f"  s_lshl_b32 s{a}, s{scb}, 8")
    A(f"  s_add_u32 s{a}, s{a}, {WS_CNT+C_KV*256}")
    A(f"  v_mov_b32 v{t2}, s{a}")
    A(f"  v_mov_b32 v{t3}, 1")
    A(f"  s_mov_b64 exec, 1")
    A(f"  buffer_atomic_add v{t3}, v{t2}, {sr(sWS,4)}, 0 offen sc1")
    A(f"  s_mov_b64 exec, -1")
    A(f"  v_lshlrev_b32 v{t2}, 4, v{vl}")
    A(f"  ds_read_b128 {vr(vO,4)}, v{t2} offset:{MS}")
    A(f"  s_lshl_b32 s{a}, s2, 6")
    A(f"  s_add_u32 s{a}, s{a}, {WS_ST1}")
    A("  s_waitcnt lgkmcnt(0)")
    A(f"  s_mov_b64 exec, 0xf")
    A(f"  buffer_store_dwordx4 {vr(vO,4)}, v{t2}, {sr(sWS,4)}, s{a} offen sc1")
    A(f"  s_mov_b64 exec, -1")
    A(f"{name}_arr1:")
    ST.stamp()
    vE, vZero, vHCw = vSf, vSf+8, vSf+12
    La, Lb, Lc = vL, vL+4, vL+8
    for i in range(4): A(f"  v_alignbit_b32 v{vE+i}, v{Lb+i}, v{La+i}, 16")
    for i in range(4): A(f"  v_alignbit_b32 v{vE+4+i}, v{Lc+i}, v{Lb+i}, 16")
    A(f"  s_mul_i32 s{a}, s{sch}, {HCH}")
    A(f"  s_add_u32 s{a}, s{a}, {HC+32}")
    A(f"  v_add_u32 v{vHCw}, s{a}, v{vT16}")
    for i in range(4): A(f"  v_mov_b32 v{vZero+i}, 0")
    A(f"  ds_write_b128 v{vHCw}, {vr(La,4)}")
    A(f"  ds_write_b128 v{vHCw}, {vr(Lb,4)} offset:{2*4160}")
    A(f"  ds_write_b128 v{vHCw}, {vr(vE,4)} offset:{4160}")
    A(f"  ds_write_b128 v{vHCw}, {vr(vE+4,4)} offset:{3*4160}")
    A(f"  s_cmp_lg_u32 s{sw}, 1")
    A(f"  s_cbranch_scc1 {name}_nozt")
    A(f"  v_lshrrev_b32 v{t1}, 5, v{vl}")
    A(f"  v_mul_u32_u24 v{t1}, 4608, v{t1}")
    A(f"  v_and_b32 v{t2}, 31, v{vl}")
    A(f"  v_lshl_add_u32 v{t1}, v{t2}, 4, v{t1}")
    A(f"  ds_write_b128 v{t1}, {vr(vZero,4)} offset:4096")
    A(f"{name}_nozt:")
    A(f"  s_cmp_lg_u32 s{sqq}, 0")
    A(f"  s_cbranch_scc1 {name}_noneg")
    A(f"  s_mov_b64 exec, 1")
    A(f"  v_subrev_u32 v{t0}, 32, v{vHCw}")
    Tn = vKf
    for i in range(12): A(f"  v_mov_b32 v{Tn+i}, 0")
    for phi in range(4): A(f"  ds_write_b128 v{t0}, {vr(vZero,4)} offset:{phi*4160}")
    A(f"  ds_write_b128 v{t0}, {vr(vZero,4)} offset:16")
    A(f"  v_lshlrev_b32 v{Tn+3}, 16, v{La}")
    A(f"  v_mov_b32 v{Tn+7}, v{La}")
    A(f"  v_lshlrev_b32 v{Tn+10}, 16, v{La}")
    A(f"  v_alignbit_b32 v{Tn+11}, v{La+1}, v{La}, 16")
    A(f"  ds_write_b128 v{t0}, {vr(Tn,4)} offset:{4160+16}")
    A(f"  ds_write_b128 v{t0}, {vr(Tn+4,4)} offset:{2*4160+16}")
    A(f"  ds_write_b128 v{t0}, {vr(Tn+8,4)} offset:{3*4160+16}")
    A(f"  s_mov_b64 exec, -1")
    A(f"{name}_noneg:")
    conv2(A, locals())
    A(f"{name}_end:")
    ST.flush(2)
    A("  s_endpgm")
    return dict(name=name, grid=256, block=512, lds=LDS, nvgpr=256, accum=256)

def conv2(A, L):
    name, ST, SPIN, PREFETCH, PSLEEP = (L[k] for k in "name ST SPIN PREFETCH PSLEEP".split())
    XR1, HC, HCH, MD, EX = (L[k] for k in "XR1 HC HCH MD EX".split())
    vl, t0, t1, t2, t3 = 1, 2, 3, 4, 5
    sWS, sSH, sXq, sPF = (L[k] for k in "sWS sSH sXq sPF".split())
    stb, scb, sw, sc, sch, sqq, sD = (L[k] for k in "stb scb sw sc sch sqq sD".split())
    a, b, c_, d_ = 44, 45, 46, 47
    pWG, pWD = L['pWG'], L['pWD']
    vAcc, vZf, vHf = 16, 48, 112
    vXP, vS1, vMd, vPt = 176, 180, 188, 196
    vZ, vH, vEXw, vEXr, vYo, vKVo, vXRw, vXo, vSo, vMo, vPf, vPd = range(208, 220)
    vHD = 220
    vPoll = 224
    A(f"  v_and_b32 v{t0}, 15, v{vl}")
    A(f"  v_lshrrev_b32 v{t1}, 4, v{vl}")
    A(f"  v_lshlrev_b32 v{t2}, 5, v{t0}")
    A(f"  v_sub_u32 v{t2}, 480, v{t2}")
    A(f"  v_lshl_add_u32 v{t2}, v{t1}, 4, v{t2}")
    A(f"  s_mul_i32 s{a}, s{sch}, {XR1}")
    A(f"  s_lshl_b32 s{b}, s{sqq}, 7")
    A(f"  s_add_u32 s{a}, s{a}, s{b}")
    A(f"  v_add_u32 v{vZ}, s{a}, v{t2}")
    A(f"  v_add_u32 v{t2}, 1, v{t0}")
    A(f"  v_and_b32 v{t3}, 3, v{t2}")
    A(f"  v_sub_u32 v{t2}, v{t2}, v{t3}")
    A(f"  v_lshl_add_u32 v{t2}, v{t1}, 3, v{t2}")
    A(f"  v_lshlrev_b32 v{t2}, 1, v{t2}")
    A(f"  v_mul_u32_u24 v{t3}, 4160, v{t3}")
    A(f"  s_mul_i32 s{a}, s{sch}, {HCH}")
    A(f"  s_add_u32 s{a}, s{a}, s{b}")
    A(f"  s_add_u32 s{a}, s{a}, {HC}")
    A(f"  v_add3_u32 v{vH}, v{t2}, v{t3}, s{a}")
    A(f"  v_lshlrev_b32 v{t2}, 4, v{vl}")
    A(f"  s_lshl_b32 s{a}, s{sw}, 13")
    A(f"  s_add_u32 s{a}, s{a}, {EX}")
    A(f"  v_add_u32 v{vEXw}, s{a}, v{t2}")
    A(f"  s_lshl_b32 s{a}, s{sw}, 10")
    A(f"  s_add_u32 s{a}, s{a}, {EX}")
    A(f"  v_add_u32 v{vEXr}, s{a}, v{t2}")
    A(f"  s_lshl_b32 s{a}, s{sc}, 13")
    A(f"  s_add_u32 s{a}, s{a}, {WS_KVR}")
    A(f"  v_lshl_add_u32 v{vKVo}, v0, 4, s{a}")
    A(f"  s_mul_i32 s{a}, s{sch}, {XR1}")
    A(f"  v_add_u32 v{vXRw}, s{a}, v{L['vT16']}")
    A(f"  s_lshr_b32 s{a}, s{sc}, 3")
    A(f"  s_lshl_b32 s{a}, s{a}, 10")
    A(f"  s_bfe_u32 s{b}, s{sc}, 0x10002")
    A(f"  s_lshl_b32 s{b}, s{b}, 9")
    A(f"  s_add_u32 s{a}, s{a}, s{b}")
    A(f"  s_and_b32 s{b}, s{sc}, 3")
    A(f"  s_lshl_b32 s{b}, s{b}, 2")
    A(f"  s_add_u32 s{a}, s{a}, s{b}")
    A(f"  s_lshl_b32 s{b}, s{sw}, 18")
    A(f"  s_add_u32 s{a}, s{a}, s{b}")
    A(f"  v_lshlrev_b32 v{t2}, 16, v{t1}")
    A(f"  v_lshl_add_u32 v{t2}, v{t0}, 4, v{t2}")
    A(f"  v_add_u32 v{vYo}, s{a}, v{t2}")
    A(f"  s_lshl_b32 s{a}, s{sc}, 13")
    A(f"  s_lshl_b32 s{b}, s{sw}, 10")
    A(f"  s_add_u32 s{a}, s{a}, s{b}")
    A(f"  s_add_u32 s{a}, s{a}, {WS_XP}")
    A(f"  v_lshlrev_b32 v{t2}, 8, v{t1}")
    A(f"  v_lshl_add_u32 v{t2}, v{t0}, 4, v{t2}")
    A(f"  v_add_u32 v{vXo}, s{a}, v{t2}")
    A(f"  v_lshl_add_u32 v{t2}, v{t1}, 6, v{t0}")
    A(f"  s_lshl_b32 s{a}, s{sw}, 11")
    A(f"  s_add_u32 s{a}, s{a}, {WS_ST1}")
    A(f"  v_lshl_add_u32 v{vSo}, v{t2}, 3, s{a}")
    A(f"  s_lshl_b32 s{a}, s{scb}, 5")
    A(f"  v_add_u32 v{vMo}, s{a}, v0")
    A(f"  v_mul_u32_u24 v{vMo}, 1536, v{vMo}")
    A(f"  s_lshl_b32 s{a}, s{stb}, 3")
    A(f"  s_add_u32 s{a}, s{a}, {WS_PART}")
    A(f"  v_add_u32 v{vMo}, s{a}, v{vMo}")
    A(f"  v_lshrrev_b32 v{t2}, 5, v0")
    A(f"  v_min_u32 v{t2}, 1, v{t2}")
    A(f"  v_lshl_or_b32 v{vMo}, v{t2}, 29, v{vMo}")
    A("  s_waitcnt lgkmcnt(0)")
    A(f"  s_lshr_b32 s{a}, s{sD}, 16")
    A(f"  s_and_b32 s{b}, s{sD}, 0xffff")
    A(f"  s_cmp_eq_u32 s{sch}, 0")
    A(f"  s_cselect_b32 s{a}, s{b}, s{a}")
    A(f"  s_lshl_b32 s{b}, s{a}, 16")
    A(f"  v_lshlrev_b32 v{t2}, 3, v{t1}")
    A(f"  v_add_u32 v{t2}, v{t2}, v{t0}")
    A(f"  v_sub_u32 v{t2}, 15, v{t2}")
    A(f"  v_and_b32 v{t3}, 1, v{t2}")
    A(f"  v_cmp_eq_u32 vcc, 1, v{t3}")
    A(f"  v_mov_b32 v{vHD}, s{a}")
    A(f"  v_mov_b32 v{vHD+1}, s{b}")
    A(f"  v_cndmask_b32 v{t3}, v{vHD}, v{vHD+1}, vcc")
    A(f"  v_ashrrev_i32 v{t2}, 1, v{t2}")
    for i in range(4):
        A(f"  v_cmp_eq_u32 vcc, {i}, v{t2}")
        A("  s_nop 1")
        A(f"  v_cndmask_b32 v{vHD+i}, 0, v{t3}, vcc")
    if PREFETCH:
        A(f"  v_and_b32 v{t1}, 127, v0")
        A(f"  v_mul_u32_u24 v{t2}, 147, v{t1}")
        A(f"  v_lshrrev_b32 v{t2}, 10, v{t2}")
        A(f"  v_mul_u32_u24 v{t3}, 7, v{t2}")
        A(f"  v_sub_u32 v{t3}, v{t1}, v{t3}")
        A(f"  s_lshl_b32 s{a}, s{stb}, 4")
        A(f"  v_add_u32 v{t2}, s{a}, v{t2}")
        A(f"  v_mul_u32_u24 v{t2}, 3584, v{t2}")
        A(f"  v_lshl_add_u32 v{vPf}, v{t3}, 7, v{t2}")
        A(f"  s_lshr_b32 s{a}, s{scb}, 1")
        A(f"  s_mul_i32 s{a}, s{a}, 896")
        A(f"  s_cmp_lt_u32 s{sw}, 4")
        A(f"  s_cselect_b32 s{a}, s{a}, 0x40000000")
        A(f"  v_add_u32 v{vPf}, s{a}, v{vPf}")
        A(f"  s_bitcmp1_b32 s{sw}, 1")
        A(f"  s_cselect_b32 s{sPF}, s{pWG+2}, s{pWG}")
        A(f"  s_cselect_b32 s{sPF+1}, s{pWG+3}, s{pWG+1}")
        A(f"  s_mov_b32 s{sPF+2}, {512*1792*2}")
        A(f"  s_mov_b32 s{sPF+3}, 0x20000")
        A(f"  s_mul_i32 s{a}, s2, 7168")
        A(f"  s_cmp_eq_u32 s{sw}, 4")
        A(f"  s_cselect_b32 s{a}, s{a}, 0x40000000")
        A(f"  v_lshl_add_u32 v{vPd}, v{vl}, 7, s{a}")
        A(f"  s_mov_b32 s{sXq}, s{pWD}")
        A(f"  s_mov_b32 s{sXq+1}, s{pWD+1}")
        A(f"  s_mov_b32 s{sXq+2}, {1792*512*2}")
    A(f"  s_cmp_lg_u32 s{sw}, 0")
    A(f"  s_cbranch_scc1 {name}_s1w")
    A(f"  s_lshl_b32 s{a}, s{scb}, 8")
    A(f"  s_add_u32 s{a}, s{a}, {WS_CNT+16*256}")
    A(f"  v_mov_b32 v{t2}, s{a}")
    poll_ge(A, f"{name}_s1", sWS, t2, [vPoll+i for i in range(4)], 32, a, b, SPIN, PSLEEP)
    A(f"{name}_s1w:")
    ST.value(b, SPIN)
    A("  s_waitcnt lgkmcnt(0)")
    A("  s_barrier")
    ST.stamp()
    vKV = vZf
    A(f"  buffer_load_dwordx4 {vr(vKV,4)}, v{vKVo}, {sr(sWS,4)}, 0 offen sc1")
    def stat_loads():
        for r in range(4):
            A(f"  buffer_load_dwordx2 {vr(vS1+2*r,2)}, v{vSo}, {sr(sWS,4)}, 0 offen offset:{128*r} sc1")
    A(f"  s_waitcnt vmcnt(0)")
    A(f"  ds_write_b128 v{vXRw}, {vr(vKV,4)}")
    A("  s_waitcnt lgkmcnt(0)")
    A("  s_barrier")
    ST.stamp()
    def late_loads():
        A(f"  s_cmp_lg_u32 s{sw}, 0")
        A(f"  s_cbranch_scc1 {name}_nopt")
        for chk in range(6):
            A(f"  buffer_load_dwordx2 {vr(vPt+2*chk,2)}, v{vMo}, {sr(sWS,4)}, 0 offen offset:{256*chk} sc1")
        A(f"{name}_nopt:")
        A(f"  buffer_load_dwordx4 {vr(vXP,4)}, v{vXo}, {sr(sWS,4)}, 0 offen sc1")
        stat_loads()
    def prefetch():
        if not PREFETCH: return
        A(f"  s_cmp_gt_u32 s{sw}, 4")
        A(f"  s_cbranch_scc1 {name}_nopf")
        A(f"  s_cmp_eq_u32 s{sw}, 4")
        A(f"  s_cbranch_scc1 {name}_pfd")
        A(f"  buffer_load_dword v228, v{vPf}, {sr(sPF,4)}, 0 offen")
        A(f"  s_branch {name}_nopf")
        A(f"{name}_pfd:")
        A(f"  buffer_load_dword v229, v{vPd}, {sr(sXq,4)}, 0 offen")
        A(f"{name}_nopf:")
    def reads(it):
        buf = it & 1
        R = []
        for G in range(8):
            R.append(f"  ds_read_b128 {vr(vZf+32*buf+4*G,4)}, v{vZ} offset:{64*it+512*(7-G)}")
        for m in range(8):
            for hh in range(2):
                R.append(f"  ds_read_b64 {vr(vHf+32*buf+4*m+2*hh,2)}, v{vH} offset:{64*it+512*m+8*hh}")
        return R
    red = []
    for k in range(6): red.append(f"  v_permlane16_swap_b32 v{vPt+2*k}, v{vPt+2*k+1}")
    for k in range(6): red.append(f"  v_add_f32 v{vPt+2*k}, v{vPt+2*k}, v{vPt+2*k+1}")
    for ror in (8, 4, 2, 1):
        for k in range(6):
            red.append(f"  v_add_f32_dpp v{vPt+2*k}, v{vPt+2*k}, v{vPt+2*k} row_ror:{ror} row_mask:0xf bank_mask:0xf")
    for k in range(6): red.append(f"  v_cvt_pk_bf16_f32 v{vPt+2*k}, v{vPt+2*k}, v{vPt+2*k}")
    for k in range(6): red.append(f"  v_lshlrev_b32 v{vPt+2*k}, 16, v{vPt+2*k}")
    for k in (1, 4): red.append(f"  v_add_f32 v{vPt+2*k}, 1.0, v{vPt+2*k}")
    for k in (1, 4): red.append(f"  v_cvt_pk_bf16_f32 v{vPt+2*k}, v{vPt+2*k}, v{vPt+2*k}")
    for k in (1, 4): red.append(f"  v_lshlrev_b32 v{vPt+2*k}, 16, v{vPt+2*k}")
    for s_ in reads(0): A(s_)
    late_loads()
    for it in range(2):
        buf = it & 1
        A("  s_waitcnt lgkmcnt(0)")
        nxt = reads(1) if it == 0 else []
        if it == 0:
            A(f"  s_cmp_lg_u32 s{sqq}, 0")
            A(f"  s_cbranch_scc1 {name}_noD")
            for G in range(8):
                A(f"  v_mfma_f32_16x16x32_bf16 {vr(vAcc+4*G,4)}, {vr(vZf+4*G,4)}, {vr(vHD,4)}, 0")
            A(f"  s_branch {name}_Dok")
            A(f"{name}_noD:")
            for i in range(32): A(f"  v_mov_b32 v{vAcc+i}, 0")
            A("  s_nop 1")
            A(f"{name}_Dok:")
        nm = 0
        for m in range(8):
            for Gz in range(8-m):
                G = Gz+m
                A(f"  v_mfma_f32_16x16x32_bf16 {vr(vAcc+4*G,4)}, {vr(vZf+32*buf+4*Gz,4)}, {vr(vHf+32*buf+4*m,4)}, {vr(vAcc+4*G,4)}")
                nm += 1
                if it == 0:
                    if nxt: A(nxt.pop(0))
                else:
                    if nm == 4:
                        A(f"  s_waitcnt vmcnt(0)")
                        prefetch()
                    if nm >= 5:
                        for _ in range(2):
                            if red: A(red.pop(0))
    while red: A(red.pop(0))
    A(f"  s_cmp_lg_u32 s{sw}, 0")
    A(f"  s_cbranch_scc1 {name}_nomd")
    A(f"  v_lshrrev_b32 v{vPt+1}, 4, v{vl}")
    A(f"  v_lshlrev_b32 v{vPt+1}, 2, v{vPt+1}")
    A(f"  v_add_u32 v{vPt+1}, {MD}, v{vPt+1}")
    A(f"  s_mov_b64 exec, 0x10001")
    for i, k in enumerate((0, 1, 2, 4)):
        A(f"  ds_write_b32 v{vPt+1}, v{vPt+2*k} offset:{8*i}")
    A(f"  s_mov_b64 exec, -1")
    A(f"{name}_nomd:")
    A("  s_nop 7")
    ST.stamp()
    for G in range(8):
        A(f"  ds_write_b128 v{vEXw}, {vr(vAcc+4*G,4)} offset:{G*1024}")
    A(f"  s_mov_b32 s{c_}, {SPIN}")
    A(f"{name}_val:")
    V = vHf
    A(f"  v_min_u32 v{V}, v{vS1}, v{vS1+2}")
    A(f"  v_min3_u32 v{V}, v{V}, v{vS1+4}, v{vS1+6}")
    A(f"  v_cmp_eq_u32 vcc, 0, v{V}")
    A("  s_nop 1")
    A(f"  s_cmp_eq_u64 vcc, 0")
    A(f"  s_cbranch_scc1 {name}_valok")
    A("  s_sleep 1")
    stat_loads()
    A("  s_waitcnt vmcnt(0)")
    A(f"  s_sub_u32 s{c_}, s{c_}, 1")
    A(f"  s_cmp_lg_u32 s{c_}, 0")
    A(f"  s_cbranch_scc1 {name}_val")
    A(f"{name}_valok:")
    ST.value(c_, SPIN)
    X, N = vHf+8, vHf+16
    for r in range(4):
        A(f"  v_lshlrev_b32 v{X+2*r}, 16, v{vXP+r}")
        A(f"  v_and_b32 v{X+2*r+1}, 0xffff0000, v{vXP+r}")
    for r in range(4):
        rs, nm = vS1+2*r, vS1+2*r+1
        A(f"  v_pk_fma_f32 {vr(N+2*r,2)}, {vr(X+2*r,2)}, {vr(rs,2)}, {vr(rs,2)} op_sel:[0,0,1] op_sel_hi:[1,0,1]")
    A("  s_waitcnt lgkmcnt(0)")
    A("  s_barrier")
    ST.stamp()
    A(f"  v_mov_b32 v{t2}, {MD}")
    A(f"  ds_read_b128 {vr(vMd,4)}, v{t2}")
    A(f"  ds_read_b128 {vr(vMd+4,4)}, v{t2} offset:16")
    vR = vZf
    for s_ in range(8):
        A(f"  ds_read_b128 {vr(vR+4*s_,4)}, v{vEXr} offset:{s_*8192}")
    sa, c1a, ga, c1b = vMd, vMd+2, vMd+4, vMd+6
    A("  s_waitcnt lgkmcnt(8)")
    for r in range(4): A(f"  v_pk_fma_f32 {vr(N+2*r,2)}, {vr(N+2*r,2)}, {vr(c1a,2)}, {vr(sa,2)}")
    for r in range(4): A(f"  v_pk_mul_f32 {vr(N+2*r,2)}, {vr(N+2*r,2)}, {vr(ga,2)}")
    A("  s_waitcnt lgkmcnt(4)")
    for hh in range(2):
        A(f"  v_pk_add_f32 {vr(vR+2*hh,2)}, {vr(vR+2*hh,2)}, {vr(vR+4+2*hh,2)}")
        A(f"  v_pk_add_f32 {vr(vR+8+2*hh,2)}, {vr(vR+8+2*hh,2)}, {vr(vR+12+2*hh,2)}")
    for hh in range(2):
        A(f"  v_pk_add_f32 {vr(vR+2*hh,2)}, {vr(vR+2*hh,2)}, {vr(vR+8+2*hh,2)}")
    A("  s_waitcnt lgkmcnt(0)")
    for hh in range(2):
        A(f"  v_pk_add_f32 {vr(vR+16+2*hh,2)}, {vr(vR+16+2*hh,2)}, {vr(vR+20+2*hh,2)}")
        A(f"  v_pk_add_f32 {vr(vR+24+2*hh,2)}, {vr(vR+24+2*hh,2)}, {vr(vR+28+2*hh,2)}")
    for hh in range(2):
        A(f"  v_pk_add_f32 {vr(vR+16+2*hh,2)}, {vr(vR+16+2*hh,2)}, {vr(vR+24+2*hh,2)}")
    for r in range(4):
        A(f"  v_fma_f32 v{X+2*r}, v{N+2*r}, v{vR+r}, v{X+2*r}")
        A(f"  v_fma_f32 v{X+2*r+1}, v{N+2*r+1}, v{vR+16+r}, v{X+2*r+1}")
    PX, PZ = vR+4, vR+8
    ST.stamp()
    for r in range(4): A(f"  v_cvt_pk_bf16_f32 v{PX+r}, v{X+2*r}, v{X+2*r+1}")
    A(f"  s_mov_b32 s{a}, {WS_X1}")
    A(f"  s_mov_b32 s{b}, {WS_X1+32768}")
    A(f"  s_mov_b32 s{c_}, {WS_H2}")
    A(f"  s_mov_b32 s{d_}, {WS_H2+32768}")
    for r in range(4):
        A(f"  buffer_store_dword v{PX+r}, v{vYo}, {sr(sWS,4)}, s{a+(r>>1)} offen offset:{256*(r&1)}")
    for r in range(4):
        A(f"  v_lshlrev_b32 v{X+2*r}, 16, v{PX+r}")
        A(f"  v_and_b32 v{X+2*r+1}, 0xffff0000, v{PX+r}")
    for r in range(4): A(f"  v_pk_mul_f32 {vr(X+2*r,2)}, {vr(X+2*r,2)}, {vr(c1b,2)}")
    for r in range(4): A(f"  v_cvt_pk_bf16_f32 v{PZ+r}, v{X+2*r}, v{X+2*r+1}")
    for r in range(4):
        A(f"  buffer_store_dword v{PZ+r}, v{vYo}, {sr(sWS,4)}, s{c_+(r>>1)} offen offset:{256*(r&1)}")
    A(f"  s_cmp_lg_u32 s{sw}, 0")
    A(f"  s_cbranch_scc1 {name}_nopub")
    A(f"  v_lshrrev_b32 v{vPt+1}, 4, v{vl}")
    A(f"  s_lshl_b32 s{a}, s{sc}, 1")
    A(f"  v_add_u32 v{vPt+1}, s{a}, v{vPt+1}")
    A(f"  v_lshlrev_b32 v{vPt+3}, 2, v{vPt+1}")
    A(f"  v_lshlrev_b32 v{vPt+5}, 1, v{vPt+1}")
    A(f"  s_mov_b64 exec, 0x10001")
    for k in range(6):
        A(f"  s_mov_b32 s{a}, {WS_MOD+k*2048}")
        A(f"  buffer_store_dword v{vPt+2*k}, v{vPt+3}, {sr(sWS,4)}, s{a} offen")
    for k in (3, 4):
        A(f"  v_lshrrev_b32 v{vPt+7}, 16, v{vPt+2*k}")
        A(f"  s_mov_b32 s{a}, {WS_MODH+k*1024}")
        A(f"  buffer_store_short v{vPt+7}, v{vPt+5}, {sr(sWS,4)}, s{a} offen")
        A("  s_nop 0")
    A(f"  s_mov_b64 exec, -1")
    A(f"{name}_nopub:")
```

```python
import sys, os
from common import *
import common
import gen as G
from ka2 import gen_ka2
from ka3 import gen_ka3
from kb import gen_kb
E = G.E
def lst():
    ka = (lambda A: gen_ka3(A, kidx=0, PREFETCH=E("PF_GU", 1), PSLEEP=E("PSLEEP", 1), ORD=E("ORD", 1))) if E("KA3", 0) else (lambda A: gen_ka2(A, kidx=0, PREFETCH=E("PF_GU", 1), PSLEEP=E("PSLEEP", 1), ORD=E("ORD", 1), TOUCH=E("TOUCH", 0), CONV4=E("CONV4", 1), PFWD=E("PFWD", 1)))
    return [ka,
            lambda A: gen_kb(A, kidx=1, AHEAD=E("AHEAD", 2), SPACE=E("SPACE", 2), NSLOT=20, B0=E("B0", 5), BR=E("BR", 1), QFL=E("QFL", 24), QCK=E("QCK", 27), QPF=E("QPF", 27), QDMA=E("QDMA", 18), PSLEEP=E("PSLEEP3", 1), ALLST=E("ALLST", 0), STAG=E("STAG", 0), NIN=E("NIN", 16), DSP=E("DSP", 3), NPOST=E("NPOST", 0), NEPI=E("NEPI", 16), W2=E("W2", 0), PRIO=E("PRIO", 0), NOBAR=E("NOBAR", 1), EPOLL=E("EPOLL", 0))]
DOC = """;
;
; conv_kernel
; ffn_kernel
;
"""
if __name__ == "__main__":
    if os.environ.get("STAMPS"): common.STAMPS = True
    dst = sys.argv[1] if len(sys.argv) > 1 else 'adaLN_cond__ssm_conv_h3__swiglu_ffn__prompt.s'
    txt = G.build(lst(), extra_header=DOC)
    open(dst, 'w').write(txt)
    print("wrote", dst, len(txt), "bytes")
```

```python
from common import *
from k3 import wave_reduce
from poll import poll_ge

C_KV = 16
WS_ALL = 0x1300000

def gen_ka2(A, name="conv_kernel", kidx=0, SPIN=200000, PREFETCH=True, PSLEEP=2, ORD=1, TOUCH=0):
    XR1, HC, HCH, MD, EX = 4608, 9216, 4*4160, 42496, 43008
    TT, XT, MS = EX, EX+8192, EX+8192+9216
    LDS = EX + 65536
    kernel_header(A, name)
    ST = Stamper(A, kidx); ST.stamp()
    sK, sV, sSH, sXq, sH, sWS, sWM, sDBG, sPF = 8, 12, 16, 20, 24, 28, 32, 36, 40
    stb, scb, sw, sc, sch, sqq, sD = 4, 5, 6, 7, 3, 100, 101
    a, b, c_, d_ = 44, 45, 46, 47
    pD, pC, pWG, pWD = 48, 50, 52, 56
    A("  s_cmp_ge_u32 s2, 256")
    A(f"  s_cbranch_scc1 {name}_end")
    for dst, key in ((sK,'k'),(sV,'v'),(sSH,'shift'),(sXq,'q'),(sH,'ssm'),(sWS,'ws'),(sWM,'wmod'),(sDBG,'dbg'),(pD,'D'),(pC,'c')):
        A(f"  s_load_dwordx2 s[{dst}:{dst+1}], s[0:1], {KA[key]}")
    for dst, size in ((sK,SZ2M),(sV,SZ2M),(sSH,4096),(sXq,SZ2M),(sH,SZ2M),(sWS,WS_ALL),(sWM,512*3072*2),(sDBG,256)):
        A(f"  s_mov_b32 s{dst+2}, {hex(size)}")
        A(f"  s_mov_b32 s{dst+3}, 0x20000")
    vl, t0, t1, t2, t3 = 1, 2, 3, 4, 5
    vb, vW, vR, vG, vSo, vXro, vT16, vFl = 6, 7, 8, 9, 10, 11, 12, 13
    vKo = 14
    vK, vV, vS, vXt, vXr = 18, 28, 32, 40, 44
    vC, vWm, vOA = 48, 52, 49
    vL = 60
    vKf, vSf, vO = 72, 92, 108
    A(f"  s_lshr_b32 s{stb}, s2, 3")
    A(f"  s_and_b32 s{scb}, s2, 7")
    A(f"  v_lshrrev_b32 v{t2}, 6, v0")
    A(f"  v_and_b32 v{vl}, 63, v0")
    A(f"  v_readfirstlane_b32 s{sw}, v{t2}")
    A(f"  v_and_b32 v{t0}, 15, v0")
    A(f"  v_lshrrev_b32 v{t1}, 4, v0")
    A(f"  v_lshlrev_b32 v{vT16}, 4, v0")
    A(f"  s_lshl_b32 s{a}, s{stb}, 16")
    A(f"  s_lshl_b32 s{b}, s{scb}, 7")
    A(f"  s_add_u32 s{a}, s{a}, s{b}")
    A(f"  v_lshlrev_b32 v{vb}, 11, v{t1}")
    A(f"  v_lshl_add_u32 v{vb}, v{t0}, 3, v{vb}")
    A(f"  v_add_u32 v{vb}, s{a}, v{vb}")
    for i in range(3):
        A(f"  v_add_u32 v{vKo+i}, {hex((-(3-i)*1024) & 0xffffffff)}, v{vb}")
    A(f"  s_lshl_b32 s{b}, s{scb}, 9")
    A(f"  v_lshl_add_u32 v{vSo}, v{t0}, 5, s{b}")
    A(f"  s_lshl_b32 s{c_}, s2, 3")
    A(f"  s_add_u32 s{c_}, s{c_}, s{sw}")
    A(f"  s_lshl_b32 s{c_}, s{c_}, 10")
    A(f"  v_lshlrev_b32 v{vXro}, 4, v{vl}")
    A(f"  s_lshl_b32 s{sc}, s{scb}, 5")
    A(f"  s_add_u32 s{sc}, s{sc}, s{stb}")
    A(f"  s_lshr_b32 s{sch}, s{sw}, 2")
    A(f"  s_and_b32 s{sqq}, s{sw}, 3")
    A(f"  v_lshrrev_b32 v{t2}, 3, v{vl}")
    A(f"  s_lshl_b32 s{a}, s{stb}, 5")
    A(f"  v_lshl_add_u32 v{t3}, v{t2}, 2, s{a}")
    A(f"  v_mul_u32_u24 v{vOA}, 12288, v{t2}")
    A(f"  v_and_b32 v{t2}, 7, v{vl}")
    A(f"  v_lshl_add_u32 v{vOA}, v{t2}, 4, v{vOA}")
    A(f"  s_mul_i32 s{a}, s{stb}, {16*6144}")
    A(f"  s_lshl_b32 s{b}, s{scb}, 7")
    A(f"  s_add_u32 s{a}, s{a}, s{b}")
    A(f"  s_lshl_b32 s{b}, s{sw}, 10")
    A(f"  s_add_u32 s{a}, s{a}, s{b}")
    A(f"  s_cmp_lt_u32 s{sw}, 6")
    A(f"  s_cselect_b32 s{a}, s{a}, 0x40000000")
    A(f"  s_add_u32 s{b}, s{a}, 6144")
    A("  s_waitcnt lgkmcnt(0)")
    A("  s_cmp_lg_u32 s2, 0")
    A(f"  s_cbranch_scc1 {name}_nozs")
    for i in range(4): A(f"  v_mov_b32 v{vO+i}, 0")
    A(f"  s_mov_b32 s{d_}, {WS_CNT}")
    A(f"  buffer_store_dwordx4 {vr(vO,4)}, v{vT16}, {sr(sWS,4)}, s{d_} offen sc1")
    for i in range(2):
        A(f"  s_mov_b32 s{d_}, {WS_ST1+8192*i}")
        A(f"  buffer_store_dwordx4 {vr(vO,4)}, v{vT16}, {sr(sWS,4)}, s{d_} offen sc1")
    A(f"{name}_nozs:")
    for i in range(3):
        A(f"  buffer_load_dwordx2 {vr(vK+2*i,2)}, v{vKo+i}, {sr(sK,4)}, 0 offen")
    for i in range(2):
        A(f"  buffer_load_dwordx2 {vr(vK+6+2*i,2)}, v{vb}, {sr(sK,4)}, 0 offen offset:{1024*i}")
    for i in range(2):
        A(f"  buffer_load_dwordx2 {vr(vV+2*i,2)}, v{vb}, {sr(sV,4)}, 0 offen offset:{1024*i}")
    for i in range(2):
        A(f"  buffer_load_dwordx4 {vr(vS+4*i,4)}, v{vSo}, {sr(sSH,4)}, 0 offen offset:{16*i}")
    if ORD: A("  s_barrier")
    for i in range(2):
        A(f"  buffer_load_dwordx2 {vr(vXt+2*i,2)}, v{vb}, {sr(sXq,4)}, 0 offen offset:{1024*i}")
    A(f"  buffer_load_dwordx4 {vr(vXr,4)}, v{vXro}, {sr(sXq,4)}, s{c_} offen")
    A(f"  s_mov_b32 s{sSH}, s{pC}")
    A(f"  s_mov_b32 s{sSH+1}, s{pC+1}")
    A(f"  s_movk_i32 s{sSH+2}, 1024")
    A(f"  buffer_load_dword v{vC}, v{t3}, {sr(sSH,4)}, 0 offen")
    A(f"  buffer_load_dwordx4 {vr(vWm,4)}, v{vOA}, {sr(sWM,4)}, s{a} offen")
    A(f"  buffer_load_dwordx4 {vr(vWm+4,4)}, v{vOA}, {sr(sWM,4)}, s{b} offen")
    NP1 = 15
    if TOUCH:
        A(f"  s_cmp_lg_u32 s{sw}, 7")
        A(f"  s_cbranch_scc1 {name}_notouch")
        A(f"  v_min_u32 v{t2}, 19, v{vl}")
        A(f"  v_lshlrev_b32 v{t2}, 20, v{t2}")
        A(f"  buffer_load_dword v230, v{t2}, {sr(sWS,4)}, 0 offen")
        A(f"{name}_notouch:")
    A("  s_cmp_lg_u32 s2, 0")
    A(f"  s_cbranch_scc1 {name}_nozero")
    A(f"  s_waitcnt vmcnt({NP1})")
    A("  s_barrier")
    A(f"  s_cmp_lg_u32 s{sw}, 0")
    A(f"  s_cbranch_scc1 {name}_nozero")
    A(f"  v_mov_b32 v{t2}, 0")
    A(f"  v_mov_b32 v{t3}, 1")
    A(f"  s_mov_b64 exec, 1")
    A(f"  buffer_store_dword v{t3}, v{t2}, {sr(sDBG,4)}, 0 offen sc1")
    A(f"  s_mov_b64 exec, -1")
    A(f"{name}_nozero:")
    A(f"  s_lshl_b32 s{a}, s{sc}, 2")
    A(f"  s_load_dword s{sD}, s[{pD}:{pD+1}], s{a}")
    if PREFETCH:
        A(f"  s_load_dwordx4 s[{pWG}:{pWG+3}], s[0:1], {KA['wg']}")
        A(f"  s_load_dwordx2 s[{pWD}:{pWD+1}], s[0:1], {KA['wd']}")
    A(f"  v_sub_u32 v{t2}, 31, v{t1}")
    A(f"  v_lshrrev_b32 v{vW}, 2, v{t2}")
    A(f"  v_and_b32 v{t3}, 7, v{t0}")
    A(f"  v_xor_b32 v{vW}, v{vW}, v{t3}")
    A(f"  v_lshlrev_b32 v{vW}, 4, v{vW}")
    A(f"  v_and_b32 v{t2}, 3, v{t2}")
    A(f"  v_lshl_add_u32 v{vW}, v{t2}, 2, v{vW}")
    A(f"  v_lshl_add_u32 v{vW}, v{t0}, 9, v{vW}")
    A(f"  v_add_u32 v{vW}, {TT}, v{vW}")
    A(f"  v_lshrrev_b32 v{t2}, 3, v0")
    A(f"  v_and_b32 v{t3}, 7, v0")
    A(f"  v_bfe_u32 v{vR}, v0, 5, 3")
    A(f"  v_xor_b32 v{vR}, v{vR}, v{t3}")
    A(f"  v_lshlrev_b32 v{vR}, 4, v{vR}")
    A(f"  v_lshl_add_u32 v{vR}, v{t2}, 7, v{vR}")
    A(f"  v_add_u32 v{vR}, {TT}, v{vR}")
    A(f"  s_lshl_b32 s{a}, s{scb}, 18")
    A(f"  s_lshl_b32 s{b}, s{stb}, 7")
    A(f"  s_sub_u32 s{a}, s{a}, s{b}")
    A(f"  s_add_u32 s{a}, s{a}, {3968+WS_KVR}")
    A(f"  v_lshlrev_b32 v{vG}, 12, v{t2}")
    A(f"  v_lshl_add_u32 v{vG}, v{t3}, 4, v{vG}")
    A(f"  v_add_u32 v{vG}, s{a}, v{vG}")
    vXw = vSo
    A(f"  v_mul_u32_u24 v{vXw}, 288, v{t1}")
    A(f"  v_lshl_add_u32 v{vXw}, v{t0}, 3, v{vXw}")
    A(f"  v_add_u32 v{vXw}, {XT}, v{vXw}")
    A(f"  s_waitcnt vmcnt(6)")
    ST.stamp()
    for ch in range(4):
        for dd in range(2):
            src = vS + 2*ch + dd
            p, e = ch >> 1, ch & 1
            A(f"  v_lshlrev_b32 v{vSf+((2*dd)*2+p)*2+e}, 16, v{src}")
            A(f"  v_and_b32 v{vSf+((2*dd+1)*2+p)*2+e}, 0xffff0000, v{src}")
    for r in range(5):
        for p in range(2):
            A(f"  v_lshlrev_b32 v{vKf+(r*2+p)*2}, 16, v{vK+2*r+p}")
            A(f"  v_and_b32 v{vKf+(r*2+p)*2+1}, 0xffff0000, v{vK+2*r+p}")
    O = vO
    for j in range(4):
        for tk in range(2):
            for p in range(2):
                kk = vKf+((3+tk-j)*2+p)*2; ww = vSf+(j*2+p)*2; o = O+(tk*2+p)*2
                if j == 0: A(f"  v_pk_mul_f32 {vr(o,2)}, {vr(kk,2)}, {vr(ww,2)}")
                else: A(f"  v_pk_fma_f32 {vr(o,2)}, {vr(kk,2)}, {vr(ww,2)}, {vr(o,2)}")
    for tk in range(2):
        for p in range(2):
            A(f"  v_lshlrev_b32 v{vKf+(tk*2+p)*2}, 16, v{vV+2*tk+p}")
            A(f"  v_and_b32 v{vKf+(tk*2+p)*2+1}, 0xffff0000, v{vV+2*tk+p}")
    for tk in range(2):
        for p in range(2):
            o = O+(tk*2+p)*2
            A(f"  v_pk_mul_f32 {vr(o,2)}, {vr(o,2)}, {vr(vKf+(tk*2+p)*2,2)}")
    for ch in range(4):
        p, e = ch >> 1, ch & 1
        A(f"  v_cvt_pk_bf16_f32 v{vKf+8+ch}, v{O+(2+p)*2+e}, v{O+p*2+e}")
    for ch in range(4):
        A(f"  ds_write_b32 v{vW}, v{vKf+8+ch} offset:{128*ch}")
    A("  s_waitcnt lgkmcnt(0)")
    A("  s_barrier")
    A(f"  ds_read_b128 {vr(vO,4)}, v{vR}")
    A(f"  v_and_b32 v{t0}, 15, v0")
    A(f"  v_lshrrev_b32 v{t1}, 4, v0")
    A(f"  v_mul_u32_u24 v{t2}, 144, v{t0}")
    A(f"  v_lshl_add_u32 v{t2}, v{t1}, 2, v{t2}")
    A(f"  v_add_u32 v{vR}, {XT}, v{t2}")
    A("  s_waitcnt lgkmcnt(0)")
    A(f"  buffer_store_dwordx4 {vr(vO,4)}, v{vG}, {sr(sWS,4)}, 0 offen sc1")
    ST.stamp()
    A(f"  v_and_b32 v{t2}, 255, v0")
    A(f"  v_lshlrev_b32 v{vT16}, 4, v{t2}")
    A(f"  s_lshl_b32 s{a}, s{sc}, 13")
    A(f"  s_lshl_b32 s{b}, s{sch}, 12")
    A(f"  s_add_u32 s{a}, s{a}, s{b}")
    for k in range(3):
        A(f"  buffer_load_dwordx4 {vr(vL+4*k,4)}, v{vT16}, {sr(sH,4)}, s{a} offen offset:{4*k}")
    A("  s_waitcnt vmcnt(8)")
    for i in range(2):
        A(f"  ds_write_b64 v{vXw}, {vr(vXt+2*i,2)} offset:{144*i}")
    A(f"  s_lshl_b32 s{a}, s{scb}, 18")
    A(f"  s_lshl_b32 s{b}, s{stb}, 8")
    A(f"  s_add_u32 s{a}, s{a}, s{b}")
    A(f"  s_add_u32 s{d_}, s{a}, {WS_XP}")
    A(f"  v_lshlrev_b32 v{vG}, 13, v{t1}")
    A(f"  v_lshl_add_u32 v{vG}, v{t0}, 4, v{vG}")
    A("  s_waitcnt lgkmcnt(0)")
    A("  s_barrier")
    for r in range(4):
        A(f"  ds_read_b32 v{vO+4+r}, v{vR} offset:{r*16*144}")
    A("  s_waitcnt vmcnt(7)")
    F, S1, S2 = vKf, vKf+8, vKf+10
    for i in range(4):
        A(f"  v_lshlrev_b32 v{F+2*i}, 16, v{vXr+i}")
        A(f"  v_and_b32 v{F+2*i+1}, 0xffff0000, v{vXr+i}")
    A(f"  v_pk_add_f32 {vr(S1,2)}, {vr(F,2)}, {vr(F+2,2)}")
    A(f"  v_pk_mul_f32 {vr(S2,2)}, {vr(F,2)}, {vr(F,2)}")
    A(f"  v_pk_add_f32 {vr(F,2)}, {vr(F+4,2)}, {vr(F+6,2)}")
    for i in range(1,4):
        A(f"  v_pk_fma_f32 {vr(S2,2)}, {vr(F+2*i,2)}, {vr(F+2*i,2)}, {vr(S2,2)}")
    A(f"  v_pk_add_f32 {vr(S1,2)}, {vr(S1,2)}, {vr(F,2)}")
    A(f"  v_add_f32 v{S2}, v{S2}, v{S2+1}")
    A(f"  v_add_f32 v{S1}, v{S1}, v{S1+1}")
    A("  s_waitcnt lgkmcnt(0)")
    A(f"  buffer_store_dwordx4 {vr(vO+4,4)}, v{vG}, {sr(sWS,4)}, s{d_} offen sc1")
    T, P = vSf, 116
    A("  s_waitcnt vmcnt(5)")
    c0, c1, e0, e1 = T, T+1, T+2, T+3
    A(f"  v_lshlrev_b32 v{c0}, 16, v{vC}")
    A(f"  v_and_b32 v{c1}, 0xffff0000, v{vC}")
    A(f"  s_mov_b32 s{a}, 0xbfb8aa3b")
    def red(ctrl):
        for r in (S1, S2): A(f"  v_add_f32_dpp v{r}, v{r}, v{r} {ctrl}")
    red("row_ror:8 row_mask:0xf bank_mask:0xf")
    A(f"  v_mul_f32 v{e0}, s{a}, v{c0}")
    A(f"  v_mul_f32 v{e1}, s{a}, v{c1}")
    red("row_ror:4 row_mask:0xf bank_mask:0xf")
    A(f"  v_exp_f32 v{e0}, v{e0}")
    A(f"  v_exp_f32 v{e1}, v{e1}")
    red("row_ror:2 row_mask:0xf bank_mask:0xf")
    A(f"  v_add_f32 v{e0}, 1.0, v{e0}")
    A(f"  v_add_f32 v{e1}, 1.0, v{e1}")
    red("row_ror:1 row_mask:0xf bank_mask:0xf")
    A(f"  v_rcp_f32 v{e0}, v{e0}")
    A(f"  v_rcp_f32 v{e1}, v{e1}")
    red("row_bcast:15 row_mask:0xa bank_mask:0xf")
    A(f"  v_mul_f32 v{c0}, v{c0}, v{e0}")
    A(f"  v_mul_f32 v{c1}, v{c1}, v{e1}")
    red("row_bcast:31 row_mask:0xc bank_mask:0xf")
    A(f"  v_cvt_pk_bf16_f32 v{vC}, v{c0}, v{c1}")
    A(f"  s_mov_b32 s{a}, 0x05040100")
    A(f"  s_mov_b32 s{b}, 0x07060302")
    for q in range(4):
        A(f"  v_perm_b32 v{T+2*q}, v{vWm+4+q}, v{vWm+q}, s{a}")
        A(f"  v_perm_b32 v{T+2*q+1}, v{vWm+4+q}, v{vWm+q}, s{b}")
    A(f"  s_mov_b32 s{a}, 0x3b000000")
    A(f"  v_mul_f32 v{S1}, s{a}, v{S1}")
    A(f"  v_mul_f32 v{S2}, s{a}, v{S2}")
    for n in range(8):
        A(f"  v_dot2_f32_bf16 v{P+n}, v{T+n}, v{vC}, 0")
    A(f"  v_fma_f32 v{S2}, -v{S1}, v{S1}, v{S2}")
    A(f"  s_mov_b32 s{a}, 0x3727c5ac")
    A(f"  v_max_f32 v{S2}, 0, v{S2}")
    A(f"  v_add_f32 v{S2}, s{a}, v{S2}")
    A(f"  v_rsq_f32 v{S2}, v{S2}")
    for i in range(4): A(f"  v_permlane32_swap_b32 v{P+i}, v{P+i+4}")
    A(f"  v_mul_f32 v{S2+1}, -v{S1}, v{S2}")
    for i in range(4): A(f"  v_add_f32 v{P+i}, v{P+i}, v{P+i+4}")
    A(f"  s_lshl_b32 s{a}, s{sw}, 3")
    A(f"  s_add_u32 s{a}, s{a}, {MS}")
    A(f"  v_mov_b32 v{t2}, s{a}")
    for i in range(2): A(f"  v_permlane16_swap_b32 v{P+i}, v{P+i+2}")
    A(f"  s_mov_b32 s{c_}, 0")
    A(f"  s_brev_b32 s{d_}, 1")
    for i in range(2): A(f"  v_add_f32 v{P+i}, v{P+i}, v{P+i+2}")
    A(f"  s_mov_b64 exec, s[{c_}:{d_}]")
    A(f"  ds_write_b64 v{t2}, {vr(S2,2)}")
    A(f"  s_mov_b64 exec, -1")
    for i in range(2): A(f"  v_add_f32_dpp v{P+i}, v{P+i}, v{P+i} row_ror:8 row_mask:0xf bank_mask:0xf")
    A(f"  v_and_b32 v{vOA}, 7, v{vl}")
    A(f"  v_lshlrev_b32 v{vOA}, 5, v{vOA}")
    A(f"  v_lshrrev_b32 v{t2}, 4, v{vl}")
    A(f"  v_lshl_add_u32 v{vOA}, v{t2}, 3, v{vOA}")
    A(f"  v_and_b32 v{t2}, 8, v{vl}")
    A(f"  v_lshl_or_b32 v{vOA}, v{t2}, 27, v{vOA}")
    A(f"  s_mul_i32 s{a}, s{sc}, 1536")
    A(f"  s_lshl_b32 s{b}, s{sw}, 8")
    A(f"  s_add_u32 s{a}, s{a}, s{b}")
    A(f"  s_add_u32 s{a}, s{a}, {WS_PART}")
    A(f"  s_cmp_lt_u32 s{sw}, 6")
    A(f"  s_cselect_b32 s{a}, s{a}, 0x20000000")
    A(f"  buffer_store_dwordx2 {vr(P,2)}, v{vOA}, {sr(sWS,4)}, s{a} offen sc1")
    ST.stamp()
    A(f"  s_cmp_eq_u32 s{sw}, 0")
    A(f"  s_cselect_b32 s{a}, 0, 0x400")
    A(f"  v_mov_b32 v{t2}, s{a}")
    A(f"  buffer_load_dword v{vFl}, v{t2}, {sr(sDBG,4)}, 0 offen sc1")
    A("  s_waitcnt vmcnt(0) lgkmcnt(0)")
    A("  s_barrier")
    A(f"  s_cmp_lg_u32 s{sw}, 0")
    A(f"  s_cbranch_scc1 {name}_arr1")
    A(f"  v_readfirstlane_b32 s{a}, v{vFl}")
    A(f"  s_mov_b32 s{b}, {SPIN}")
    A(f"{name}_rdy:")
    A(f"  s_cmp_lg_u32 s{a}, 0")
    A(f"  s_cbranch_scc1 {name}_rdyok")
    A(f"  v_mov_b32 v{t2}, 0")
    A(f"  buffer_load_dword v{vFl}, v{t2}, {sr(sDBG,4)}, 0 offen sc1")
    A("  s_waitcnt vmcnt(0)")
    A(f"  v_readfirstlane_b32 s{a}, v{vFl}")
    A(f"  s_sub_u32 s{b}, s{b}, 1")
    A(f"  s_cmp_lg_u32 s{b}, 0")
    A(f"  s_cbranch_scc1 {name}_rdy")
    A(f"{name}_rdyok:")
    ST.value(b, SPIN)
    A(f"  s_lshl_b32 s{a}, s{scb}, 8")
    A(f"  s_add_u32 s{a}, s{a}, {WS_CNT+C_KV*256}")
    A(f"  v_mov_b32 v{t2}, s{a}")
    A(f"  v_mov_b32 v{t3}, 1")
    A(f"  s_mov_b64 exec, 1")
    A(f"  buffer_atomic_add v{t3}, v{t2}, {sr(sWS,4)}, 0 offen sc1")
    A(f"  s_mov_b64 exec, -1")
    A(f"  v_lshlrev_b32 v{t2}, 4, v{vl}")
    A(f"  ds_read_b128 {vr(vO,4)}, v{t2} offset:{MS}")
    A(f"  s_lshl_b32 s{a}, s2, 6")
    A(f"  s_add_u32 s{a}, s{a}, {WS_ST1}")
    A("  s_waitcnt lgkmcnt(0)")
    A(f"  s_mov_b64 exec, 0xf")
    A(f"  buffer_store_dwordx4 {vr(vO,4)}, v{t2}, {sr(sWS,4)}, s{a} offen sc1")
    A(f"  s_mov_b64 exec, -1")
    A(f"{name}_arr1:")
    ST.stamp()
    vE, vZero, vHCw = vSf, vSf+8, vSf+12
    La, Lb, Lc = vL, vL+4, vL+8
    for i in range(4): A(f"  v_alignbit_b32 v{vE+i}, v{Lb+i}, v{La+i}, 16")
    for i in range(4): A(f"  v_alignbit_b32 v{vE+4+i}, v{Lc+i}, v{Lb+i}, 16")
    A(f"  s_mul_i32 s{a}, s{sch}, {HCH}")
    A(f"  s_add_u32 s{a}, s{a}, {HC+32}")
    A(f"  v_add_u32 v{vHCw}, s{a}, v{vT16}")
    for i in range(4): A(f"  v_mov_b32 v{vZero+i}, 0")
    A(f"  ds_write_b128 v{vHCw}, {vr(La,4)}")
    A(f"  ds_write_b128 v{vHCw}, {vr(Lb,4)} offset:{2*4160}")
    A(f"  ds_write_b128 v{vHCw}, {vr(vE,4)} offset:{4160}")
    A(f"  ds_write_b128 v{vHCw}, {vr(vE+4,4)} offset:{3*4160}")
    A(f"  s_cmp_lg_u32 s{sw}, 1")
    A(f"  s_cbranch_scc1 {name}_nozt")
    A(f"  v_lshrrev_b32 v{t1}, 5, v{vl}")
    A(f"  v_mul_u32_u24 v{t1}, 4608, v{t1}")
    A(f"  v_and_b32 v{t2}, 31, v{vl}")
    A(f"  v_lshl_add_u32 v{t1}, v{t2}, 4, v{t1}")
    A(f"  ds_write_b128 v{t1}, {vr(vZero,4)} offset:4096")
    A(f"{name}_nozt:")
    A(f"  s_cmp_lg_u32 s{sqq}, 0")
    A(f"  s_cbranch_scc1 {name}_noneg")
    A(f"  s_mov_b64 exec, 1")
    A(f"  v_subrev_u32 v{t0}, 32, v{vHCw}")
    Tn = vKf
    for i in range(12): A(f"  v_mov_b32 v{Tn+i}, 0")
    for phi in range(4): A(f"  ds_write_b128 v{t0}, {vr(vZero,4)} offset:{phi*4160}")
    A(f"  ds_write_b128 v{t0}, {vr(vZero,4)} offset:16")
    A(f"  v_lshlrev_b32 v{Tn+3}, 16, v{La}")
    A(f"  v_mov_b32 v{Tn+7}, v{La}")
    A(f"  v_lshlrev_b32 v{Tn+10}, 16, v{La}")
    A(f"  v_alignbit_b32 v{Tn+11}, v{La+1}, v{La}, 16")
    A(f"  ds_write_b128 v{t0}, {vr(Tn,4)} offset:{4160+16}")
    A(f"  ds_write_b128 v{t0}, {vr(Tn+4,4)} offset:{2*4160+16}")
    A(f"  ds_write_b128 v{t0}, {vr(Tn+8,4)} offset:{3*4160+16}")
    A(f"  s_mov_b64 exec, -1")
    A(f"{name}_noneg:")
    conv2(A, locals())
    A(f"{name}_end:")
    ST.flush(2)
    A("  s_endpgm")
    return dict(name=name, grid=256, block=512, lds=LDS, nvgpr=256, accum=256)

def conv2(A, L):
    name, ST, SPIN, PREFETCH, PSLEEP = (L[k] for k in "name ST SPIN PREFETCH PSLEEP".split())
    XR1, HC, HCH, MD, EX = (L[k] for k in "XR1 HC HCH MD EX".split())
    vl, t0, t1, t2, t3 = 1, 2, 3, 4, 5
    sWS, sSH, sXq, sPF = (L[k] for k in "sWS sSH sXq sPF".split())
    stb, scb, sw, sc, sch, sqq, sD = (L[k] for k in "stb scb sw sc sch sqq sD".split())
    a, b, c_, d_ = 44, 45, 46, 47
    pWG, pWD = L['pWG'], L['pWD']
    vAcc, vZf, vHf = 16, 48, 112
    vXP, vS1, vMd, vPt = 176, 180, 188, 196
    vZ, vH, vEXw, vEXr, vYo, vKVo, vXRw, vXo, vSo, vMo, vPf, vPd = range(208, 220)
    vHD = 220
    vPoll = 224
    A(f"  v_and_b32 v{t0}, 15, v{vl}")
    A(f"  v_lshrrev_b32 v{t1}, 4, v{vl}")
    A(f"  v_lshlrev_b32 v{t2}, 5, v{t0}")
    A(f"  v_sub_u32 v{t2}, 480, v{t2}")
    A(f"  v_lshl_add_u32 v{t2}, v{t1}, 4, v{t2}")
    A(f"  s_mul_i32 s{a}, s{sch}, {XR1}")
    A(f"  s_lshl_b32 s{b}, s{sqq}, 7")
    A(f"  s_add_u32 s{a}, s{a}, s{b}")
    A(f"  v_add_u32 v{vZ}, s{a}, v{t2}")
    A(f"  v_add_u32 v{t2}, 1, v{t0}")
    A(f"  v_and_b32 v{t3}, 3, v{t2}")
    A(f"  v_sub_u32 v{t2}, v{t2}, v{t3}")
    A(f"  v_lshl_add_u32 v{t2}, v{t1}, 3, v{t2}")
    A(f"  v_lshlrev_b32 v{t2}, 1, v{t2}")
    A(f"  v_mul_u32_u24 v{t3}, 4160, v{t3}")
    A(f"  s_mul_i32 s{a}, s{sch}, {HCH}")
    A(f"  s_add_u32 s{a}, s{a}, s{b}")
    A(f"  s_add_u32 s{a}, s{a}, {HC}")
    A(f"  v_add3_u32 v{vH}, v{t2}, v{t3}, s{a}")
    A(f"  v_lshlrev_b32 v{t2}, 4, v{vl}")
    A(f"  s_lshl_b32 s{a}, s{sw}, 13")
    A(f"  s_add_u32 s{a}, s{a}, {EX}")
    A(f"  v_add_u32 v{vEXw}, s{a}, v{t2}")
    A(f"  s_lshl_b32 s{a}, s{sw}, 10")
    A(f"  s_add_u32 s{a}, s{a}, {EX}")
    A(f"  v_add_u32 v{vEXr}, s{a}, v{t2}")
    A(f"  s_lshl_b32 s{a}, s{sc}, 13")
    A(f"  s_add_u32 s{a}, s{a}, {WS_KVR}")
    A(f"  v_lshl_add_u32 v{vKVo}, v0, 4, s{a}")
    A(f"  s_mul_i32 s{a}, s{sch}, {XR1}")
    A(f"  v_add_u32 v{vXRw}, s{a}, v{L['vT16']}")
    A(f"  s_lshr_b32 s{a}, s{sc}, 3")
    A(f"  s_lshl_b32 s{a}, s{a}, 10")
    A(f"  s_bfe_u32 s{b}, s{sc}, 0x10002")
    A(f"  s_lshl_b32 s{b}, s{b}, 9")
    A(f"  s_add_u32 s{a}, s{a}, s{b}")
    A(f"  s_and_b32 s{b}, s{sc}, 3")
    A(f"  s_lshl_b32 s{b}, s{b}, 2")
    A(f"  s_add_u32 s{a}, s{a}, s{b}")
    A(f"  s_lshl_b32 s{b}, s{sw}, 18")
    A(f"  s_add_u32 s{a}, s{a}, s{b}")
    A(f"  v_lshlrev_b32 v{t2}, 16, v{t1}")
    A(f"  v_lshl_add_u32 v{t2}, v{t0}, 4, v{t2}")
    A(f"  v_add_u32 v{vYo}, s{a}, v{t2}")
    A(f"  s_lshl_b32 s{a}, s{sc}, 13")
    A(f"  s_lshl_b32 s{b}, s{sw}, 10")
    A(f"  s_add_u32 s{a}, s{a}, s{b}")
    A(f"  s_add_u32 s{a}, s{a}, {WS_XP}")
    A(f"  v_lshlrev_b32 v{t2}, 8, v{t1}")
    A(f"  v_lshl_add_u32 v{t2}, v{t0}, 4, v{t2}")
    A(f"  v_add_u32 v{vXo}, s{a}, v{t2}")
    A(f"  v_lshl_add_u32 v{t2}, v{t1}, 6, v{t0}")
    A(f"  s_lshl_b32 s{a}, s{sw}, 11")
    A(f"  s_add_u32 s{a}, s{a}, {WS_ST1}")
    A(f"  v_lshl_add_u32 v{vSo}, v{t2}, 3, s{a}")
    A(f"  s_lshl_b32 s{a}, s{scb}, 5")
    A(f"  v_add_u32 v{vMo}, s{a}, v0")
    A(f"  v_mul_u32_u24 v{vMo}, 1536, v{vMo}")
    A(f"  s_lshl_b32 s{a}, s{stb}, 3")
    A(f"  s_add_u32 s{a}, s{a}, {WS_PART}")
    A(f"  v_add_u32 v{vMo}, s{a}, v{vMo}")
    A(f"  v_lshrrev_b32 v{t2}, 5, v0")
    A(f"  v_min_u32 v{t2}, 1, v{t2}")
    A(f"  v_lshl_or_b32 v{vMo}, v{t2}, 29, v{vMo}")
    A("  s_waitcnt lgkmcnt(0)")
    A(f"  s_lshr_b32 s{a}, s{sD}, 16")
    A(f"  s_and_b32 s{b}, s{sD}, 0xffff")
    A(f"  s_cmp_eq_u32 s{sch}, 0")
    A(f"  s_cselect_b32 s{a}, s{b}, s{a}")
    A(f"  s_lshl_b32 s{b}, s{a}, 16")
    A(f"  v_lshlrev_b32 v{t2}, 3, v{t1}")
    A(f"  v_add_u32 v{t2}, v{t2}, v{t0}")
    A(f"  v_sub_u32 v{t2}, 15, v{t2}")
    A(f"  v_and_b32 v{t3}, 1, v{t2}")
    A(f"  v_cmp_eq_u32 vcc, 1, v{t3}")
    A(f"  v_mov_b32 v{vHD}, s{a}")
    A(f"  v_mov_b32 v{vHD+1}, s{b}")
    A(f"  v_cndmask_b32 v{t3}, v{vHD}, v{vHD+1}, vcc")
    A(f"  v_ashrrev_i32 v{t2}, 1, v{t2}")
    for i in range(4):
        A(f"  v_cmp_eq_u32 vcc, {i}, v{t2}")
        A("  s_nop 1")
        A(f"  v_cndmask_b32 v{vHD+i}, 0, v{t3}, vcc")
    if PREFETCH:
        A(f"  v_and_b32 v{t1}, 127, v0")
        A(f"  v_mul_u32_u24 v{t2}, 147, v{t1}")
        A(f"  v_lshrrev_b32 v{t2}, 10, v{t2}")
        A(f"  v_mul_u32_u24 v{t3}, 7, v{t2}")
        A(f"  v_sub_u32 v{t3}, v{t1}, v{t3}")
        A(f"  s_lshl_b32 s{a}, s{stb}, 4")
        A(f"  v_add_u32 v{t2}, s{a}, v{t2}")
        A(f"  v_mul_u32_u24 v{t2}, 3584, v{t2}")
        A(f"  v_lshl_add_u32 v{vPf}, v{t3}, 7, v{t2}")
        A(f"  s_lshr_b32 s{a}, s{scb}, 1")
        A(f"  s_mul_i32 s{a}, s{a}, 896")
        A(f"  s_cmp_lt_u32 s{sw}, 4")
        A(f"  s_cselect_b32 s{a}, s{a}, 0x40000000")
        A(f"  v_add_u32 v{vPf}, s{a}, v{vPf}")
        A(f"  s_bitcmp1_b32 s{sw}, 1")
        A(f"  s_cselect_b32 s{sPF}, s{pWG+2}, s{pWG}")
        A(f"  s_cselect_b32 s{sPF+1}, s{pWG+3}, s{pWG+1}")
        A(f"  s_mov_b32 s{sPF+2}, {512*1792*2}")
        A(f"  s_mov_b32 s{sPF+3}, 0x20000")
        A(f"  s_mul_i32 s{a}, s2, 7168")
        A(f"  s_cmp_eq_u32 s{sw}, 4")
        A(f"  s_cselect_b32 s{a}, s{a}, 0x40000000")
        A(f"  v_lshl_add_u32 v{vPd}, v{vl}, 7, s{a}")
        A(f"  s_mov_b32 s{sXq}, s{pWD}")
        A(f"  s_mov_b32 s{sXq+1}, s{pWD+1}")
        A(f"  s_mov_b32 s{sXq+2}, {1792*512*2}")
    A(f"  s_cmp_lg_u32 s{sw}, 0")
    A(f"  s_cbranch_scc1 {name}_s1w")
    A(f"  s_lshl_b32 s{a}, s{scb}, 8")
    A(f"  s_add_u32 s{a}, s{a}, {WS_CNT+16*256}")
    A(f"  v_mov_b32 v{t2}, s{a}")
    poll_ge(A, f"{name}_s1", sWS, t2, [vPoll+i for i in range(4)], 32, a, b, SPIN, PSLEEP)
    A(f"{name}_s1w:")
    ST.value(b, SPIN)
    A("  s_waitcnt lgkmcnt(0)")
    A("  s_barrier")
    ST.stamp()
    vKV = vZf
    A(f"  buffer_load_dwordx4 {vr(vKV,4)}, v{vKVo}, {sr(sWS,4)}, 0 offen sc1")
    for m in range(8):
        for hh in range(2):
            A(f"  ds_read_b64 {vr(vHf+4*m+2*hh,2)}, v{vH} offset:{512*m+8*hh}")
    def stat_loads():
        for r in range(4):
            A(f"  buffer_load_dwordx2 {vr(vS1+2*r,2)}, v{vSo}, {sr(sWS,4)}, 0 offen offset:{128*r} sc1")
    A(f"  s_waitcnt vmcnt(0)")
    A(f"  ds_write_b128 v{vXRw}, {vr(vKV,4)}")
    A("  s_waitcnt lgkmcnt(0)")
    A("  s_barrier")
    ST.stamp()
    def late_loads():
        A(f"  s_cmp_lg_u32 s{sw}, 0")
        A(f"  s_cbranch_scc1 {name}_nopt")
        for chk in range(6):
            A(f"  buffer_load_dwordx2 {vr(vPt+2*chk,2)}, v{vMo}, {sr(sWS,4)}, 0 offen offset:{256*chk} sc1")
        A(f"{name}_nopt:")
        A(f"  buffer_load_dwordx4 {vr(vXP,4)}, v{vXo}, {sr(sWS,4)}, 0 offen sc1")
        stat_loads()
    def prefetch():
        if not PREFETCH: return
        A(f"  s_cmp_gt_u32 s{sw}, 4")
        A(f"  s_cbranch_scc1 {name}_nopf")
        A(f"  s_cmp_eq_u32 s{sw}, 4")
        A(f"  s_cbranch_scc1 {name}_pfd")
        A(f"  buffer_load_dword v228, v{vPf}, {sr(sPF,4)}, 0 offen")
        A(f"  s_branch {name}_nopf")
        A(f"{name}_pfd:")
        A(f"  buffer_load_dword v229, v{vPd}, {sr(sXq,4)}, 0 offen")
        A(f"{name}_nopf:")
    def reads(it):
        buf = it & 1
        R = []
        for G in range(8):
            R.append(f"  ds_read_b128 {vr(vZf+32*buf+4*G,4)}, v{vZ} offset:{64*it+512*(7-G)}")
        for m in range(8):
            for hh in range(2):
                R.append(f"  ds_read_b64 {vr(vHf+32*buf+4*m+2*hh,2)}, v{vH} offset:{64*it+512*m+8*hh}")
        return R
    red = []
    for k in range(6): red.append(f"  v_permlane16_swap_b32 v{vPt+2*k}, v{vPt+2*k+1}")
    for k in range(6): red.append(f"  v_add_f32 v{vPt+2*k}, v{vPt+2*k}, v{vPt+2*k+1}")
    for ror in (8, 4, 2, 1):
        for k in range(6):
            red.append(f"  v_add_f32_dpp v{vPt+2*k}, v{vPt+2*k}, v{vPt+2*k} row_ror:{ror} row_mask:0xf bank_mask:0xf")
    for k in range(6): red.append(f"  v_cvt_pk_bf16_f32 v{vPt+2*k}, v{vPt+2*k}, v{vPt+2*k}")
    for k in range(6): red.append(f"  v_lshlrev_b32 v{vPt+2*k}, 16, v{vPt+2*k}")
    for k in (1, 4): red.append(f"  v_add_f32 v{vPt+2*k}, 1.0, v{vPt+2*k}")
    for k in (1, 4): red.append(f"  v_cvt_pk_bf16_f32 v{vPt+2*k}, v{vPt+2*k}, v{vPt+2*k}")
    for k in (1, 4): red.append(f"  v_lshlrev_b32 v{vPt+2*k}, 16, v{vPt+2*k}")
    for s_ in reads(0)[:8]: A(s_)
    late_loads()
    for it in range(2):
        buf = it & 1
        A("  s_waitcnt lgkmcnt(0)")
        nxt = reads(1) if it == 0 else []
        if it == 0:
            A(f"  s_cmp_lg_u32 s{sqq}, 0")
            A(f"  s_cbranch_scc1 {name}_noD")
            for G in range(8):
                A(f"  v_mfma_f32_16x16x32_bf16 {vr(vAcc+4*G,4)}, {vr(vZf+4*G,4)}, {vr(vHD,4)}, 0")
            A(f"  s_branch {name}_Dok")
            A(f"{name}_noD:")
            for i in range(32): A(f"  v_mov_b32 v{vAcc+i}, 0")
            A("  s_nop 1")
            A(f"{name}_Dok:")
        nm = 0
        for m in range(8):
            for Gz in range(8-m):
                G = Gz+m
                A(f"  v_mfma_f32_16x16x32_bf16 {vr(vAcc+4*G,4)}, {vr(vZf+32*buf+4*Gz,4)}, {vr(vHf+32*buf+4*m,4)}, {vr(vAcc+4*G,4)}")
                nm += 1
                if it == 0:
                    if nxt: A(nxt.pop(0))
                else:
                    if nm == 4:
                        A(f"  s_waitcnt vmcnt(0)")
                        prefetch()
                    if nm >= 5:
                        for _ in range(2):
                            if red: A(red.pop(0))
    while red: A(red.pop(0))
    A(f"  s_cmp_lg_u32 s{sw}, 0")
    A(f"  s_cbranch_scc1 {name}_nomd")
    A(f"  v_lshrrev_b32 v{vPt+1}, 4, v{vl}")
    A(f"  v_lshlrev_b32 v{vPt+1}, 2, v{vPt+1}")
    A(f"  v_add_u32 v{vPt+1}, {MD}, v{vPt+1}")
    A(f"  s_mov_b64 exec, 0x10001")
    for i, k in enumerate((0, 1, 2, 4)):
        A(f"  ds_write_b32 v{vPt+1}, v{vPt+2*k} offset:{8*i}")
    A(f"  s_mov_b64 exec, -1")
    A(f"  v_lshrrev_b32 v{vPt+1}, 4, v{vl}")
    A(f"  s_lshl_b32 s{a}, s{sc}, 1")
    A(f"  v_add_u32 v{vPt+1}, s{a}, v{vPt+1}")
    A(f"  v_lshlrev_b32 v{vPt+3}, 2, v{vPt+1}")
    A(f"  v_lshlrev_b32 v{vPt+5}, 1, v{vPt+1}")
    A(f"  s_mov_b64 exec, 0x10001")
    for k in range(6):
        A(f"  s_mov_b32 s{a}, {WS_MOD+k*2048}")
        A(f"  buffer_store_dword v{vPt+2*k}, v{vPt+3}, {sr(sWS,4)}, s{a} offen")
    for k in (3, 4):
        A(f"  v_lshrrev_b32 v{vPt+7}, 16, v{vPt+2*k}")
        A(f"  s_mov_b32 s{a}, {WS_MODH+k*1024}")
        A(f"  buffer_store_short v{vPt+7}, v{vPt+5}, {sr(sWS,4)}, s{a} offen")
        A("  s_nop 0")
    A(f"  s_mov_b64 exec, -1")
    A(f"{name}_nomd:")
    A("  s_nop 7")
    ST.stamp()
    for G in range(8):
        A(f"  ds_write_b128 v{vEXw}, {vr(vAcc+4*G,4)} offset:{G*1024}")
    A(f"  s_mov_b32 s{c_}, {SPIN}")
    A(f"{name}_val:")
    V = vHf
    A(f"  v_min_u32 v{V}, v{vS1}, v{vS1+2}")
    A(f"  v_min3_u32 v{V}, v{V}, v{vS1+4}, v{vS1+6}")
    A(f"  v_cmp_eq_u32 vcc, 0, v{V}")
    A("  s_nop 1")
    A(f"  s_cmp_eq_u64 vcc, 0")
    A(f"  s_cbranch_scc1 {name}_valok")
    A("  s_sleep 1")
    stat_loads()
    A("  s_waitcnt vmcnt(0)")
    A(f"  s_sub_u32 s{c_}, s{c_}, 1")
    A(f"  s_cmp_lg_u32 s{c_}, 0")
    A(f"  s_cbranch_scc1 {name}_val")
    A(f"{name}_valok:")
    ST.value(c_, SPIN)
    X, N = vHf+8, vHf+16
    for r in range(4):
        A(f"  v_lshlrev_b32 v{X+2*r}, 16, v{vXP+r}")
        A(f"  v_and_b32 v{X+2*r+1}, 0xffff0000, v{vXP+r}")
    for r in range(4):
        rs, nm = vS1+2*r, vS1+2*r+1
        A(f"  v_pk_fma_f32 {vr(N+2*r,2)}, {vr(X+2*r,2)}, {vr(rs,2)}, {vr(rs,2)} op_sel:[0,0,1] op_sel_hi:[1,0,1]")
    A("  s_waitcnt lgkmcnt(0)")
    A("  s_barrier")
    ST.stamp()
    A(f"  v_mov_b32 v{t2}, {MD}")
    A(f"  ds_read_b128 {vr(vMd,4)}, v{t2}")
    A(f"  ds_read_b128 {vr(vMd+4,4)}, v{t2} offset:16")
    vR = vZf
    for s_ in range(8):
        A(f"  ds_read_b128 {vr(vR+4*s_,4)}, v{vEXr} offset:{s_*8192}")
    sa, c1a, ga, c1b = vMd, vMd+2, vMd+4, vMd+6
    A("  s_waitcnt lgkmcnt(8)")
    for r in range(4): A(f"  v_pk_fma_f32 {vr(N+2*r,2)}, {vr(N+2*r,2)}, {vr(c1a,2)}, {vr(sa,2)}")
    for r in range(4): A(f"  v_pk_mul_f32 {vr(N+2*r,2)}, {vr(N+2*r,2)}, {vr(ga,2)}")
    A("  s_waitcnt lgkmcnt(4)")
    for hh in range(2):
        A(f"  v_pk_add_f32 {vr(vR+2*hh,2)}, {vr(vR+2*hh,2)}, {vr(vR+4+2*hh,2)}")
        A(f"  v_pk_add_f32 {vr(vR+8+2*hh,2)}, {vr(vR+8+2*hh,2)}, {vr(vR+12+2*hh,2)}")
    for hh in range(2):
        A(f"  v_pk_add_f32 {vr(vR+2*hh,2)}, {vr(vR+2*hh,2)}, {vr(vR+8+2*hh,2)}")
    A("  s_waitcnt lgkmcnt(0)")
    for hh in range(2):
        A(f"  v_pk_add_f32 {vr(vR+16+2*hh,2)}, {vr(vR+16+2*hh,2)}, {vr(vR+20+2*hh,2)}")
        A(f"  v_pk_add_f32 {vr(vR+24+2*hh,2)}, {vr(vR+24+2*hh,2)}, {vr(vR+28+2*hh,2)}")
    for hh in range(2):
        A(f"  v_pk_add_f32 {vr(vR+16+2*hh,2)}, {vr(vR+16+2*hh,2)}, {vr(vR+24+2*hh,2)}")
    for r in range(4):
        A(f"  v_fma_f32 v{X+2*r}, v{N+2*r}, v{vR+r}, v{X+2*r}")
        A(f"  v_fma_f32 v{X+2*r+1}, v{N+2*r+1}, v{vR+16+r}, v{X+2*r+1}")
    PX, PZ = vR+4, vR+8
    ST.stamp()
    for r in range(4): A(f"  v_cvt_pk_bf16_f32 v{PX+r}, v{X+2*r}, v{X+2*r+1}")
    A(f"  s_mov_b32 s{a}, {WS_X1}")
    A(f"  s_mov_b32 s{b}, {WS_X1+32768}")
    A(f"  s_mov_b32 s{c_}, {WS_H2}")
    A(f"  s_mov_b32 s{d_}, {WS_H2+32768}")
    for r in range(4):
        A(f"  buffer_store_dword v{PX+r}, v{vYo}, {sr(sWS,4)}, s{a+(r>>1)} offen offset:{256*(r&1)}")
    for r in range(4):
        A(f"  v_lshlrev_b32 v{X+2*r}, 16, v{PX+r}")
        A(f"  v_and_b32 v{X+2*r+1}, 0xffff0000, v{PX+r}")
    for r in range(4): A(f"  v_pk_mul_f32 {vr(X+2*r,2)}, {vr(X+2*r,2)}, {vr(c1b,2)}")
    for r in range(4): A(f"  v_cvt_pk_bf16_f32 v{PZ+r}, v{X+2*r}, v{X+2*r+1}")
    for r in range(4):
        A(f"  buffer_store_dword v{PZ+r}, v{vYo}, {sr(sWS,4)}, s{c_+(r>>1)} offen offset:{256*(r&1)}")
```

```python
from common import *
from common import _os_env
from k3 import wave_reduce
from poll import poll_ge

C_KV = 16
WS_ALL = 0x1300000

def gen_ka2(A, name="conv_kernel", kidx=0, SPIN=200000, PREFETCH=True, PSLEEP=2, ORD=1, TOUCH=0, CONV4=0, PFWD=1):
    XR1, HC, HCH, MD, EX = 4608, 9216, 4*4160, 42496, 43008
    TT, XT, MS = EX, EX+8192, EX+8192+9216
    LDS = EX + 65536
    kernel_header(A, name)
    ST = Stamper(A, kidx); ST.stamp()
    sK, sV, sSH, sXq, sH, sWS, sWM, sDBG, sPF = 8, 12, 16, 20, 24, 28, 32, 36, 40
    stb, scb, sw, sc, sch, sqq, sD = 4, 5, 6, 7, 3, 100, 101
    a, b, c_, d_ = 44, 45, 46, 47
    pD, pC, pWG, pWD = 48, 50, 52, 56
    A("  s_cmp_ge_u32 s2, 256")
    A(f"  s_cbranch_scc1 {name}_end")
    for dst, key in ((sK,'k'),(sV,'v'),(sSH,'shift'),(sXq,'q'),(sH,'ssm'),(sWS,'ws'),(sWM,'wmod'),(sDBG,'dbg'),(pD,'D'),(pC,'c')):
        A(f"  s_load_dwordx2 s[{dst}:{dst+1}], s[0:1], {KA[key]}")
    for dst, size in ((sK,SZ2M),(sV,SZ2M),(sSH,4096),(sXq,SZ2M),(sH,SZ2M),(sWS,WS_ALL),(sWM,512*3072*2),(sDBG,256)):
        A(f"  s_mov_b32 s{dst+2}, {hex(size)}")
        A(f"  s_mov_b32 s{dst+3}, 0x20000")
    vl, t0, t1, t2, t3 = 1, 2, 3, 4, 5
    vb, vW, vR, vG, vSo, vXro, vT16, vFl = 6, 7, 8, 9, 10, 11, 12, 13
    vKo = 14
    vK, vV, vS, vXt, vXr = 18, 28, 32, 40, 44
    vC, vWm, vOA = 48, 52, 49
    vL = 60
    vKf, vSf, vO = 72, 92, 108
    A(f"  s_lshr_b32 s{stb}, s2, 3")
    A(f"  s_and_b32 s{scb}, s2, 7")
    A(f"  v_lshrrev_b32 v{t2}, 6, v0")
    A(f"  v_and_b32 v{vl}, 63, v0")
    A(f"  v_readfirstlane_b32 s{sw}, v{t2}")
    A(f"  v_and_b32 v{t0}, 15, v0")
    A(f"  v_lshrrev_b32 v{t1}, 4, v0")
    A(f"  v_lshlrev_b32 v{vT16}, 4, v0")
    A(f"  s_lshl_b32 s{a}, s{stb}, 16")
    A(f"  s_lshl_b32 s{b}, s{scb}, 7")
    A(f"  s_add_u32 s{a}, s{a}, s{b}")
    A(f"  v_lshlrev_b32 v{vb}, 11, v{t1}")
    A(f"  v_lshl_add_u32 v{vb}, v{t0}, 3, v{vb}")
    A(f"  v_add_u32 v{vb}, s{a}, v{vb}")
    for i in range(3):
        A(f"  v_add_u32 v{vKo+i}, {hex((-(3-i)*1024) & 0xffffffff)}, v{vb}")
    A(f"  s_lshl_b32 s{b}, s{scb}, 9")
    A(f"  v_lshl_add_u32 v{vSo}, v{t0}, 5, s{b}")
    A(f"  s_lshl_b32 s{c_}, s2, 3")
    A(f"  s_add_u32 s{c_}, s{c_}, s{sw}")
    A(f"  s_lshl_b32 s{c_}, s{c_}, 10")
    A(f"  v_lshlrev_b32 v{vXro}, 4, v{vl}")
    A(f"  s_lshl_b32 s{sc}, s{scb}, 5")
    A(f"  s_add_u32 s{sc}, s{sc}, s{stb}")
    A(f"  s_lshr_b32 s{sch}, s{sw}, 2")
    A(f"  s_and_b32 s{sqq}, s{sw}, 3")
    A(f"  v_lshrrev_b32 v{t2}, 3, v{vl}")
    A(f"  s_lshl_b32 s{a}, s{stb}, 5")
    A(f"  v_lshl_add_u32 v{t3}, v{t2}, 2, s{a}")
    A(f"  v_mul_u32_u24 v{vOA}, 12288, v{t2}")
    A(f"  v_and_b32 v{t2}, 7, v{vl}")
    A(f"  v_lshl_add_u32 v{vOA}, v{t2}, 4, v{vOA}")
    A(f"  s_mul_i32 s{a}, s{stb}, {16*6144}")
    A(f"  s_lshl_b32 s{b}, s{scb}, 7")
    A(f"  s_add_u32 s{a}, s{a}, s{b}")
    A(f"  s_lshl_b32 s{b}, s{sw}, 10")
    A(f"  s_add_u32 s{a}, s{a}, s{b}")
    A(f"  s_cmp_lt_u32 s{sw}, 6")
    A(f"  s_cselect_b32 s{a}, s{a}, 0x40000000")
    A(f"  s_add_u32 s{b}, s{a}, 6144")
    A("  s_waitcnt lgkmcnt(0)")
    A("  s_cmp_lg_u32 s2, 0")
    A(f"  s_cbranch_scc1 {name}_nozs")
    for i in range(4): A(f"  v_mov_b32 v{vO+i}, 0")
    A(f"  s_mov_b32 s{d_}, {WS_CNT}")
    A(f"  buffer_store_dwordx4 {vr(vO,4)}, v{vT16}, {sr(sWS,4)}, s{d_} offen sc1")
    for i in range(2):
        A(f"  s_mov_b32 s{d_}, {WS_ST1+8192*i}")
        A(f"  buffer_store_dwordx4 {vr(vO,4)}, v{vT16}, {sr(sWS,4)}, s{d_} offen sc1")
    A(f"{name}_nozs:")
    for i in range(3):
        A(f"  buffer_load_dwordx2 {vr(vK+2*i,2)}, v{vKo+i}, {sr(sK,4)}, 0 offen")
    for i in range(2):
        A(f"  buffer_load_dwordx2 {vr(vK+6+2*i,2)}, v{vb}, {sr(sK,4)}, 0 offen offset:{1024*i}")
    for i in range(2):
        A(f"  buffer_load_dwordx2 {vr(vV+2*i,2)}, v{vb}, {sr(sV,4)}, 0 offen offset:{1024*i}")
    for i in range(2):
        A(f"  buffer_load_dwordx4 {vr(vS+4*i,4)}, v{vSo}, {sr(sSH,4)}, 0 offen offset:{16*i}")
    if ORD: A("  s_barrier")
    for i in range(2):
        A(f"  buffer_load_dwordx2 {vr(vXt+2*i,2)}, v{vb}, {sr(sXq,4)}, 0 offen offset:{1024*i}")
    A(f"  buffer_load_dwordx4 {vr(vXr,4)}, v{vXro}, {sr(sXq,4)}, s{c_} offen")
    A(f"  s_mov_b32 s{sSH}, s{pC}")
    A(f"  s_mov_b32 s{sSH+1}, s{pC+1}")
    A(f"  s_movk_i32 s{sSH+2}, 1024")
    A(f"  buffer_load_dword v{vC}, v{t3}, {sr(sSH,4)}, 0 offen")
    A(f"  buffer_load_dwordx4 {vr(vWm,4)}, v{vOA}, {sr(sWM,4)}, s{a} offen")
    A(f"  buffer_load_dwordx4 {vr(vWm+4,4)}, v{vOA}, {sr(sWM,4)}, s{b} offen")
    NP1 = 15
    if TOUCH:
        A(f"  s_cmp_lg_u32 s{sw}, 7")
        A(f"  s_cbranch_scc1 {name}_notouch")
        A(f"  v_min_u32 v{t2}, 19, v{vl}")
        A(f"  v_lshlrev_b32 v{t2}, 20, v{t2}")
        A(f"  buffer_load_dword v230, v{t2}, {sr(sWS,4)}, 0 offen")
        A(f"{name}_notouch:")
    A("  s_cmp_lg_u32 s2, 0")
    A(f"  s_cbranch_scc1 {name}_nozero")
    A(f"  s_waitcnt vmcnt({NP1})")
    A("  s_barrier")
    A(f"  s_cmp_lg_u32 s{sw}, 0")
    A(f"  s_cbranch_scc1 {name}_nozero")
    A(f"  v_mov_b32 v{t2}, 0")
    A(f"  v_mov_b32 v{t3}, 1")
    A(f"  s_mov_b64 exec, 1")
    A(f"  buffer_store_dword v{t3}, v{t2}, {sr(sDBG,4)}, 0 offen sc1")
    A(f"  s_mov_b64 exec, -1")
    A(f"{name}_nozero:")
    A(f"  s_lshl_b32 s{a}, s{sc}, 2")
    A(f"  s_load_dword s{sD}, s[{pD}:{pD+1}], s{a}")
    if PREFETCH:
        A(f"  s_load_dwordx4 s[{pWG}:{pWG+3}], s[0:1], {KA['wg']}")
        A(f"  s_load_dwordx2 s[{pWD}:{pWD+1}], s[0:1], {KA['wd']}")
    A(f"  v_sub_u32 v{t2}, 31, v{t1}")
    A(f"  v_lshrrev_b32 v{vW}, 2, v{t2}")
    A(f"  v_and_b32 v{t3}, 7, v{t0}")
    A(f"  v_xor_b32 v{vW}, v{vW}, v{t3}")
    A(f"  v_lshlrev_b32 v{vW}, 4, v{vW}")
    A(f"  v_and_b32 v{t2}, 3, v{t2}")
    A(f"  v_lshl_add_u32 v{vW}, v{t2}, 2, v{vW}")
    A(f"  v_lshl_add_u32 v{vW}, v{t0}, 9, v{vW}")
    A(f"  v_add_u32 v{vW}, {TT}, v{vW}")
    A(f"  v_lshrrev_b32 v{t2}, 3, v0")
    A(f"  v_and_b32 v{t3}, 7, v0")
    A(f"  v_bfe_u32 v{vR}, v0, 5, 3")
    A(f"  v_xor_b32 v{vR}, v{vR}, v{t3}")
    A(f"  v_lshlrev_b32 v{vR}, 4, v{vR}")
    A(f"  v_lshl_add_u32 v{vR}, v{t2}, 7, v{vR}")
    A(f"  v_add_u32 v{vR}, {TT}, v{vR}")
    A(f"  s_lshl_b32 s{a}, s{scb}, 18")
    A(f"  s_lshl_b32 s{b}, s{stb}, 7")
    A(f"  s_sub_u32 s{a}, s{a}, s{b}")
    A(f"  s_add_u32 s{a}, s{a}, {3968+WS_KVR}")
    A(f"  v_lshlrev_b32 v{vG}, 12, v{t2}")
    A(f"  v_lshl_add_u32 v{vG}, v{t3}, 4, v{vG}")
    A(f"  v_add_u32 v{vG}, s{a}, v{vG}")
    vXw = vSo
    A(f"  v_mul_u32_u24 v{vXw}, 288, v{t1}")
    A(f"  v_lshl_add_u32 v{vXw}, v{t0}, 3, v{vXw}")
    A(f"  v_add_u32 v{vXw}, {XT}, v{vXw}")
    A(f"  s_waitcnt vmcnt(6)")
    ST.stamp()
    for ch in range(4):
        for dd in range(2):
            src = vS + 2*ch + dd
            p, e = ch >> 1, ch & 1
            A(f"  v_lshlrev_b32 v{vSf+((2*dd)*2+p)*2+e}, 16, v{src}")
            A(f"  v_and_b32 v{vSf+((2*dd+1)*2+p)*2+e}, 0xffff0000, v{src}")
    for r in range(5):
        for p in range(2):
            A(f"  v_lshlrev_b32 v{vKf+(r*2+p)*2}, 16, v{vK+2*r+p}")
            A(f"  v_and_b32 v{vKf+(r*2+p)*2+1}, 0xffff0000, v{vK+2*r+p}")
    O = vO
    for j in range(4):
        for tk in range(2):
            for p in range(2):
                kk = vKf+((3+tk-j)*2+p)*2; ww = vSf+(j*2+p)*2; o = O+(tk*2+p)*2
                if j == 0: A(f"  v_pk_mul_f32 {vr(o,2)}, {vr(kk,2)}, {vr(ww,2)}")
                else: A(f"  v_pk_fma_f32 {vr(o,2)}, {vr(kk,2)}, {vr(ww,2)}, {vr(o,2)}")
    for tk in range(2):
        for p in range(2):
            A(f"  v_lshlrev_b32 v{vKf+(tk*2+p)*2}, 16, v{vV+2*tk+p}")
            A(f"  v_and_b32 v{vKf+(tk*2+p)*2+1}, 0xffff0000, v{vV+2*tk+p}")
    for tk in range(2):
        for p in range(2):
            o = O+(tk*2+p)*2
            A(f"  v_pk_mul_f32 {vr(o,2)}, {vr(o,2)}, {vr(vKf+(tk*2+p)*2,2)}")
    for ch in range(4):
        p, e = ch >> 1, ch & 1
        A(f"  v_cvt_pk_bf16_f32 v{vKf+8+ch}, v{O+(2+p)*2+e}, v{O+p*2+e}")
    for ch in range(4):
        A(f"  ds_write_b32 v{vW}, v{vKf+8+ch} offset:{128*ch}")
    A("  s_waitcnt lgkmcnt(0)")
    A("  s_barrier")
    A(f"  ds_read_b128 {vr(vO,4)}, v{vR}")
    A(f"  v_and_b32 v{t0}, 15, v0")
    A(f"  v_lshrrev_b32 v{t1}, 4, v0")
    A(f"  v_mul_u32_u24 v{t2}, 144, v{t0}")
    A(f"  v_lshl_add_u32 v{t2}, v{t1}, 2, v{t2}")
    A(f"  v_add_u32 v{vR}, {XT}, v{t2}")
    A("  s_waitcnt lgkmcnt(0)")
    A(f"  buffer_store_dwordx4 {vr(vO,4)}, v{vG}, {sr(sWS,4)}, 0 offen sc1")
    ST.stamp()
    A(f"  v_and_b32 v{t2}, 255, v0")
    A(f"  v_lshlrev_b32 v{vT16}, 4, v{t2}")
    A(f"  s_lshl_b32 s{a}, s{sc}, 13")
    A(f"  s_lshl_b32 s{b}, s{sch}, 12")
    A(f"  s_add_u32 s{a}, s{a}, s{b}")
    for k in range(3):
        A(f"  buffer_load_dwordx4 {vr(vL+4*k,4)}, v{vT16}, {sr(sH,4)}, s{a} offen offset:{4*k}")
    A("  s_waitcnt vmcnt(8)")
    for i in range(2):
        A(f"  ds_write_b64 v{vXw}, {vr(vXt+2*i,2)} offset:{144*i}")
    A(f"  s_lshl_b32 s{a}, s{scb}, 18")
    A(f"  s_lshl_b32 s{b}, s{stb}, 8")
    A(f"  s_add_u32 s{a}, s{a}, s{b}")
    A(f"  s_add_u32 s{d_}, s{a}, {WS_XP}")
    A(f"  v_lshlrev_b32 v{vG}, 13, v{t1}")
    A(f"  v_lshl_add_u32 v{vG}, v{t0}, 4, v{vG}")
    A("  s_waitcnt lgkmcnt(0)")
    A("  s_barrier")
    for r in range(4):
        A(f"  ds_read_b32 v{vO+4+r}, v{vR} offset:{r*16*144}")
    A("  s_waitcnt vmcnt(7)")
    F, S1, S2 = vKf, vKf+8, vKf+10
    for i in range(4):
        A(f"  v_lshlrev_b32 v{F+2*i}, 16, v{vXr+i}")
        A(f"  v_and_b32 v{F+2*i+1}, 0xffff0000, v{vXr+i}")
    A(f"  v_pk_add_f32 {vr(S1,2)}, {vr(F,2)}, {vr(F+2,2)}")
    A(f"  v_pk_mul_f32 {vr(S2,2)}, {vr(F,2)}, {vr(F,2)}")
    A(f"  v_pk_add_f32 {vr(F,2)}, {vr(F+4,2)}, {vr(F+6,2)}")
    for i in range(1,4):
        A(f"  v_pk_fma_f32 {vr(S2,2)}, {vr(F+2*i,2)}, {vr(F+2*i,2)}, {vr(S2,2)}")
    A(f"  v_pk_add_f32 {vr(S1,2)}, {vr(S1,2)}, {vr(F,2)}")
    A(f"  v_add_f32 v{S2}, v{S2}, v{S2+1}")
    A(f"  v_add_f32 v{S1}, v{S1}, v{S1+1}")
    A("  s_waitcnt lgkmcnt(0)")
    A(f"  buffer_store_dwordx4 {vr(vO+4,4)}, v{vG}, {sr(sWS,4)}, s{d_} offen sc1")
    T, P = vSf, 116
    A("  s_waitcnt vmcnt(5)")
    c0, c1, e0, e1 = T, T+1, T+2, T+3
    A(f"  v_lshlrev_b32 v{c0}, 16, v{vC}")
    A(f"  v_and_b32 v{c1}, 0xffff0000, v{vC}")
    A(f"  s_mov_b32 s{a}, 0xbfb8aa3b")
    def red(ctrl):
        for r in (S1, S2): A(f"  v_add_f32_dpp v{r}, v{r}, v{r} {ctrl}")
    red("row_ror:8 row_mask:0xf bank_mask:0xf")
    A(f"  v_mul_f32 v{e0}, s{a}, v{c0}")
    A(f"  v_mul_f32 v{e1}, s{a}, v{c1}")
    red("row_ror:4 row_mask:0xf bank_mask:0xf")
    A(f"  v_exp_f32 v{e0}, v{e0}")
    A(f"  v_exp_f32 v{e1}, v{e1}")
    red("row_ror:2 row_mask:0xf bank_mask:0xf")
    A(f"  v_add_f32 v{e0}, 1.0, v{e0}")
    A(f"  v_add_f32 v{e1}, 1.0, v{e1}")
    red("row_ror:1 row_mask:0xf bank_mask:0xf")
    A(f"  v_rcp_f32 v{e0}, v{e0}")
    A(f"  v_rcp_f32 v{e1}, v{e1}")
    red("row_bcast:15 row_mask:0xa bank_mask:0xf")
    A(f"  v_mul_f32 v{c0}, v{c0}, v{e0}")
    A(f"  v_mul_f32 v{c1}, v{c1}, v{e1}")
    red("row_bcast:31 row_mask:0xc bank_mask:0xf")
    A(f"  v_cvt_pk_bf16_f32 v{vC}, v{c0}, v{c1}")
    A(f"  s_mov_b32 s{a}, 0x05040100")
    A(f"  s_mov_b32 s{b}, 0x07060302")
    for q in range(4):
        A(f"  v_perm_b32 v{T+2*q}, v{vWm+4+q}, v{vWm+q}, s{a}")
        A(f"  v_perm_b32 v{T+2*q+1}, v{vWm+4+q}, v{vWm+q}, s{b}")
    A(f"  s_mov_b32 s{a}, 0x3b000000")
    A(f"  v_mul_f32 v{S1}, s{a}, v{S1}")
    A(f"  v_mul_f32 v{S2}, s{a}, v{S2}")
    for n in range(8):
        A(f"  v_dot2_f32_bf16 v{P+n}, v{T+n}, v{vC}, 0")
    A(f"  v_fma_f32 v{S2}, -v{S1}, v{S1}, v{S2}")
    A(f"  s_mov_b32 s{a}, 0x3727c5ac")
    A(f"  v_max_f32 v{S2}, 0, v{S2}")
    A(f"  v_add_f32 v{S2}, s{a}, v{S2}")
    A(f"  v_rsq_f32 v{S2}, v{S2}")
    for i in range(4): A(f"  v_permlane32_swap_b32 v{P+i}, v{P+i+4}")
    A(f"  v_mul_f32 v{S2+1}, -v{S1}, v{S2}")
    for i in range(4): A(f"  v_add_f32 v{P+i}, v{P+i}, v{P+i+4}")
    A(f"  s_lshl_b32 s{a}, s{sw}, 3")
    A(f"  s_add_u32 s{a}, s{a}, {MS}")
    A(f"  v_mov_b32 v{t2}, s{a}")
    for i in range(2): A(f"  v_permlane16_swap_b32 v{P+i}, v{P+i+2}")
    A(f"  s_mov_b32 s{c_}, 0")
    A(f"  s_brev_b32 s{d_}, 1")
    for i in range(2): A(f"  v_add_f32 v{P+i}, v{P+i}, v{P+i+2}")
    A(f"  s_mov_b64 exec, s[{c_}:{d_}]")
    A(f"  ds_write_b64 v{t2}, {vr(S2,2)}")
    A(f"  s_mov_b64 exec, -1")
    for i in range(2): A(f"  v_add_f32_dpp v{P+i}, v{P+i}, v{P+i} row_ror:8 row_mask:0xf bank_mask:0xf")
    A(f"  v_and_b32 v{vOA}, 7, v{vl}")
    A(f"  v_lshlrev_b32 v{vOA}, 5, v{vOA}")
    A(f"  v_lshrrev_b32 v{t2}, 4, v{vl}")
    A(f"  v_lshl_add_u32 v{vOA}, v{t2}, 3, v{vOA}")
    A(f"  v_and_b32 v{t2}, 8, v{vl}")
    A(f"  v_lshl_or_b32 v{vOA}, v{t2}, 27, v{vOA}")
    A(f"  s_mul_i32 s{a}, s{sc}, 1536")
    A(f"  s_lshl_b32 s{b}, s{sw}, 8")
    A(f"  s_add_u32 s{a}, s{a}, s{b}")
    A(f"  s_add_u32 s{a}, s{a}, {WS_PART}")
    A(f"  s_cmp_lt_u32 s{sw}, 6")
    A(f"  s_cselect_b32 s{a}, s{a}, 0x20000000")
    A(f"  buffer_store_dwordx2 {vr(P,2)}, v{vOA}, {sr(sWS,4)}, s{a} offen sc1")
    ST.stamp()
    A(f"  s_cmp_eq_u32 s{sw}, 0")
    A(f"  s_cselect_b32 s{a}, 0, 0x400")
    A(f"  v_mov_b32 v{t2}, s{a}")
    A(f"  buffer_load_dword v{vFl}, v{t2}, {sr(sDBG,4)}, 0 offen sc1")
    A("  s_waitcnt vmcnt(0) lgkmcnt(0)")
    A("  s_barrier")
    A(f"  s_cmp_lg_u32 s{sw}, 0")
    A(f"  s_cbranch_scc1 {name}_arr1")
    A(f"  v_readfirstlane_b32 s{a}, v{vFl}")
    A(f"  s_mov_b32 s{b}, {SPIN}")
    A(f"{name}_rdy:")
    A(f"  s_cmp_lg_u32 s{a}, 0")
    A(f"  s_cbranch_scc1 {name}_rdyok")
    A(f"  v_mov_b32 v{t2}, 0")
    A(f"  buffer_load_dword v{vFl}, v{t2}, {sr(sDBG,4)}, 0 offen sc1")
    A("  s_waitcnt vmcnt(0)")
    A(f"  v_readfirstlane_b32 s{a}, v{vFl}")
    A(f"  s_sub_u32 s{b}, s{b}, 1")
    A(f"  s_cmp_lg_u32 s{b}, 0")
    A(f"  s_cbranch_scc1 {name}_rdy")
    A(f"{name}_rdyok:")
    ST.value(b, SPIN)
    A(f"  s_lshl_b32 s{a}, s{scb}, 8")
    A(f"  s_add_u32 s{a}, s{a}, {WS_CNT+C_KV*256}")
    A(f"  v_mov_b32 v{t2}, s{a}")
    A(f"  v_mov_b32 v{t3}, 1")
    A(f"  s_mov_b64 exec, 1")
    A(f"  buffer_atomic_add v{t3}, v{t2}, {sr(sWS,4)}, 0 offen sc1")
    A(f"  s_mov_b64 exec, -1")
    A(f"  v_lshlrev_b32 v{t2}, 4, v{vl}")
    A(f"  ds_read_b128 {vr(vO,4)}, v{t2} offset:{MS}")
    A(f"  s_lshl_b32 s{a}, s2, 6")
    A(f"  s_add_u32 s{a}, s{a}, {WS_ST1}")
    A("  s_waitcnt lgkmcnt(0)")
    A(f"  s_mov_b64 exec, 0xf")
    A(f"  buffer_store_dwordx4 {vr(vO,4)}, v{t2}, {sr(sWS,4)}, s{a} offen sc1")
    A(f"  s_mov_b64 exec, -1")
    A(f"{name}_arr1:")
    ST.stamp()
    vE, vZero, vHCw = vSf, vSf+8, vSf+12
    La, Lb, Lc = vL, vL+4, vL+8
    for i in range(4): A(f"  v_alignbit_b32 v{vE+i}, v{Lb+i}, v{La+i}, 16")
    for i in range(4): A(f"  v_alignbit_b32 v{vE+4+i}, v{Lc+i}, v{Lb+i}, 16")
    A(f"  s_mul_i32 s{a}, s{sch}, {HCH}")
    A(f"  s_add_u32 s{a}, s{a}, {HC+32}")
    A(f"  v_add_u32 v{vHCw}, s{a}, v{vT16}")
    for i in range(4): A(f"  v_mov_b32 v{vZero+i}, 0")
    A(f"  ds_write_b128 v{vHCw}, {vr(La,4)}")
    A(f"  ds_write_b128 v{vHCw}, {vr(Lb,4)} offset:{2*4160}")
    A(f"  ds_write_b128 v{vHCw}, {vr(vE,4)} offset:{4160}")
    A(f"  ds_write_b128 v{vHCw}, {vr(vE+4,4)} offset:{3*4160}")
    A(f"  s_cmp_lg_u32 s{sw}, 1")
    A(f"  s_cbranch_scc1 {name}_nozt")
    A(f"  v_lshrrev_b32 v{t1}, 5, v{vl}")
    A(f"  v_mul_u32_u24 v{t1}, 4608, v{t1}")
    A(f"  v_and_b32 v{t2}, 31, v{vl}")
    A(f"  v_lshl_add_u32 v{t1}, v{t2}, 4, v{t1}")
    A(f"  ds_write_b128 v{t1}, {vr(vZero,4)} offset:4096")
    A(f"{name}_nozt:")
    A(f"  s_cmp_lg_u32 s{sqq}, 0")
    A(f"  s_cbranch_scc1 {name}_noneg")
    A(f"  s_mov_b64 exec, 1")
    A(f"  v_subrev_u32 v{t0}, 32, v{vHCw}")
    Tn = vKf
    for i in range(12): A(f"  v_mov_b32 v{Tn+i}, 0")
    for phi in range(4): A(f"  ds_write_b128 v{t0}, {vr(vZero,4)} offset:{phi*4160}")
    A(f"  ds_write_b128 v{t0}, {vr(vZero,4)} offset:16")
    A(f"  v_lshlrev_b32 v{Tn+3}, 16, v{La}")
    A(f"  v_mov_b32 v{Tn+7}, v{La}")
    A(f"  v_lshlrev_b32 v{Tn+10}, 16, v{La}")
    A(f"  v_alignbit_b32 v{Tn+11}, v{La+1}, v{La}, 16")
    A(f"  ds_write_b128 v{t0}, {vr(Tn,4)} offset:{4160+16}")
    A(f"  ds_write_b128 v{t0}, {vr(Tn+4,4)} offset:{2*4160+16}")
    A(f"  ds_write_b128 v{t0}, {vr(Tn+8,4)} offset:{3*4160+16}")
    A(f"  s_mov_b64 exec, -1")
    A(f"{name}_noneg:")
    (conv4 if CONV4 else conv2)(A, locals())
    A(f"{name}_end:")
    ST.flush(2)
    A("  s_endpgm")
    return dict(name=name, grid=256, block=512, lds=LDS, nvgpr=256, accum=256)

def conv2(A, L):
    name, ST, SPIN, PREFETCH, PSLEEP = (L[k] for k in "name ST SPIN PREFETCH PSLEEP".split())
    XR1, HC, HCH, MD, EX = (L[k] for k in "XR1 HC HCH MD EX".split())
    vl, t0, t1, t2, t3 = 1, 2, 3, 4, 5
    sWS, sSH, sXq, sPF = (L[k] for k in "sWS sSH sXq sPF".split())
    stb, scb, sw, sc, sch, sqq, sD = (L[k] for k in "stb scb sw sc sch sqq sD".split())
    a, b, c_, d_ = 44, 45, 46, 47
    pWG, pWD = L['pWG'], L['pWD']
    vAcc, vZf, vHf = 16, 48, 112
    vXP, vS1, vMd, vPt = 176, 180, 188, 196
    vZ, vH, vEXw, vEXr, vYo, vKVo, vXRw, vXo, vSo, vMo, vPf, vPd = range(208, 220)
    vHD = 220
    vPoll = 224
    A(f"  v_and_b32 v{t0}, 15, v{vl}")
    A(f"  v_lshrrev_b32 v{t1}, 4, v{vl}")
    A(f"  v_lshlrev_b32 v{t2}, 5, v{t0}")
    A(f"  v_sub_u32 v{t2}, 480, v{t2}")
    A(f"  v_lshl_add_u32 v{t2}, v{t1}, 4, v{t2}")
    A(f"  s_mul_i32 s{a}, s{sch}, {XR1}")
    A(f"  s_lshl_b32 s{b}, s{sqq}, 7")
    A(f"  s_add_u32 s{a}, s{a}, s{b}")
    A(f"  v_add_u32 v{vZ}, s{a}, v{t2}")
    A(f"  v_add_u32 v{t2}, 1, v{t0}")
    A(f"  v_and_b32 v{t3}, 3, v{t2}")
    A(f"  v_sub_u32 v{t2}, v{t2}, v{t3}")
    A(f"  v_lshl_add_u32 v{t2}, v{t1}, 3, v{t2}")
    A(f"  v_lshlrev_b32 v{t2}, 1, v{t2}")
    A(f"  v_mul_u32_u24 v{t3}, 4160, v{t3}")
    A(f"  s_mul_i32 s{a}, s{sch}, {HCH}")
    A(f"  s_add_u32 s{a}, s{a}, s{b}")
    A(f"  s_add_u32 s{a}, s{a}, {HC}")
    A(f"  v_add3_u32 v{vH}, v{t2}, v{t3}, s{a}")
    A(f"  v_lshlrev_b32 v{t2}, 4, v{vl}")
    A(f"  s_lshl_b32 s{a}, s{sw}, 13")
    A(f"  s_add_u32 s{a}, s{a}, {EX}")
    A(f"  v_add_u32 v{vEXw}, s{a}, v{t2}")
    A(f"  s_lshl_b32 s{a}, s{sw}, 10")
    A(f"  s_add_u32 s{a}, s{a}, {EX}")
    A(f"  v_add_u32 v{vEXr}, s{a}, v{t2}")
    A(f"  s_lshl_b32 s{a}, s{sc}, 13")
    A(f"  s_add_u32 s{a}, s{a}, {WS_KVR}")
    A(f"  v_lshl_add_u32 v{vKVo}, v0, 4, s{a}")
    A(f"  s_mul_i32 s{a}, s{sch}, {XR1}")
    A(f"  v_add_u32 v{vXRw}, s{a}, v{L['vT16']}")
    A(f"  s_lshr_b32 s{a}, s{sc}, 3")
    A(f"  s_lshl_b32 s{a}, s{a}, 10")
    A(f"  s_bfe_u32 s{b}, s{sc}, 0x10002")
    A(f"  s_lshl_b32 s{b}, s{b}, 9")
    A(f"  s_add_u32 s{a}, s{a}, s{b}")
    A(f"  s_and_b32 s{b}, s{sc}, 3")
    A(f"  s_lshl_b32 s{b}, s{b}, 2")
    A(f"  s_add_u32 s{a}, s{a}, s{b}")
    A(f"  s_lshl_b32 s{b}, s{sw}, 18")
    A(f"  s_add_u32 s{a}, s{a}, s{b}")
    A(f"  v_lshlrev_b32 v{t2}, 16, v{t1}")
    A(f"  v_lshl_add_u32 v{t2}, v{t0}, 4, v{t2}")
    A(f"  v_add_u32 v{vYo}, s{a}, v{t2}")
    A(f"  s_lshl_b32 s{a}, s{sc}, 13")
    A(f"  s_lshl_b32 s{b}, s{sw}, 10")
    A(f"  s_add_u32 s{a}, s{a}, s{b}")
    A(f"  s_add_u32 s{a}, s{a}, {WS_XP}")
    A(f"  v_lshlrev_b32 v{t2}, 8, v{t1}")
    A(f"  v_lshl_add_u32 v{t2}, v{t0}, 4, v{t2}")
    A(f"  v_add_u32 v{vXo}, s{a}, v{t2}")
    A(f"  v_lshl_add_u32 v{t2}, v{t1}, 6, v{t0}")
    A(f"  s_lshl_b32 s{a}, s{sw}, 11")
    A(f"  s_add_u32 s{a}, s{a}, {WS_ST1}")
    A(f"  v_lshl_add_u32 v{vSo}, v{t2}, 3, s{a}")
    A(f"  s_lshl_b32 s{a}, s{scb}, 5")
    A(f"  v_add_u32 v{vMo}, s{a}, v0")
    A(f"  v_mul_u32_u24 v{vMo}, 1536, v{vMo}")
    A(f"  s_lshl_b32 s{a}, s{stb}, 3")
    A(f"  s_add_u32 s{a}, s{a}, {WS_PART}")
    A(f"  v_add_u32 v{vMo}, s{a}, v{vMo}")
    A(f"  v_lshrrev_b32 v{t2}, 5, v0")
    A(f"  v_min_u32 v{t2}, 1, v{t2}")
    A(f"  v_lshl_or_b32 v{vMo}, v{t2}, 29, v{vMo}")
    A("  s_waitcnt lgkmcnt(0)")
    A(f"  s_lshr_b32 s{a}, s{sD}, 16")
    A(f"  s_and_b32 s{b}, s{sD}, 0xffff")
    A(f"  s_cmp_eq_u32 s{sch}, 0")
    A(f"  s_cselect_b32 s{a}, s{b}, s{a}")
    A(f"  s_lshl_b32 s{b}, s{a}, 16")
    A(f"  v_lshlrev_b32 v{t2}, 3, v{t1}")
    A(f"  v_add_u32 v{t2}, v{t2}, v{t0}")
    A(f"  v_sub_u32 v{t2}, 15, v{t2}")
    A(f"  v_and_b32 v{t3}, 1, v{t2}")
    A(f"  v_cmp_eq_u32 vcc, 1, v{t3}")
    A(f"  v_mov_b32 v{vHD}, s{a}")
    A(f"  v_mov_b32 v{vHD+1}, s{b}")
    A(f"  v_cndmask_b32 v{t3}, v{vHD}, v{vHD+1}, vcc")
    A(f"  v_ashrrev_i32 v{t2}, 1, v{t2}")
    for i in range(4):
        A(f"  v_cmp_eq_u32 vcc, {i}, v{t2}")
        A("  s_nop 1")
        A(f"  v_cndmask_b32 v{vHD+i}, 0, v{t3}, vcc")
    if PREFETCH:
        A(f"  v_and_b32 v{t1}, 127, v0")
        A(f"  v_mul_u32_u24 v{t2}, 147, v{t1}")
        A(f"  v_lshrrev_b32 v{t2}, 10, v{t2}")
        A(f"  v_mul_u32_u24 v{t3}, 7, v{t2}")
        A(f"  v_sub_u32 v{t3}, v{t1}, v{t3}")
        A(f"  s_lshl_b32 s{a}, s{stb}, 4")
        A(f"  v_add_u32 v{t2}, s{a}, v{t2}")
        A(f"  v_mul_u32_u24 v{t2}, 3584, v{t2}")
        A(f"  v_lshl_add_u32 v{vPf}, v{t3}, 7, v{t2}")
        A(f"  s_lshr_b32 s{a}, s{scb}, 1")
        A(f"  s_mul_i32 s{a}, s{a}, 896")
        A(f"  s_cmp_lt_u32 s{sw}, 4")
        A(f"  s_cselect_b32 s{a}, s{a}, 0x40000000")
        A(f"  v_add_u32 v{vPf}, s{a}, v{vPf}")
        A(f"  s_bitcmp1_b32 s{sw}, 1")
        A(f"  s_cselect_b32 s{sPF}, s{pWG+2}, s{pWG}")
        A(f"  s_cselect_b32 s{sPF+1}, s{pWG+3}, s{pWG+1}")
        A(f"  s_mov_b32 s{sPF+2}, {512*1792*2}")
        A(f"  s_mov_b32 s{sPF+3}, 0x20000")
        A(f"  s_mul_i32 s{a}, s2, 7168")
        A(f"  s_cmp_eq_u32 s{sw}, 4")
        A(f"  s_cselect_b32 s{a}, s{a}, 0x40000000")
        A(f"  v_lshl_add_u32 v{vPd}, v{vl}, 7, s{a}")
        A(f"  s_mov_b32 s{sXq}, s{pWD}")
        A(f"  s_mov_b32 s{sXq+1}, s{pWD+1}")
        A(f"  s_mov_b32 s{sXq+2}, {1792*512*2}")
    A(f"  s_cmp_lg_u32 s{sw}, 0")
    A(f"  s_cbranch_scc1 {name}_s1w")
    A(f"  s_lshl_b32 s{a}, s{scb}, 8")
    A(f"  s_add_u32 s{a}, s{a}, {WS_CNT+16*256}")
    A(f"  v_mov_b32 v{t2}, s{a}")
    poll_ge(A, f"{name}_s1", sWS, t2, [vPoll+i for i in range(4)], 32, a, b, SPIN, PSLEEP)
    A(f"{name}_s1w:")
    ST.value(b, SPIN)
    A("  s_waitcnt lgkmcnt(0)")
    A("  s_barrier")
    ST.stamp()
    vKV = vZf
    A(f"  buffer_load_dwordx4 {vr(vKV,4)}, v{vKVo}, {sr(sWS,4)}, 0 offen sc1")
    for m in range(8):
        for hh in range(2):
            A(f"  ds_read_b64 {vr(vHf+4*m+2*hh,2)}, v{vH} offset:{512*m+8*hh}")
    def stat_loads():
        for r in range(4):
            A(f"  buffer_load_dwordx2 {vr(vS1+2*r,2)}, v{vSo}, {sr(sWS,4)}, 0 offen offset:{128*r} sc1")
    A(f"  s_waitcnt vmcnt(0)")
    A(f"  ds_write_b128 v{vXRw}, {vr(vKV,4)}")
    A("  s_waitcnt lgkmcnt(0)")
    A("  s_barrier")
    ST.stamp()
    def late_loads():
        A(f"  s_cmp_lg_u32 s{sw}, 0")
        A(f"  s_cbranch_scc1 {name}_nopt")
        for chk in range(6):
            A(f"  buffer_load_dwordx2 {vr(vPt+2*chk,2)}, v{vMo}, {sr(sWS,4)}, 0 offen offset:{256*chk} sc1")
        A(f"{name}_nopt:")
        A(f"  buffer_load_dwordx4 {vr(vXP,4)}, v{vXo}, {sr(sWS,4)}, 0 offen sc1")
        stat_loads()
    def prefetch():
        if not PREFETCH: return
        A(f"  s_cmp_gt_u32 s{sw}, 4")
        A(f"  s_cbranch_scc1 {name}_nopf")
        A(f"  s_cmp_eq_u32 s{sw}, 4")
        A(f"  s_cbranch_scc1 {name}_pfd")
        A(f"  buffer_load_dword v228, v{vPf}, {sr(sPF,4)}, 0 offen")
        A(f"  s_branch {name}_nopf")
        A(f"{name}_pfd:")
        A(f"  buffer_load_dword v229, v{vPd}, {sr(sXq,4)}, 0 offen")
        A(f"{name}_nopf:")
    def reads(it):
        buf = it & 1
        R = []
        for G in range(8):
            R.append(f"  ds_read_b128 {vr(vZf+32*buf+4*G,4)}, v{vZ} offset:{64*it+512*(7-G)}")
        for m in range(8):
            for hh in range(2):
                R.append(f"  ds_read_b64 {vr(vHf+32*buf+4*m+2*hh,2)}, v{vH} offset:{64*it+512*m+8*hh}")
        return R
    red = []
    for k in range(6): red.append(f"  v_permlane16_swap_b32 v{vPt+2*k}, v{vPt+2*k+1}")
    for k in range(6): red.append(f"  v_add_f32 v{vPt+2*k}, v{vPt+2*k}, v{vPt+2*k+1}")
    for ror in (8, 4, 2, 1):
        for k in range(6):
            red.append(f"  v_add_f32_dpp v{vPt+2*k}, v{vPt+2*k}, v{vPt+2*k} row_ror:{ror} row_mask:0xf bank_mask:0xf")
    for k in range(6): red.append(f"  v_cvt_pk_bf16_f32 v{vPt+2*k}, v{vPt+2*k}, v{vPt+2*k}")
    for k in range(6): red.append(f"  v_lshlrev_b32 v{vPt+2*k}, 16, v{vPt+2*k}")
    for k in (1, 4): red.append(f"  v_add_f32 v{vPt+2*k}, 1.0, v{vPt+2*k}")
    for k in (1, 4): red.append(f"  v_cvt_pk_bf16_f32 v{vPt+2*k}, v{vPt+2*k}, v{vPt+2*k}")
    for k in (1, 4): red.append(f"  v_lshlrev_b32 v{vPt+2*k}, 16, v{vPt+2*k}")
    for s_ in reads(0)[:8]: A(s_)
    late_loads()
    for it in range(2):
        buf = it & 1
        A("  s_waitcnt lgkmcnt(0)")
        nxt = reads(1) if it == 0 else []
        if it == 0:
            A(f"  s_cmp_lg_u32 s{sqq}, 0")
            A(f"  s_cbranch_scc1 {name}_noD")
            for G in range(8):
                A(f"  v_mfma_f32_16x16x32_bf16 {vr(vAcc+4*G,4)}, {vr(vZf+4*G,4)}, {vr(vHD,4)}, 0")
            A(f"  s_branch {name}_Dok")
            A(f"{name}_noD:")
            for i in range(32): A(f"  v_mov_b32 v{vAcc+i}, 0")
            A("  s_nop 1")
            A(f"{name}_Dok:")
        nm = 0
        for m in range(8):
            for Gz in range(8-m):
                G = Gz+m
                A(f"  v_mfma_f32_16x16x32_bf16 {vr(vAcc+4*G,4)}, {vr(vZf+32*buf+4*Gz,4)}, {vr(vHf+32*buf+4*m,4)}, {vr(vAcc+4*G,4)}")
                nm += 1
                if it == 0:
                    if nxt: A(nxt.pop(0))
                else:
                    if nm == 4:
                        A(f"  s_waitcnt vmcnt(0)")
                        prefetch()
                    if nm >= 5:
                        for _ in range(2):
                            if red: A(red.pop(0))
    while red: A(red.pop(0))
    A(f"  s_cmp_lg_u32 s{sw}, 0")
    A(f"  s_cbranch_scc1 {name}_nomd")
    A(f"  v_lshrrev_b32 v{vPt+1}, 4, v{vl}")
    A(f"  v_lshlrev_b32 v{vPt+1}, 2, v{vPt+1}")
    A(f"  v_add_u32 v{vPt+1}, {MD}, v{vPt+1}")
    A(f"  s_mov_b64 exec, 0x10001")
    for i, k in enumerate((0, 1, 2, 4)):
        A(f"  ds_write_b32 v{vPt+1}, v{vPt+2*k} offset:{8*i}")
    A(f"  s_mov_b64 exec, -1")
    A(f"  v_lshrrev_b32 v{vPt+1}, 4, v{vl}")
    A(f"  s_lshl_b32 s{a}, s{sc}, 1")
    A(f"  v_add_u32 v{vPt+1}, s{a}, v{vPt+1}")
    A(f"  v_lshlrev_b32 v{vPt+3}, 2, v{vPt+1}")
    A(f"  v_lshlrev_b32 v{vPt+5}, 1, v{vPt+1}")
    A(f"  s_mov_b64 exec, 0x10001")
    for k in range(6):
        A(f"  s_mov_b32 s{a}, {WS_MOD+k*2048}")
        A(f"  buffer_store_dword v{vPt+2*k}, v{vPt+3}, {sr(sWS,4)}, s{a} offen")
    for k in (3, 4):
        A(f"  v_lshrrev_b32 v{vPt+7}, 16, v{vPt+2*k}")
        A(f"  s_mov_b32 s{a}, {WS_MODH+k*1024}")
        A(f"  buffer_store_short v{vPt+7}, v{vPt+5}, {sr(sWS,4)}, s{a} offen")
        A("  s_nop 0")
    A(f"  s_mov_b64 exec, -1")
    A(f"{name}_nomd:")
    A("  s_nop 7")
    ST.stamp()
    for G in range(8):
        A(f"  ds_write_b128 v{vEXw}, {vr(vAcc+4*G,4)} offset:{G*1024}")
    A(f"  s_mov_b32 s{c_}, {SPIN}")
    A(f"{name}_val:")
    V = vHf
    A(f"  v_min_u32 v{V}, v{vS1}, v{vS1+2}")
    A(f"  v_min3_u32 v{V}, v{V}, v{vS1+4}, v{vS1+6}")
    A(f"  v_cmp_eq_u32 vcc, 0, v{V}")
    A("  s_nop 1")
    A(f"  s_cmp_eq_u64 vcc, 0")
    A(f"  s_cbranch_scc1 {name}_valok")
    A("  s_sleep 1")
    stat_loads()
    A("  s_waitcnt vmcnt(0)")
    A(f"  s_sub_u32 s{c_}, s{c_}, 1")
    A(f"  s_cmp_lg_u32 s{c_}, 0")
    A(f"  s_cbranch_scc1 {name}_val")
    A(f"{name}_valok:")
    ST.value(c_, SPIN)
    X, N = vHf+8, vHf+16
    for r in range(4):
        A(f"  v_lshlrev_b32 v{X+2*r}, 16, v{vXP+r}")
        A(f"  v_and_b32 v{X+2*r+1}, 0xffff0000, v{vXP+r}")
    for r in range(4):
        rs, nm = vS1+2*r, vS1+2*r+1
        A(f"  v_pk_fma_f32 {vr(N+2*r,2)}, {vr(X+2*r,2)}, {vr(rs,2)}, {vr(rs,2)} op_sel:[0,0,1] op_sel_hi:[1,0,1]")
    A("  s_waitcnt lgkmcnt(0)")
    A("  s_barrier")
    ST.stamp()
    A(f"  v_mov_b32 v{t2}, {MD}")
    A(f"  ds_read_b128 {vr(vMd,4)}, v{t2}")
    A(f"  ds_read_b128 {vr(vMd+4,4)}, v{t2} offset:16")
    vR = vZf
    for s_ in range(8):
        A(f"  ds_read_b128 {vr(vR+4*s_,4)}, v{vEXr} offset:{s_*8192}")
    sa, c1a, ga, c1b = vMd, vMd+2, vMd+4, vMd+6
    A("  s_waitcnt lgkmcnt(8)")
    for r in range(4): A(f"  v_pk_fma_f32 {vr(N+2*r,2)}, {vr(N+2*r,2)}, {vr(c1a,2)}, {vr(sa,2)}")
    for r in range(4): A(f"  v_pk_mul_f32 {vr(N+2*r,2)}, {vr(N+2*r,2)}, {vr(ga,2)}")
    A("  s_waitcnt lgkmcnt(4)")
    for hh in range(2):
        A(f"  v_pk_add_f32 {vr(vR+2*hh,2)}, {vr(vR+2*hh,2)}, {vr(vR+4+2*hh,2)}")
        A(f"  v_pk_add_f32 {vr(vR+8+2*hh,2)}, {vr(vR+8+2*hh,2)}, {vr(vR+12+2*hh,2)}")
    for hh in range(2):
        A(f"  v_pk_add_f32 {vr(vR+2*hh,2)}, {vr(vR+2*hh,2)}, {vr(vR+8+2*hh,2)}")
    A("  s_waitcnt lgkmcnt(0)")
    for hh in range(2):
        A(f"  v_pk_add_f32 {vr(vR+16+2*hh,2)}, {vr(vR+16+2*hh,2)}, {vr(vR+20+2*hh,2)}")
        A(f"  v_pk_add_f32 {vr(vR+24+2*hh,2)}, {vr(vR+24+2*hh,2)}, {vr(vR+28+2*hh,2)}")
    for hh in range(2):
        A(f"  v_pk_add_f32 {vr(vR+16+2*hh,2)}, {vr(vR+16+2*hh,2)}, {vr(vR+24+2*hh,2)}")
    for r in range(4):
        A(f"  v_fma_f32 v{X+2*r}, v{N+2*r}, v{vR+r}, v{X+2*r}")
        A(f"  v_fma_f32 v{X+2*r+1}, v{N+2*r+1}, v{vR+16+r}, v{X+2*r+1}")
    PX, PZ = vR+4, vR+8
    ST.stamp()
    for r in range(4): A(f"  v_cvt_pk_bf16_f32 v{PX+r}, v{X+2*r}, v{X+2*r+1}")
    A(f"  s_mov_b32 s{a}, {WS_X1}")
    A(f"  s_mov_b32 s{b}, {WS_X1+32768}")
    A(f"  s_mov_b32 s{c_}, {WS_H2}")
    A(f"  s_mov_b32 s{d_}, {WS_H2+32768}")
    for r in range(4):
        A(f"  buffer_store_dword v{PX+r}, v{vYo}, {sr(sWS,4)}, s{a+(r>>1)} offen offset:{256*(r&1)}" + (" sc1" if _os_env("XSC1","") else ""))
    for r in range(4):
        A(f"  v_lshlrev_b32 v{X+2*r}, 16, v{PX+r}")
        A(f"  v_and_b32 v{X+2*r+1}, 0xffff0000, v{PX+r}")
    for r in range(4): A(f"  v_pk_mul_f32 {vr(X+2*r,2)}, {vr(X+2*r,2)}, {vr(c1b,2)}")
    for r in range(4): A(f"  v_cvt_pk_bf16_f32 v{PZ+r}, v{X+2*r}, v{X+2*r+1}")
    for r in range(4):
        A(f"  buffer_store_dword v{PZ+r}, v{vYo}, {sr(sWS,4)}, s{c_+(r>>1)} offen offset:{256*(r&1)}" + (" sc1" if _os_env("XSC1","") else ""))
    if _os_env("XDRAIN",""):
        ST.stamp()
        A("  s_waitcnt vmcnt(0)")
        A("  s_barrier")

def conv4(A, L):
    name, ST, SPIN, PREFETCH, PSLEEP = (L[k] for k in "name ST SPIN PREFETCH PSLEEP".split())
    XR1, HC, HCH, MD, EX = (L[k] for k in "XR1 HC HCH MD EX".split())
    vl, t0, t1, t2, t3 = 1, 2, 3, 4, 5
    sWS, sSH, sXq, sPF = (L[k] for k in "sWS sSH sXq sPF".split())
    stb, scb, sw, sc, sch, sqq, sD = (L[k] for k in "stb scb sw sc sch sqq sD".split())
    a, b, c_, d_ = 44, 45, 46, 47
    pWG, pWD = L['pWG'], L['pWD']
    vAcc, vZf, vHf = 16, 48, 112
    vXP, vS1, vMd, vPt = 176, 180, 188, 196
    vZ, vH, vEXw, vEXr, vYo, vKVo, vXRw, vXo, vSo, vMo, vPf, vPd = range(208, 220)
    vHD = 220
    vPoll = 224
    scc, sqh = 61, 62
    A(f"  s_bfe_u32 s{scc}, s{sw}, 0x10001")
    A(f"  s_and_b32 s{sqh}, s{sw}, 1")
    A(f"  v_and_b32 v{t0}, 15, v{vl}")
    A(f"  v_lshrrev_b32 v{t1}, 4, v{vl}")
    A(f"  v_lshlrev_b32 v{t2}, 5, v{t0}")
    A(f"  v_sub_u32 v{t2}, 480, v{t2}")
    A(f"  v_lshl_add_u32 v{t2}, v{t1}, 4, v{t2}")
    A(f"  s_mul_i32 s{a}, s{scc}, {XR1}")
    A(f"  s_lshl_b32 s{b}, s{sqh}, 8")
    A(f"  s_add_u32 s{a}, s{a}, s{b}")
    A(f"  v_add_u32 v{vZ}, s{a}, v{t2}")
    A(f"  v_add_u32 v{t2}, 1, v{t0}")
    A(f"  v_and_b32 v{t3}, 3, v{t2}")
    A(f"  v_sub_u32 v{t2}, v{t2}, v{t3}")
    A(f"  v_lshl_add_u32 v{t2}, v{t1}, 3, v{t2}")
    A(f"  v_lshlrev_b32 v{t2}, 1, v{t2}")
    A(f"  v_mul_u32_u24 v{t3}, 4160, v{t3}")
    A(f"  s_mul_i32 s{a}, s{scc}, {HCH}")
    A(f"  s_add_u32 s{a}, s{a}, s{b}")
    A(f"  s_add_u32 s{a}, s{a}, {HC}")
    A(f"  v_add3_u32 v{vH}, v{t2}, v{t3}, s{a}")
    A(f"  v_lshlrev_b32 v{t2}, 4, v{vl}")
    A(f"  s_lshl_b32 s{a}, s{sw}, 13")
    A(f"  s_add_u32 s{a}, s{a}, {EX}")
    A(f"  v_add_u32 v{vEXw}, s{a}, v{t2}")
    A(f"  s_lshl_b32 s{a}, s{sw}, 10")
    A(f"  s_add_u32 s{a}, s{a}, {EX}")
    A(f"  v_add_u32 v{vEXr}, s{a}, v{t2}")
    A(f"  s_lshl_b32 s{a}, s{sc}, 13")
    A(f"  s_add_u32 s{a}, s{a}, {WS_KVR}")
    A(f"  v_lshl_add_u32 v{vKVo}, v0, 4, s{a}")
    A(f"  s_mul_i32 s{a}, s{sch}, {XR1}")
    A(f"  v_add_u32 v{vXRw}, s{a}, v{L['vT16']}")
    A(f"  s_lshr_b32 s{a}, s{sc}, 3")
    A(f"  s_lshl_b32 s{a}, s{a}, 10")
    A(f"  s_bfe_u32 s{b}, s{sc}, 0x10002")
    A(f"  s_lshl_b32 s{b}, s{b}, 9")
    A(f"  s_add_u32 s{a}, s{a}, s{b}")
    A(f"  s_and_b32 s{b}, s{sc}, 3")
    A(f"  s_lshl_b32 s{b}, s{b}, 2")
    A(f"  s_add_u32 s{a}, s{a}, s{b}")
    A(f"  s_lshl_b32 s{b}, s{sw}, 18")
    A(f"  s_add_u32 s{a}, s{a}, s{b}")
    A(f"  v_lshlrev_b32 v{t2}, 16, v{t1}")
    A(f"  v_lshl_add_u32 v{t2}, v{t0}, 4, v{t2}")
    A(f"  v_add_u32 v{vYo}, s{a}, v{t2}")
    A(f"  s_lshl_b32 s{a}, s{sc}, 13")
    A(f"  s_lshl_b32 s{b}, s{sw}, 10")
    A(f"  s_add_u32 s{a}, s{a}, s{b}")
    A(f"  s_add_u32 s{a}, s{a}, {WS_XP}")
    A(f"  v_lshlrev_b32 v{t2}, 8, v{t1}")
    A(f"  v_lshl_add_u32 v{t2}, v{t0}, 4, v{t2}")
    A(f"  v_add_u32 v{vXo}, s{a}, v{t2}")
    A(f"  v_lshl_add_u32 v{t2}, v{t1}, 6, v{t0}")
    A(f"  s_lshl_b32 s{a}, s{sw}, 11")
    A(f"  s_add_u32 s{a}, s{a}, {WS_ST1}")
    A(f"  v_lshl_add_u32 v{vSo}, v{t2}, 3, s{a}")
    A(f"  s_lshl_b32 s{a}, s{scb}, 5")
    A(f"  v_add_u32 v{vMo}, s{a}, v{vl}")
    A(f"  v_mul_u32_u24 v{vMo}, 1536, v{vMo}")
    A(f"  s_lshl_b32 s{a}, s{stb}, 3")
    A(f"  s_add_u32 s{a}, s{a}, {WS_PART}")
    A(f"  v_add_u32 v{vMo}, s{a}, v{vMo}")
    A(f"  v_lshrrev_b32 v{t2}, 5, v{vl}")
    A(f"  v_lshl_or_b32 v{vMo}, v{t2}, 29, v{vMo}")
    A("  s_waitcnt lgkmcnt(0)")
    A(f"  s_lshr_b32 s{a}, s{sD}, 16")
    A(f"  s_and_b32 s{b}, s{sD}, 0xffff")
    A(f"  s_cmp_eq_u32 s{scc}, 0")
    A(f"  s_cselect_b32 s{a}, s{b}, s{a}")
    A(f"  s_lshl_b32 s{b}, s{a}, 16")
    A(f"  v_lshlrev_b32 v{t2}, 3, v{t1}")
    A(f"  v_add_u32 v{t2}, v{t2}, v{t0}")
    A(f"  v_sub_u32 v{t2}, 15, v{t2}")
    A(f"  v_and_b32 v{t3}, 1, v{t2}")
    A(f"  v_cmp_eq_u32 vcc, 1, v{t3}")
    A(f"  v_mov_b32 v{vHD}, s{a}")
    A(f"  v_mov_b32 v{vHD+1}, s{b}")
    A(f"  v_cndmask_b32 v{t3}, v{vHD}, v{vHD+1}, vcc")
    A(f"  v_ashrrev_i32 v{t2}, 1, v{t2}")
    for i in range(4):
        A(f"  v_cmp_eq_u32 vcc, {i}, v{t2}")
        A("  s_nop 1")
        A(f"  v_cndmask_b32 v{vHD+i}, 0, v{t3}, vcc")
    if PREFETCH:
        A(f"  v_and_b32 v{t1}, 127, v0")
        A(f"  v_mul_u32_u24 v{t2}, 147, v{t1}")
        A(f"  v_lshrrev_b32 v{t2}, 10, v{t2}")
        A(f"  v_mul_u32_u24 v{t3}, 7, v{t2}")
        A(f"  v_sub_u32 v{t3}, v{t1}, v{t3}")
        A(f"  s_lshl_b32 s{a}, s{stb}, 4")
        A(f"  v_add_u32 v{t2}, s{a}, v{t2}")
        A(f"  v_mul_u32_u24 v{t2}, 3584, v{t2}")
        A(f"  v_lshl_add_u32 v{vPf}, v{t3}, 7, v{t2}")
        A(f"  s_lshr_b32 s{a}, s{scb}, 1")
        A(f"  s_mul_i32 s{a}, s{a}, 896")
        A(f"  v_add_u32 v{vPf}, s{a}, v{vPf}")
        A(f"  s_bitcmp1_b32 s{sw}, 1")
        A(f"  s_cselect_b32 s{sPF}, s{pWG+2}, s{pWG}")
        A(f"  s_cselect_b32 s{sPF+1}, s{pWG+3}, s{pWG+1}")
        A(f"  s_mov_b32 s{sPF+2}, {512*1792*2}")
        A(f"  s_mov_b32 s{sPF+3}, 0x20000")
        if L['PFWD'] == 2:
            A(f"  s_mul_i32 s{a}, s{stb}, 57344")
            A(f"  v_and_b32 v{t1}, 255, v0")
            A(f"  v_lshl_add_u32 v{vPd}, v{t1}, 7, s{a}")
        else:
            A(f"  s_mul_i32 s{a}, s2, 7168")
            A(f"  v_lshl_add_u32 v{vPd}, v{vl}, 7, s{a}")
        A(f"  s_mov_b32 s{sXq}, s{pWD}")
        A(f"  s_mov_b32 s{sXq+1}, s{pWD+1}")
        A(f"  s_mov_b32 s{sXq+2}, {1792*512*2}")
    A(f"  s_cmp_lg_u32 s{sw}, 0")
    A(f"  s_cbranch_scc1 {name}_s1w")
    A(f"  s_lshl_b32 s{a}, s{scb}, 8")
    A(f"  s_add_u32 s{a}, s{a}, {WS_CNT+16*256}")
    A(f"  v_mov_b32 v{t2}, s{a}")
    poll_ge(A, f"{name}_s1", sWS, t2, [vPoll+i for i in range(4)], 32, a, b, SPIN, PSLEEP)
    A(f"{name}_s1w:")
    ST.value(b, SPIN)
    A("  s_waitcnt lgkmcnt(0)")
    A("  s_barrier")
    ST.stamp()
    vKV = vZf
    A(f"  buffer_load_dwordx4 {vr(vKV,4)}, v{vKVo}, {sr(sWS,4)}, 0 offen sc1")
    A(f"  s_cmp_ge_u32 s{sw}, 4")
    A(f"  s_cbranch_scc1 {name}_nohf")
    for m in range(8):
        for hh in range(2):
            A(f"  ds_read_b64 {vr(vHf+4*m+2*hh,2)}, v{vH} offset:{512*m+8*hh}")
    A(f"{name}_nohf:")
    def stat_loads():
        for r in range(4):
            A(f"  buffer_load_dwordx2 {vr(vS1+2*r,2)}, v{vSo}, {sr(sWS,4)}, 0 offen offset:{128*r} sc1")
    A(f"  s_waitcnt vmcnt(0)")
    A(f"  ds_write_b128 v{vXRw}, {vr(vKV,4)}")
    A("  s_waitcnt lgkmcnt(0)")
    A("  s_barrier")
    ST.stamp()
    def late_loads():
        A(f"  buffer_load_dwordx4 {vr(vXP,4)}, v{vXo}, {sr(sWS,4)}, 0 offen sc1")
        stat_loads()
    def reads(it):
        buf = it & 1
        R = []
        for G in range(8):
            R.append(f"  ds_read_b128 {vr(vZf+32*buf+4*G,4)}, v{vZ} offset:{64*it+512*(7-G)}")
        for m in range(8):
            for hh in range(2):
                R.append(f"  ds_read_b64 {vr(vHf+32*buf+4*m+2*hh,2)}, v{vH} offset:{64*it+512*m+8*hh}")
        return R
    red = []
    for k in range(6): red.append(f"  v_permlane16_swap_b32 v{vPt+2*k}, v{vPt+2*k+1}")
    for k in range(6): red.append(f"  v_add_f32 v{vPt+2*k}, v{vPt+2*k}, v{vPt+2*k+1}")
    for ror in (8, 4, 2, 1):
        for k in range(6):
            red.append(f"  v_add_f32_dpp v{vPt+2*k}, v{vPt+2*k}, v{vPt+2*k} row_ror:{ror} row_mask:0xf bank_mask:0xf")
    for k in range(6): red.append(f"  v_cvt_pk_bf16_f32 v{vPt+2*k}, v{vPt+2*k}, v{vPt+2*k}")
    for k in range(6): red.append(f"  v_lshlrev_b32 v{vPt+2*k}, 16, v{vPt+2*k}")
    for k in (1, 4): red.append(f"  v_add_f32 v{vPt+2*k}, 1.0, v{vPt+2*k}")
    for k in (1, 4): red.append(f"  v_cvt_pk_bf16_f32 v{vPt+2*k}, v{vPt+2*k}, v{vPt+2*k}")
    for k in (1, 4): red.append(f"  v_lshlrev_b32 v{vPt+2*k}, 16, v{vPt+2*k}")
    A(f"  s_cmp_ge_u32 s{sw}, 4")
    A(f"  s_cbranch_scc1 {name}_support")
    for s_ in reads(0)[:8]: A(s_)
    late_loads()
    for it in range(4):
        buf = it & 1
        A("  s_waitcnt lgkmcnt(0)")
        nxt = reads(it+1) if it < 3 else []
        if it == 0:
            A(f"  s_cmp_lg_u32 s{sqh}, 0")
            A(f"  s_cbranch_scc1 {name}_noD")
            for G in range(8):
                A(f"  v_mfma_f32_16x16x32_bf16 {vr(vAcc+4*G,4)}, {vr(vZf+4*G,4)}, {vr(vHD,4)}, 0")
            A(f"  s_branch {name}_Dok")
            A(f"{name}_noD:")
            for i in range(32): A(f"  v_mov_b32 v{vAcc+i}, 0")
            A("  s_nop 1")
            A(f"{name}_Dok:")
        for m in range(8):
            for Gz in range(8-m):
                G = Gz+m
                A(f"  v_mfma_f32_16x16x32_bf16 {vr(vAcc+4*G,4)}, {vr(vZf+32*buf+4*Gz,4)}, {vr(vHf+32*buf+4*m,4)}, {vr(vAcc+4*G,4)}")
                if nxt: A(nxt.pop(0))
    A("  s_nop 7")
    ST.stamp()
    for G in range(8):
        A(f"  ds_write_b128 v{vEXw}, {vr(vAcc+4*G,4)} offset:{G*1024}")
    A("  s_waitcnt vmcnt(0)")
    A(f"  s_branch {name}_join")
    A(f"{name}_support:")
    A(f"  s_cmp_lg_u32 s{sw}, 4")
    A(f"  s_cbranch_scc1 {name}_nopt")
    for chk in range(6):
        A(f"  buffer_load_dwordx2 {vr(vPt+2*chk,2)}, v{vMo}, {sr(sWS,4)}, 0 offen offset:{256*chk} sc1")
    A(f"{name}_nopt:")
    late_loads()
    A("  s_waitcnt vmcnt(0)")
    if PREFETCH:
        A(f"  buffer_load_dword v228, v{vPf}, {sr(sPF,4)}, 0 offen")
        if L['PFWD'] == 2:
            A(f"  buffer_load_dword v229, v{vPd}, {sr(sXq,4)}, 0 offen")
            A(f"  s_mov_b32 s{a}, 32768")
            A(f"  buffer_load_dword v230, v{vPd}, {sr(sXq,4)}, s{a} offen")
        else:
            A(f"  s_cmp_lg_u32 s{sw}, 5")
            A(f"  s_cbranch_scc1 {name}_nopd")
            A(f"  buffer_load_dword v229, v{vPd}, {sr(sXq,4)}, 0 offen")
            A(f"{name}_nopd:")
    A(f"  s_cmp_lg_u32 s{sw}, 4")
    A(f"  s_cbranch_scc1 {name}_join")
    while red: A(red.pop(0))
    A(f"  v_lshrrev_b32 v{vPt+1}, 4, v{vl}")
    A(f"  v_lshlrev_b32 v{vPt+1}, 2, v{vPt+1}")
    A(f"  v_add_u32 v{vPt+1}, {MD}, v{vPt+1}")
    A(f"  s_mov_b64 exec, 0x10001")
    for i, k in enumerate((0, 1, 2, 4)):
        A(f"  ds_write_b32 v{vPt+1}, v{vPt+2*k} offset:{8*i}")
    A(f"  s_mov_b64 exec, -1")
    A(f"  v_lshrrev_b32 v{vPt+1}, 4, v{vl}")
    A(f"  s_lshl_b32 s{a}, s{sc}, 1")
    A(f"  v_add_u32 v{vPt+1}, s{a}, v{vPt+1}")
    A(f"  v_lshlrev_b32 v{vPt+3}, 2, v{vPt+1}")
    A(f"  v_lshlrev_b32 v{vPt+5}, 1, v{vPt+1}")
    A(f"  s_mov_b64 exec, 0x10001")
    for k in range(6):
        A(f"  s_mov_b32 s{a}, {WS_MOD+k*2048}")
        A(f"  buffer_store_dword v{vPt+2*k}, v{vPt+3}, {sr(sWS,4)}, s{a} offen")
    for k in (3, 4):
        A(f"  v_lshrrev_b32 v{vPt+7}, 16, v{vPt+2*k}")
        A(f"  s_mov_b32 s{a}, {WS_MODH+k*1024}")
        A(f"  buffer_store_short v{vPt+7}, v{vPt+5}, {sr(sWS,4)}, s{a} offen")
        A("  s_nop 0")
    A(f"  s_mov_b64 exec, -1")
    A(f"{name}_join:")
    A(f"  s_mov_b32 s{c_}, {SPIN}")
    A(f"{name}_val:")
    V = vHf
    A(f"  v_min_u32 v{V}, v{vS1}, v{vS1+2}")
    A(f"  v_min3_u32 v{V}, v{V}, v{vS1+4}, v{vS1+6}")
    A(f"  v_cmp_eq_u32 vcc, 0, v{V}")
    A("  s_nop 1")
    A(f"  s_cmp_eq_u64 vcc, 0")
    A(f"  s_cbranch_scc1 {name}_valok")
    A("  s_sleep 1")
    stat_loads()
    A("  s_waitcnt vmcnt(0)")
    A(f"  s_sub_u32 s{c_}, s{c_}, 1")
    A(f"  s_cmp_lg_u32 s{c_}, 0")
    A(f"  s_cbranch_scc1 {name}_val")
    A(f"{name}_valok:")
    ST.value(c_, SPIN)
    X, N = vHf+8, vHf+16
    for r in range(4):
        A(f"  v_lshlrev_b32 v{X+2*r}, 16, v{vXP+r}")
        A(f"  v_and_b32 v{X+2*r+1}, 0xffff0000, v{vXP+r}")
    for r in range(4):
        rs, nm = vS1+2*r, vS1+2*r+1
        A(f"  v_pk_fma_f32 {vr(N+2*r,2)}, {vr(X+2*r,2)}, {vr(rs,2)}, {vr(rs,2)} op_sel:[0,0,1] op_sel_hi:[1,0,1]")
    A("  s_waitcnt lgkmcnt(0)")
    A("  s_barrier")
    ST.stamp()
    A(f"  v_mov_b32 v{t2}, {MD}")
    A(f"  ds_read_b128 {vr(vMd,4)}, v{t2}")
    A(f"  ds_read_b128 {vr(vMd+4,4)}, v{t2} offset:16")
    vR = vZf
    for s_ in range(4):
        A(f"  ds_read_b128 {vr(vR+(0,4,16,20)[s_],4)}, v{vEXr} offset:{s_*8192}")
    sa, c1a, ga, c1b = vMd, vMd+2, vMd+4, vMd+6
    A("  s_waitcnt lgkmcnt(4)")
    for r in range(4): A(f"  v_pk_fma_f32 {vr(N+2*r,2)}, {vr(N+2*r,2)}, {vr(c1a,2)}, {vr(sa,2)}")
    for r in range(4): A(f"  v_pk_mul_f32 {vr(N+2*r,2)}, {vr(N+2*r,2)}, {vr(ga,2)}")
    A("  s_waitcnt lgkmcnt(0)")
    for hh in range(2):
        A(f"  v_pk_add_f32 {vr(vR+2*hh,2)}, {vr(vR+2*hh,2)}, {vr(vR+4+2*hh,2)}")
        A(f"  v_pk_add_f32 {vr(vR+16+2*hh,2)}, {vr(vR+16+2*hh,2)}, {vr(vR+20+2*hh,2)}")
    for r in range(4):
        A(f"  v_fma_f32 v{X+2*r}, v{N+2*r}, v{vR+r}, v{X+2*r}")
        A(f"  v_fma_f32 v{X+2*r+1}, v{N+2*r+1}, v{vR+16+r}, v{X+2*r+1}")
    PX, PZ = vR+4, vR+8
    ST.stamp()
    for r in range(4): A(f"  v_cvt_pk_bf16_f32 v{PX+r}, v{X+2*r}, v{X+2*r+1}")
    A(f"  s_mov_b32 s{a}, {WS_X1}")
    A(f"  s_mov_b32 s{b}, {WS_X1+32768}")
    A(f"  s_mov_b32 s{c_}, {WS_H2}")
    A(f"  s_mov_b32 s{d_}, {WS_H2+32768}")
    for r in range(4):
        A(f"  buffer_store_dword v{PX+r}, v{vYo}, {sr(sWS,4)}, s{a+(r>>1)} offen offset:{256*(r&1)}" + (" sc1" if _os_env("XSC1","") else ""))
    for r in range(4):
        A(f"  v_lshlrev_b32 v{X+2*r}, 16, v{PX+r}")
        A(f"  v_and_b32 v{X+2*r+1}, 0xffff0000, v{PX+r}")
    for r in range(4): A(f"  v_pk_mul_f32 {vr(X+2*r,2)}, {vr(X+2*r,2)}, {vr(c1b,2)}")
    for r in range(4): A(f"  v_cvt_pk_bf16_f32 v{PZ+r}, v{X+2*r}, v{X+2*r+1}")
    for r in range(4):
        A(f"  buffer_store_dword v{PZ+r}, v{vYo}, {sr(sWS,4)}, s{c_+(r>>1)} offen offset:{256*(r&1)}" + (" sc1" if _os_env("XSC1","") else ""))
    if _os_env("XDRAIN",""):
        ST.stamp()
        A("  s_waitcnt vmcnt(0)")
        A("  s_barrier")
```

```python
from common import *
from common import _os_env
from k3 import wave_reduce
from poll import poll_ge

C_KV = 16
WS_ALL = 0x1300000

def gen_ka2(A, name="conv_kernel", kidx=0, SPIN=200000, PREFETCH=True, PSLEEP=2, ORD=1, TOUCH=0, CONV4=0, PFWD=1):
    XR1, HC, HCH, MD, EX = 4608, 9216, 4*4160, 42496, 43008
    TT, XT, MS = EX, EX+8192, EX+8192+9216
    LDS = EX + 65536
    kernel_header(A, name)
    ST = Stamper(A, kidx); ST.stamp()
    sK, sV, sSH, sXq, sH, sWS, sWM, sDBG, sPF = 8, 12, 16, 20, 24, 28, 32, 36, 40
    stb, scb, sw, sc, sch, sqq, sD = 4, 5, 6, 7, 3, 100, 101
    a, b, c_, d_ = 44, 45, 46, 47
    pD, pC, pWG, pWD = 48, 50, 52, 56
    A("  s_cmp_ge_u32 s2, 256")
    A(f"  s_cbranch_scc1 {name}_end")
    for dst, key in ((sK,'k'),(sV,'v'),(sSH,'shift'),(sXq,'q'),(sH,'ssm'),(sWS,'ws'),(sWM,'wmod'),(sDBG,'dbg'),(pD,'D'),(pC,'c')):
        A(f"  s_load_dwordx2 s[{dst}:{dst+1}], s[0:1], {KA[key]}")
    for dst, size in ((sK,SZ2M),(sV,SZ2M),(sSH,4096),(sXq,SZ2M),(sH,SZ2M),(sWS,WS_ALL),(sWM,512*3072*2),(sDBG,256)):
        A(f"  s_mov_b32 s{dst+2}, {hex(size)}")
        A(f"  s_mov_b32 s{dst+3}, 0x20000")
    vl, t0, t1, t2, t3 = 1, 2, 3, 4, 5
    vb, vW, vR, vG, vSo, vXro, vT16, vFl = 6, 7, 8, 9, 10, 11, 12, 13
    vKo = 14
    vK, vV, vS, vXt, vXr = 18, 28, 32, 40, 44
    vC, vWm, vOA = 48, 52, 49
    vL = 60
    vKf, vSf, vO = 72, 92, 108
    A(f"  s_lshr_b32 s{stb}, s2, 3")
    A(f"  s_and_b32 s{scb}, s2, 7")
    A(f"  v_lshrrev_b32 v{t2}, 6, v0")
    A(f"  v_and_b32 v{vl}, 63, v0")
    A(f"  v_readfirstlane_b32 s{sw}, v{t2}")
    A(f"  v_and_b32 v{t0}, 15, v0")
    A(f"  v_lshrrev_b32 v{t1}, 4, v0")
    A(f"  v_lshlrev_b32 v{vT16}, 4, v0")
    A(f"  s_lshl_b32 s{a}, s{stb}, 16")
    A(f"  s_lshl_b32 s{b}, s{scb}, 7")
    A(f"  s_add_u32 s{a}, s{a}, s{b}")
    A(f"  v_lshlrev_b32 v{vb}, 11, v{t1}")
    A(f"  v_lshl_add_u32 v{vb}, v{t0}, 3, v{vb}")
    A(f"  v_add_u32 v{vb}, s{a}, v{vb}")
    for i in range(3):
        A(f"  v_add_u32 v{vKo+i}, {hex((-(3-i)*1024) & 0xffffffff)}, v{vb}")
    A(f"  s_lshl_b32 s{b}, s{scb}, 9")
    A(f"  v_lshl_add_u32 v{vSo}, v{t0}, 5, s{b}")
    A(f"  s_lshl_b32 s{c_}, s2, 3")
    A(f"  s_add_u32 s{c_}, s{c_}, s{sw}")
    A(f"  s_lshl_b32 s{c_}, s{c_}, 10")
    A(f"  v_lshlrev_b32 v{vXro}, 4, v{vl}")
    A(f"  s_lshl_b32 s{sc}, s{scb}, 5")
    A(f"  s_add_u32 s{sc}, s{sc}, s{stb}")
    A(f"  s_lshr_b32 s{sch}, s{sw}, 2")
    A(f"  s_and_b32 s{sqq}, s{sw}, 3")
    A(f"  v_lshrrev_b32 v{t2}, 3, v{vl}")
    A(f"  s_lshl_b32 s{a}, s{stb}, 5")
    A(f"  v_lshl_add_u32 v{t3}, v{t2}, 2, s{a}")
    A(f"  v_mul_u32_u24 v{vOA}, 12288, v{t2}")
    A(f"  v_and_b32 v{t2}, 7, v{vl}")
    A(f"  v_lshl_add_u32 v{vOA}, v{t2}, 4, v{vOA}")
    A(f"  s_mul_i32 s{a}, s{stb}, {16*6144}")
    A(f"  s_lshl_b32 s{b}, s{scb}, 7")
    A(f"  s_add_u32 s{a}, s{a}, s{b}")
    A(f"  s_lshl_b32 s{b}, s{sw}, 10")
    A(f"  s_add_u32 s{a}, s{a}, s{b}")
    A(f"  s_cmp_lt_u32 s{sw}, 6")
    A(f"  s_cselect_b32 s{a}, s{a}, 0x40000000")
    A(f"  s_add_u32 s{b}, s{a}, 6144")
    A("  s_waitcnt lgkmcnt(0)")
    A("  s_cmp_lg_u32 s2, 0")
    A(f"  s_cbranch_scc1 {name}_nozs")
    for i in range(4): A(f"  v_mov_b32 v{vO+i}, 0")
    A(f"  s_mov_b32 s{d_}, {WS_CNT}")
    A(f"  buffer_store_dwordx4 {vr(vO,4)}, v{vT16}, {sr(sWS,4)}, s{d_} offen sc1")
    for i in range(2):
        A(f"  s_mov_b32 s{d_}, {WS_ST1+8192*i}")
        A(f"  buffer_store_dwordx4 {vr(vO,4)}, v{vT16}, {sr(sWS,4)}, s{d_} offen sc1")
    A(f"{name}_nozs:")
    for i in range(3):
        A(f"  buffer_load_dwordx2 {vr(vK+2*i,2)}, v{vKo+i}, {sr(sK,4)}, 0 offen")
    for i in range(2):
        A(f"  buffer_load_dwordx2 {vr(vK+6+2*i,2)}, v{vb}, {sr(sK,4)}, 0 offen offset:{1024*i}")
    for i in range(2):
        A(f"  buffer_load_dwordx2 {vr(vV+2*i,2)}, v{vb}, {sr(sV,4)}, 0 offen offset:{1024*i}")
    for i in range(2):
        A(f"  buffer_load_dwordx4 {vr(vS+4*i,4)}, v{vSo}, {sr(sSH,4)}, 0 offen offset:{16*i}")
    if ORD: A("  s_barrier")
    for i in range(2):
        A(f"  buffer_load_dwordx2 {vr(vXt+2*i,2)}, v{vb}, {sr(sXq,4)}, 0 offen offset:{1024*i}")
    A(f"  buffer_load_dwordx4 {vr(vXr,4)}, v{vXro}, {sr(sXq,4)}, s{c_} offen")
    A(f"  s_mov_b32 s{sSH}, s{pC}")
    A(f"  s_mov_b32 s{sSH+1}, s{pC+1}")
    A(f"  s_movk_i32 s{sSH+2}, 1024")
    A(f"  buffer_load_dword v{vC}, v{t3}, {sr(sSH,4)}, 0 offen")
    A(f"  buffer_load_dwordx4 {vr(vWm,4)}, v{vOA}, {sr(sWM,4)}, s{a} offen")
    A(f"  buffer_load_dwordx4 {vr(vWm+4,4)}, v{vOA}, {sr(sWM,4)}, s{b} offen")
    NP1 = 15
    if TOUCH:
        A(f"  s_cmp_lg_u32 s{sw}, 7")
        A(f"  s_cbranch_scc1 {name}_notouch")
        A(f"  v_min_u32 v{t2}, 19, v{vl}")
        A(f"  v_lshlrev_b32 v{t2}, 20, v{t2}")
        A(f"  buffer_load_dword v230, v{t2}, {sr(sWS,4)}, 0 offen")
        A(f"{name}_notouch:")
    A("  s_cmp_lg_u32 s2, 0")
    A(f"  s_cbranch_scc1 {name}_nozero")
    A(f"  s_waitcnt vmcnt({NP1})")
    A("  s_barrier")
    A(f"  s_cmp_lg_u32 s{sw}, 0")
    A(f"  s_cbranch_scc1 {name}_nozero")
    A(f"  v_mov_b32 v{t2}, 0")
    A(f"  v_mov_b32 v{t3}, 1")
    A(f"  s_mov_b64 exec, 1")
    A(f"  buffer_store_dword v{t3}, v{t2}, {sr(sDBG,4)}, 0 offen sc1")
    A(f"  s_mov_b64 exec, -1")
    A(f"{name}_nozero:")
    A(f"  s_lshl_b32 s{a}, s{sc}, 2")
    A(f"  s_load_dword s{sD}, s[{pD}:{pD+1}], s{a}")
    if PREFETCH:
        A(f"  s_load_dwordx4 s[{pWG}:{pWG+3}], s[0:1], {KA['wg']}")
        A(f"  s_load_dwordx2 s[{pWD}:{pWD+1}], s[0:1], {KA['wd']}")
    A(f"  v_sub_u32 v{t2}, 31, v{t1}")
    A(f"  v_lshrrev_b32 v{vW}, 2, v{t2}")
    A(f"  v_and_b32 v{t3}, 7, v{t0}")
    A(f"  v_xor_b32 v{vW}, v{vW}, v{t3}")
    A(f"  v_lshlrev_b32 v{vW}, 4, v{vW}")
    A(f"  v_and_b32 v{t2}, 3, v{t2}")
    A(f"  v_lshl_add_u32 v{vW}, v{t2}, 2, v{vW}")
    A(f"  v_lshl_add_u32 v{vW}, v{t0}, 9, v{vW}")
    A(f"  v_add_u32 v{vW}, {TT}, v{vW}")
    A(f"  v_lshrrev_b32 v{t2}, 3, v0")
    A(f"  v_and_b32 v{t3}, 7, v0")
    A(f"  v_bfe_u32 v{vR}, v0, 5, 3")
    A(f"  v_xor_b32 v{vR}, v{vR}, v{t3}")
    A(f"  v_lshlrev_b32 v{vR}, 4, v{vR}")
    A(f"  v_lshl_add_u32 v{vR}, v{t2}, 7, v{vR}")
    A(f"  v_add_u32 v{vR}, {TT}, v{vR}")
    A(f"  s_lshl_b32 s{a}, s{scb}, 18")
    A(f"  s_lshl_b32 s{b}, s{stb}, 7")
    A(f"  s_sub_u32 s{a}, s{a}, s{b}")
    A(f"  s_add_u32 s{a}, s{a}, {3968+WS_KVR}")
    A(f"  v_lshlrev_b32 v{vG}, 12, v{t2}")
    A(f"  v_lshl_add_u32 v{vG}, v{t3}, 4, v{vG}")
    A(f"  v_add_u32 v{vG}, s{a}, v{vG}")
    vXw = vSo
    A(f"  v_mul_u32_u24 v{vXw}, 288, v{t1}")
    A(f"  v_lshl_add_u32 v{vXw}, v{t0}, 3, v{vXw}")
    A(f"  v_add_u32 v{vXw}, {XT}, v{vXw}")
    A(f"  s_waitcnt vmcnt(6)")
    ST.stamp()
    for ch in range(4):
        for dd in range(2):
            src = vS + 2*ch + dd
            p, e = ch >> 1, ch & 1
            A(f"  v_lshlrev_b32 v{vSf+((2*dd)*2+p)*2+e}, 16, v{src}")
            A(f"  v_and_b32 v{vSf+((2*dd+1)*2+p)*2+e}, 0xffff0000, v{src}")
    for r in range(5):
        for p in range(2):
            A(f"  v_lshlrev_b32 v{vKf+(r*2+p)*2}, 16, v{vK+2*r+p}")
            A(f"  v_and_b32 v{vKf+(r*2+p)*2+1}, 0xffff0000, v{vK+2*r+p}")
    O = vO
    for j in range(4):
        for tk in range(2):
            for p in range(2):
                kk = vKf+((3+tk-j)*2+p)*2; ww = vSf+(j*2+p)*2; o = O+(tk*2+p)*2
                if j == 0: A(f"  v_pk_mul_f32 {vr(o,2)}, {vr(kk,2)}, {vr(ww,2)}")
                else: A(f"  v_pk_fma_f32 {vr(o,2)}, {vr(kk,2)}, {vr(ww,2)}, {vr(o,2)}")
    for tk in range(2):
        for p in range(2):
            A(f"  v_lshlrev_b32 v{vKf+(tk*2+p)*2}, 16, v{vV+2*tk+p}")
            A(f"  v_and_b32 v{vKf+(tk*2+p)*2+1}, 0xffff0000, v{vV+2*tk+p}")
    for tk in range(2):
        for p in range(2):
            o = O+(tk*2+p)*2
            A(f"  v_pk_mul_f32 {vr(o,2)}, {vr(o,2)}, {vr(vKf+(tk*2+p)*2,2)}")
    for ch in range(4):
        p, e = ch >> 1, ch & 1
        A(f"  v_cvt_pk_bf16_f32 v{vKf+8+ch}, v{O+(2+p)*2+e}, v{O+p*2+e}")
    for ch in range(4):
        A(f"  ds_write_b32 v{vW}, v{vKf+8+ch} offset:{128*ch}")
    A("  s_waitcnt lgkmcnt(0)")
    A("  s_barrier")
    A(f"  ds_read_b128 {vr(vO,4)}, v{vR}")
    A(f"  v_and_b32 v{t0}, 15, v0")
    A(f"  v_lshrrev_b32 v{t1}, 4, v0")
    A(f"  v_mul_u32_u24 v{t2}, 144, v{t0}")
    A(f"  v_lshl_add_u32 v{t2}, v{t1}, 2, v{t2}")
    A(f"  v_add_u32 v{vR}, {XT}, v{t2}")
    A("  s_waitcnt lgkmcnt(0)")
    A(f"  buffer_store_dwordx4 {vr(vO,4)}, v{vG}, {sr(sWS,4)}, 0 offen sc1")
    ST.stamp()
    A(f"  v_and_b32 v{t2}, 255, v0")
    A(f"  v_lshlrev_b32 v{vT16}, 4, v{t2}")
    A(f"  s_lshl_b32 s{a}, s{sc}, 13")
    A(f"  s_lshl_b32 s{b}, s{sch}, 12")
    A(f"  s_add_u32 s{a}, s{a}, s{b}")
    for k in range(3):
        A(f"  buffer_load_dwordx4 {vr(vL+4*k,4)}, v{vT16}, {sr(sH,4)}, s{a} offen offset:{4*k}")
    A("  s_waitcnt vmcnt(8)")
    for i in range(2):
        A(f"  ds_write_b64 v{vXw}, {vr(vXt+2*i,2)} offset:{144*i}")
    A(f"  s_lshl_b32 s{a}, s{scb}, 18")
    A(f"  s_lshl_b32 s{b}, s{stb}, 8")
    A(f"  s_add_u32 s{a}, s{a}, s{b}")
    A(f"  s_add_u32 s{d_}, s{a}, {WS_XP}")
    A(f"  v_lshlrev_b32 v{vG}, 13, v{t1}")
    A(f"  v_lshl_add_u32 v{vG}, v{t0}, 4, v{vG}")
    A("  s_waitcnt lgkmcnt(0)")
    A("  s_barrier")
    for r in range(4):
        A(f"  ds_read_b32 v{vO+4+r}, v{vR} offset:{r*16*144}")
    A("  s_waitcnt vmcnt(7)")
    F, S1, S2 = vKf, vKf+8, vKf+10
    for i in range(4):
        A(f"  v_lshlrev_b32 v{F+2*i}, 16, v{vXr+i}")
        A(f"  v_and_b32 v{F+2*i+1}, 0xffff0000, v{vXr+i}")
    A(f"  v_pk_add_f32 {vr(S1,2)}, {vr(F,2)}, {vr(F+2,2)}")
    A(f"  v_pk_mul_f32 {vr(S2,2)}, {vr(F,2)}, {vr(F,2)}")
    A(f"  v_pk_add_f32 {vr(F,2)}, {vr(F+4,2)}, {vr(F+6,2)}")
    for i in range(1,4):
        A(f"  v_pk_fma_f32 {vr(S2,2)}, {vr(F+2*i,2)}, {vr(F+2*i,2)}, {vr(S2,2)}")
    A(f"  v_pk_add_f32 {vr(S1,2)}, {vr(S1,2)}, {vr(F,2)}")
    A(f"  v_add_f32 v{S2}, v{S2}, v{S2+1}")
    A(f"  v_add_f32 v{S1}, v{S1}, v{S1+1}")
    A("  s_waitcnt lgkmcnt(0)")
    A(f"  buffer_store_dwordx4 {vr(vO+4,4)}, v{vG}, {sr(sWS,4)}, s{d_} offen sc1")
    T, P = vSf, 116
    A("  s_waitcnt vmcnt(5)")
    c0, c1, e0, e1 = T, T+1, T+2, T+3
    A(f"  v_lshlrev_b32 v{c0}, 16, v{vC}")
    A(f"  v_and_b32 v{c1}, 0xffff0000, v{vC}")
    A(f"  s_mov_b32 s{a}, 0xbfb8aa3b")
    def red(ctrl):
        for r in (S1, S2): A(f"  v_add_f32_dpp v{r}, v{r}, v{r} {ctrl}")
    red("row_ror:8 row_mask:0xf bank_mask:0xf")
    A(f"  v_mul_f32 v{e0}, s{a}, v{c0}")
    A(f"  v_mul_f32 v{e1}, s{a}, v{c1}")
    red("row_ror:4 row_mask:0xf bank_mask:0xf")
    A(f"  v_exp_f32 v{e0}, v{e0}")
    A(f"  v_exp_f32 v{e1}, v{e1}")
    red("row_ror:2 row_mask:0xf bank_mask:0xf")
    A(f"  v_add_f32 v{e0}, 1.0, v{e0}")
    A(f"  v_add_f32 v{e1}, 1.0, v{e1}")
    red("row_ror:1 row_mask:0xf bank_mask:0xf")
    A(f"  v_rcp_f32 v{e0}, v{e0}")
    A(f"  v_rcp_f32 v{e1}, v{e1}")
    red("row_bcast:15 row_mask:0xa bank_mask:0xf")
    A(f"  v_mul_f32 v{c0}, v{c0}, v{e0}")
    A(f"  v_mul_f32 v{c1}, v{c1}, v{e1}")
    red("row_bcast:31 row_mask:0xc bank_mask:0xf")
    A(f"  v_cvt_pk_bf16_f32 v{vC}, v{c0}, v{c1}")
    A(f"  s_mov_b32 s{a}, 0x05040100")
    A(f"  s_mov_b32 s{b}, 0x07060302")
    for q in range(4):
        A(f"  v_perm_b32 v{T+2*q}, v{vWm+4+q}, v{vWm+q}, s{a}")
        A(f"  v_perm_b32 v{T+2*q+1}, v{vWm+4+q}, v{vWm+q}, s{b}")
    A(f"  s_mov_b32 s{a}, 0x3b000000")
    A(f"  v_mul_f32 v{S1}, s{a}, v{S1}")
    A(f"  v_mul_f32 v{S2}, s{a}, v{S2}")
    for n in range(8):
        A(f"  v_dot2_f32_bf16 v{P+n}, v{T+n}, v{vC}, 0")
    A(f"  v_fma_f32 v{S2}, -v{S1}, v{S1}, v{S2}")
    A(f"  s_mov_b32 s{a}, 0x3727c5ac")
    A(f"  v_max_f32 v{S2}, 0, v{S2}")
    A(f"  v_add_f32 v{S2}, s{a}, v{S2}")
    A(f"  v_rsq_f32 v{S2}, v{S2}")
    for i in range(4): A(f"  v_permlane32_swap_b32 v{P+i}, v{P+i+4}")
    A(f"  v_mov_b32 v{S2+1}, v{S1}")
    for i in range(4): A(f"  v_add_f32 v{P+i}, v{P+i}, v{P+i+4}")
    A(f"  s_lshl_b32 s{a}, s{sw}, 3")
    A(f"  s_add_u32 s{a}, s{a}, {MS}")
    A(f"  v_mov_b32 v{t2}, s{a}")
    for i in range(2): A(f"  v_permlane16_swap_b32 v{P+i}, v{P+i+2}")
    A(f"  s_mov_b32 s{c_}, 0")
    A(f"  s_brev_b32 s{d_}, 1")
    for i in range(2): A(f"  v_add_f32 v{P+i}, v{P+i}, v{P+i+2}")
    A(f"  s_mov_b64 exec, s[{c_}:{d_}]")
    A(f"  ds_write_b64 v{t2}, {vr(S2,2)}")
    A(f"  s_mov_b64 exec, -1")
    for i in range(2): A(f"  v_add_f32_dpp v{P+i}, v{P+i}, v{P+i} row_ror:8 row_mask:0xf bank_mask:0xf")
    A(f"  v_and_b32 v{vOA}, 7, v{vl}")
    A(f"  v_lshlrev_b32 v{vOA}, 5, v{vOA}")
    A(f"  v_lshrrev_b32 v{t2}, 4, v{vl}")
    A(f"  v_lshl_add_u32 v{vOA}, v{t2}, 3, v{vOA}")
    A(f"  v_and_b32 v{t2}, 8, v{vl}")
    A(f"  v_lshl_or_b32 v{vOA}, v{t2}, 27, v{vOA}")
    A(f"  s_mul_i32 s{a}, s{sc}, 1536")
    A(f"  s_lshl_b32 s{b}, s{sw}, 8")
    A(f"  s_add_u32 s{a}, s{a}, s{b}")
    A(f"  s_add_u32 s{a}, s{a}, {WS_PART}")
    A(f"  s_cmp_lt_u32 s{sw}, 6")
    A(f"  s_cselect_b32 s{a}, s{a}, 0x20000000")
    A(f"  buffer_store_dwordx2 {vr(P,2)}, v{vOA}, {sr(sWS,4)}, s{a} offen sc1")
    ST.stamp()
    A(f"  s_cmp_eq_u32 s{sw}, 0")
    A(f"  s_cselect_b32 s{a}, 0, 0x400")
    A(f"  v_mov_b32 v{t2}, s{a}")
    A(f"  buffer_load_dword v{vFl}, v{t2}, {sr(sDBG,4)}, 0 offen sc1")
    A("  s_waitcnt vmcnt(0) lgkmcnt(0)")
    A("  s_barrier")
    A(f"  s_cmp_lg_u32 s{sw}, 0")
    A(f"  s_cbranch_scc1 {name}_arr1")
    A(f"  v_readfirstlane_b32 s{a}, v{vFl}")
    A(f"  s_mov_b32 s{b}, {SPIN}")
    A(f"{name}_rdy:")
    A(f"  s_cmp_lg_u32 s{a}, 0")
    A(f"  s_cbranch_scc1 {name}_rdyok")
    A(f"  v_mov_b32 v{t2}, 0")
    A(f"  buffer_load_dword v{vFl}, v{t2}, {sr(sDBG,4)}, 0 offen sc1")
    A("  s_waitcnt vmcnt(0)")
    A(f"  v_readfirstlane_b32 s{a}, v{vFl}")
    A(f"  s_sub_u32 s{b}, s{b}, 1")
    A(f"  s_cmp_lg_u32 s{b}, 0")
    A(f"  s_cbranch_scc1 {name}_rdy")
    A(f"{name}_rdyok:")
    ST.value(b, SPIN)
    A(f"  s_lshl_b32 s{a}, s{scb}, 8")
    A(f"  s_add_u32 s{a}, s{a}, {WS_CNT+C_KV*256}")
    A(f"  v_mov_b32 v{t2}, s{a}")
    A(f"  v_mov_b32 v{t3}, 1")
    A(f"  s_mov_b64 exec, 1")
    A(f"  buffer_atomic_add v{t3}, v{t2}, {sr(sWS,4)}, 0 offen sc1")
    A(f"  s_mov_b64 exec, -1")
    A(f"  v_lshlrev_b32 v{t2}, 4, v{vl}")
    A(f"  ds_read_b128 {vr(vO,4)}, v{t2} offset:{MS}")
    A(f"  s_lshl_b32 s{a}, s2, 6")
    A(f"  s_add_u32 s{a}, s{a}, {WS_ST1}")
    A("  s_waitcnt lgkmcnt(0)")
    A(f"  s_mov_b64 exec, 0xf")
    A(f"  buffer_store_dwordx4 {vr(vO,4)}, v{t2}, {sr(sWS,4)}, s{a} offen sc1")
    A(f"  s_mov_b64 exec, -1")
    A(f"{name}_arr1:")
    ST.stamp()
    vE, vZero, vHCw = vSf, vSf+8, vSf+12
    La, Lb, Lc = vL, vL+4, vL+8
    for i in range(4): A(f"  v_alignbit_b32 v{vE+i}, v{Lb+i}, v{La+i}, 16")
    for i in range(4): A(f"  v_alignbit_b32 v{vE+4+i}, v{Lc+i}, v{Lb+i}, 16")
    A(f"  s_mul_i32 s{a}, s{sch}, {HCH}")
    A(f"  s_add_u32 s{a}, s{a}, {HC+32}")
    A(f"  v_add_u32 v{vHCw}, s{a}, v{vT16}")
    for i in range(4): A(f"  v_mov_b32 v{vZero+i}, 0")
    A(f"  ds_write_b128 v{vHCw}, {vr(La,4)}")
    A(f"  ds_write_b128 v{vHCw}, {vr(Lb,4)} offset:{2*4160}")
    A(f"  ds_write_b128 v{vHCw}, {vr(vE,4)} offset:{4160}")
    A(f"  ds_write_b128 v{vHCw}, {vr(vE+4,4)} offset:{3*4160}")
    A(f"  s_cmp_lg_u32 s{sw}, 1")
    A(f"  s_cbranch_scc1 {name}_nozt")
    A(f"  v_lshrrev_b32 v{t1}, 5, v{vl}")
    A(f"  v_mul_u32_u24 v{t1}, 4608, v{t1}")
    A(f"  v_and_b32 v{t2}, 31, v{vl}")
    A(f"  v_lshl_add_u32 v{t1}, v{t2}, 4, v{t1}")
    A(f"  ds_write_b128 v{t1}, {vr(vZero,4)} offset:4096")
    A(f"{name}_nozt:")
    A(f"  s_cmp_lg_u32 s{sqq}, 0")
    A(f"  s_cbranch_scc1 {name}_noneg")
    A(f"  s_mov_b64 exec, 1")
    A(f"  v_subrev_u32 v{t0}, 32, v{vHCw}")
    Tn = vKf
    for i in range(12): A(f"  v_mov_b32 v{Tn+i}, 0")
    for phi in range(4): A(f"  ds_write_b128 v{t0}, {vr(vZero,4)} offset:{phi*4160}")
    A(f"  ds_write_b128 v{t0}, {vr(vZero,4)} offset:16")
    A(f"  v_lshlrev_b32 v{Tn+3}, 16, v{La}")
    A(f"  v_mov_b32 v{Tn+7}, v{La}")
    A(f"  v_lshlrev_b32 v{Tn+10}, 16, v{La}")
    A(f"  v_alignbit_b32 v{Tn+11}, v{La+1}, v{La}, 16")
    A(f"  ds_write_b128 v{t0}, {vr(Tn,4)} offset:{4160+16}")
    A(f"  ds_write_b128 v{t0}, {vr(Tn+4,4)} offset:{2*4160+16}")
    A(f"  ds_write_b128 v{t0}, {vr(Tn+8,4)} offset:{3*4160+16}")
    A(f"  s_mov_b64 exec, -1")
    A(f"{name}_noneg:")
    (conv4 if CONV4 else conv2)(A, locals())
    A(f"{name}_end:")
    ST.flush(2)
    A("  s_endpgm")
    return dict(name=name, grid=256, block=512, lds=LDS, nvgpr=256, accum=256)

def conv2(A, L):
    name, ST, SPIN, PREFETCH, PSLEEP = (L[k] for k in "name ST SPIN PREFETCH PSLEEP".split())
    XR1, HC, HCH, MD, EX = (L[k] for k in "XR1 HC HCH MD EX".split())
    vl, t0, t1, t2, t3 = 1, 2, 3, 4, 5
    sWS, sSH, sXq, sPF = (L[k] for k in "sWS sSH sXq sPF".split())
    stb, scb, sw, sc, sch, sqq, sD = (L[k] for k in "stb scb sw sc sch sqq sD".split())
    a, b, c_, d_ = 44, 45, 46, 47
    pWG, pWD = L['pWG'], L['pWD']
    vAcc, vZf, vHf = 16, 48, 112
    vXP, vS1, vMd, vPt = 176, 180, 188, 196
    vZ, vH, vEXw, vEXr, vYo, vKVo, vXRw, vXo, vSo, vMo, vPf, vPd = range(208, 220)
    vHD = 220
    vPoll = 224
    A(f"  v_and_b32 v{t0}, 15, v{vl}")
    A(f"  v_lshrrev_b32 v{t1}, 4, v{vl}")
    A(f"  v_lshlrev_b32 v{t2}, 5, v{t0}")
    A(f"  v_sub_u32 v{t2}, 480, v{t2}")
    A(f"  v_lshl_add_u32 v{t2}, v{t1}, 4, v{t2}")
    A(f"  s_mul_i32 s{a}, s{sch}, {XR1}")
    A(f"  s_lshl_b32 s{b}, s{sqq}, 7")
    A(f"  s_add_u32 s{a}, s{a}, s{b}")
    A(f"  v_add_u32 v{vZ}, s{a}, v{t2}")
    A(f"  v_add_u32 v{t2}, 1, v{t0}")
    A(f"  v_and_b32 v{t3}, 3, v{t2}")
    A(f"  v_sub_u32 v{t2}, v{t2}, v{t3}")
    A(f"  v_lshl_add_u32 v{t2}, v{t1}, 3, v{t2}")
    A(f"  v_lshlrev_b32 v{t2}, 1, v{t2}")
    A(f"  v_mul_u32_u24 v{t3}, 4160, v{t3}")
    A(f"  s_mul_i32 s{a}, s{sch}, {HCH}")
    A(f"  s_add_u32 s{a}, s{a}, s{b}")
    A(f"  s_add_u32 s{a}, s{a}, {HC}")
    A(f"  v_add3_u32 v{vH}, v{t2}, v{t3}, s{a}")
    A(f"  v_lshlrev_b32 v{t2}, 4, v{vl}")
    A(f"  s_lshl_b32 s{a}, s{sw}, 13")
    A(f"  s_add_u32 s{a}, s{a}, {EX}")
    A(f"  v_add_u32 v{vEXw}, s{a}, v{t2}")
    A(f"  s_lshl_b32 s{a}, s{sw}, 10")
    A(f"  s_add_u32 s{a}, s{a}, {EX}")
    A(f"  v_add_u32 v{vEXr}, s{a}, v{t2}")
    A(f"  s_lshl_b32 s{a}, s{sc}, 13")
    A(f"  s_add_u32 s{a}, s{a}, {WS_KVR}")
    A(f"  v_lshl_add_u32 v{vKVo}, v0, 4, s{a}")
    A(f"  s_mul_i32 s{a}, s{sch}, {XR1}")
    A(f"  v_add_u32 v{vXRw}, s{a}, v{L['vT16']}")
    A(f"  s_lshr_b32 s{a}, s{sc}, 3")
    A(f"  s_lshl_b32 s{a}, s{a}, 10")
    A(f"  s_bfe_u32 s{b}, s{sc}, 0x10002")
    A(f"  s_lshl_b32 s{b}, s{b}, 9")
    A(f"  s_add_u32 s{a}, s{a}, s{b}")
    A(f"  s_and_b32 s{b}, s{sc}, 3")
    A(f"  s_lshl_b32 s{b}, s{b}, 2")
    A(f"  s_add_u32 s{a}, s{a}, s{b}")
    A(f"  s_lshl_b32 s{b}, s{sw}, 18")
    A(f"  s_add_u32 s{a}, s{a}, s{b}")
    A(f"  v_lshlrev_b32 v{t2}, 16, v{t1}")
    A(f"  v_lshl_add_u32 v{t2}, v{t0}, 4, v{t2}")
    A(f"  v_add_u32 v{vYo}, s{a}, v{t2}")
    A(f"  s_lshl_b32 s{a}, s{sc}, 13")
    A(f"  s_lshl_b32 s{b}, s{sw}, 10")
    A(f"  s_add_u32 s{a}, s{a}, s{b}")
    A(f"  s_add_u32 s{a}, s{a}, {WS_XP}")
    A(f"  v_lshlrev_b32 v{t2}, 8, v{t1}")
    A(f"  v_lshl_add_u32 v{t2}, v{t0}, 4, v{t2}")
    A(f"  v_add_u32 v{vXo}, s{a}, v{t2}")
    A(f"  v_lshl_add_u32 v{t2}, v{t1}, 6, v{t0}")
    A(f"  s_lshl_b32 s{a}, s{sw}, 11")
    A(f"  s_add_u32 s{a}, s{a}, {WS_ST1}")
    A(f"  v_lshl_add_u32 v{vSo}, v{t2}, 3, s{a}")
    A(f"  s_lshl_b32 s{a}, s{scb}, 5")
    A(f"  v_add_u32 v{vMo}, s{a}, v0")
    A(f"  v_mul_u32_u24 v{vMo}, 1536, v{vMo}")
    A(f"  s_lshl_b32 s{a}, s{stb}, 3")
    A(f"  s_add_u32 s{a}, s{a}, {WS_PART}")
    A(f"  v_add_u32 v{vMo}, s{a}, v{vMo}")
    A(f"  v_lshrrev_b32 v{t2}, 5, v0")
    A(f"  v_min_u32 v{t2}, 1, v{t2}")
    A(f"  v_lshl_or_b32 v{vMo}, v{t2}, 29, v{vMo}")
    A("  s_waitcnt lgkmcnt(0)")
    A(f"  s_lshr_b32 s{a}, s{sD}, 16")
    A(f"  s_and_b32 s{b}, s{sD}, 0xffff")
    A(f"  s_cmp_eq_u32 s{sch}, 0")
    A(f"  s_cselect_b32 s{a}, s{b}, s{a}")
    A(f"  s_lshl_b32 s{b}, s{a}, 16")
    A(f"  v_lshlrev_b32 v{t2}, 3, v{t1}")
    A(f"  v_add_u32 v{t2}, v{t2}, v{t0}")
    A(f"  v_sub_u32 v{t2}, 15, v{t2}")
    A(f"  v_and_b32 v{t3}, 1, v{t2}")
    A(f"  v_cmp_eq_u32 vcc, 1, v{t3}")
    A(f"  v_mov_b32 v{vHD}, s{a}")
    A(f"  v_mov_b32 v{vHD+1}, s{b}")
    A(f"  v_cndmask_b32 v{t3}, v{vHD}, v{vHD+1}, vcc")
    A(f"  v_ashrrev_i32 v{t2}, 1, v{t2}")
    for i in range(4):
        A(f"  v_cmp_eq_u32 vcc, {i}, v{t2}")
        A("  s_nop 1")
        A(f"  v_cndmask_b32 v{vHD+i}, 0, v{t3}, vcc")
    if PREFETCH:
        A(f"  v_and_b32 v{t1}, 127, v0")
        A(f"  v_mul_u32_u24 v{t2}, 147, v{t1}")
        A(f"  v_lshrrev_b32 v{t2}, 10, v{t2}")
        A(f"  v_mul_u32_u24 v{t3}, 7, v{t2}")
        A(f"  v_sub_u32 v{t3}, v{t1}, v{t3}")
        A(f"  s_lshl_b32 s{a}, s{stb}, 4")
        A(f"  v_add_u32 v{t2}, s{a}, v{t2}")
        A(f"  v_mul_u32_u24 v{t2}, 3584, v{t2}")
        A(f"  v_lshl_add_u32 v{vPf}, v{t3}, 7, v{t2}")
        A(f"  s_lshr_b32 s{a}, s{scb}, 1")
        A(f"  s_mul_i32 s{a}, s{a}, 896")
        A(f"  s_cmp_lt_u32 s{sw}, 4")
        A(f"  s_cselect_b32 s{a}, s{a}, 0x40000000")
        A(f"  v_add_u32 v{vPf}, s{a}, v{vPf}")
        A(f"  s_bitcmp1_b32 s{sw}, 1")
        A(f"  s_cselect_b32 s{sPF}, s{pWG+2}, s{pWG}")
        A(f"  s_cselect_b32 s{sPF+1}, s{pWG+3}, s{pWG+1}")
        A(f"  s_mov_b32 s{sPF+2}, {512*1792*2}")
        A(f"  s_mov_b32 s{sPF+3}, 0x20000")
        A(f"  s_mul_i32 s{a}, s2, 7168")
        A(f"  s_cmp_eq_u32 s{sw}, 4")
        A(f"  s_cselect_b32 s{a}, s{a}, 0x40000000")
        A(f"  v_lshl_add_u32 v{vPd}, v{vl}, 7, s{a}")
        A(f"  s_mov_b32 s{sXq}, s{pWD}")
        A(f"  s_mov_b32 s{sXq+1}, s{pWD+1}")
        A(f"  s_mov_b32 s{sXq+2}, {1792*512*2}")
    A(f"  s_cmp_lg_u32 s{sw}, 0")
    A(f"  s_cbranch_scc1 {name}_s1w")
    A(f"  s_lshl_b32 s{a}, s{scb}, 8")
    A(f"  s_add_u32 s{a}, s{a}, {WS_CNT+16*256}")
    A(f"  v_mov_b32 v{t2}, s{a}")
    poll_ge(A, f"{name}_s1", sWS, t2, [vPoll+i for i in range(4)], 32, a, b, SPIN, PSLEEP)
    A(f"{name}_s1w:")
    ST.value(b, SPIN)
    A("  s_waitcnt lgkmcnt(0)")
    A("  s_barrier")
    ST.stamp()
    vKV = vZf
    A(f"  buffer_load_dwordx4 {vr(vKV,4)}, v{vKVo}, {sr(sWS,4)}, 0 offen sc1")
    for m in range(8):
        for hh in range(2):
            A(f"  ds_read_b64 {vr(vHf+4*m+2*hh,2)}, v{vH} offset:{512*m+8*hh}")
    def stat_loads():
        for r in range(4):
            A(f"  buffer_load_dwordx2 {vr(vS1+2*r,2)}, v{vSo}, {sr(sWS,4)}, 0 offen offset:{128*r} sc1")
    A(f"  s_waitcnt vmcnt(0)")
    A(f"  ds_write_b128 v{vXRw}, {vr(vKV,4)}")
    A("  s_waitcnt lgkmcnt(0)")
    A("  s_barrier")
    ST.stamp()
    def late_loads():
        A(f"  s_cmp_lg_u32 s{sw}, 0")
        A(f"  s_cbranch_scc1 {name}_nopt")
        for chk in range(6):
            A(f"  buffer_load_dwordx2 {vr(vPt+2*chk,2)}, v{vMo}, {sr(sWS,4)}, 0 offen offset:{256*chk} sc1")
        A(f"{name}_nopt:")
        A(f"  buffer_load_dwordx4 {vr(vXP,4)}, v{vXo}, {sr(sWS,4)}, 0 offen sc1")
        stat_loads()
    def prefetch():
        if not PREFETCH: return
        A(f"  s_cmp_gt_u32 s{sw}, 4")
        A(f"  s_cbranch_scc1 {name}_nopf")
        A(f"  s_cmp_eq_u32 s{sw}, 4")
        A(f"  s_cbranch_scc1 {name}_pfd")
        A(f"  buffer_load_dword v228, v{vPf}, {sr(sPF,4)}, 0 offen")
        A(f"  s_branch {name}_nopf")
        A(f"{name}_pfd:")
        A(f"  buffer_load_dword v229, v{vPd}, {sr(sXq,4)}, 0 offen")
        A(f"{name}_nopf:")
    def reads(it):
        buf = it & 1
        R = []
        for G in range(8):
            R.append(f"  ds_read_b128 {vr(vZf+32*buf+4*G,4)}, v{vZ} offset:{64*it+512*(7-G)}")
        for m in range(8):
            for hh in range(2):
                R.append(f"  ds_read_b64 {vr(vHf+32*buf+4*m+2*hh,2)}, v{vH} offset:{64*it+512*m+8*hh}")
        return R
    red = []
    for k in range(6): red.append(f"  v_permlane16_swap_b32 v{vPt+2*k}, v{vPt+2*k+1}")
    for k in range(6): red.append(f"  v_add_f32 v{vPt+2*k}, v{vPt+2*k}, v{vPt+2*k+1}")
    for ror in (8, 4, 2, 1):
        for k in range(6):
            red.append(f"  v_add_f32_dpp v{vPt+2*k}, v{vPt+2*k}, v{vPt+2*k} row_ror:{ror} row_mask:0xf bank_mask:0xf")
    for k in range(6): red.append(f"  v_cvt_pk_bf16_f32 v{vPt+2*k}, v{vPt+2*k}, v{vPt+2*k}")
    for k in range(6): red.append(f"  v_lshlrev_b32 v{vPt+2*k}, 16, v{vPt+2*k}")
    for k in (1, 4): red.append(f"  v_add_f32 v{vPt+2*k}, 1.0, v{vPt+2*k}")
    for k in (1, 4): red.append(f"  v_cvt_pk_bf16_f32 v{vPt+2*k}, v{vPt+2*k}, v{vPt+2*k}")
    for k in (1, 4): red.append(f"  v_lshlrev_b32 v{vPt+2*k}, 16, v{vPt+2*k}")
    for s_ in reads(0)[:8]: A(s_)
    late_loads()
    for it in range(2):
        buf = it & 1
        A("  s_waitcnt lgkmcnt(0)")
        nxt = reads(1) if it == 0 else []
        if it == 0:
            A(f"  s_cmp_lg_u32 s{sqq}, 0")
            A(f"  s_cbranch_scc1 {name}_noD")
            for G in range(8):
                A(f"  v_mfma_f32_16x16x32_bf16 {vr(vAcc+4*G,4)}, {vr(vZf+4*G,4)}, {vr(vHD,4)}, 0")
            A(f"  s_branch {name}_Dok")
            A(f"{name}_noD:")
            for i in range(32): A(f"  v_mov_b32 v{vAcc+i}, 0")
            A("  s_nop 1")
            A(f"{name}_Dok:")
        nm = 0
        for m in range(8):
            for Gz in range(8-m):
                G = Gz+m
                A(f"  v_mfma_f32_16x16x32_bf16 {vr(vAcc+4*G,4)}, {vr(vZf+32*buf+4*Gz,4)}, {vr(vHf+32*buf+4*m,4)}, {vr(vAcc+4*G,4)}")
                nm += 1
                if it == 0:
                    if nxt: A(nxt.pop(0))
                else:
                    if nm == 4:
                        A(f"  s_waitcnt vmcnt(0)")
                        prefetch()
                    if nm >= 5:
                        for _ in range(2):
                            if red: A(red.pop(0))
    while red: A(red.pop(0))
    A(f"  s_cmp_lg_u32 s{sw}, 0")
    A(f"  s_cbranch_scc1 {name}_nomd")
    A(f"  v_lshrrev_b32 v{vPt+1}, 4, v{vl}")
    A(f"  v_lshlrev_b32 v{vPt+1}, 2, v{vPt+1}")
    A(f"  v_add_u32 v{vPt+1}, {MD}, v{vPt+1}")
    A(f"  s_mov_b64 exec, 0x10001")
    for i, k in enumerate((0, 1, 2, 4)):
        A(f"  ds_write_b32 v{vPt+1}, v{vPt+2*k} offset:{8*i}")
    A(f"  s_mov_b64 exec, -1")
    A(f"  v_lshrrev_b32 v{vPt+1}, 4, v{vl}")
    A(f"  s_lshl_b32 s{a}, s{sc}, 1")
    A(f"  v_add_u32 v{vPt+1}, s{a}, v{vPt+1}")
    A(f"  v_lshlrev_b32 v{vPt+3}, 2, v{vPt+1}")
    A(f"  v_lshlrev_b32 v{vPt+5}, 1, v{vPt+1}")
    A(f"  s_mov_b64 exec, 0x10001")
    for k in range(6):
        A(f"  s_mov_b32 s{a}, {WS_MOD+k*2048}")
        A(f"  buffer_store_dword v{vPt+2*k}, v{vPt+3}, {sr(sWS,4)}, s{a} offen")
    for k in (3, 4):
        A(f"  v_lshrrev_b32 v{vPt+7}, 16, v{vPt+2*k}")
        A(f"  s_mov_b32 s{a}, {WS_MODH+k*1024}")
        A(f"  buffer_store_short v{vPt+7}, v{vPt+5}, {sr(sWS,4)}, s{a} offen")
        A("  s_nop 0")
    A(f"  s_mov_b64 exec, -1")
    A(f"{name}_nomd:")
    A("  s_nop 7")
    ST.stamp()
    for G in range(8):
        A(f"  ds_write_b128 v{vEXw}, {vr(vAcc+4*G,4)} offset:{G*1024}")
    A(f"  s_mov_b32 s{c_}, {SPIN}")
    A(f"{name}_val:")
    V = vHf
    A(f"  v_min_u32 v{V}, v{vS1}, v{vS1+2}")
    A(f"  v_min3_u32 v{V}, v{V}, v{vS1+4}, v{vS1+6}")
    A(f"  v_cmp_eq_u32 vcc, 0, v{V}")
    A("  s_nop 1")
    A(f"  s_cmp_eq_u64 vcc, 0")
    A(f"  s_cbranch_scc1 {name}_valok")
    A("  s_sleep 1")
    stat_loads()
    A("  s_waitcnt vmcnt(0)")
    A(f"  s_sub_u32 s{c_}, s{c_}, 1")
    A(f"  s_cmp_lg_u32 s{c_}, 0")
    A(f"  s_cbranch_scc1 {name}_val")
    A(f"{name}_valok:")
    ST.value(c_, SPIN)
    X, N = vHf+8, vHf+16
    for r in range(4):
        A(f"  v_lshlrev_b32 v{X+2*r}, 16, v{vXP+r}")
        A(f"  v_and_b32 v{X+2*r+1}, 0xffff0000, v{vXP+r}")
    for r in range(4):
        rs = vS1+2*r
        A(f"  v_pk_add_f32 {vr(N+2*r,2)}, {vr(X+2*r,2)}, {vr(rs,2)} op_sel:[0,1] op_sel_hi:[1,1] neg_lo:[0,1] neg_hi:[0,1]")
    for r in range(4):
        rs = vS1+2*r
        A(f"  v_pk_mul_f32 {vr(N+2*r,2)}, {vr(N+2*r,2)}, {vr(rs,2)} op_sel_hi:[1,0]")
    A("  s_waitcnt lgkmcnt(0)")
    A("  s_barrier")
    ST.stamp()
    A(f"  v_mov_b32 v{t2}, {MD}")
    A(f"  ds_read_b128 {vr(vMd,4)}, v{t2}")
    A(f"  ds_read_b128 {vr(vMd+4,4)}, v{t2} offset:16")
    vR = vZf
    for s_ in range(8):
        A(f"  ds_read_b128 {vr(vR+4*s_,4)}, v{vEXr} offset:{s_*8192}")
    sa, c1a, ga, c1b = vMd, vMd+2, vMd+4, vMd+6
    A("  s_waitcnt lgkmcnt(8)")
    for r in range(4): A(f"  v_pk_fma_f32 {vr(N+2*r,2)}, {vr(N+2*r,2)}, {vr(c1a,2)}, {vr(sa,2)}")
    for r in range(4): A(f"  v_pk_mul_f32 {vr(N+2*r,2)}, {vr(N+2*r,2)}, {vr(ga,2)}")
    A("  s_waitcnt lgkmcnt(4)")
    for hh in range(2):
        A(f"  v_pk_add_f32 {vr(vR+2*hh,2)}, {vr(vR+2*hh,2)}, {vr(vR+4+2*hh,2)}")
        A(f"  v_pk_add_f32 {vr(vR+8+2*hh,2)}, {vr(vR+8+2*hh,2)}, {vr(vR+12+2*hh,2)}")
    for hh in range(2):
        A(f"  v_pk_add_f32 {vr(vR+2*hh,2)}, {vr(vR+2*hh,2)}, {vr(vR+8+2*hh,2)}")
    A("  s_waitcnt lgkmcnt(0)")
    for hh in range(2):
        A(f"  v_pk_add_f32 {vr(vR+16+2*hh,2)}, {vr(vR+16+2*hh,2)}, {vr(vR+20+2*hh,2)}")
        A(f"  v_pk_add_f32 {vr(vR+24+2*hh,2)}, {vr(vR+24+2*hh,2)}, {vr(vR+28+2*hh,2)}")
    for hh in range(2):
        A(f"  v_pk_add_f32 {vr(vR+16+2*hh,2)}, {vr(vR+16+2*hh,2)}, {vr(vR+24+2*hh,2)}")
    for r in range(4):
        A(f"  v_fma_f32 v{X+2*r}, v{N+2*r}, v{vR+r}, v{X+2*r}")
        A(f"  v_fma_f32 v{X+2*r+1}, v{N+2*r+1}, v{vR+16+r}, v{X+2*r+1}")
    PX, PZ = vR+4, vR+8
    ST.stamp()
    for r in range(4): A(f"  v_cvt_pk_bf16_f32 v{PX+r}, v{X+2*r}, v{X+2*r+1}")
    A(f"  s_mov_b32 s{a}, {WS_X1}")
    A(f"  s_mov_b32 s{b}, {WS_X1+32768}")
    A(f"  s_mov_b32 s{c_}, {WS_H2}")
    A(f"  s_mov_b32 s{d_}, {WS_H2+32768}")
    for r in range(4):
        A(f"  buffer_store_dword v{PX+r}, v{vYo}, {sr(sWS,4)}, s{a+(r>>1)} offen offset:{256*(r&1)}" + (" sc1" if _os_env("XSC1","") else ""))
    for r in range(4):
        A(f"  v_lshlrev_b32 v{X+2*r}, 16, v{PX+r}")
        A(f"  v_and_b32 v{X+2*r+1}, 0xffff0000, v{PX+r}")
    for r in range(4):
        A(f"  v_pk_add_f32 {vr(X+2*r,2)}, {vr(X+2*r,2)}, {vr(vS1+2*r,2)} op_sel:[0,1] op_sel_hi:[1,1] neg_lo:[0,1] neg_hi:[0,1]")
    for r in range(4): A(f"  v_pk_mul_f32 {vr(X+2*r,2)}, {vr(X+2*r,2)}, {vr(c1b,2)}")
    for r in range(4): A(f"  v_cvt_pk_bf16_f32 v{PZ+r}, v{X+2*r}, v{X+2*r+1}")
    for r in range(4):
        A(f"  buffer_store_dword v{PZ+r}, v{vYo}, {sr(sWS,4)}, s{c_+(r>>1)} offen offset:{256*(r&1)}" + (" sc1" if _os_env("XSC1","") else ""))
    if _os_env("XDRAIN",""):
        ST.stamp()
        A("  s_waitcnt vmcnt(0)")
        A("  s_barrier")

def conv4(A, L):
    name, ST, SPIN, PREFETCH, PSLEEP = (L[k] for k in "name ST SPIN PREFETCH PSLEEP".split())
    XR1, HC, HCH, MD, EX = (L[k] for k in "XR1 HC HCH MD EX".split())
    vl, t0, t1, t2, t3 = 1, 2, 3, 4, 5
    sWS, sSH, sXq, sPF = (L[k] for k in "sWS sSH sXq sPF".split())
    stb, scb, sw, sc, sch, sqq, sD = (L[k] for k in "stb scb sw sc sch sqq sD".split())
    a, b, c_, d_ = 44, 45, 46, 47
    pWG, pWD = L['pWG'], L['pWD']
    vAcc, vZf, vHf = 16, 48, 112
    vXP, vS1, vMd, vPt = 176, 180, 188, 196
    vZ, vH, vEXw, vEXr, vYo, vKVo, vXRw, vXo, vSo, vMo, vPf, vPd = range(208, 220)
    vHD = 220
    vPoll = 224
    scc, sqh = 61, 62
    A(f"  s_bfe_u32 s{scc}, s{sw}, 0x10001")
    A(f"  s_and_b32 s{sqh}, s{sw}, 1")
    A(f"  v_and_b32 v{t0}, 15, v{vl}")
    A(f"  v_lshrrev_b32 v{t1}, 4, v{vl}")
    A(f"  v_lshlrev_b32 v{t2}, 5, v{t0}")
    A(f"  v_sub_u32 v{t2}, 480, v{t2}")
    A(f"  v_lshl_add_u32 v{t2}, v{t1}, 4, v{t2}")
    A(f"  s_mul_i32 s{a}, s{scc}, {XR1}")
    A(f"  s_lshl_b32 s{b}, s{sqh}, 8")
    A(f"  s_add_u32 s{a}, s{a}, s{b}")
    A(f"  v_add_u32 v{vZ}, s{a}, v{t2}")
    A(f"  v_add_u32 v{t2}, 1, v{t0}")
    A(f"  v_and_b32 v{t3}, 3, v{t2}")
    A(f"  v_sub_u32 v{t2}, v{t2}, v{t3}")
    A(f"  v_lshl_add_u32 v{t2}, v{t1}, 3, v{t2}")
    A(f"  v_lshlrev_b32 v{t2}, 1, v{t2}")
    A(f"  v_mul_u32_u24 v{t3}, 4160, v{t3}")
    A(f"  s_mul_i32 s{a}, s{scc}, {HCH}")
    A(f"  s_add_u32 s{a}, s{a}, s{b}")
    A(f"  s_add_u32 s{a}, s{a}, {HC}")
    A(f"  v_add3_u32 v{vH}, v{t2}, v{t3}, s{a}")
    A(f"  v_lshlrev_b32 v{t2}, 4, v{vl}")
    A(f"  s_lshl_b32 s{a}, s{sw}, 13")
    A(f"  s_add_u32 s{a}, s{a}, {EX}")
    A(f"  v_add_u32 v{vEXw}, s{a}, v{t2}")
    A(f"  s_lshl_b32 s{a}, s{sw}, 10")
    A(f"  s_add_u32 s{a}, s{a}, {EX}")
    A(f"  v_add_u32 v{vEXr}, s{a}, v{t2}")
    A(f"  s_lshl_b32 s{a}, s{sc}, 13")
    A(f"  s_add_u32 s{a}, s{a}, {WS_KVR}")
    A(f"  v_lshl_add_u32 v{vKVo}, v0, 4, s{a}")
    A(f"  s_mul_i32 s{a}, s{sch}, {XR1}")
    A(f"  v_add_u32 v{vXRw}, s{a}, v{L['vT16']}")
    A(f"  s_lshr_b32 s{a}, s{sc}, 3")
    A(f"  s_lshl_b32 s{a}, s{a}, 10")
    A(f"  s_bfe_u32 s{b}, s{sc}, 0x10002")
    A(f"  s_lshl_b32 s{b}, s{b}, 9")
    A(f"  s_add_u32 s{a}, s{a}, s{b}")
    A(f"  s_and_b32 s{b}, s{sc}, 3")
    A(f"  s_lshl_b32 s{b}, s{b}, 2")
    A(f"  s_add_u32 s{a}, s{a}, s{b}")
    A(f"  s_lshl_b32 s{b}, s{sw}, 18")
    A(f"  s_add_u32 s{a}, s{a}, s{b}")
    A(f"  v_lshlrev_b32 v{t2}, 16, v{t1}")
    A(f"  v_lshl_add_u32 v{t2}, v{t0}, 4, v{t2}")
    A(f"  v_add_u32 v{vYo}, s{a}, v{t2}")
    A(f"  s_lshl_b32 s{a}, s{sc}, 13")
    A(f"  s_lshl_b32 s{b}, s{sw}, 10")
    A(f"  s_add_u32 s{a}, s{a}, s{b}")
    A(f"  s_add_u32 s{a}, s{a}, {WS_XP}")
    A(f"  v_lshlrev_b32 v{t2}, 8, v{t1}")
    A(f"  v_lshl_add_u32 v{t2}, v{t0}, 4, v{t2}")
    A(f"  v_add_u32 v{vXo}, s{a}, v{t2}")
    A(f"  v_lshl_add_u32 v{t2}, v{t1}, 6, v{t0}")
    A(f"  s_lshl_b32 s{a}, s{sw}, 11")
    A(f"  s_add_u32 s{a}, s{a}, {WS_ST1}")
    A(f"  v_lshl_add_u32 v{vSo}, v{t2}, 3, s{a}")
    A(f"  s_lshl_b32 s{a}, s{scb}, 5")
    A(f"  v_add_u32 v{vMo}, s{a}, v{vl}")
    A(f"  v_mul_u32_u24 v{vMo}, 1536, v{vMo}")
    A(f"  s_lshl_b32 s{a}, s{stb}, 3")
    A(f"  s_add_u32 s{a}, s{a}, {WS_PART}")
    A(f"  v_add_u32 v{vMo}, s{a}, v{vMo}")
    A(f"  v_lshrrev_b32 v{t2}, 5, v{vl}")
    A(f"  v_lshl_or_b32 v{vMo}, v{t2}, 29, v{vMo}")
    A("  s_waitcnt lgkmcnt(0)")
    A(f"  s_lshr_b32 s{a}, s{sD}, 16")
    A(f"  s_and_b32 s{b}, s{sD}, 0xffff")
    A(f"  s_cmp_eq_u32 s{scc}, 0")
    A(f"  s_cselect_b32 s{a}, s{b}, s{a}")
    A(f"  s_lshl_b32 s{b}, s{a}, 16")
    A(f"  v_lshlrev_b32 v{t2}, 3, v{t1}")
    A(f"  v_add_u32 v{t2}, v{t2}, v{t0}")
    A(f"  v_sub_u32 v{t2}, 15, v{t2}")
    A(f"  v_and_b32 v{t3}, 1, v{t2}")
    A(f"  v_cmp_eq_u32 vcc, 1, v{t3}")
    A(f"  v_mov_b32 v{vHD}, s{a}")
    A(f"  v_mov_b32 v{vHD+1}, s{b}")
    A(f"  v_cndmask_b32 v{t3}, v{vHD}, v{vHD+1}, vcc")
    A(f"  v_ashrrev_i32 v{t2}, 1, v{t2}")
    for i in range(4):
        A(f"  v_cmp_eq_u32 vcc, {i}, v{t2}")
        A("  s_nop 1")
        A(f"  v_cndmask_b32 v{vHD+i}, 0, v{t3}, vcc")
    if PREFETCH:
        A(f"  v_and_b32 v{t1}, 127, v0")
        A(f"  v_mul_u32_u24 v{t2}, 147, v{t1}")
        A(f"  v_lshrrev_b32 v{t2}, 10, v{t2}")
        A(f"  v_mul_u32_u24 v{t3}, 7, v{t2}")
        A(f"  v_sub_u32 v{t3}, v{t1}, v{t3}")
        A(f"  s_lshl_b32 s{a}, s{stb}, 4")
        A(f"  v_add_u32 v{t2}, s{a}, v{t2}")
        A(f"  v_mul_u32_u24 v{t2}, 3584, v{t2}")
        A(f"  v_lshl_add_u32 v{vPf}, v{t3}, 7, v{t2}")
        A(f"  s_lshr_b32 s{a}, s{scb}, 1")
        A(f"  s_mul_i32 s{a}, s{a}, 896")
        A(f"  v_add_u32 v{vPf}, s{a}, v{vPf}")
        A(f"  s_bitcmp1_b32 s{sw}, 1")
        A(f"  s_cselect_b32 s{sPF}, s{pWG+2}, s{pWG}")
        A(f"  s_cselect_b32 s{sPF+1}, s{pWG+3}, s{pWG+1}")
        A(f"  s_mov_b32 s{sPF+2}, {512*1792*2}")
        A(f"  s_mov_b32 s{sPF+3}, 0x20000")
        if L['PFWD'] == 2:
            A(f"  s_mul_i32 s{a}, s{stb}, 57344")
            A(f"  v_and_b32 v{t1}, 255, v0")
            A(f"  v_lshl_add_u32 v{vPd}, v{t1}, 7, s{a}")
        else:
            A(f"  s_mul_i32 s{a}, s2, 7168")
            A(f"  v_lshl_add_u32 v{vPd}, v{vl}, 7, s{a}")
        A(f"  s_mov_b32 s{sXq}, s{pWD}")
        A(f"  s_mov_b32 s{sXq+1}, s{pWD+1}")
        A(f"  s_mov_b32 s{sXq+2}, {1792*512*2}")
    A(f"  s_cmp_lg_u32 s{sw}, 0")
    A(f"  s_cbranch_scc1 {name}_s1w")
    A(f"  s_lshl_b32 s{a}, s{scb}, 8")
    A(f"  s_add_u32 s{a}, s{a}, {WS_CNT+16*256}")
    A(f"  v_mov_b32 v{t2}, s{a}")
    poll_ge(A, f"{name}_s1", sWS, t2, [vPoll+i for i in range(4)], 32, a, b, SPIN, PSLEEP)
    A(f"{name}_s1w:")
    ST.value(b, SPIN)
    A("  s_waitcnt lgkmcnt(0)")
    A("  s_barrier")
    ST.stamp()
    vKV = vZf
    A(f"  buffer_load_dwordx4 {vr(vKV,4)}, v{vKVo}, {sr(sWS,4)}, 0 offen sc1")
    A(f"  s_cmp_ge_u32 s{sw}, 4")
    A(f"  s_cbranch_scc1 {name}_nohf")
    for m in range(8):
        for hh in range(2):
            A(f"  ds_read_b64 {vr(vHf+4*m+2*hh,2)}, v{vH} offset:{512*m+8*hh}")
    A(f"{name}_nohf:")
    def stat_loads():
        for r in range(4):
            A(f"  buffer_load_dwordx2 {vr(vS1+2*r,2)}, v{vSo}, {sr(sWS,4)}, 0 offen offset:{128*r} sc1")
    A(f"  s_waitcnt vmcnt(0)")
    A(f"  ds_write_b128 v{vXRw}, {vr(vKV,4)}")
    A("  s_waitcnt lgkmcnt(0)")
    A("  s_barrier")
    ST.stamp()
    def late_loads():
        A(f"  buffer_load_dwordx4 {vr(vXP,4)}, v{vXo}, {sr(sWS,4)}, 0 offen sc1")
        stat_loads()
    def reads(it):
        buf = it & 1
        R = []
        for G in range(8):
            R.append(f"  ds_read_b128 {vr(vZf+32*buf+4*G,4)}, v{vZ} offset:{64*it+512*(7-G)}")
        for m in range(8):
            for hh in range(2):
                R.append(f"  ds_read_b64 {vr(vHf+32*buf+4*m+2*hh,2)}, v{vH} offset:{64*it+512*m+8*hh}")
        return R
    red = []
    for k in range(6): red.append(f"  v_permlane16_swap_b32 v{vPt+2*k}, v{vPt+2*k+1}")
    for k in range(6): red.append(f"  v_add_f32 v{vPt+2*k}, v{vPt+2*k}, v{vPt+2*k+1}")
    for ror in (8, 4, 2, 1):
        for k in range(6):
            red.append(f"  v_add_f32_dpp v{vPt+2*k}, v{vPt+2*k}, v{vPt+2*k} row_ror:{ror} row_mask:0xf bank_mask:0xf")
    for k in range(6): red.append(f"  v_cvt_pk_bf16_f32 v{vPt+2*k}, v{vPt+2*k}, v{vPt+2*k}")
    for k in range(6): red.append(f"  v_lshlrev_b32 v{vPt+2*k}, 16, v{vPt+2*k}")
    for k in (1, 4): red.append(f"  v_add_f32 v{vPt+2*k}, 1.0, v{vPt+2*k}")
    for k in (1, 4): red.append(f"  v_cvt_pk_bf16_f32 v{vPt+2*k}, v{vPt+2*k}, v{vPt+2*k}")
    for k in (1, 4): red.append(f"  v_lshlrev_b32 v{vPt+2*k}, 16, v{vPt+2*k}")
    A(f"  s_cmp_ge_u32 s{sw}, 4")
    A(f"  s_cbranch_scc1 {name}_support")
    for s_ in reads(0)[:8]: A(s_)
    late_loads()
    for it in range(4):
        buf = it & 1
        A("  s_waitcnt lgkmcnt(0)")
        nxt = reads(it+1) if it < 3 else []
        if it == 0:
            A(f"  s_cmp_lg_u32 s{sqh}, 0")
            A(f"  s_cbranch_scc1 {name}_noD")
            for G in range(8):
                A(f"  v_mfma_f32_16x16x32_bf16 {vr(vAcc+4*G,4)}, {vr(vZf+4*G,4)}, {vr(vHD,4)}, 0")
            A(f"  s_branch {name}_Dok")
            A(f"{name}_noD:")
            for i in range(32): A(f"  v_mov_b32 v{vAcc+i}, 0")
            A("  s_nop 1")
            A(f"{name}_Dok:")
        for m in range(8):
            for Gz in range(8-m):
                G = Gz+m
                A(f"  v_mfma_f32_16x16x32_bf16 {vr(vAcc+4*G,4)}, {vr(vZf+32*buf+4*Gz,4)}, {vr(vHf+32*buf+4*m,4)}, {vr(vAcc+4*G,4)}")
                if nxt: A(nxt.pop(0))
    A("  s_nop 7")
    ST.stamp()
    for G in range(8):
        A(f"  ds_write_b128 v{vEXw}, {vr(vAcc+4*G,4)} offset:{G*1024}")
    A("  s_waitcnt vmcnt(0)")
    A(f"  s_branch {name}_join")
    A(f"{name}_support:")
    A(f"  s_cmp_lg_u32 s{sw}, 4")
    A(f"  s_cbranch_scc1 {name}_nopt")
    for chk in range(6):
        A(f"  buffer_load_dwordx2 {vr(vPt+2*chk,2)}, v{vMo}, {sr(sWS,4)}, 0 offen offset:{256*chk} sc1")
    A(f"{name}_nopt:")
    late_loads()
    A("  s_waitcnt vmcnt(0)")
    if PREFETCH:
        A(f"  buffer_load_dword v228, v{vPf}, {sr(sPF,4)}, 0 offen")
        if L['PFWD'] == 2:
            A(f"  buffer_load_dword v229, v{vPd}, {sr(sXq,4)}, 0 offen")
            A(f"  s_mov_b32 s{a}, 32768")
            A(f"  buffer_load_dword v230, v{vPd}, {sr(sXq,4)}, s{a} offen")
        else:
            A(f"  s_cmp_lg_u32 s{sw}, 5")
            A(f"  s_cbranch_scc1 {name}_nopd")
            A(f"  buffer_load_dword v229, v{vPd}, {sr(sXq,4)}, 0 offen")
            A(f"{name}_nopd:")
    A(f"  s_cmp_lg_u32 s{sw}, 4")
    A(f"  s_cbranch_scc1 {name}_join")
    while red: A(red.pop(0))
    A(f"  v_lshrrev_b32 v{vPt+1}, 4, v{vl}")
    A(f"  v_lshlrev_b32 v{vPt+1}, 2, v{vPt+1}")
    A(f"  v_add_u32 v{vPt+1}, {MD}, v{vPt+1}")
    A(f"  s_mov_b64 exec, 0x10001")
    for i, k in enumerate((0, 1, 2, 4)):
        A(f"  ds_write_b32 v{vPt+1}, v{vPt+2*k} offset:{8*i}")
    A(f"  s_mov_b64 exec, -1")
    A(f"  v_lshrrev_b32 v{vPt+1}, 4, v{vl}")
    A(f"  s_lshl_b32 s{a}, s{sc}, 1")
    A(f"  v_add_u32 v{vPt+1}, s{a}, v{vPt+1}")
    A(f"  v_lshlrev_b32 v{vPt+3}, 2, v{vPt+1}")
    A(f"  v_lshlrev_b32 v{vPt+5}, 1, v{vPt+1}")
    A(f"  s_mov_b64 exec, 0x10001")
    for k in range(6):
        A(f"  s_mov_b32 s{a}, {WS_MOD+k*2048}")
        A(f"  buffer_store_dword v{vPt+2*k}, v{vPt+3}, {sr(sWS,4)}, s{a} offen")
    for k in (3, 4):
        A(f"  v_lshrrev_b32 v{vPt+7}, 16, v{vPt+2*k}")
        A(f"  s_mov_b32 s{a}, {WS_MODH+k*1024}")
        A(f"  buffer_store_short v{vPt+7}, v{vPt+5}, {sr(sWS,4)}, s{a} offen")
        A("  s_nop 0")
    A(f"  s_mov_b64 exec, -1")
    A(f"{name}_join:")
    A(f"  s_mov_b32 s{c_}, {SPIN}")
    A(f"{name}_val:")
    V = vHf
    A(f"  v_min_u32 v{V}, v{vS1}, v{vS1+2}")
    A(f"  v_min3_u32 v{V}, v{V}, v{vS1+4}, v{vS1+6}")
    A(f"  v_cmp_eq_u32 vcc, 0, v{V}")
    A("  s_nop 1")
    A(f"  s_cmp_eq_u64 vcc, 0")
    A(f"  s_cbranch_scc1 {name}_valok")
    A("  s_sleep 1")
    stat_loads()
    A("  s_waitcnt vmcnt(0)")
    A(f"  s_sub_u32 s{c_}, s{c_}, 1")
    A(f"  s_cmp_lg_u32 s{c_}, 0")
    A(f"  s_cbranch_scc1 {name}_val")
    A(f"{name}_valok:")
    ST.value(c_, SPIN)
    X, N = vHf+8, vHf+16
    for r in range(4):
        A(f"  v_lshlrev_b32 v{X+2*r}, 16, v{vXP+r}")
        A(f"  v_and_b32 v{X+2*r+1}, 0xffff0000, v{vXP+r}")
    for r in range(4):
        rs = vS1+2*r
        A(f"  v_pk_add_f32 {vr(N+2*r,2)}, {vr(X+2*r,2)}, {vr(rs,2)} op_sel:[0,1] op_sel_hi:[1,1] neg_lo:[0,1] neg_hi:[0,1]")
    for r in range(4):
        rs = vS1+2*r
        A(f"  v_pk_mul_f32 {vr(N+2*r,2)}, {vr(N+2*r,2)}, {vr(rs,2)} op_sel_hi:[1,0]")
    A("  s_waitcnt lgkmcnt(0)")
    A("  s_barrier")
    ST.stamp()
    A(f"  v_mov_b32 v{t2}, {MD}")
    A(f"  ds_read_b128 {vr(vMd,4)}, v{t2}")
    A(f"  ds_read_b128 {vr(vMd+4,4)}, v{t2} offset:16")
    vR = vZf
    for s_ in range(4):
        A(f"  ds_read_b128 {vr(vR+(0,4,16,20)[s_],4)}, v{vEXr} offset:{s_*8192}")
    sa, c1a, ga, c1b = vMd, vMd+2, vMd+4, vMd+6
    A("  s_waitcnt lgkmcnt(4)")
    for r in range(4): A(f"  v_pk_fma_f32 {vr(N+2*r,2)}, {vr(N+2*r,2)}, {vr(c1a,2)}, {vr(sa,2)}")
    for r in range(4): A(f"  v_pk_mul_f32 {vr(N+2*r,2)}, {vr(N+2*r,2)}, {vr(ga,2)}")
    A("  s_waitcnt lgkmcnt(0)")
    for hh in range(2):
        A(f"  v_pk_add_f32 {vr(vR+2*hh,2)}, {vr(vR+2*hh,2)}, {vr(vR+4+2*hh,2)}")
        A(f"  v_pk_add_f32 {vr(vR+16+2*hh,2)}, {vr(vR+16+2*hh,2)}, {vr(vR+20+2*hh,2)}")
    for r in range(4):
        A(f"  v_fma_f32 v{X+2*r}, v{N+2*r}, v{vR+r}, v{X+2*r}")
        A(f"  v_fma_f32 v{X+2*r+1}, v{N+2*r+1}, v{vR+16+r}, v{X+2*r+1}")
    PX, PZ = vR+4, vR+8
    ST.stamp()
    for r in range(4): A(f"  v_cvt_pk_bf16_f32 v{PX+r}, v{X+2*r}, v{X+2*r+1}")
    A(f"  s_mov_b32 s{a}, {WS_X1}")
    A(f"  s_mov_b32 s{b}, {WS_X1+32768}")
    A(f"  s_mov_b32 s{c_}, {WS_H2}")
    A(f"  s_mov_b32 s{d_}, {WS_H2+32768}")
    for r in range(4):
        A(f"  buffer_store_dword v{PX+r}, v{vYo}, {sr(sWS,4)}, s{a+(r>>1)} offen offset:{256*(r&1)}" + (" sc1" if _os_env("XSC1","") else ""))
    for r in range(4):
        A(f"  v_lshlrev_b32 v{X+2*r}, 16, v{PX+r}")
        A(f"  v_and_b32 v{X+2*r+1}, 0xffff0000, v{PX+r}")
    for r in range(4):
        A(f"  v_pk_add_f32 {vr(X+2*r,2)}, {vr(X+2*r,2)}, {vr(vS1+2*r,2)} op_sel:[0,1] op_sel_hi:[1,1] neg_lo:[0,1] neg_hi:[0,1]")
    for r in range(4): A(f"  v_pk_mul_f32 {vr(X+2*r,2)}, {vr(X+2*r,2)}, {vr(c1b,2)}")
    for r in range(4): A(f"  v_cvt_pk_bf16_f32 v{PZ+r}, v{X+2*r}, v{X+2*r+1}")
    for r in range(4):
        A(f"  buffer_store_dword v{PZ+r}, v{vYo}, {sr(sWS,4)}, s{c_+(r>>1)} offen offset:{256*(r&1)}" + (" sc1" if _os_env("XSC1","") else ""))
    if _os_env("XDRAIN",""):
        ST.stamp()
        A("  s_waitcnt vmcnt(0)")
        A("  s_barrier")
```

```python
from common import *
from poll import poll_ge

NHELP = 32
UNIT = [131072 + 8192*p for p in range(4)] + [m*65536 + 8192*st for st in range(8) for m in range(2)]
def gen_kb(A, name="ffn_kernel", kidx=3, AHEAD=2, SPACE=2, NSLOT=20, SPIN=200000, B0=10, BR=2, QFL=24, QCK=27, EARLY=0, QPF=18, QDMA=18, PSLEEP=2, PK=1, ALLST=0, STAG=0, NIN=0, DSP=5, NPOST=8, NEPI=8, W2=0, PRIO=0, NOBAR=0, EPOLL=1):
    LDS = 4*NSLOT*2048
    assert LDS >= 131072
    REG = NSLOT*2048
    kernel_header(A, name)
    ST = Stamper(A, kidx); ST.stamp()
    sW, sH, sACT, sWD, sCNT, sX = 8, 12, 16, 20, 24, 28
    sw, sm, sWo, sM0, sf0, stb, sHo = 40, 41, 42, 43, 44, 45, 46
    sT0, sT1, sT2, sT3 = 47, 48, 49, 50
    sdb, stb64, skq, stt, sDo, sLb = 51, 52, 53, 54, 55, 56
    pWG, pWU, pWD, pWS, pOUT = 4, 6, 32, 34, 36
    A("  s_cmp_ge_u32 s2, 256")
    A(f"  s_cbranch_scc1 {name}_end")
    A(f"  s_load_dwordx4 s[4:7], s[0:1], {KA['wg']}")
    A(f"  s_load_dwordx2 s[{pWD}:{pWD+1}], s[0:1], {KA['wd']}")
    A(f"  s_load_dwordx2 s[{pWS}:{pWS+1}], s[0:1], {KA['ws']}")
    A(f"  s_load_dwordx2 s[{pOUT}:{pOUT+1}], s[0:1], {KA['out']}")
    vl, vWoff, vH, vAct, vt0, vt1, vt2, vt3, vRS = 1,2,3,4,5,6,7,8,14
    vA = 10
    vAf = 16
    vAcc = 48
    vX = 112
    A(f"  v_lshrrev_b32 v{vt0}, 6, v0")
    A(f"  v_and_b32 v{vl}, 63, v0")
    A(f"  v_readfirstlane_b32 s{sw}, v{vt0}")
    A("  s_and_b32 s3, s2, 7")
    A(f"  s_lshr_b32 s{sT0}, s2, 3")
    A(f"  s_and_b32 s{sdb}, s{sT0}, 7")
    A(f"  s_lshr_b32 s{sT1}, s{sT0}, 3")
    A(f"  s_lshl_b32 s{stb64}, s3, 2")
    A(f"  s_add_u32 s{stb64}, s{stb64}, s{sT1}")
    A(f"  s_lshr_b32 s{skq}, s{sw}, 1")
    A(f"  s_and_b32 s{stt}, s{sw}, 1")
    A(f"  s_mov_b32 s{sm}, s{stt}")
    A("  s_cmp_ge_u32 s2, 224")
    A(f"  s_cbranch_scc1 {name}_helper")
    A(f"  s_mul_i32 s{sT1}, s{sT0}, 37")
    A(f"  s_lshr_b32 s{sT1}, s{sT1}, 8")
    A(f"  s_mul_i32 s{sT2}, s{sT1}, 7")
    A(f"  s_sub_u32 s{sT2}, s{sT0}, s{sT2}")
    A(f"  s_and_b32 s{sT3}, s3, 1")
    A(f"  s_lshl_b32 s{sT3}, s{sT3}, 2")
    A(f"  s_add_u32 s{stb}, s{sT3}, s{sT1}")
    A(f"  s_lshr_b32 s{sT3}, s3, 1")
    A(f"  s_mul_i32 s{sT3}, s{sT3}, 7")
    A(f"  s_add_u32 s{sT3}, s{sT3}, s{sT2}")
    A(f"  s_lshl_b32 s{sf0}, s{sT3}, 6")
    A(f"  v_lshrrev_b32 v{vt0}, 3, v{vl}")
    A(f"  v_bfe_u32 v{vt1}, v{vl}, 4, 1")
    A(f"  s_lshl_b32 s{sT0}, s{sm}, 1")
    A(f"  v_bfe_u32 v{vt2}, v{vl}, 1, 2")
    A(f"  v_or_b32 v{vt1}, s{sT0}, v{vt1}")
    A(f"  v_xor_b32 v{vt1}, v{vt1}, v{vt2}")
    A(f"  v_and_b32 v{vt2}, 1, v{vl}")
    A(f"  v_lshlrev_b32 v{vt1}, 5, v{vt1}")
    A(f"  v_lshl_add_u32 v{vt1}, v{vt2}, 4, v{vt1}")
    A(f"  s_movk_i32 s{sT0}, 3584")
    A(f"  v_mad_u32_u24 v{vWoff}, v{vt0}, s{sT0}, v{vt1}")
    sTB32 = 57
    A(f"  s_lshl_b32 s{sTB32}, s{stb}, 3")
    A(f"  s_add_u32 s{sTB32}, s{sTB32}, s{sw}")
    A(f"  s_lshl_b32 s{sT1}, s{sTB32}, 15")
    A(f"  v_lshlrev_b32 v{vt0}, 4, v{vl}")
    A(f"  v_add_u32 v{vH}, s{sT1}, v{vt0}")
    A(f"  s_mul_i32 s{sWo}, s{skq}, {16*3584}")
    A(f"  s_lshl_b32 s{sT1}, s{sf0}, 1")
    A(f"  s_add_u32 s{sWo}, s{sWo}, s{sT1}")
    A(f"  s_lshl_b32 s{sM0}, s{skq}, 11")
    A(f"  s_lshl_b32 s{sT1}, s{sm}, 16")
    A(f"  s_add_u32 s{sM0}, s{sM0}, s{sT1}")
    A(f"  s_mov_b32 s{sHo}, 0")
    A("  s_waitcnt lgkmcnt(0)")
    A(f"  s_cmp_eq_u32 s{sm}, 0")
    A(f"  s_cselect_b32 s{sW}, s4, s6")
    A(f"  s_cselect_b32 s{sW+1}, s5, s7")
    A(f"  s_mov_b32 s{sW+2}, {512*1792*2}")
    A(f"  s_mov_b32 s{sW+3}, 0x20000")
    srd(A, sH, pWS, WS_H2, SZ2M)
    loadops = []
    for st in range(8):
        for ii in range(2):
            L = [f"  s_add_u32 m0, s{sM0}, {st*64*128 + ii*1024}"]
            if st or ii:
                inc = 8*3584 if ii else (64-8)*3584
                L.append(f"  s_add_u32 s{sWo}, s{sWo}, {inc}")
            else:
                L.append("  s_nop 0")
            L.append(f"  buffer_load_dwordx4 v{vWoff}, {sr(sW,4)}, s{sWo} offen lds")
            loadops.append(L)
        for qq in range(4):
            q = 4*st+qq
            L = [f"  buffer_load_dwordx4 {ar(4*q,4)}, v{vH}, {sr(sH,4)}, s{sHo} offen offset:{qq*1024}"]
            if qq == 3 and st < 7:
                L.append(f"  s_add_u32 s{sHo}, s{sHo}, 4096")
            loadops.append(L)
    state = dict(n=0, vm=0)
    mark = {}
    def emit_load():
        if state['n'] < 48:
            for x in loadops[state['n']]: A(x)
            state['n'] += 1; state['vm'] += 1
            if state['n'] % 6 == 0: mark[state['n']//6-1] = state['vm']
    def other_vm(line):
        A(line); state['vm'] += 1
        return state['vm']
    def wait_vm(idx):
        A(f"  s_waitcnt vmcnt({state['vm']-idx})")
    for _ in range(6): emit_load()
    srd(A, sACT, pWS, WS_ACT, SZ_ACT)
    srd(A, sWD, pWD, 0, 1792*512*2)
    srd(A, sCNT, pWS, WS_CNT, 4096)
    A(f"  v_bfe_u32 v{vt1}, v{vl}, 2, 2")
    A(f"  v_lshrrev_b32 v{vt2}, 5, v{vl}")
    A(f"  v_lshl_add_u32 v{vt2}, v{vt2}, 3, v{vt1}")
    A(f"  v_bfe_u32 v{vt3}, v{vl}, 4, 1")
    A(f"  v_lshlrev_b32 v{vt2}, 7, v{vt2}")
    A(f"  v_lshl_add_u32 v{vt2}, v{vt3}, 16, v{vt2}")
    A(f"  v_lshrrev_b32 v{vt1}, 1, v{vt1}")
    A(f"  v_lshl_or_b32 v{vt1}, v{vt3}, 1, v{vt1}")
    A(f"  v_and_b32 v{vt3}, 1, v{vl}")
    A(f"  v_lshl_add_u32 v{vt2}, v{vt3}, 4, v{vt2}")
    A(f"  v_bfe_u32 v{vt3}, v{vl}, 1, 1")
    A(f"  v_lshl_add_u32 v{vt2}, v{vt3}, 3, v{vt2}")
    for tau in range(4):
        A(f"  v_xor_b32 v{vt3}, {tau}, v{vt1}")
        A(f"  v_lshl_add_u32 v{vA+tau}, v{vt3}, 5, v{vt2}")
    A(f"  s_mul_i32 s{sT0}, s{sTB32}, 112")
    A(f"  s_lshr_b32 s{sT1}, s{sf0}, 4")
    A(f"  s_add_u32 s{sT0}, s{sT0}, s{sT1}")
    A(f"  s_lshl_b32 s{sT0}, s{sT0}, 10")
    A(f"  v_add_u32 v{vAct}, s{sT0}, v{vt0}")
    for st in range(1, AHEAD):
        A("  s_barrier")
        for _ in range(6): emit_load()
    vAE, vBE, vRo = vX+1, vX+2, vX+3
    A(f"  v_and_b32 v{vt1}, 3, v{vl}")
    A(f"  v_bfe_u32 v{vt2}, v{vl}, 2, 1")
    A(f"  v_lshl_add_u32 v{vt1}, v{vt2}, 3, v{vt1}")
    A(f"  v_bfe_u32 v{vt2}, v{vl}, 3, 1")
    A(f"  v_lshl_add_u32 v{vt1}, v{vt2}, 2, v{vt1}")
    A(f"  v_add_u32 v{vt1}, s{sf0}, v{vt1}")
    A(f"  v_bfe_u32 v{vt2}, v{vl}, 4, 1")
    A(f"  v_mul_u32_u24 v{vt2}, 1792, v{vt2}")
    A(f"  v_add_u32 v{vt1}, v{vt1}, v{vt2}")
    A(f"  v_lshlrev_b32 v{vAE}, 4, v{vt1}")
    A(f"  v_lshrrev_b32 v{vt2}, 5, v{vl}")
    A(f"  v_lshl_or_b32 v{vAE}, v{vt2}, 30, v{vAE}")
    A(f"  v_and_b32 v{vt1}, 31, v{vl}")
    A(f"  s_lshl_b32 s{sT0}, s{sTB32}, 5")
    A(f"  v_add_u32 v{vt1}, s{sT0}, v{vt1}")
    A(f"  v_lshlrev_b32 v{vRo}, 3, v{vt1}")
    A(f"  v_lshlrev_b32 v{vBE}, 4, v{vt1}")
    A(f"  v_lshl_or_b32 v{vBE}, v{vt2}, 30, v{vBE}")
    phase2_setup(A, locals())
    pre = phase2_preload_ops(locals())
    def dma_ok(p, q_done):
        if p < 4: return True
        st = (p-4)//2
        return st <= 5 and q_done >= 4*(st+2)-1
    def dma(q_done=None):
        if pre:
            p = NSLOT-len(pre)
            if q_done is not None and not dma_ok(p, q_done): return
            ops = pre.pop(0)
            for x in ops[:-1]: A(x)
            other_vm(ops[-1])
    def rd(q, tau):
        buf = q & 1
        return [f"  ds_read_b64_tr_b16 {vr(vAf+buf*16+tau*4+r*2,2)}, v{vA+tau} offset:{q*2048+r*512}" for r in range(2)]
    ST.stamp()
    def wait_stage(st):
        wait_vm(mark[st])
        A("  s_barrier")
    if PRIO:
        A(f"  s_cmp_lt_u32 s{sw}, 4")
        A(f"  s_cbranch_scc1 {name}_noprio")
        A("  s_setprio 1")
        A(f"{name}_noprio:")
    wait_stage(0)
    ST.stamp()
    for tau in range(4):
        for x in rd(0, tau): A(x)
    vFl = vX+4
    aE = 0
    import copy
    def emit_loop(grp):
        nonlocal_ = {}
        nout = 8
        slot = 0
        ext_idx = fl_idx = None
        for q in range(32):
            nxt = q+1 < 32
            if q == QFL:
                assert state['n'] == 48
                A(f"  s_and_b32 s{sT0}, s2, 7")
                A(f"  s_lshl_b32 s{sT0}, s{sT0}, 8")
                A(f"  s_add_u32 s{sT0}, s{sT0}, {8*256}")
                A(f"  s_cmp_eq_u32 s{sw}, 0")
                A(f"  s_cselect_b32 s{sT0}, s{sT0}, 0x4000")
                A(f"  v_mov_b32 v{vt1}, s{sT0}")
                fl_idx = other_vm(f"  buffer_load_dword v{vFl}, v{vt1}, {sr(sCNT,4)}, 0 offen sc1")
            if q == QCK:
                assert (q+1) % 4 == 0
                A(f"  s_cmp_lg_u32 s{sw}, 0")
                A(f"  s_cbranch_scc1 {name}_hok{grp}")
                wait_vm(fl_idx)
                A(f"  v_readfirstlane_b32 s{sT0}, v{vFl}")
                A(f"  s_mov_b32 s{sT1}, {SPIN}")
                A(f"{name}_hchk{grp}:")
                A(f"  s_cmp_ge_u32 s{sT0}, {NHELP}")
                A(f"  s_cbranch_scc1 {name}_hok{grp}")
                A("  s_sleep 2")
                A(f"  buffer_load_dword v{vFl}, v{vt1}, {sr(sCNT,4)}, 0 offen sc1")
                A("  s_waitcnt vmcnt(0)")
                A(f"  v_readfirstlane_b32 s{sT0}, v{vFl}")
                A(f"  s_sub_u32 s{sT1}, s{sT1}, 1")
                A(f"  s_cmp_lg_u32 s{sT1}, 0")
                A(f"  s_cbranch_scc1 {name}_hchk{grp}")
                A(f"{name}_hok{grp}:")
                ST.value(sT1, SPIN)
            if nxt and (q+1) % 4 == 0:
                st = (q+1)//4
                wait_stage(st)
                if (st in (2,4,6)) or (ALLST and st in (1,3,5,7)): ST.stamp()
            if q == QCK:
                srd(A, sX, pWS, WS_AEXT, 2*1792*16)
                for tau in range(4):
                    other_vm(f"  buffer_load_dwordx4 {ar(aE+4*tau,4)}, v{vAE}, {sr(sX,4)}, 0 offen offset:{256*tau} sc1")
                srd(A, sH, pWS, WS_BEXT, 2048*16)
                other_vm(f"  buffer_load_dwordx4 {ar(aE+16,4)}, v{vBE}, {sr(sH,4)}, 0 offen sc1")
                srd(A, sW, pWS, WS_RS, 2048*8)
                ext_idx = other_vm(f"  buffer_load_dwordx2 {vr(vRS,2)}, v{vRo}, {sr(sW,4)}, 0 offen sc1")
            if QPF > 0 and q == QPF:
                A(f"  s_lshr_b32 s{sT0}, s2, 3")
                A(f"  s_lshl_b32 s{sT0}, s{sT0}, 16")
                A(f"  v_lshlrev_b32 v{vt2}, 7, v0")
                other_vm(f"  buffer_load_dword v{vX}, v{vt2}, {sr(sWD,4)}, s{sT0} offen")
            buf = q & 1
            for tau in range(4):
                if W2:
                    if tau % 2 == 0:
                        A(f"  s_waitcnt lgkmcnt({nout-4})")
                    nout -= 2
                else:
                    A(f"  s_waitcnt lgkmcnt({nout-2})")
                    nout -= 2
                c = "0" if q == 0 else vr(vAcc+16*tau,16)
                A(f"  v_mfma_f32_32x32x16_bf16 {vr(vAcc+16*tau,16)}, {vr(vAf+buf*16+tau*4,4)}, {ar(4*q,4)}, {c}")
                if nxt:
                    for x in rd(q+1, tau): A(x)
                    nout += 2
                if (slot + grp) % SPACE == SPACE-1 and state['n'] < 48: emit_load()
                elif state['n'] == 48 and q >= QDMA and NSLOT-len(pre) < NIN and (slot % DSP) == DSP-1: dma(q)
                slot += 1
        return ext_idx
    if STAG:
        snap = (copy.deepcopy(state), copy.deepcopy(mark), list(pre), ST.n)
        A(f"  s_cmp_ge_u32 s{sw}, 4")
        A(f"  s_cbranch_scc1 {name}_loopB")
        e0 = emit_loop(0)
        endA = (copy.deepcopy(state), list(pre), ST.n)
        A(f"  s_branch {name}_loopEnd")
        A(f"{name}_loopB:")
        state.clear(); state.update(snap[0]); mark.clear(); mark.update(snap[1]); pre[:] = snap[2]; ST.n = snap[3]
        ext_idx = emit_loop(1)
        assert (state, pre, ST.n, ext_idx) == (endA[0], endA[1], endA[2], e0), (state, endA[0], len(pre), len(endA[1]), ext_idx, e0)
        A(f"{name}_loopEnd:")
    else:
        ext_idx = emit_loop(0)
    wait_vm(ext_idx)
    for tau in range(4):
        A(f"  v_mfma_f32_32x32x16_bf16 {vr(vAcc+16*tau,16)}, {ar(aE+4*tau,4)}, {ar(aE+16,4)}, {vr(vAcc+16*tau,16)}")
    if NOBAR:
        assert NPOST == 0 and NEPI <= NSLOT-len(pre), (NPOST, NEPI, len(pre))
        A("  s_nop 8")
    else:
        A("  s_barrier")
        A("  s_nop 7")
    ST.stamp()
    k1, sd2 = vRS, vRS+1
    for tau in range(4):
        g = vAcc+16*tau
        u = g+8
        E = vAf if (tau & 1) == 0 else vAf+16
        for r in range(0, 8, 2):
            A(f"  v_pk_mul_f32 {vr(E+r,2)}, {vr(g+r,2)}, {vr(k1,2)} op_sel_hi:[1,0]")
        if NSLOT-len(pre) < NEPI: dma()
        for r in range(8):
            A(f"  v_exp_f32 v{E+r}, v{E+r}")
        for r in range(0, 8, 2):
            A(f"  v_pk_mul_f32 {vr(u+r,2)}, {vr(g+r,2)}, {vr(u+r,2)}")
        for r in range(0, 8, 2):
            A(f"  v_pk_fma_f32 {vr(E+r,2)}, {vr(E+r,2)}, {vr(k1,2)}, {vr(k1,2)} op_sel:[0,1,1] op_sel_hi:[1,1,1]")
        if NSLOT-len(pre) < NEPI: dma()
        for r in range(8):
            A(f"  v_rcp_f32 v{E+r}, v{E+r}")
        if NSLOT-len(pre) < NEPI and NEPI > 8: dma()
        else: A("  s_nop 0")
        for r in range(0, 8, 2):
            A(f"  v_pk_mul_f32 {vr(u+r,2)}, {vr(u+r,2)}, {vr(E+r,2)}")
        for i in range(4):
            A(f"  v_cvt_pk_bf16_f32 v{E+8+i}, v{u+2*i}, v{u+2*i+1}")
        A(f"  buffer_store_dwordx4 {vr(E+8,4)}, v{vAct}, {sr(sACT,4)}, 0 offen offset:{tau*1024} sc1")
    npost = 0
    while pre and npost < NPOST:
        dma(); npost += 1
    A(f"  s_waitcnt vmcnt({npost})")
    A("  s_barrier")
    ST.stamp()
    A(f"  s_cmp_lg_u32 s{sw}, 0")
    A(f"  s_cbranch_scc1 {name}_arrd")
    A(f"  s_lshl_b32 s{sT0}, s{stb}, 8")
    A(f"  v_mov_b32 v{vt0}, s{sT0}")
    A(f"  v_mov_b32 v{vt1}, 1")
    A(f"  s_mov_b64 exec, 1")
    A(f"  buffer_atomic_add v{vt1}, v{vt0}, {sr(sCNT,4)}, 0 offen sc1")
    A(f"  s_mov_b64 exec, -1")
    A(f"{name}_arrd:")
    while pre: dma()
    if max(NIN, NEPI) < 28-NSLOT:
        A("  s_waitcnt vmcnt(0)")
        A("  s_barrier")
    A(f"  s_branch {name}_p2")
    A(f"{name}_helper:")
    gen_helper(A, locals())
    phase2_setup(A, locals())
    phase2_preload(A, locals())
    A("  s_waitcnt vmcnt(0)")
    A("  s_barrier")
    A(f"{name}_p2:")
    gen_phase2(A, locals())
    A(f"{name}_end:")
    ST.flush(2)
    A("  s_endpgm")
    return dict(name=name, grid=256, block=512, lds=LDS, nvgpr=256, accum=128)

P2 = dict(vWd=124, vA0=10, vB=3, vXO=4, vEXw=5, vEXr=9, vX1=112, vGB=116)
def phase2_setup(A, L):
    vl, vt0, vt1, vt2 = L['vl'], L['vt0'], L['vt1'], L['vt2']
    sT0, sT1, skq, stt, sdb, stb64, sDo, sLb, REG = (L[k] for k in "sT0 sT1 skq stt sdb stb64 sDo sLb REG".split())
    vWd = P2['vWd']
    A(f"  v_lshrrev_b32 v{vt0}, 3, v{vl}")
    A(f"  v_lshrrev_b32 v{vt1}, 1, v{vt0}")
    A(f"  v_lshrrev_b32 v{vt2}, 2, v{vl}")
    A(f"  v_xor_b32 v{vt1}, v{vt1}, v{vt2}")
    A(f"  v_and_b32 v{vt1}, 1, v{vt1}")
    A(f"  v_lshlrev_b32 v{vt1}, 6, v{vt1}")
    A(f"  v_and_b32 v{vt2}, 3, v{vl}")
    A(f"  v_lshl_add_u32 v{vt1}, v{vt2}, 4, v{vt1}")
    A(f"  v_lshl_add_u32 v{vWd}, v{vt0}, 10, v{vt1}")
    A(f"  s_mul_i32 s{sDo}, s{skq}, {28*16*1024}")
    A(f"  s_lshl_b32 s{sT0}, s{stt}, 13")
    A(f"  s_add_u32 s{sDo}, s{sDo}, s{sT0}")
    A(f"  s_lshl_b32 s{sT0}, s{sdb}, 7")
    A(f"  s_add_u32 s{sDo}, s{sDo}, s{sT0}")
    A(f"  s_lshl_b32 s{sLb}, s{skq}, 11")
    A(f"  s_lshl_b32 s{sT0}, s{stt}, 10")
    A(f"  s_add_u32 s{sLb}, s{sLb}, s{sT0}")

def phase2_preload_ops(L):
    NSLOT, sLb, sDo, sWD = L['NSLOT'], L['sLb'], L['sDo'], L['sWD']
    ops = []
    for p in range(NSLOT):
        o = [f"  s_add_u32 m0, s{sLb}, {UNIT[p]}"]
        o.append(f"  s_add_u32 s{sDo}, s{sDo}, 16384" if p else "  s_nop 0")
        o.append(f"  buffer_load_dwordx4 v{P2['vWd']}, {sr(sWD,4)}, s{sDo} offen lds")
        ops.append(o)
    return ops
def phase2_preload(A, L):
    for o in phase2_preload_ops(L):
        for x in o: A(x)

def bf16_split(A, x, hi, lo, tmp):
    A(f"  v_cvt_pk_bf16_f32 v{hi}, v{x}, v{x}")
    A(f"  v_lshlrev_b32 v{tmp}, 16, v{hi}")
    A(f"  v_sub_f32 v{tmp}, v{x}, v{tmp}")
    A(f"  v_cvt_pk_bf16_f32 v{lo}, v{tmp}, v{tmp}")
    A(f"  v_and_b32 v{hi}, 0xffff, v{hi}")
    A(f"  v_and_b32 v{lo}, 0xffff, v{lo}")

def lane0_atomic_inc(A, name, sCNT, idx_bytes, vt0, vt1):
    A(f"  v_mov_b32 v{vt0}, {idx_bytes}")
    A(f"  v_mov_b32 v{vt1}, 1")
    A(f"  s_mov_b64 exec, 1")
    A(f"  buffer_atomic_add v{vt1}, v{vt0}, {sr(sCNT,4)}, 0 offen sc1")
    A(f"  s_mov_b64 exec, -1")

def gen_helper(A, L):
    name = L['name']
    vl, vt0, vt1, vt2, vt3 = L['vl'], L['vt0'], L['vt1'], L['vt2'], L['vt3']
    sw, sm, skq, sT0, sT1, sT2, sT3 = (L[k] for k in "sw sm skq sT0 sT1 sT2 sT3".split())
    sW, sH, sX, sWD, sCNT, sACT, pWS, pWD = (L[k] for k in "sW sH sX sWD sCNT sACT pWS pWD".split())
    sh = 57
    RED, RED2 = 131072, 133120
    vXs = 16
    vWl = 48
    vMc = 112
    A(f"  s_sub_u32 s{sh}, s2, 224")
    A("  s_waitcnt lgkmcnt(0)")
    srd(A, sH, pWS, WS_X1, SZ2M)
    srd(A, sWD, pWD, 0, 1792*512*2)
    srd(A, sCNT, pWS, WS_CNT, 4096)
    A(f"  s_cmp_eq_u32 s{sm}, 0")
    A(f"  s_cselect_b32 s{sW}, s4, s6")
    A(f"  s_cselect_b32 s{sW+1}, s5, s7")
    A(f"  s_mov_b32 s{sW+2}, {512*1792*2}")
    A(f"  s_mov_b32 s{sW+3}, 0x20000")
    srd(A, sX, pWS, WS_ST1, 2048*8)
    A(f"  s_lshl_b32 s{sT0}, s{sh}, 9")
    A(f"  v_lshlrev_b32 v{vt1}, 3, v{vl}")
    A(f"  buffer_load_dword v126, v{vt1}, {sr(sX,4)}, s{sT0} offen offset:4")
    A(f"  s_lshl_b32 s{sT0}, s{sh}, 1")
    A(f"  s_add_u32 s{sT0}, s{sT0}, s{sm}")
    A(f"  s_lshl_b32 s{sT0}, s{sT0}, 15")
    A(f"  s_lshl_b32 s{sT1}, s{skq}, 13")
    A(f"  s_add_u32 s{sT0}, s{sT0}, s{sT1}")
    A(f"  v_lshlrev_b32 v{vt0}, 4, v{vl}")
    for i in range(8):
        if i == 4: A(f"  s_add_u32 s{sT0}, s{sT0}, 4096")
        A(f"  buffer_load_dwordx4 {vr(vXs+4*i,4)}, v{vt0}, {sr(sH,4)}, s{sT0} offen offset:{(i&3)*1024}")
    vBo, vW0, vW1 = 9, 10, 11
    vAh = 112
    srd(A, sX, pWS, WS_MODH, 3072*2)
    A(f"  v_and_b32 v{vt1}, 31, v{vl}")
    A(f"  v_lshrrev_b32 v{vt2}, 5, v{vl}")
    A(f"  v_lshlrev_b32 v{vBo}, 4, v{vt2}")
    A(f"  v_lshlrev_b32 v{vt2}, 10, v{vt1}")
    A(f"  v_sub_u32 v{vt2}, 4096, v{vt2}")
    A(f"  v_add_u32 v{vBo}, v{vBo}, v{vt2}")
    A(f"  v_cmp_lt_u32 vcc, 1, v{vt1}")
    A(f"  v_mov_b32 v{vt2}, 0x40000000")
    A(f"  s_lshl_b32 s{sT0}, s{sw}, 7")
    A(f"  v_cndmask_b32 v{vBo}, v{vBo}, v{vt2}, vcc")
    for qq in range(4):
        A(f"  buffer_load_dwordx4 {ar(4*qq,4)}, v{vBo}, {sr(sX,4)}, s{sT0} offen offset:{32*qq}")
    A(f"  v_lshrrev_b32 v{vt0}, 3, v{vl}")
    A(f"  v_bfe_u32 v{vt1}, v{vl}, 4, 1")
    A(f"  v_bfe_u32 v{vt2}, v{vl}, 1, 2")
    A(f"  v_xor_b32 v{vt1}, v{vt1}, v{vt2}")
    A(f"  v_and_b32 v{vt2}, 1, v{vl}")
    A(f"  v_lshlrev_b32 v{vt2}, 4, v{vt2}")
    A(f"  s_movk_i32 s{sT1}, 3584")
    A(f"  v_mad_u32_u24 v{vt0}, v{vt0}, s{sT1}, v{vt2}")
    A(f"  v_lshl_add_u32 v{vW0}, v{vt1}, 5, v{vt0}")
    A(f"  v_xor_b32 v{vt1}, 2, v{vt1}")
    A(f"  v_lshl_add_u32 v{vW1}, v{vt1}, 5, v{vt0}")
    A(f"  s_and_b32 s{sT1}, s{sh}, 1")
    A(f"  s_lshl_b32 s{sT1}, s{sT1}, 2")
    A(f"  s_lshr_b32 s{sT2}, s{sh}, 3")
    A(f"  s_add_u32 s60, s{sT1}, s{sT2}")
    A(f"  s_bfe_u32 s{sT1}, s{sh}, 0x20001")
    A(f"  s_mul_i32 s{sT1}, s{sT1}, 7")
    A(f"  s_min_u32 s{sT2}, s60, 6")
    A(f"  s_add_u32 s61, s{sT1}, s{sT2}")
    A(f"  s_lshl_b32 s{sT2}, s61, 7")
    A(f"  s_mul_i32 s{sT1}, s{sw}, {64*3584}")
    A(f"  s_add_u32 s{sT2}, s{sT2}, s{sT1}")
    A(f"  s_lshl_b32 s{sT3}, s{sw}, 13")
    srd(A, sW, 4, 0, 512*1792*2)
    srd(A, sACT, 6, 0, 512*1792*2)
    for ii in range(8):
        A(f"  s_add_u32 m0, s{sT3}, {ii*1024}")
        A("  s_nop 0")
        A(f"  buffer_load_dwordx4 v{vW0}, {sr(sW,4)}, s{sT2} offen lds")
        A(f"  s_add_u32 m0, s{sT3}, {65536+ii*1024}")
        A("  s_nop 0")
        A(f"  buffer_load_dwordx4 v{vW1}, {sr(sACT,4)}, s{sT2} offen lds")
        if ii < 7: A(f"  s_add_u32 s{sT2}, s{sT2}, {8*3584}")
    A(f"  v_bfe_u32 v{vt1}, v{vl}, 2, 2")
    A(f"  v_lshrrev_b32 v{vt2}, 5, v{vl}")
    A(f"  v_lshl_add_u32 v{vt2}, v{vt2}, 3, v{vt1}")
    A(f"  v_bfe_u32 v{vt3}, v{vl}, 4, 1")
    A(f"  v_lshlrev_b32 v{vt2}, 7, v{vt2}")
    A(f"  v_lshl_add_u32 v{vt2}, v{vt3}, 16, v{vt2}")
    A(f"  v_lshrrev_b32 v{vt1}, 1, v{vt1}")
    A(f"  v_lshl_or_b32 v{vt1}, v{vt3}, 1, v{vt1}")
    A(f"  v_and_b32 v{vt3}, 1, v{vl}")
    A(f"  v_lshl_add_u32 v{vt2}, v{vt3}, 4, v{vt2}")
    A(f"  v_bfe_u32 v{vt3}, v{vl}, 1, 1")
    A(f"  v_lshl_add_u32 v{vt2}, v{vt3}, 3, v{vt2}")
    A(f"  v_add_u32 v{vt2}, s{sT3}, v{vt2}")
    for tau in range(4):
        A(f"  v_xor_b32 v{vt3}, {tau}, v{vt1}")
        A(f"  v_lshl_add_u32 v{vAh+tau}, v{vt3}, 5, v{vt2}")
    s1, s2 = 12, 13
    pa, pb, xx = 48, 50, 52
    for r in (pa, pa+1, pb, pb+1): A(f"  v_mov_b32 v{r}, 0")
    A(f"  s_waitcnt vmcnt({4+16})")
    if not L['ALLST']: L['ST'].stamp()
    for i in range(32):
        t = xx + 2*(i & 1)
        A(f"  v_lshlrev_b32 v{t}, 16, v{vXs+i}")
        A(f"  v_and_b32 v{t+1}, 0xffff0000, v{vXs+i}")
        A(f"  v_pk_add_f32 {vr(pa,2)}, {vr(pa,2)}, {vr(t,2)}")
        A(f"  v_pk_fma_f32 {vr(pb,2)}, {vr(t,2)}, {vr(t,2)}, {vr(pb,2)}")
    A(f"  v_add_f32 v{s1}, v{pa}, v{pa+1}")
    A(f"  v_add_f32 v{s2}, v{pb}, v{pb+1}")
    A("  s_nop 1")
    A(f"  v_permlane32_swap_b32 v{s1}, v{s2}")
    A("  s_nop 1")
    A(f"  v_add_f32 v{s1}, v{s1}, v{s2}")
    A(f"  s_lshl_b32 s{sT0}, s{sm}, 2")
    A(f"  s_add_u32 s{sT0}, s{sT0}, s{skq}")
    A(f"  s_lshl_b32 s{sT0}, s{sT0}, 8")
    A(f"  s_add_u32 s{sT0}, s{sT0}, {RED}")
    A(f"  v_lshlrev_b32 v{vt0}, 2, v{vl}")
    A(f"  v_add_u32 v{vt0}, s{sT0}, v{vt0}")
    A(f"  ds_write_b32 v{vt0}, v{s1} offset:0")
    vAf, vAcc = 16, 48
    A("  s_waitcnt vmcnt(0)")
    if not L['ALLST']: L['ST'].stamp()
    def hrd(qq):
        for tau in range(4):
            for r in range(2):
                A(f"  ds_read_b64_tr_b16 {vr(vAf+16*(qq&1)+tau*4+r*2,2)}, v{vAh+tau} offset:{qq*2048+r*512}")
    hrd(0)
    for qq in range(4):
        if qq < 3:
            hrd(qq+1)
            A("  s_waitcnt lgkmcnt(8)")
        else:
            A("  s_waitcnt lgkmcnt(0)")
        for tau in range(4):
            c = "0" if qq == 0 else vr(vAcc+16*tau,16)
            A(f"  v_mfma_f32_32x32x16_bf16 {vr(vAcc+16*tau,16)}, {ar(4*qq,4)}, {vr(vAf+16*(qq&1)+tau*4,4)}, {c}")
    if not L['ALLST']: L['ST'].stamp()
    A(f"  s_lshl_b32 s{sT0}, s{sw}, 10")
    A(f"  s_add_u32 s{sT0}, s{sT0}, {RED2}")
    A(f"  v_lshlrev_b32 v{vt0}, 3, v{vl}")
    A(f"  v_add_u32 v{vt0}, s{sT0}, v{vt0}")
    A(f"  s_mov_b32 s58, -1")
    A(f"  s_mov_b32 s59, 0")
    A("  s_nop 7")
    A(f"  s_mov_b64 exec, s[58:59]")
    for tau in range(4):
        A(f"  ds_write_b64 v{vt0}, {vr(vAcc+16*tau,2)} offset:{tau*256}")
    A(f"  s_mov_b64 exec, -1")
    A("  s_waitcnt lgkmcnt(0)")
    A("  s_barrier")
    if not L['ALLST']: L['ST'].stamp()
    U = 16
    A(f"  s_cmp_eq_u32 s{sw}, 0")
    A(f"  s_cbranch_scc1 {name}_hstat")
    A(f"  s_cmp_eq_u32 s{skq}, 1")
    A(f"  s_cbranch_scc0 {name}_hdone")
    A(f"  s_lshl_b32 s{sT0}, s{sm}, 9")
    A(f"  s_add_u32 s{sT0}, s{sT0}, {RED2}")
    A(f"  v_lshlrev_b32 v{vt0}, 3, v{vl}")
    A(f"  v_add_u32 v{vt0}, s{sT0}, v{vt0}")
    R = 48
    for w8 in range(8):
        A(f"  ds_read_b64 {vr(R+2*w8,2)}, v{vt0} offset:{w8*1024}")
    A("  s_waitcnt lgkmcnt(0)")
    for k in range(1,8):
        A(f"  v_add_f32 v{R}, v{R}, v{R+2*k}")
        A(f"  v_add_f32 v{R+1}, v{R+1}, v{R+2*k+1}")
    A(f"  v_mov_b32 v{U}, v{R}")
    A(f"  v_mov_b32 v{U+4}, v{R+1}")
    bf16_split(A, U, U+8, U+9, U+10)
    bf16_split(A, U+4, U+11, U+12, U+10)
    O = U+16
    A(f"  v_lshl_or_b32 v{O}, v{U+8}, 16, v{U+8}")
    A(f"  v_mov_b32 v{O+1}, v{U+9}")
    A(f"  v_lshl_or_b32 v{O+2}, v{U+11}, 16, v{U+11}")
    A(f"  v_mov_b32 v{O+3}, v{U+12}")
    srd(A, sX, pWS, WS_AEXT, 2*1792*16)
    A(f"  s_cmp_ge_u32 s60, 7")
    A(f"  s_cbranch_scc1 {name}_hdone")
    A(f"  v_and_b32 v{vt1}, 3, v{vl}")
    A(f"  v_bfe_u32 v{vt2}, v{vl}, 2, 1")
    A(f"  v_lshl_add_u32 v{vt1}, v{vt2}, 3, v{vt1}")
    A(f"  v_bfe_u32 v{vt2}, v{vl}, 3, 1")
    A(f"  v_lshl_add_u32 v{vt1}, v{vt2}, 2, v{vt1}")
    A(f"  v_lshrrev_b32 v{vt2}, 5, v{vl}")
    A(f"  v_lshl_add_u32 v{vt1}, v{vt2}, 4, v{vt1}")
    A(f"  v_bfe_u32 v{vt2}, v{vl}, 4, 1")
    A(f"  v_mul_u32_u24 v{vt2}, 1792, v{vt2}")
    A(f"  v_add_u32 v{vt1}, v{vt1}, v{vt2}")
    A(f"  s_lshl_b32 s{sT0}, s{sm}, 5")
    A(f"  s_lshl_b32 s{sT1}, s61, 6")
    A(f"  s_add_u32 s{sT0}, s{sT0}, s{sT1}")
    A(f"  s_lshl_b32 s{sT0}, s{sT0}, 4")
    A(f"  v_lshlrev_b32 v{vt0}, 4, v{vt1}")
    A(f"  buffer_store_dwordx4 {vr(O,4)}, v{vt0}, {sr(sX,4)}, s{sT0} offen sc1")
    A(f"  s_branch {name}_hdone")
    A(f"{name}_hstat:")
    A(f"  v_lshrrev_b32 v{vt0}, 5, v{vl}")
    A(f"  v_lshlrev_b32 v{vt0}, 10, v{vt0}")
    A(f"  v_and_b32 v{vt1}, 31, v{vl}")
    A(f"  v_lshl_add_u32 v{vt0}, v{vt1}, 2, v{vt0}")
    A(f"  v_add_u32 v{vt0}, {RED}, v{vt0}")
    for p in range(4):
        A(f"  ds_read_b32 v{U+p}, v{vt0} offset:{p*256}")
        A(f"  ds_read_b32 v{U+4+p}, v{vt0} offset:{p*256+128}")
    A("  s_waitcnt lgkmcnt(0)")
    for b in (U, U+4):
        A(f"  v_add_f32 v{b}, v{b}, v{b+1}")
        A(f"  v_add_f32 v{b+2}, v{b+2}, v{b+3}")
        A(f"  v_add_f32 v{b}, v{b}, v{b+2}")
    A(f"  s_mov_b32 s{sT0}, 0x3b000000")
    A(f"  s_mov_b32 s{sT1}, 0x3727c5ac")
    A(f"  v_mul_f32 v{U}, s{sT0}, v{U}")
    A(f"  v_mul_f32 v{U+4}, s{sT0}, v{U+4}")
    A(f"  v_fma_f32 v{U+4}, -v{U}, v{U}, v{U+4}")
    A(f"  v_max_f32 v{U+4}, 0, v{U+4}")
    A(f"  v_add_f32 v{U+4}, s{sT1}, v{U+4}")
    A(f"  v_sqrt_f32 v{U+5}, v{U+4}")
    A(f"  v_rsq_f32 v{U+6}, v{U+4}")
    A(f"  v_sub_f32 v{U}, v126, v{U}")
    A(f"  s_mov_b32 s{sT0}, 0xbfb8aa3b")
    A(f"  v_mul_f32 v{U+2}, s{sT0}, v{U+6}")
    A(f"  v_mov_b32 v{U+3}, v{U+4}")
    bf16_split(A, U, U+8, U+9, U+10)
    bf16_split(A, U+5, U+11, U+12, U+10)
    O = U+16
    A(f"  v_lshl_or_b32 v{O}, v{U+9}, 16, v{U+8}")
    A(f"  v_mov_b32 v{O+1}, v{U+8}")
    A(f"  v_lshl_or_b32 v{O+2}, v{U+12}, 16, v{U+11}")
    A(f"  v_mov_b32 v{O+3}, v{U+11}")
    srd(A, sX, pWS, WS_BEXT, 2048*16)
    srd(A, sH, pWS, WS_RS, 2048*8)
    A(f"  s_lshl_b32 s{sT0}, s{sh}, 10")
    A(f"  v_lshlrev_b32 v{vt0}, 4, v{vl}")
    A(f"  buffer_store_dwordx4 {vr(O,4)}, v{vt0}, {sr(sX,4)}, s{sT0} offen sc1")
    A(f"  s_lshl_b32 s{sT0}, s{sh}, 9")
    A(f"  v_lshlrev_b32 v{vt0}, 3, v{vl}")
    A(f"  buffer_store_dwordx2 {vr(U+2,2)}, v{vt0}, {sr(sH,4)}, s{sT0} offen sc1")
    A(f"{name}_hdone:")
    if not L['ALLST']: L['ST'].stamp()
    A("  s_waitcnt vmcnt(0)")
    A("  s_barrier")
    A(f"  s_cmp_lg_u32 s{sw}, 0")
    A(f"  s_cbranch_scc1 {name}_hsig")
    A(f"  v_lshlrev_b32 v{vt0}, 8, v{vl}")
    A(f"  v_add_u32 v{vt0}, {8*256}, v{vt0}")
    A(f"  v_mov_b32 v{vt1}, 1")
    A(f"  s_mov_b64 exec, 0xff")
    A(f"  buffer_atomic_add v{vt1}, v{vt0}, {sr(sCNT,4)}, 0 offen sc1")
    A(f"  s_mov_b64 exec, -1")
    A(f"{name}_hsig:")
    if L['QPF'] == 0:
        A(f"  s_lshr_b32 s{sT0}, s{sh}, 3")
        A(f"  s_mul_i32 s{sT0}, s{sT0}, 458752")
        A(f"  v_lshlrev_b32 v{vt0}, 7, v0")
        for i in range(7):
            A(f"  buffer_load_dword v{16+i}, v{vt0}, {sr(sWD,4)}, s{sT0} offen")
            if i < 6: A(f"  s_add_u32 s{sT0}, s{sT0}, 65536")

def gen_phase2(A, L):
    name, ST, NSLOT, SPIN, REG = L['name'], L['ST'], L['NSLOT'], L['SPIN'], L['REG']
    vl, vt0, vt1, vt2 = L['vl'], L['vt0'], L['vt1'], L['vt2']
    sw, skq, stt, sdb, stb64, sT0, sT1, sT2, sLb, sDo = (L[k] for k in "sw skq stt sdb stb64 sT0 sT1 sT2 sLb sDo".split())
    sW, sH, sX, sWD, sCNT, sACT, pWS, pOUT = (L[k] for k in "sW sH sX sWD sCNT sACT pWS pOUT".split())
    vWd, vA0, vB, vXO, vEXw, vEXr, vX1, vGB = (P2[k] for k in "vWd vA0 vB vXO vEXw vEXr vX1 vGB".split())
    vt0, vt1, vt2 = 6, 7, 8
    vAf, vAcc = 16, 48
    A(f"  v_lshrrev_b32 v{vt0}, 5, v{vl}")
    A(f"  v_lshlrev_b32 v{vt0}, 3, v{vt0}")
    A(f"  v_bfe_u32 v{vt1}, v{vl}, 2, 2")
    A(f"  v_add_u32 v{vt0}, v{vt0}, v{vt1}")
    A(f"  v_lshlrev_b32 v{vA0}, 7, v{vt0}")
    A(f"  v_lshrrev_b32 v{vt1}, 1, v{vt1}")
    A(f"  v_lshlrev_b32 v{vt1}, 6, v{vt1}")
    A(f"  v_and_b32 v{vt0}, 1, v{vl}")
    A(f"  v_lshlrev_b32 v{vt0}, 5, v{vt0}")
    A(f"  v_bfe_u32 v{vt2}, v{vl}, 1, 1")
    A(f"  v_lshl_add_u32 v{vt0}, v{vt2}, 3, v{vt0}")
    A(f"  v_bfe_u32 v{vt2}, v{vl}, 4, 1")
    A(f"  v_lshl_add_u32 v{vt0}, v{vt2}, 4, v{vt0}")
    A(f"  v_add_u32 v{vA0}, v{vA0}, v{vt0}")
    A(f"  s_lshl_b32 s{sT0}, s{skq}, 11")
    A(f"  v_add_u32 v{vA0}, s{sT0}, v{vA0}")
    A(f"  v_xor_b32 v{vt2}, 64, v{vt1}")
    A(f"  v_add_u32 v{vA0+1}, v{vA0}, v{vt2}")
    A(f"  v_add_u32 v{vA0}, v{vA0}, v{vt1}")
    for blk in (1, 2):
        for tau in range(2):
            A(f"  v_add_u32 v{vA0+2*blk+tau}, {65536*blk}, v{vA0+tau}")
    def trd(dst, p, tau, r, agpr=False):
        u = UNIT[p]
        reg = (ar if agpr else vr)(dst, 2)
        return f"  ds_read_b64_tr_b16 {reg}, v{vA0+2*(u>>16)+tau} offset:{(u & 0xffff)+r*512}"
    NREG = 28-NSLOT
    STG = [(32,False),(40,False),(80,False),(88,False),(96,False),(104,False),(112,True),(120,True)]
    for kk in range(NREG):
        base, ag = STG[kk]
        for tau in range(2):
            for r in range(2):
                A(trd(base+4*tau+2*r, kk, tau, r, ag))
        if kk % 3 == 2: A("  s_waitcnt lgkmcnt(4)")
    A("  s_waitcnt lgkmcnt(0)")
    A("  s_barrier")
    for p in range(NREG):
        A(f"  s_add_u32 m0, s{sLb}, {UNIT[p]}")
        A(f"  s_add_u32 s{sDo}, s{sDo}, 16384")
        A(f"  buffer_load_dwordx4 v{vWd}, {sr(sWD,4)}, s{sDo} offen lds")
    A(f"  s_lshl_b32 s{sT0}, s{stb64}, 1")
    A(f"  s_add_u32 s{sT2}, s{sT0}, s{stt}")
    A(f"  s_mul_i32 s{sT0}, s{sT2}, 112")
    A(f"  s_mul_i32 s{sT1}, s{skq}, 28")
    A(f"  s_add_u32 s{sT0}, s{sT0}, s{sT1}")
    A(f"  s_lshl_b32 s{sT0}, s{sT0}, 10")
    A(f"  v_lshlrev_b32 v{vt0}, 4, v{vl}")
    A(f"  v_add_u32 v{vB}, s{sT0}, v{vt0}")
    A(f"  s_lshl_b32 s{sT0}, s{stt}, 16")
    A(f"  s_add_u32 s{sT0}, s{sT0}, 16384")
    A(f"  s_lshl_b32 s{sT1}, s{skq}, 11")
    A(f"  s_add_u32 s{sT1}, s{sT1}, s{sT0}")
    A(f"  v_add_u32 v{vEXw}, s{sT1}, v{vt0}")
    A(f"  s_lshl_b32 s{sT1}, s{skq}, 13")
    A(f"  s_add_u32 s{sT1}, s{sT1}, s{sT0}")
    A(f"  v_add_u32 v{vEXr}, s{sT1}, v{vt0}")
    A(f"  s_lshr_b32 s{sT0}, s{skq}, 1")
    A(f"  s_lshl_b32 s{sT0}, s{sT0}, 5")
    A(f"  s_and_b32 s{sT1}, s{skq}, 1")
    A(f"  s_lshl_b32 s{sT1}, s{sT1}, 3")
    A(f"  s_add_u32 s{sT0}, s{sT0}, s{sT1}")
    A(f"  s_lshl_b32 s{sT1}, s{sdb}, 6")
    A(f"  s_add_u32 s{sT0}, s{sT0}, s{sT1}")
    A(f"  v_lshrrev_b32 v{vt1}, 5, v{vl}")
    A(f"  v_lshlrev_b32 v{vt1}, 4, v{vt1}")
    A(f"  v_add_u32 v{vt1}, s{sT0}, v{vt1}")
    A(f"  v_and_b32 v{vt0}, 31, v{vl}")
    A(f"  s_lshl_b32 s{sT1}, s{sT2}, 15")
    A(f"  v_lshrrev_b32 v{vt2}, 4, v{vt1}")
    A(f"  v_lshlrev_b32 v{vt2}, 10, v{vt2}")
    A(f"  v_lshl_add_u32 v{vt2}, v{vt0}, 4, v{vt2}")
    A(f"  v_bfe_u32 v{vXO}, v{vt1}, 3, 1")
    A(f"  v_lshl_add_u32 v{vt2}, v{vXO}, 9, v{vt2}")
    srd(A, sH, pWS, WS_X1, SZ2M)
    A(f"  buffer_load_dwordx4 {vr(vX1,4)}, v{vt2}, {sr(sH,4)}, s{sT1} offen")
    srd(A, sX, pWS, WS_MOD + 5*2048, 2048)
    A(f"  v_lshlrev_b32 v{vt2}, 2, v{vt1}")
    A(f"  buffer_load_dwordx4 {vr(vGB,4)}, v{vt2}, {sr(sX,4)}, 0 offen")
    A(f"  buffer_load_dwordx4 {vr(vGB+4,4)}, v{vt2}, {sr(sX,4)}, 0 offen offset:16")
    A(f"  s_lshl_b32 s{sT1}, s{sT2}, 15")
    A(f"  v_lshlrev_b32 v{vXO}, 10, v{vt0}")
    A(f"  v_lshl_add_u32 v{vXO}, v{vt1}, 1, v{vXO}")
    A(f"  v_add_u32 v{vXO}, s{sT1}, v{vXO}")
    srd(A, sACT, pWS, WS_ACT, SZ_ACT)
    srd(A, sW, pOUT, 0, SZ2M)
    A(f"  s_lshr_b32 s{sT0}, s{stb64}, 2")
    A(f"  s_lshl_b32 s{sT0}, s{sT0}, 8")
    A(f"  s_cmp_eq_u32 s{sw}, 0")
    A(f"  s_cselect_b32 s{sT0}, s{sT0}, 0x4000")
    A(f"  v_mov_b32 v{vt0}, s{sT0}")
    if L['EPOLL']:
        A(f"  buffer_load_dword v125, v{vt0}, {sr(sCNT,4)}, 0 offen sc1")
    A("  s_waitcnt vmcnt(0)")
    A(f"  s_cmp_lg_u32 s{sw}, 0")
    A(f"  s_cbranch_scc1 {name}_s3w")
    if L['EPOLL']:
        A(f"  v_readfirstlane_b32 s{sT0}, v125")
        A(f"  s_mov_b32 s{sT1}, {SPIN}")
        A(f"  s_cmp_ge_u32 s{sT0}, 28")
        A(f"  s_cbranch_scc1 {name}_s3w")
    poll_ge(A, f"{name}_s3", sCNT, vt0, [125, 126, 127, 7], 28, sT0, sT1, SPIN, L['PSLEEP'])
    A(f"{name}_s3w:")
    ST.value(sT1, SPIN)
    A("  s_barrier")
    ST.stamp()
    A(f"  s_mov_b32 s{sT0}, 0")
    vm = dict(n=0)
    bidx = {}
    def bload():
        kk = len(bidx)
        if kk >= 28: return
        A(f"  buffer_load_dwordx4 {ar(4*kk,4)}, v{vB}, {sr(sACT,4)}, s{sT0} offen offset:{(kk&3)*1024} sc1")
        if (kk & 3) == 3: A(f"  s_add_u32 s{sT0}, s{sT0}, 4096")
        vm['n'] += 1
        bidx[kk] = vm['n']
    def rd(kk):
        if kk < NREG: return []
        slot = kk % NSLOT
        buf = kk & 1
        return [trd(vAf+buf*8+tau*4+r*2, slot, tau, r) for tau in range(2) for r in range(2)]
    B0 = L['B0']; BR = L['BR']
    for _ in range(B0): bload()
    for kk in range(28):
        if kk == 22: A("  s_barrier")
        nx = rd(kk+1) if kk+1 < 28 else []
        for x in nx: A(x)
        assert kk in bidx, kk
        A(f"  s_waitcnt vmcnt({vm['n']-bidx[kk]})")
        if kk >= NREG:
            A(f"  s_waitcnt lgkmcnt({len(nx)})")
        buf = kk & 1
        for tau in range(2):
            c = "0" if kk == 0 else vr(vAcc+16*tau,16)
            if kk < NREG:
                base, ag = STG[kk]
                aop = (ar if ag else vr)(base+4*tau, 4)
            else:
                aop = vr(vAf+buf*8+tau*4,4)
            A(f"  v_mfma_f32_32x32x16_bf16 {vr(vAcc+16*tau,16)}, {aop}, {ar(4*kk,4)}, {c}")
            if tau < BR: bload()
    ST.stamp()
    vU = 80
    for i in range(4):
        A(f"  v_lshlrev_b32 v{vU+2*i}, 16, v{vX1+i}")
        A(f"  v_and_b32 v{vU+2*i+1}, 0xffff0000, v{vX1+i}")
    A("  s_nop 4")
    for o in range(4):
        for a in range(2):
            A(f"  ds_write_b128 v{vEXw}, {vr(vAcc+16*(o>>1)+8*(o&1)+4*a,4)} offset:{o*8192+a*1024}")
    A("  s_waitcnt lgkmcnt(0)")
    A("  s_barrier")
    vT = 16
    for s in range(4):
        for a in range(2):
            A(f"  ds_read_b128 {vr(vT+8*s+4*a,4)}, v{vEXr} offset:{s*2048+a*1024}")
    A("  s_waitcnt lgkmcnt(4)")
    for r in range(0, 8, 2):
        A(f"  v_pk_add_f32 {vr(vT+r,2)}, {vr(vT+r,2)}, {vr(vT+8+r,2)}")
    A("  s_waitcnt lgkmcnt(0)")
    for r in range(0, 8, 2):
        A(f"  v_pk_add_f32 {vr(vT+16+r,2)}, {vr(vT+16+r,2)}, {vr(vT+24+r,2)}")
    for r in range(0, 8, 2):
        A(f"  v_pk_add_f32 {vr(vT+r,2)}, {vr(vT+r,2)}, {vr(vT+16+r,2)}")
    for r in range(0, 8, 2):
        A(f"  v_pk_fma_f32 {vr(vT+r,2)}, {vr(vT+r,2)}, {vr(vGB+r,2)}, {vr(vU+r,2)}")
    for i in range(4):
        A(f"  v_cvt_pk_bf16_f32 v{vU+i}, v{vT+2*i}, v{vT+2*i+1}")
    A(f"  buffer_store_dwordx4 {vr(vU,4)}, v{vXO}, {sr(sW,4)}, 0 offen")
```
